```python
import torch

def _softmax(x, axis=-1):
    return torch.softmax(x, dim=axis)

def _gelu(x):
    return torch.nn.functional.gelu(x, approximate='tanh')

def _silu(x):
    return torch.nn.functional.silu(x)

def _sigmoid(x):
    return torch.sigmoid(x)

def _layernorm(x, axis=-1, eps=1e-05):
    m = x.mean(dim=axis, keepdim=True)
    v = x.var(dim=axis, keepdim=True, unbiased=False)
    return (x - m) / torch.sqrt(v + eps)

def _scatter_add(tgt, idx, src, axis=0):
    return tgt.clone().index_add_(axis, idx, src)

def _segment_sum(src, seg, n):
    out = torch.zeros((n,) + src.shape[1:], dtype=src.dtype)
    return out.index_add_(0, seg, src)

def _pad(x, pw):
    flat = tuple((v for pair in reversed(pw) for v in pair))
    return torch.nn.functional.pad(x, flat)
kernel_name = 'recurrent_scan__softmax_full_mha__mixer_gmlp__prompt'

def setup_inputs():

    _w = lambda a: (lambda t: t.to(torch.bfloat16) if t.is_floating_point() else t)(torch.as_tensor(a))

    def _A_setup():
        B, S, D = (1, 2048, 1024)
        return {'x': _w((lambda *s: torch.randn(*s, dtype=torch.bfloat16) * 0.05)(B, S, D)), 'wqkv': _w((lambda *s: torch.randn(*s, dtype=torch.bfloat16) * 0.05)(D, 3 * D)), 'wo': _w((lambda *s: torch.randn(*s, dtype=torch.bfloat16) * 0.05)(D, D))}
    _A_in = _A_setup()

    def _B_setup():
        B, S, D, F = (1, 2048, 1024, 3584)
        Fh = F // 2
        return {'x': _w((lambda *s: torch.randn(*s, dtype=torch.bfloat16) * 0.05)(B, S, D)), 'w_in': _w((lambda *s: torch.randn(*s, dtype=torch.bfloat16) * 0.8)(D, 2 * Fh)), 'w_sp': _w(0.01 * (lambda *s: torch.randn(*s, dtype=torch.bfloat16) * 0.8)(S, S)), 'b_sp': _w(1.0 + 0.01 * (lambda *s: torch.randn(*s, dtype=torch.bfloat16) * 0.05)(S)), 'w_out': _w((lambda *s: torch.randn(*s, dtype=torch.bfloat16) * 0.05)(Fh, D))}
    _B_in = _B_setup()
    return {'A_x': _A_in['x'], 'A_wqkv': _A_in['wqkv'], 'A_wo': _A_in['wo'], 'B_x': _B_in['x'], 'B_w_in': _B_in['w_in'], 'B_w_sp': _B_in['w_sp'], 'B_b_sp': _B_in['b_sp'], 'B_w_out': _B_in['w_out']}

def reference(A_x, A_wqkv, A_wo, B_x, B_w_in, B_w_sp, B_b_sp, B_w_out):

    def _A_ref(x, wqkv, wo):
        B, S, D = x.shape
        H = 32
        Dh = D // H
        qkv = (lambda x, *d: x.permute(*d))((x @ wqkv).reshape(B, S, 3, H, Dh), 2, 0, 3, 1, 4)
        q, k, v = (qkv[0], qkv[1], qkv[2])
        scale = Dh ** (-0.5)
        scores = torch.einsum('bhqd,bhkd->bhqk', q, k) * scale
        p = _softmax(scores, axis=-1)
        o = torch.einsum('bhqk,bhkd->bhqd', p, v)
        return (lambda x, *d: x.permute(*d))(o, 0, 2, 1, 3).reshape(B, S, D) @ wo

    def _B_ref(x, w_in, w_sp, b_sp, w_out):
        B, S, D = x.shape
        F = w_in.shape[-1]
        Fh = F // 2
        z = _gelu(torch.einsum('bsd,df->bsf', x, w_in))
        z1 = z[..., :Fh].clone()
        z2 = _layernorm(z[..., Fh:], axis=-1)
        g = torch.einsum('ts,bsf->btf', w_sp, z2) + b_sp[None, :, None]
        return torch.einsum('bsf,fd->bsd', z1 * g, w_out)
    x = A_x
    xn = _layernorm(x, axis=-1)
    s = _A_ref(xn, A_wqkv, A_wo)
    g = _silu(_B_ref(xn, B_w_in, B_w_sp, B_b_sp, B_w_out))
    return x + s * g
```

```python
import re

REG_RE = re.compile(r'^(-|abs\()?([vas])(?:(\d+)|\[(\d+):(\d+)\])\)?$')

def regs_of(tok):
    tok = tok.strip()
    if tok.startswith('-'): tok = tok[1:]
    if tok.startswith('|') and tok.endswith('|'): tok = tok[1:-1]
    if tok.startswith('abs(') and tok.endswith(')'): tok = tok[4:-1]
    if tok in ('vcc',): return [('x','vcc')]
    if tok in ('vcc_lo','vcc_hi'): return [('x','vcc')]
    if tok in ('exec','exec_lo','exec_hi'): return [('x','exec')]
    if tok == 'm0': return [('x','m0')]
    m = re.match(r'^([vas])(\d+)$', tok)
    if m: return [(m.group(1), int(m.group(2)))]
    m = re.match(r'^([vas])\[(\d+):(\d+)\]$', tok)
    if m: return [(m.group(1), i) for i in range(int(m.group(2)), int(m.group(3))+1)]
    return []

TRANS = ('v_exp_f32','v_log_f32','v_rcp_f32','v_rsq_f32','v_sqrt_f32','v_sin_f32','v_cos_f32','v_rcp_iflag_f32')

class Ins:
    __slots__=('text','op','ops','mods','w','r','kind','passes','srcC','srcAB','isdpp','lineno')
    def __init__(self, text):
        self.text = text
        t = text.split(';')[0].strip()
        parts = t.split(None,1)
        self.op = parts[0]
        rest = parts[1] if len(parts)>1 else ''
        ops=[]; cur=''; depth=0
        for ch in rest:
            if ch in '[(': depth+=1
            if ch in '])': depth-=1
            if ch==',' and depth==0: ops.append(cur.strip()); cur=''
            else: cur+=ch
        if cur.strip(): ops.append(cur.strip())
        mods=''
        if ops:
            last = ops[-1].split(None,1)
            ops[-1]=last[0]
            if len(last)>1: mods=last[1]
        self.ops=ops; self.mods=mods
        self.w=[]; self.r=[]; self.passes=0; self.srcC=[]; self.srcAB=[]
        op=self.op
        base = re.sub(r'_(e32|e64|dpp|sdwa)$','',op)
        self.isdpp = op.endswith('_dpp') or 'quad_perm' in mods or 'row_' in mods
        R=lambda i: regs_of(ops[i]) if i<len(ops) else []
        allr=lambda a: [x for i in range(a,len(ops)) for x in regs_of(ops[i])]
        if base.startswith('v_mfma') or base.startswith('v_smfmac'):
            self.kind='mfma'
            self.passes = 8 if ('32x32' in base) else 4
            self.w=R(0); self.srcAB=R(1)+R(2)
            if base.startswith('v_smfmac'):
                self.srcC=R(0); self.srcAB+=R(3)
            else: self.srcC=R(3)
            self.r=self.srcAB+self.srcC
        elif base.startswith('v_'):
            self.kind='trans' if base in TRANS else 'valu'
            if base.startswith('v_cmp'):
                self.w=R(0); self.r=allr(1)
                if base.startswith('v_cmpx'): self.w=self.w+[('x','exec')]
            elif base.startswith('v_permlane') and 'swap' in base:
                self.w=R(0)+R(1); self.r=R(0)+R(1); self.kind='permlane'
            elif base in ('v_readfirstlane_b32','v_readlane_b32'):
                self.w=R(0); self.r=allr(1); self.kind='readlane'
            elif base in ('v_fmac_f32','v_dot2c_f32_bf16','v_pk_fmac_f16','v_writelane_b32'):
                self.w=R(0); self.r=allr(0)
            elif base in ('v_add_co_u32','v_sub_co_u32','v_addc_co_u32','v_subb_co_u32','v_mad_u64_u32'):
                self.w=R(0)+R(1); self.r=allr(2)
            elif base=='v_nop':
                pass
            else:
                self.w=R(0); self.r=allr(1)
                if self.isdpp: self.r=self.r+R(0)
        elif op.startswith('ds_'):
            self.kind='ds'
            if op.startswith('ds_read') or op.startswith('ds_bpermute') or op.startswith('ds_permute') or op.startswith('ds_swizzle') or '_rtn' in op:
                self.w=R(0); self.r=allr(1)
            else:
                self.r=allr(0); self.kind='dsw'
        elif op.startswith('buffer_') or op.startswith('global_'):
            islds = bool(re.search(r'\blds\b', mods)) or '_lds_' in op
            if op in ('buffer_inv','buffer_wbl2'):
                self.kind='vmem_other'
            elif islds:
                self.kind='dma'; self.r=allr(0)+[('x','m0')]
            elif '_load' in op:
                self.kind='vload'; self.w=R(0); self.r=allr(1)
            elif '_store' in op:
                self.kind='vstore'; self.r=allr(0)
            elif '_atomic' in op:
                self.kind='vatomic'
                ret = 'sc0' in mods
                if op.startswith('buffer_'):
                    self.r=allr(0)
                    if ret: self.w=R(0)
                else:
                    if ret: self.w=R(0); self.r=allr(1)
                    else: self.r=allr(0)
            else: raise Exception('unk vmem '+text)
        elif op.startswith('s_'):
            self.kind='salu'
            if op.startswith('s_load') or op.startswith('s_buffer_load') or op in ('s_memtime','s_memrealtime'):
                self.kind='smem'; self.w=R(0); self.r=allr(1)
            elif op.startswith('s_cmp') or op.startswith('s_bitcmp'):
                self.r=allr(0)
            elif op in ('s_waitcnt','s_barrier','s_nop','s_setprio','s_sleep','s_branch','s_endpgm') or op.startswith('s_cbranch'):
                self.kind=op if not op.startswith('s_cbranch') else 's_branch'
                if op=='s_cbranch_vccz' or op=='s_cbranch_vccnz': self.r=[('x','vcc')]
                if op.startswith('s_cbranch_exec'): self.r=[('x','exec')]
            elif 'saveexec' in op:
                self.w=R(0)+[('x','exec')]; self.r=allr(1)+[('x','exec')]
            else:
                self.w=R(0); self.r=allr(1)
                if op in ('s_addk_i32','s_mulk_i32','s_cmov_b32'): self.r=allr(0)
        else:
            raise Exception('unknown instr '+text)
    def states(self):
        if self.op=='s_nop': return int(self.ops[0],0)+1
        return 1

def is_instr(line):
    t=line.split(';')[0].strip()
    return bool(t) and not t.endswith(':') and not t.startswith('.')

def need_states(p, c):
    n=0
    pw=set(p.w); pr=set(p.r); cw=set(c.w); cr=set(c.r)
    vw=set(x for x in pw if x[0] in 'va')
    valu_like = p.kind in ('valu','trans','permlane','readlane')
    c_valu = c.kind in ('valu','trans','permlane','readlane')
    if valu_like:
        if vw & cr:
            if c.kind=='mfma': n=max(n,2)
            if c.kind=='permlane' or c.isdpp: n=max(n,2)
            if c.kind=='readlane': n=max(n,1)
            if p.kind=='trans' and c_valu and c.kind!='trans': n=max(n,1)
            if p.kind=='trans' and c.kind=='trans': n=max(n,0)
            if p.op.startswith('v_dot2'):
                if not (c.op==p.op and set(c.w)&vw and False): n=max(n,3) if c.op!=p.op else n
        sw=set(x for x in pw if x[0]=='s' or x==('x','vcc'))
        if sw & cr:
            if c_valu: n=max(n,2)
            if c.kind=='readlane' and len(c.ops)>2 and set(regs_of(c.ops[2]))&sw: n=max(n,4)
            if c.kind in ('dma','vload','vstore','vatomic'): n=max(n,5)
            if c.kind in ('salu','s_branch','smem'): n=max(n,1)
        if ('x','exec') in pw:
            if c.kind=='mfma' or c.kind in('readlane','permlane'): n=max(n,4)
            if c.isdpp: n=max(n,5)
    if p.kind=='mfma':
        P=p.passes
        big={4:8,8:12}[P]
        if c.kind=='mfma':
            if pw & set(c.srcAB): n=max(n,big)
            if pw & set(c.srcC):
                if not (c.srcC==p.w and c.passes==p.passes): n=max(n,{4:6,8:10}[P])
            elif pw & cw:
                n=max(n,{4:6,8:10}[P]) if False else n
        else:
            if pw & (cr|cw): n=max(n,big)
            if c_valu and set(p.srcC)&cw and not (pw&cw): n=max(n,{4:3,8:7}[P])
    if p.kind=='salu' and ('x','m0') in pw and c.kind=='dma': n=max(n,1)
    if p.kind in ('vstore','vatomic','dsw') and ('x3' in p.op or 'x4' in p.op or 'b128' in p.op or 'b96' in p.op):
        data=set(regs_of(p.ops[0])) if p.op.startswith('buffer_') else set(regs_of(p.ops[1]))
        if data & cw: n=max(n,2 if c_valu else 1)
    return n

def fix_hazards(lines, auto=True, tag=''):
    out=[]; hist=[]
    cnt=0
    for ln in lines:
        if not is_instr(ln):
            out.append(ln); continue
        c=Ins(ln)
        dist=0; need=0
        for p in reversed(hist):
            k=need_states(p,c)
            if k>dist: need=max(need,k-dist)
            dist+=p.states()
            if dist>=20: break
        if need>0:
            cnt+=1
            if auto:
                while need>0:
                    k=min(need,16)
                    nop='    s_nop %d'%(k-1); out.append(nop); hist.append(Ins(nop)); need-=k
            else:
                if cnt<=4: print('HAZARD[%s] need %d more before: %s'%(tag,need,ln.strip()))
        out.append(ln); hist.append(c)
        if len(hist)>40: hist=hist[-40:]
    return out,cnt

def check_waits(lines, tag=''):
    vm=[]; lg=[]
    errs=0
    for ln in lines:
        if not is_instr(ln): continue
        c=Ins(ln)
        if c.op=='s_waitcnt':
            t=ln.split(';')[0]
            m=re.search(r'vmcnt\((\d+)\)',t)
            if m:
                n=int(m.group(1));
                while len(vm)>n: vm.pop(0)
            m=re.search(r'lgkmcnt\((\d+)\)',t)
            if m:
                n=int(m.group(1))
                if any(e[2] for e in lg):
                    if n==0: lg=[]
                else:
                    while len(lg)>n: lg.pop(0)
            continue
        touched=set(c.r)|set(c.w)
        for q,name in ((vm,'vm'),(lg,'lgkm')):
            for e in q:
                if e[0]&touched:
                    if (e[0]&set(c.r)) or not ((name=='vm' and c.kind=='vload') or (name=='lgkm' and c.kind=='ds' and not e[2])):
                        errs+=1
                        if errs<=4: print('WAITERR[%s] %s pending (%s) used by: %s'%(tag,name,e[1].strip(),ln.strip()))
        if c.kind in ('vload','vatomic'): vm.append((set(c.w),ln,False))
        elif c.kind in ('dma','vstore','vmem_other'): vm.append((set(),ln,False))
        elif c.kind=='ds': lg.append((set(c.w),ln,False))
        elif c.kind=='dsw': lg.append((set(),ln,False))
        elif c.kind=='smem': lg.append((set(c.w),ln,True))
        if len(vm)>63: print('WARN[%s] vmcnt overflow >63 at %s'%(tag,ln.strip()))
    return errs

def interleave(spine, fill, default_gap=None):
    out=list(fill.get(-1,[]))
    for i,s in enumerate(spine):
        out.append(s); out+=fill.get(i,[])
    return out

def kernel_header(name):
    return ['.text','.globl %s'%name,'.p2align 8','.type %s,@function'%name,'%s:'%name]

def kernel_desc(name, nv, accum, ns=102):
    return ['.section .rodata,"a"','.p2align 6','.amdhsa_kernel %s'%name,
     '  .amdhsa_next_free_vgpr %d'%nv,'  .amdhsa_next_free_sgpr %d'%ns,'  .amdhsa_accum_offset %d'%accum,
     '  .amdhsa_group_segment_fixed_size 0','  .amdhsa_kernarg_size 88','  .amdhsa_user_sgpr_count 2',
     '  .amdhsa_user_sgpr_kernarg_segment_ptr 1','  .amdhsa_system_sgpr_workgroup_id_x 1',
     '.end_amdhsa_kernel']

def vr(b,n=1,f='v'):
    return '%s%d'%(f,b) if n==1 else '%s[%d:%d]'%(f,b,b+n-1)
def ar(b,n=1): return vr(b,n,'a')
def sr(b,n=1): return vr(b,n,'s')
```

```python
import sys, json
from common import *
HEAD = open('recurrent_scan__softmax_full_mha__mixer_gmlp__prompt.s.ref').read().split('; Override launch')[0] if len(sys.argv)>0 else ''
def assemble(parts, path):
    out=[HEAD.rstrip('\n')]
    out+=[p[2] for p in parts]
    out+=['.amdgcn_target "amdgcn-amd-amdhsa--gfx950"']
    for p in parts: out+=p[0]
    for p in parts: out+=p[1]
    open(path,'w').write('\n'.join(out)+'\n')
```

```python
from asmlib import *
import re
XN_OFF  = 0x0000000
P1_OFF  = 0x0400000
Z2N_OFF = 0x2000000
O_OFF   = 0x2800000
H_OFF   = 0x2C00000
P1_SIZE = 208*64*2048
Z2N_SIZE= 56*64*2048
O_SIZE  = 64*32*2048
H_SIZE  = 64*56*2048
KA_X, KA_WQKV, KA_WO, KA_BX, KA_WIN, KA_WSP, KA_BSP, KA_WOUT, KA_OUT, KA_DBG, KA_WS = [8*i for i in range(11)]

def I(s): return '    '+s

def srd(d, lo, hi, off, size):
    L=[]
    if off==0 or off is None:
        L+= [I('s_mov_b32 s%d, s%d'%(d,lo)), I('s_mov_b32 s%d, s%d'%(d+1,hi))]
    else:
        o = off if isinstance(off,str) else hex(off)
        L+= [I('s_add_u32 s%d, s%d, %s'%(d,lo,o)), I('s_addc_u32 s%d, s%d, 0'%(d+1,hi))]
    sz = size if isinstance(size,str) else hex(size)
    L+= [I('s_mov_b32 s%d, %s'%(d+2,sz)), I('s_mov_b32 s%d, 0x20000'%(d+3))]
    return L

def auto_lgkm(body, pre=None):
    pre = body if pre is None else pre
    q=[]
    def step(ln, out):
        nonlocal q
        if not is_instr(ln):
            if out is not None: out.append(ln)
            return
        c=Ins(ln)
        if c.op=='s_waitcnt':
            m=re.search(r'lgkmcnt\((\d+)\)',ln.split(';')[0])
            if m:
                n=int(m.group(1))
                while len(q)>n: q.pop(0)
        else:
            touched=set(c.r)|(set(c.w) if c.kind!='ds' else set())
            idx=-1
            for i,e in enumerate(q):
                if e&touched: idx=i
            if idx>=0:
                n=min(len(q)-1-idx,15)
                if out is not None: out.append(I('s_waitcnt lgkmcnt(%d)'%n))
                while len(q)>n: q.pop(0)
            if c.kind=='ds': q.append(set(c.w))
            elif c.kind=='dsw': q.append(set())
            assert c.kind!='smem'
        if out is not None: out.append(ln)
    for ln in pre: step(ln,None)
    out=[]
    for ln in body: step(ln,out)
    return out

def wave_sum(v,t):
    return [I('v_add_f32_dpp v%d, v%d, v%d quad_perm:[1,0,3,2] row_mask:0xf bank_mask:0xf'%(v,v,v)),
            I('v_add_f32_dpp v%d, v%d, v%d quad_perm:[2,3,0,1] row_mask:0xf bank_mask:0xf'%(v,v,v)),
            I('v_add_f32_dpp v%d, v%d, v%d row_half_mirror row_mask:0xf bank_mask:0xf'%(v,v,v)),
            I('v_add_f32_dpp v%d, v%d, v%d row_mirror row_mask:0xf bank_mask:0xf'%(v,v,v)),
            I('v_mov_b32 v%d, v%d'%(t,v)), I('v_permlane16_swap_b32 v%d, v%d'%(v,t)), I('v_add_f32 v%d, v%d, v%d'%(v,v,t)),
            I('v_mov_b32 v%d, v%d'%(t,v)), I('v_permlane32_swap_b32 v%d, v%d'%(v,t)), I('v_add_f32 v%d, v%d, v%d'%(v,v,t))]

ST_OFF = 0x8000000
def rt_begin(opt, sreg=90):
    if not opt.get('rt'): return []
    return [I('s_memrealtime s[%d:%d]'%(sreg,sreg+1)), I('s_memtime s[%d:%d]'%(sreg+2,sreg+3))]
def rt_end(opt, kidx, tag, wavereg=None, sreg=90, drain=True):
    if not opt.get('rt'): return []
    L=[]
    if drain: L+=[I('s_waitcnt vmcnt(0)')]
    L+=[I('s_memrealtime s[76:77]'), I('s_memtime s[78:79]'), I('s_load_dwordx2 s[80:81], s[0:1], %d'%KA_WS), I('s_waitcnt lgkmcnt(0)')]
    L+=srd(84,80,81,ST_OFF+kidx*65536,65536)
    L+=[I('s_lshl_b32 s82, s2, 4'), I('v_mov_b32 v1, s82'), I('v_mov_b32 v2, s%d'%sreg), I('v_mov_b32 v3, s76'), I('v_mov_b32 v4, s%d'%(sreg+2)), I('v_mov_b32 v5, s78'),
        I('s_nop 1'), I('buffer_store_dwordx4 v[2:5], v1, s[84:87], 0 offen')]
    return L

def ring_gemm(tag, ntiles, nslot, steps, mfmas, reads, dma, vm_per_tile, PD, dma_gaps, loop_sreg, extra_vm_before=0, first_c0=False, fillers=None, first_wait=None):
    NSETS=steps
    def tile(kt_mod, do_dma, has_next, c0=False, last_wait=None, fl=None):
        slot=kt_mod%nslot
        spine=[]; fill={}
        def add(g,x): fill.setdefault(g,[]).extend(x)
        starts=[]
        for j in range(steps):
            starts.append(len(spine)); spine+=mfmas(j,j%NSETS,c0 and j==0)
        n=len(spine); per=n//steps
        for j in range(steps):
            jj=j+PD
            if jj<steps: R=reads(slot,jj,jj%NSETS)
            elif has_next: R=reads((slot+1)%nslot,jj-steps,jj%NSETS)
            else: R=[]
            g0=starts[j]
            if jj==steps and has_next:
                w = vm_per_tile*(nslot-3) if last_wait is None else last_wait
                add(g0-1 if g0>0 else -1,[I('s_waitcnt vmcnt(%d)'%w), I('s_barrier')])
            for k,r in enumerate(R): add(g0+(k*per)//len(R), [r])
        if do_dma:
            G=dma((slot+nslot-1)%nslot)
            gb=starts[steps-PD]
            pos=[gb+x for x in dma_gaps]
            assert len(pos)==len(G) and pos[-1]<n, (pos,n)
            for p,g in zip(pos,G): add(p,g)
        if fl:
            for g,x in fl.items(): add(g,x)
        return interleave(spine,fill)
    pro=[]
    for j in range(PD): pro+=reads(0,j,j%NSETS)
    pro+=[I('s_waitcnt lgkmcnt(0)')]
    nd=ntiles-nslot+1
    seq=[]
    k=0
    if first_c0:
        seq.append(('code',tile(0,True,True,c0=True,last_wait=first_wait))); k=1
    nloop=(nd-k)//nslot
    body=[]
    for t in range(nslot): body+=tile(k+t,True,True)
    rest=[]
    kk=k+nloop*nslot
    while kk<ntiles:
        rem=ntiles-1-kk
        dd = kk<nd
        lw = None if dd else vm_per_tile*max(rem-1,0)
        rest+=tile(kk,dd,rem>0,last_wait=lw, fl=(fillers(kk) if fillers else None))
        kk+=1
    head=[]
    for _,c in seq: head+=c
    head=auto_lgkm(head,pre=[])
    bodyw=auto_lgkm(body)
    restw=auto_lgkm(rest,pre=bodyw)
    Lp='L_%s_loop'%tag
    main=head+[I('s_mov_b32 s%d, %d'%(loop_sreg,nloop)), Lp+':']+bodyw+[I('s_sub_u32 s%d, s%d, 1'%(loop_sreg,loop_sreg)), I('s_cmp_lg_u32 s%d, 0'%loop_sreg), I('s_cbranch_scc1 %s'%Lp)]+restw
    trace=head+bodyw+bodyw+restw
    fix_hazards(bodyw+bodyw,auto=False,tag=tag+'_loop')
    return pro, main, trace

import struct, math
def f2u(x): return struct.unpack('<I',struct.pack('<f',x))[0]
GC1 = -2.0*math.sqrt(2.0/math.pi)*math.log2(math.e)
GC2 = GC1*0.044715
def gelu_pair(x, t, sC1, sC2):
    raise NotImplementedError
def gelu_block(xs, tmp, vC1, sC2pair):
    L=[]
    T=[tmp+2*i for i in range(len(xs))]
    p=lambda b: vr(b,2)
    for x,t in zip(xs,T): L.append(I('v_pk_mul_f32 %s, %s, %s'%(p(t),p(x),p(x))))
    for x,t in zip(xs,T): L.append(I('v_pk_fma_f32 %s, %s, %s, %s'%(p(t),p(t),sr(sC2pair,2),p(vC1))))
    for x,t in zip(xs,T): L.append(I('v_pk_mul_f32 %s, %s, %s'%(p(t),p(t),p(x))))
    for x,t in zip(xs,T): L+= [I('v_exp_f32 v%d, v%d'%(t,t)), I('v_exp_f32 v%d, v%d'%(t+1,t+1))]
    for x,t in zip(xs,T): L.append(I('v_pk_add_f32 %s, %s, 1.0 op_sel_hi:[1,0]'%(p(t),p(t))))
    for x,t in zip(xs,T): L+= [I('v_rcp_f32 v%d, v%d'%(t,t)), I('v_rcp_f32 v%d, v%d'%(t+1,t+1))]
    for x,t in zip(xs,T): L.append(I('v_pk_mul_f32 %s, %s, %s'%(p(x),p(x),p(t))))
    return L
def unpack8(src, dst):
    L=[]
    for i in range(4):
        L+=[I('v_lshlrev_b32 v%d, 16, v%d'%(dst+2*i,src+i)), I('v_and_b32 v%d, 0xffff0000, v%d'%(dst+2*i+1,src+i))]
    return L
```

```python
from common import *
def gen_k0(name='ln_kernel', opt={}):
    L=kernel_header(name)
    B=[]
    B+=[I('s_cmp_ge_u32 s2, 512'), I('s_cbranch_scc1 L_k0_end')]+rt_begin(opt)+[
        I('s_load_dwordx2 s[4:5], s[0:1], %d'%KA_X), I('s_load_dwordx2 s[6:7], s[0:1], %d'%KA_WS),
        I('v_lshrrev_b32 v1, 6, v0'), I('v_and_b32 v2, 63, v0'),
        I('s_lshl_b32 s3, s2, 13'),
        I('v_lshlrev_b32 v1, 11, v1'), I('v_lshl_add_u32 v1, v2, 4, v1'),
        I('s_waitcnt lgkmcnt(0)')]
    B+=srd(8,4,5,0,0x400000)+srd(12,6,7,XN_OFF,0x400000)
    B+=[I('buffer_load_dwordx4 v[4:7], v1, s[8:11], s3 offen'),
        I('buffer_load_dwordx4 v[8:11], v1, s[8:11], s3 offen offset:1024'),
        I('s_waitcnt vmcnt(0)')]
    for i in range(8):
        B+=[I('v_lshlrev_b32 v%d, 16, v%d'%(16+2*i,4+i)), I('v_and_b32 v%d, 0xffff0000, v%d'%(17+2*i,4+i))]
    B+=[I('v_add_f32 v12, v16, v17')]
    for i in range(2,16): B+=[I('v_add_f32 v12, v12, v%d'%(16+i))]
    B+=wave_sum(12,13)
    B+=[I('v_mul_f32 v12, 0x3a800000, v12')]
    for i in range(16): B+=[I('v_sub_f32 v%d, v%d, v12'%(16+i,16+i))]
    B+=[I('v_mul_f32 v14, v16, v16')]
    for i in range(1,16): B+=[I('v_fmac_f32 v14, v%d, v%d'%(16+i,16+i))]
    B+=wave_sum(14,13)
    B+=[I('v_mov_b32 v15, 0x3727c5ac'), I('v_fmac_f32 v15, 0x3a800000, v14'), I('v_rsq_f32 v15, v15')]
    for i in range(16): B+=[I('v_mul_f32 v%d, v%d, v15'%(16+i,16+i))]
    for i in range(8): B+=[I('v_cvt_pk_bf16_f32 v%d, v%d, v%d'%(4+i,16+2*i,17+2*i))]
    B+=[I('buffer_store_dwordx4 v[4:7], v1, s[12:15], s3 offen'),
        I('buffer_store_dwordx4 v[8:11], v1, s[12:15], s3 offen offset:1024')]+rt_end(opt,0,'k0')+[
        'L_k0_end:', I('s_endpgm')]
    B,_=fix_hazards(B)
    check_waits(B,'k0')
    return L+B, kernel_desc(name,32,32,96), '; @launch kernel=%s grid=(512,1,1) block=(256,1,1) lds=0'%name
```

```python
from common import *
ACC0=32
A_LDS=0
B_LDS=65536
QSCALE = 0x3e82a7c4
import struct, math
QSCALE = struct.unpack('<I',struct.pack('<f', 32**-0.5*math.log2(math.e)))[0]

def gen_variant(NF, strideB, tag, scale_q, opt):
    BS = NF*4096; RB = NF*64; CPR=NF*4
    vOA=1; vOB=9; vA=16; vB=20
    aA=lambda s,mf: 8*s+4*mf
    aB=lambda nf: 16+4*nf
    acc=lambda nf,mf: ACC0+16*(2*nf+mf)
    S=[]
    S+=[I('v_lshrrev_b32 v22, 3, v0'),
        I('v_lshrrev_b32 v23, 4, v0'),
        I('v_and_b32 v24, 7, v0'),
        I('s_lshl_b32 s26, s25, 17'),
        I('v_lshlrev_b32 v22, 11, v22'), I('v_add_u32 v22, s26, v22'),
        I('v_xor_b32 v25, v24, v23'), I('v_xor_b32 v26, 4, v25'),
        I('v_lshl_add_u32 v25, v25, 4, v22'), I('v_lshl_add_u32 v26, v26, 4, v22')]
    for i in range(8):
        S+=[I('v_add_u32 v%d, %d, v%d'%(vOA+i, i*8*2048-(i%4)*1024, 25+(i&1)))]
    M=-(-65536//CPR)
    S+=[I('s_mul_i32 s26, s25, %d'%(NF*64)), I('s_mov_b32 s27, %d'%strideB)]
    for i in range(NF):
        S+=[I('v_add_u32 v22, s26, v0'), I('v_add_u32 v22, %d, v22'%(i*64)),
            I('v_mul_u32_u24 v23, %d, v22'%M), I('v_lshrrev_b32 v23, 16, v23'),
            I('v_mul_u32_u24 v24, %d, v23'%CPR), I('v_sub_u32 v24, v22, v24')]
        if NF%2==0:
            assert NF==6
            S+=[I('v_lshlrev_b32 v25, 1, v23'), I('v_and_b32 v25, 4, v25'), I('v_xor_b32 v24, v24, v25')]
        S+=[I('v_mul_lo_u32 v23, v23, s27'), I('v_lshl_add_u32 v23, v24, 4, v23'),
            I('v_subrev_u32 v%d, %d, v23'%(vOB+i,(i%4)*1024))]
    S+=[I('v_and_b32 v22, 31, v0'), I('v_lshrrev_b32 v23, 5, v0'),
        I('v_bfe_u32 v24, v0, 1, 3'),
        I('s_lshl_b32 s26, s25, 13'),
        I('v_lshlrev_b32 v22, 7, v22'), I('v_add_u32 v22, s26, v22')]
    for j in range(4):
        S+=[I('v_add_u32 v25, %d, v23'%(2*j)), I('v_xor_b32 v25, v25, v24'), I('v_lshl_add_u32 v%d, v25, 4, v22'%(vA+j))]
    S+=[I('v_lshrrev_b32 v22, 5, v0'), I('v_bfe_u32 v23, v0, 2, 2'),
        I('v_lshl_add_u32 v22, v22, 3, v23'), I('v_mul_u32_u24 v22, %d, v22'%RB),
        I('v_bfe_u32 v24, v0, 4, 1'), I('v_and_b32 v25, 3, v0'),
        I('v_lshlrev_b32 v24, 5, v24'), I('v_lshl_add_u32 v24, v25, 3, v24'),
        I('v_add_u32 v22, v22, v24'), I('v_add_u32 v%d, %d, v22'%(vB,B_LDS))]
    if NF%2==0:
        S+=[I('v_bfe_u32 v23, v0, 3, 1'), I('v_lshlrev_b32 v23, 6, v23'),
            I('v_sub_u32 v%d, v%d, v23'%(vB+1,vB)), I('v_add_u32 v%d, 64, v%d'%(vB+1,vB+1)),
            I('v_add_u32 v%d, v%d, v23'%(vB,vB))]
    S+=[I('s_lshl_b32 s28, s25, 13'), I('s_mul_i32 s29, s25, %d'%(NF*1024)), I('s_add_u32 s29, s29, %d'%B_LDS),
        I('s_mov_b32 s20, 0'), I('s_mov_b32 s21, 0')]
    def dma(st):
        G=[]
        for i in range(8):
            g=[]
            if i%4==0: g.append(I('s_add_u32 m0, s28, %d'%(st*32768+(i//4)*4096)))
            g.append(I('buffer_load_dwordx4 v%d, s[8:11], s20 offen offset:%d lds'%(vOA+i,(i%4)*1024)))
            G.append(g)
        for i in range(NF):
            g=[]
            if i%4==0: g.append(I('s_add_u32 m0, s29, %d'%(st*BS+(i//4)*4096)))
            g.append(I('buffer_load_dwordx4 v%d, s[12:15], s21 offen offset:%d lds'%(vOB+i,(i%4)*1024)))
            G.append(g)
        if opt.get('b_first',True): G=G[8:]+G[:8]
        for k in range(1,len(G)):
            if len(G[k])==2:
                G[k-1].append(G[k][0]); G[k]=G[k][1:]
        G=[G[0][:1]]+[G[0][1:]]+G[1:]
        G[-1]=G[-1]+[I('s_add_u32 s20, s20, 128'), I('s_add_u32 s21, s21, %d'%(64*strideB))]
        return G
    def rdA(st,j,mf): return I('ds_read_b128 %s, v%d offset:%d'%(ar(aA(j&1,mf),4), vA+j, st*32768+mf*4096))
    def rdB(st,j,nf):
        o=[]
        for u in range(2):
            if NF%2==0 and nf%2==1: v=vB+1; no=(nf-1)*64
            else: v=vB; no=nf*64
            o.append(I('ds_read_b64_tr_b16 %s, v%d offset:%d'%(ar(aB(nf)+2*u,2), v, st*BS+(16*j+4*u)*RB+no)))
        return o
    def mf(j,nf,m): return I('v_mfma_f32_32x32x16_bf16 %s, %s, %s, %s'%(vr(acc(nf,m),16), ar(aB(nf),4), ar(aA(j&1,m),4), vr(acc(nf,m),16)))
    BP=opt.get('bar_pair',1); DS=opt.get('dma_stride',1); D0=opt.get('dma_start',0)
    def tile(st, do_dma, has_next, carry_in):
        spine=[]; fill={}
        def add(g,x): fill.setdefault(g,[]).extend(x)
        for j in range(4):
            for nf in range(NF):
                for m in range(2): spine.append(mf(j,nf,m))
        NS=2*NF
        for j in range(3):
            add(j*NS+0,[rdA(st,j+1,0)]); add(j*NS+2,[rdA(st,j+1,1)])
            for nf in range(NF):
                r=rdB(st,j+1,nf)
                add(j*NS+2*nf+1,r[:1]);
                if 2*nf+2<NS: add(j*NS+2*nf+2,r[1:])
                else: add(j*NS+2*nf+1,r[1:])
        g=0
        for grp in carry_in:
            add(g,grp); g+=DS
        carry=[]
        if has_next:
            gb=3*NS+2*BP+1
            add(gb,[I('s_waitcnt vmcnt(0) lgkmcnt(0)'), I('s_barrier')])
            pend=[rdA(st^1,0,0),rdA(st^1,0,1)]
            seq=[]
            for nf in range(NF): seq.append(rdB(st^1,0,nf))
            q=[]
            for nf in range(BP+1): q+=seq[nf]
            q=q[:2]+pend+q[2:]
            gg=gb
            for nf in range(BP+1,NF):
                for g2 in (3*NS+2*nf,3*NS+2*nf+1):
                    pass
            avail={}
            for k,x in enumerate(q): avail.setdefault(gb,[]).append(x)
            for nf in range(BP+1,NF): avail.setdefault(3*NS+2*nf+1,[]).extend(seq[nf])
            queue=[]
            for g2 in range(gb,4*NS):
                queue+=avail.get(g2,[])
                n=2 if g2<4*NS-1 else len(queue)
                add(g2,queue[:n]); queue=queue[n:]
            if do_dma:
                G=dma(st); g=gb+D0
                while G and g<4*NS:
                    add(g,G.pop(0)); g+=DS
                carry=G
        return interleave(spine,fill), carry
    P=[]
    for st in range(2):
        for g in dma(st): P+=g
    for r in range(ACC0,ACC0+32*NF): P.append(I('v_mov_b32 v%d, 0'%r))
    P+=[I('s_waitcnt vmcnt(%d)'%(8+NF)), I('s_barrier')]
    P+=[rdA(0,0,0),rdA(0,0,1)]
    for nf in range(NF): P+=rdB(0,0,nf)
    P+=[I('s_mov_b32 s22, 7'), I('s_waitcnt lgkmcnt(0)')]
    _,c=tile(0,True,True,[])
    ncarry=len(c)
    t0,c0=tile(0,True,True,dma(1)[-ncarry:] if ncarry else [])
    t1,c1=tile(1,True,True,c0)
    body=t0+t1
    first=None
    if ncarry:
        f0,fc=tile(0,True,True,[])
        f1,_=tile(1,True,True,fc)
        first=auto_lgkm(f0+f1,pre=[])
    body=auto_lgkm(body)
    if opt.get('no_lds'): body=[x for x in body if 'ds_read' not in x]
    if opt.get('no_ldsB'): body=[x for x in body if 'ds_read_b64' not in x]
    if opt.get('no_dma'): body=[x for x in body if 'buffer_load' not in x]
    e0,_=tile(0,False,True,c1)
    e1,_=tile(1,False,False,[])
    tail=auto_lgkm(e0+e1,pre=body)
    Lp='L_k1_loop_%s'%tag
    main=[]
    if first is not None:
        main+=first; P[-2]=I('s_mov_b32 s22, 6')
    loop=[Lp+':']+body+[I('s_sub_u32 s22, s22, 1'), I('s_cmp_lg_u32 s22, 0'), I('s_cbranch_scc1 %s'%Lp)]
    E=[I('v_lshlrev_b32 v1, 4, v0'), I('s_lshl_b32 s26, s25, 12'), I('v_add_u32 v1, s26, v1')]
    order=[(nf,m) for nf in range(NF) for m in range(2)]
    for nf in range(NF):
        if scale_q:
            E+=[I('s_add_u32 s26, s30, %d'%nf), I('s_cmp_lt_u32 s26, 32'), I('s_cselect_b32 s34, 0x%x, 1.0'%QSCALE), I('s_mov_b32 s35, s34')]
        for m in range(2):
            a=acc(nf,m)
            if scale_q:
                for i in range(8): E.append(I('v_pk_mul_f32 %s, %s, s[34:35]'%(vr(a+2*i,2),vr(a+2*i,2))))
            for i in range(8): E.append(I('v_cvt_pk_bf16_f32 v%d, v%d, v%d'%(a+i,a+2*i,a+2*i+1)))
            for h in range(2):
                E.append(I('buffer_store_dwordx4 %s, v1, s[16:19], s31 offen offset:%d'%(vr(a+4*h,4), m*2048+h*1024)))
        E.append(I('s_add_u32 s31, s31, 131072'))
    E+=rt_end(opt,1,tag)
    E.append(I('s_endpgm'))
    def stamp(k):
        if not opt.get('stamp'): return []
        return [I('s_memtime s[%d:%d]'%(40+2*k,41+2*k))]
    fin=[]
    if opt.get('stamp'):
        E=E[:-1]+[I('s_waitcnt vmcnt(0)')]+stamp(4)+[I('s_waitcnt lgkmcnt(0)'), I('s_cmp_lg_u32 s2, %d'%opt.get('stamp_wg',0)), I('s_cbranch_scc1 L_k1_nost_%s'%tag),
            I('s_load_dwordx2 s[36:37], s[0:1], %d'%KA_DBG), I('s_waitcnt lgkmcnt(0)')]+srd(52,36,37,0,256)
        E+=[I('s_lshl_b32 s26, s25, 4'), I('v_mov_b32 v1, s26')]
        for k in range(4):
            E+=[I('s_sub_u32 s26, s%d, s%d'%(42+2*k,40+2*k)), I('v_mov_b32 v2, s26'), I('buffer_store_dword v2, v1, s[52:55], 0 offen offset:%d'%(4*k))]
        E+=['L_k1_nost_%s:'%tag, I('s_endpgm')]
    pre = S+P[:-1]+stamp(1)+P[-1:]
    code = pre+main+loop+stamp(2)+([I('s_waitcnt lgkmcnt(0)')] if opt.get('stamp') else [])+tail+stamp(3)+E
    code,n=fix_hazards(code)
    tr = pre+main+body+body+tail+E
    tr,_=fix_hazards(tr)
    check_waits(tr,'k1_'+tag)
    _,nh=fix_hazards(body+body,auto=False,tag='k1loop')
    return code

def gen_k1(name='gemm1_kernel', opt={}):
    L=kernel_header(name)
    B=[I('s_cmp_ge_u32 s2, 256'), I('s_cbranch_scc1 L_k1_end')]
    if opt.get('stamp'): B+=[I('s_memtime s[40:41]')]
    B+=rt_begin(opt)
    B+=[I('s_load_dwordx2 s[4:5], s[0:1], %d'%KA_WS), I('s_load_dwordx2 s[6:7], s[0:1], %d'%KA_WQKV), I('s_load_dwordx2 s[36:37], s[0:1], %d'%KA_WIN),
        I('v_lshrrev_b32 v1, 6, v0'), I('v_and_b32 v0, 63, v0'), I('s_nop 0'), I('v_readfirstlane_b32 s25, v1'),
        I('s_and_b32 s23, s2, 1'), I('s_lshl_b32 s23, s23, 2'), I('s_bfe_u32 s24, s2, 0x20003'), I('s_add_u32 s23, s23, s24'),
        I('s_bfe_u32 s24, s2, 0x20001'), I('s_lshl_b32 s24, s24, 3'), I('s_lshr_b32 s26, s2, 5'), I('s_add_u32 s24, s24, s26'),
        I('s_lshr_b32 s33, s24, 1'),
        I('s_lshl_b32 s26, s23, 19'),
        I('s_add_u32 s26, s26, 0x%x'%XN_OFF),
        I('s_waitcnt lgkmcnt(0)')]
    B+=srd(8,4,5,'s26',256*2048)+srd(16,4,5,P1_OFF,P1_SIZE)
    B+=[I('s_or_b32 s26, s2, s25'), I('s_cbranch_scc1 L_k1_nz')]+srd(12,4,5,FLAG_OFF,2048)
    B+=[I('v_lshlrev_b32 v1, 7, v0'), I('v_mov_b32 v2, 0'), I('buffer_store_dword v2, v1, s[12:15], 0 offen'), 'L_k1_nz:']
    B+=[I('s_bitcmp1_b32 s24, 0'), I('s_cbranch_scc1 L_k1_win')]
    V=[I('s_mul_i32 s30, s33, 6'), I('s_lshl_b32 s26, s30, 6'), I('s_sub_u32 s27, 0x600000, s26')]
    V+=srd(12,6,7,'s26','s27')
    V+=[I('s_lshl_b32 s31, s30, 17'), I('s_lshl_b32 s26, s23, 14'), I('s_add_u32 s31, s31, s26')]
    B+=V+gen_variant(6,6144,'q',True,opt)
    V=['L_k1_win:', I('s_mul_i32 s30, s33, 7'), I('s_lshl_b32 s26, s30, 6'), I('s_sub_u32 s27, 0x700000, s26')]
    V+=srd(12,36,37,'s26','s27')
    V+=[I('s_add_u32 s30, s30, 96'), I('s_lshl_b32 s31, s30, 17'), I('s_lshl_b32 s26, s23, 14'), I('s_add_u32 s31, s31, s26')]
    B+=V+gen_variant(7,7168,'w',False,opt)
    B+=['L_k1_end:', I('s_endpgm')]
    lds=65536+2*7*4096
    return L+B, kernel_desc(name,256+48,256,96), '; @launch kernel=%s grid=(256,1,1) block=(256,1,1) lds=%d'%(name,lds)
```

```python
from common import *
import numpy as np
def unswz_z2n(a):
    a=a.reshape(-1,4,32,8)
    o=np.empty_like(a)
    for q in range(4):
        s=np.arange(32); o[:,q,s,:]=a[:,q,s^(q<<2),:]
    return o.reshape(-1)

SPARE=131072

def gen_slice(opt):
    Ld=[]
    Ld+=srd(8,4,5,P1_OFF+152*131072,56*131072)+srd(12,4,5,Z2N_OFF,Z2N_SIZE)
    Ld+=[I('s_lshr_b32 s26, s2, 2'), I('s_lshl_b32 s26, s26, 11'),
         I('s_mul_i32 s27, s25, %d'%(7*262144)), I('s_add_u32 s26, s26, s27'),
         I('s_and_b32 s27, s2, 3'), I('s_lshl_b32 s27, s27, 3'),
         I('v_lshrrev_b32 v2, 5, v0'), I('v_lshlrev_b32 v2, 17, v2'),
         I('v_bfe_u32 v3, v0, 3, 2'), I('v_lshl_add_u32 v2, v3, 9, v2'),
         I('v_and_b32 v4, 7, v0'), I('v_add_u32 v4, s27, v4'),
         I('v_lshl_add_u32 v5, v4, 4, v2'),
         I('v_lshlrev_b32 v3, 2, v3'), I('v_xor_b32 v4, v4, v3'), I('v_lshl_add_u32 v6, v4, 4, v2'),
         I('s_mov_b32 s27, s26'), I('s_mov_b32 s35, s26')]
    for t in range(7):
        Ld+=[I('buffer_load_dwordx4 %s, v5, s[8:11], s27 offen'%vr(160+4*t,4)), I('s_add_u32 s27, s27, 262144')]
    C=[]
    X=64
    C+=[I('s_mov_b32 s28, 0x%x'%f2u(GC2)), I('s_mov_b32 s29, s28'), I('v_mov_b32 v14, 0x%x'%f2u(GC1)), I('v_mov_b32 v15, v14')]
    for t in range(7): C+=unpack8(160+4*t,X+8*t)
    for b in range(0,28,7):
        C+=gelu_block([X+2*i for i in range(b,b+7)],128,14,28)
    C+=[I('v_pk_add_f32 v[10:11], %s, %s'%(vr(X,2),vr(X+2,2))), I('v_pk_mul_f32 v[12:13], %s, %s'%(vr(X,2),vr(X,2))),
        I('v_pk_fma_f32 v[12:13], %s, %s, v[12:13]'%(vr(X+2,2),vr(X+2,2)))]
    for i in range(2,28):
        C+=[I('v_pk_add_f32 v[10:11], v[10:11], %s'%vr(X+2*i,2)), I('v_pk_fma_f32 v[12:13], %s, %s, v[12:13]'%(vr(X+2*i,2),vr(X+2*i,2)))]
    C+=[I('v_add_f32 v10, v10, v11'), I('v_add_f32 v11, v12, v13')]
    for v in (10,11):
        C+=[I('v_add_f32_dpp v%d, v%d, v%d row_ror:8 row_mask:0xf bank_mask:0xf'%(v,v,v))]
    for sw in ('16','32'):
        for v in (10,11):
            C+=[I('v_mov_b32 v12, v%d'%v), I('v_permlane%s_swap_b32 v%d, v12'%(sw,v)), I('v_add_f32 v%d, v%d, v12'%(v,v))]
    C+=[I('v_and_b32 v12, 7, v0'), I('v_lshlrev_b32 v12, 5, v12'), I('v_add_u32 v12, %d, v12'%SPARE),
        I('s_lshl_b32 s27, s25, 3'), I('v_add_u32 v13, s27, v12'),
        I('ds_write_b64 v13, v[10:11]'), I('s_waitcnt lgkmcnt(0)'), I('s_barrier'),
        I('ds_read_b128 v[128:131], v12'), I('ds_read_b128 v[132:135], v12 offset:16'), I('s_waitcnt lgkmcnt(0)'),
        I('v_pk_add_f32 v[128:129], v[128:129], v[130:131]'), I('v_pk_add_f32 v[132:133], v[132:133], v[134:135]'),
        I('v_pk_add_f32 v[128:129], v[128:129], v[132:133]'),
        I('v_mul_f32 v10, 0x%x, v128'%f2u(1/1792)),
        I('v_mul_f32 v11, 0x%x, v129'%f2u(1/1792)),
        I('v_fma_f32 v11, -v10, v10, v11'), I('v_max_f32 v11, 0, v11'), I('v_add_f32 v11, 0x3727c5ac, v11'), I('v_rsq_f32 v12, v11'),
        I('v_mul_f32 v10, v10, v12')]
    for i in range(28):
        C+=[I('v_pk_fma_f32 %s, %s, v[12:13], v[10:11] op_sel_hi:[1,0,0] neg_lo:[0,0,1] neg_hi:[0,0,1]'%(vr(X+2*i,2),vr(X+2*i,2)))]
    for t in range(7):
        for i in range(4): C+=[I('v_cvt_pk_bf16_f32 v%d, v%d, v%d'%(160+4*t+i,X+8*t+2*i,X+8*t+2*i+1))]
        C+=[I('buffer_store_dwordx4 %s, v6, s[12:15], s35 offen sc0 sc1'%vr(160+4*t,4)), I('s_add_u32 s35, s35, 262144')]
    return Ld,C

Q=16; KB=32; VB=48; SA=64; SB=80; PA=96; PB=104; OA=112; OB=128; LA=144; LB=148; ONES=152
vK0,vV00,vV10, vK,vV0,vV1, vDK,vDV0,vDV1 = 1,2,3,4,5,6,7,8,9

def mf32(d,a,b,c=None): return I('v_mfma_f32_32x32x16_bf16 %s, %s, %s, %s'%(vr(d,16),vr(a,4),vr(b,4), vr(d,16) if c is None else c))
def mf16(d,a,b): return I('v_mfma_f32_16x16x32_bf16 %s, %s, %s, %s'%(vr(d,4),vr(a,4),vr(b,4),vr(d,4)))

def gen_attn(opt):
    S=[]
    S+=[I('s_lshl_b32 s26, s33, 17'), I('s_add_u32 s27, s26, 0x%x'%(P1_OFF+32*131072))]
    S+=srd(16,4,5,'s27',131072)
    S+=[I('s_add_u32 s27, s26, 0x%x'%(P1_OFF+64*131072-2048))]+srd(20,4,5,'s27',131072+2048)
    S+=[I('s_add_u32 s27, s26, 0x%x'%P1_OFF)]+srd(36,4,5,'s27',131072)
    S+=[I('v_lshlrev_b32 v%d, 4, v0'%vDK),
        I('v_lshrrev_b32 v10, 5, v0'), I('v_lshlrev_b32 v10, 6, v10'),
        I('v_xor_b32 v%d, v%d, v10'%(vDV0,vDK)), I('v_xor_b32 v%d, 128, v%d'%(vDV1,vDV0)),
        I('s_lshl_b32 s26, s34, 14'), I('s_lshl_b32 s27, s25, 12'), I('s_add_u32 s26, s26, s27')]
    for i in range(4): S+=[I('buffer_load_dwordx4 %s, v%d, s[36:39], s26 offen offset:%d'%(vr(Q+4*i,4),vDK,1024*i))]
    S+=[I('s_lshl_b32 s40, s25, 12'), I('s_lshl_b32 s41, s25, 13')]
    def dma_block():
        return [[I('s_mov_b32 m0, s41')],
                [I('buffer_load_dwordx4 v%d, s[16:19], s40 offen lds'%vDK)],
                [I('buffer_load_dwordx4 v%d, s[16:19], s40 offen offset:1024 lds'%vDK)],
                [I('buffer_load_dwordx4 v%d, s[20:23], s40 offen offset:2048 lds'%vDV0)],
                [I('buffer_load_dwordx4 v%d, s[20:23], s40 offen offset:3072 lds'%vDV1),
                 I('s_xor_b32 s42, s42, 1'),
                 I('s_cselect_b32 s43, 2048, s24'), I('s_add_u32 s40, s40, s43'),
                 I('s_lshl_b32 s43, s43, 1'), I('s_add_u32 s41, s41, s43'), I('s_and_b32 s41, s41, 0x1ffff')]]
    D=[I('s_mov_b32 s42, 0'), I('s_mov_b32 s24, %d'%(16384-2048))]
    for b in range(6):
        for g in dma_block(): D+=g
    R=[]
    R+=[I('v_lshlrev_b32 v%d, 4, v0'%vK0),
        I('v_bfe_u32 v10, v0, 4, 1'),
        I('v_and_b32 v11, 1, v0'),
        I('v_bfe_u32 v12, v0, 1, 1'),
        I('v_bfe_u32 v13, v0, 2, 2'),
        I('v_lshrrev_b32 v14, 5, v0'),
        I('v_xor_b32 v14, v14, v11'), I('v_lshl_add_u32 v13, v14, 2, v13'),
        I('v_lshl_add_u32 v13, v10, 3, v13'),
        I('v_lshlrev_b32 v13, 4, v13'), I('v_lshl_add_u32 v13, v12, 3, v13'),
        I('v_lshl_add_u32 v13, v11, 9, v13'), I('v_lshl_add_u32 v13, v10, 10, v13'),
        I('v_add_u32 v%d, 2048, v13'%vV00), I('v_xor_b32 v%d, 128, v%d'%(vV10,vV00)),
        I('v_mov_b32 v%d, v%d'%(vK,vK0)), I('v_mov_b32 v%d, v%d'%(vV0,vV00)), I('v_mov_b32 v%d, v%d'%(vV1,vV10)),
        I('v_bfe_u32 v10, v0, 2, 1'), I('v_bfe_u32 v11, v0, 4, 1'), I('v_cmp_eq_u32 vcc, v10, v11'),
        I('v_mov_b32 v10, 0x3f803f80'), I('v_cndmask_b32 v%d, 0, v10, vcc'%ONES)]
    for i in range(1,4): R+=[I('v_mov_b32 v%d, v%d'%(ONES+i,ONES))]
    for r in list(range(OA,OA+40))+list(range(PB,PB+8))+list(range(VB+8,VB+16)): R+=[I('v_mov_b32 v%d, 0'%r)]
    def rdK(i,base): return [I('ds_read_b128 %s, v%d offset:%d'%(vr(KB+8*(i&1)+4*f,4),vK,base+1024*f)) for f in range(2)]
    def rdV(i,base): return [I('ds_read_b64_tr_b16 %s, v%d offset:%d'%(vr(VB+8*(i&1)+4*f+2*u,2),(vV0,vV1)[u],base+256*f)) for f in range(2) for u in range(2)]
    R+=[I('s_mov_b32 s44, 0'), I('s_mov_b32 s45, 0'), I('s_waitcnt vmcnt(23)'), I('s_barrier')]+rdK(0,0)+[I('s_waitcnt lgkmcnt(0)'),
        mf32(SA,KB,Q,'0'), mf32(SA,KB+4,Q+4), I('s_nop 7'), I('s_nop 3')]
    def phase(S_,P_, mf, extra):
        ex=[I('v_exp_f32 v%d, v%d'%(S_+i,S_+i)) for i in range(16)]
        cv=[I('v_cvt_pk_bf16_f32 v%d, v%d, v%d'%(P_+i,S_+2*i,S_+2*i+1)) for i in range(8)]
        pat=opt.get('att_pat',[(3,0),(3,1),(3,2),(3,2),(2,1),(2,2)])
        out=[]; e=0;c=0
        for k,(ne,nc) in enumerate(pat):
            out.append(mf[k]); out+=extra.get(k,[])
            out+=ex[e:e+ne]; e+=ne
            out+=cv[c:c+nc]; c+=nc
        assert e==16 and c==8
        return out
    body=[]
    G=dma_block()
    for i in range(4):
        kb=KB+8*(i&1); kn=KB+8*((i+1)&1); vb=VB+8*(i&1); vp=VB+8*((i+1)&1)
        ex={}
        rv=rdV(i,4096*i)
        if i<3:
            rk=rdK(i+1,4096*(i+1))
            ex={0:rv[:2],1:rv[2:],2:rk[:1],3:rk[1:]}
        else:
            bnd=[I('s_add_u32 s44, s44, 16384'), I('s_and_b32 s44, s44, 0x1ffff'), I('s_add_u32 s45, s45, 1'),
                 I('s_bitcmp1_b32 s45, 0'), I('s_cbranch_scc0 L_att_bnd'), 'L_att_bnd_ret:',
                 I('v_add_u32 v%d, s44, v%d'%(vK,vK0)), I('v_add_u32 v%d, s44, v%d'%(vV0,vV00)), I('v_add_u32 v%d, s44, v%d'%(vV1,vV10))]
            rk=rdK(0,0)
            ex={0:rv[:2],1:rv[2:],2:bnd+rk[:1],3:rk[1:]}
        if i==0: ex.setdefault(4,[]).extend(G[0])
        mfA=[mf32(SB,kb,Q+8,'0'), mf32(SB,kb+4,Q+12), mf32(OB,vp,PB), mf32(OB,vp+4,PB+4), mf16(LB,ONES,PB), mf16(LB,ONES,PB+4)]
        body+=phase(SA,PA,mfA,ex)
        mfB=[mf32(SA,kn,Q,'0'), mf32(SA,kn+4,Q+4), mf32(OA,vb,PA), mf32(OA,vb+4,PA+4), mf16(LA,ONES,PA), mf16(LA,ONES,PA+4)]
        body+=phase(SB,PB,mfB,{1:G[1+i]})
    body=auto_lgkm(body)
    fix_hazards(body+body,auto=False,tag='att_loop')
    loop=['L_att_loop:']+body+[I('s_cmp_lg_u32 s45, 16'), I('s_cbranch_scc1 L_att_loop')]
    tail=[mf32(OB,VB+8,PB), mf32(OB,VB+12,PB+4), mf16(LB,ONES,PB), mf16(LB,ONES,PB+4)]
    bndc=['L_att_bnd:', I('s_waitcnt vmcnt(15) lgkmcnt(0)'), I('s_barrier'),
          I('s_cmp_lg_u32 s45, 8'), I('s_cbranch_scc1 L_att_bnd_ret'), I('s_cmp_lg_u32 s25, 0'), I('s_cbranch_scc1 L_att_bnd_ret'),
          I('s_mov_b64 exec, 1'), I('v_mov_b32 v10, 1'), I('v_mov_b32 v11, 0'), I('buffer_atomic_add v10, v11, s[48:51], 0 offen sc1'), I('s_mov_b64 exec, -1'),
          I('s_branch L_att_bnd_ret')]
    E=[]
    E+=[I('s_lshl_b32 s26, s34, 3'), I('s_lshl_b32 s27, s25, 1'), I('s_add_u32 s26, s26, s27'),
        I('s_lshl_b32 s26, s26, 5'), I('s_add_u32 s26, s26, s33'), I('s_lshl_b32 s46, s26, 11')]
    E+=srd(52,4,5,O_OFF,O_SIZE)
    E+=[I('s_mov_b32 s47, 0')]
    chk=[I('v_mov_b32 v10, 0x1f800000'), I('v_mov_b32 v11, 0x5f800000'), I('v_mov_b32 v12, 0x207')]
    for O_,L_ in ((OA,LA),(OB,LB)):
        chk+=[I('v_cmp_nge_f32 vcc, v%d, v10'%L_), I('s_mov_b64 s[56:57], vcc') if O_==OA else I('s_or_b64 s[56:57], s[56:57], vcc'),
              I('v_cmp_nle_f32 vcc, v%d, v11'%L_), I('s_or_b64 s[56:57], s[56:57], vcc')]
        for i in range(16): chk+=[I('v_cmp_class_f32 vcc, v%d, v12'%(O_+i)), I('s_or_b64 s[56:57], s[56:57], vcc')]
    chk+=[I('s_cmp_lg_u64 s[56:57], 0'), I('s_cbranch_scc1 L_att_fb'), 'L_att_fb_ret:']
    E+=chk
    for k,(O_,L_) in enumerate(((OA,LA),(OB,LB))):
        E+=[I('v_rcp_f32 v10, v%d'%L_)]
        for i in range(8): E+=[I('v_pk_mul_f32 %s, %s, v[10:11] op_sel_hi:[1,0]'%(vr(O_+2*i,2),vr(O_+2*i,2)))]
        for i in range(8): E+=[I('v_cvt_pk_bf16_f32 v%d, v%d, v%d'%(O_+i,O_+2*i,O_+2*i+1))]
        for h in range(2): E+=[I('buffer_store_dwordx4 %s, v%d, s[52:55], s46 offen offset:%d'%(vr(O_+4*h,4),vDK,1024*h))]
        if k==0: E+=[I('s_add_u32 s46, s46, 65536')]
    F=['L_att_fb:', I('s_waitcnt vmcnt(0)'),
       I('s_lshl_b32 s26, s25, 12'), I('s_add_u32 s58, s26, %d'%(SPARE+4096-2048)),
       I('v_add_u32 v%d, s58, v%d'%(vV0,vV00)), I('v_add_u32 v%d, s58, v%d'%(vV1,vV10)), I('s_mov_b32 m0, s58')]
    for k,(O_,L_,Q_) in enumerate(((OA,LA,Q),(OB,LB,Q+8))):
        F+=[I('v_mov_b32 v%d, 0'%(O_+i)) for i in range(16)]
        F+=[I('v_mov_b32 v%d, 0'%L_), I('v_mov_b32 v12, 0xff800000'), I('s_mov_b32 s59, 0'), 'L_att_fbl%d:'%k,
            I('buffer_load_dwordx4 %s, v%d, s[16:19], s59 offen'%(vr(KB,4),vDK)),
            I('buffer_load_dwordx4 %s, v%d, s[16:19], s59 offen offset:1024'%(vr(KB+4,4),vDK)),
            I('buffer_load_dwordx4 v%d, s[20:23], s59 offen offset:2048 lds'%vDV0),
            I('buffer_load_dwordx4 v%d, s[20:23], s59 offen offset:3072 lds'%vDV1),
            I('s_waitcnt vmcnt(0)')]
        F+=rdV(0,0)
        F+=[mf32(SA,KB,Q_,'0'), mf32(SA,KB+4,Q_+4), I('v_max3_f32 v13, v%d, v%d, v12'%(SA,SA+1))]
        for i in range(1,8): F+=[I('v_max3_f32 v13, v%d, v%d, v13'%(SA+2*i,SA+2*i+1))]
        F+=[I('v_mov_b32 v14, v13'), I('v_permlane32_swap_b32 v13, v14'), I('v_max_f32 v13, v13, v14'),
            I('v_sub_f32 v14, v12, v13'), I('v_exp_f32 v14, v14'), I('v_mov_b32 v12, v13')]
        for i in range(16): F+=[I('v_sub_f32 v%d, v%d, v13'%(SA+i,SA+i))]
        for i in range(16): F+=[I('v_exp_f32 v%d, v%d'%(SA+i,SA+i))]
        F+=[I('v_mul_f32 v%d, v%d, v14'%(L_,L_))]
        for i in range(16): F+=[I('v_add_f32 v%d, v%d, v%d'%(L_,L_,SA+i)), I('v_mul_f32 v%d, v%d, v14'%(O_+i,O_+i))]
        for i in range(8): F+=[I('v_cvt_pk_bf16_f32 v%d, v%d, v%d'%(PA+i,SA+2*i,SA+2*i+1))]
        F+=[I('s_waitcnt lgkmcnt(0)'), mf32(O_,VB,PA), mf32(O_,VB+4,PA+4),
            I('s_add_u32 s59, s59, 2048'), I('s_cmp_lg_u32 s59, 131072'), I('s_nop 7'), I('s_nop 7'), I('s_cbranch_scc1 L_att_fbl%d'%k),
            I('v_mov_b32 v14, v%d'%L_), I('v_permlane32_swap_b32 v%d, v14'%L_), I('v_add_f32 v%d, v%d, v14'%(L_,L_))]
    F+=[I('s_branch L_att_fb_ret')]
    return S,D,R,loop,body,tail,E,bndc,F

def gen_gemm2(opt):
    ACC=160; FR=64
    vOA=1; vOB=5; vA=8; vB=16
    S=[]
    S+=[I('s_lshl_b32 s26, s60, 19')]+srd(8,62,63,'s26',128*4096)
    S+=[I('s_lshl_b32 s26, s61, 19'), I('s_add_u32 s26, s26, 0x%x'%Z2N_OFF)]+srd(12,4,5,'s26',4*131072)
    S+=[I('v_lshrrev_b32 v22, 3, v0'), I('v_lshrrev_b32 v23, 4, v0'), I('v_and_b32 v24, 7, v0'),
        I('s_lshl_b32 s26, s25, 17'), I('v_lshlrev_b32 v22, 12, v22'), I('v_add_u32 v22, s26, v22'),
        I('v_xor_b32 v25, v24, v23'), I('v_xor_b32 v26, 4, v25'),
        I('v_lshl_add_u32 v25, v25, 4, v22'), I('v_lshl_add_u32 v26, v26, 4, v22')]
    for i in range(4): S+=[I('v_add_u32 v%d, %d, v%d'%(vOA+i, i*8*4096-i*1024, 25+(i&1)))]
    S+=[I('s_lshr_b32 s26, s25, 1'), I('s_lshl_b32 s26, s26, 11'), I('s_and_b32 s27, s25, 1'), I('s_lshl_b32 s27, s27, 18'), I('s_add_u32 s26, s26, s27'),
        I('v_lshlrev_b32 v22, 4, v0'), I('v_add_u32 v%d, s26, v22'%vOB), I('v_add_u32 v%d, %d, v%d'%(vOB+1,131072-2048,vOB))]
    S+=[I('v_and_b32 v22, 31, v0'), I('v_lshrrev_b32 v23, 5, v0'), I('v_bfe_u32 v24, v0, 1, 3'),
        I('s_lshr_b32 s26, s25, 1'), I('s_lshl_b32 s26, s26, 13'),
        I('v_lshlrev_b32 v22, 7, v22'), I('v_add_u32 v22, s26, v22')]
    for j in range(4):
        S+=[I('v_add_u32 v25, %d, v23'%(2*j)), I('v_xor_b32 v25, v25, v24'), I('v_lshl_add_u32 v%d, v25, 4, v22'%(vA+j)),
            I('v_add_u32 v%d, 65536, v%d'%(vA+4+j,vA+j))]
    S+=[I('v_bfe_u32 v22, v0, 4, 1'),
        I('v_and_b32 v23, 1, v0'),
        I('v_bfe_u32 v24, v0, 1, 1'),
        I('v_bfe_u32 v25, v0, 2, 2'),
        I('v_lshrrev_b32 v26, 5, v0'), I('v_xor_b32 v26, v26, v22'),
        I('v_lshl_add_u32 v25, v26, 3, v25'), I('v_lshl_add_u32 v25, v23, 2, v25'),
        I('v_lshlrev_b32 v25, 4, v25'), I('v_lshl_add_u32 v25, v24, 3, v25'),
        I('v_lshl_add_u32 v25, v23, 9, v25'), I('v_lshl_add_u32 v25, v22, 10, v25'),
        I('s_and_b32 s26, s25, 1'), I('s_lshl_b32 s26, s26, 12'), I('s_add_u32 s26, s26, 16384'),
        I('v_add_u32 v%d, s26, v25'%vB), I('v_xor_b32 v%d, 64, v%d'%(vB+1,vB)),
        I('v_add_u32 v%d, 65536, v%d'%(vB+2,vB)), I('v_add_u32 v%d, 65536, v%d'%(vB+3,vB+1)),
        I('s_lshl_b32 s28, s25, 12'), I('s_mov_b32 s20, 0'), I('s_mov_b32 s21, 0')]
    def dmaA(slot):
        return [[I('s_add_u32 m0, s28, %d'%(slot*32768))]]+[[I('buffer_load_dwordx4 v%d, s[8:11], s20 offen offset:%d lds'%(vOA+i,i*1024))] for i in range(4)]
    def dmaB(slot):
        return [[I('s_add_u32 m0, s28, %d'%(slot*32768+16384))]]+[[I('buffer_load_dwordx4 v%d, s[12:15], s21 offen offset:%d lds'%(vOB+i//2,i*1024))] for i in range(4)]
    def dma(slot):
        a=dmaA(slot); b=dmaB(slot)
        a[-1]+=b[0]+[I('s_add_u32 s20, s20, %d'%(0 if opt.get('g2_fixA') else 128))]; b[-1]+=[I('s_add_u32 s21, s21, %d'%(0 if opt.get('g2_fixB') else 4096))]
        return a+b[1:]
    def reads(slot,j,fs):
        so=(slot&1)*32768; hi=slot>>1; f=FR+16*fs
        L=[I('ds_read_b128 %s, v%d offset:%d'%(vr(f+4*m,4),vA+4*hi+j,so+m*4096)) for m in range(2)]
        for nf in range(2):
            for u in range(2):
                L.append(I('ds_read_b64_tr_b16 %s, v%d offset:%d'%(vr(f+8+4*nf+2*u,2),vB+2*hi+u,so+(j>>1)*8192+nf*2048+(j&1)*256)))
        return [L[2],L[3],L[0],L[1],L[4],L[5]]
    def mfmas(j,fs,c0):
        f=FR+16*fs
        return [mf32(ACC+16*(2*nf+m), f+8+4*nf, f+4*m, '0' if c0 else None) for nf in range(2) for m in range(2)]
    PD=opt.get('g2_pd',2)
    gaps=opt.get('g2_gaps',[-1,0,1,2,3,4,5,6,7])
    pro,main,trace=ring_gemm('g2',32,4,4,mfmas,reads,dma,8,PD,gaps,22,first_c0=True,first_wait=4)
    PA=[];PB_=[]
    for t in range(3):
        for g in dmaA(t): PA+=g
        PA+=[I('s_add_u32 s20, s20, 128')]
        for g in dmaB(t): PB_+=g
        PB_+=[I('s_add_u32 s21, s21, 4096')]
    poll=[I('s_cmp_lg_u32 s25, 0'), I('s_cbranch_scc1 L_g2_go2'), I('s_mov_b64 exec, 1'),
          I('v_mov_b32 v20, 0'), I('s_mov_b32 s27, 0x10000'), 'L_g2_poll:', I('buffer_load_dword v21, v20, s[48:51], 0 offen sc1'), I('s_waitcnt vmcnt(0)'),
          I('v_readfirstlane_b32 s26, v21'), I('s_cmp_ge_u32 s26, 256'), I('s_cbranch_scc1 L_g2_go'), I('s_sleep 4'), I('s_sub_u32 s27, s27, 1'), I('s_cmp_lg_u32 s27, 0'), I('s_cbranch_scc1 L_g2_poll'), 'L_g2_go:',
          I('buffer_inv sc1'), I('s_mov_b64 exec, -1'), I('s_waitcnt vmcnt(0)'), 'L_g2_go2:', I('s_barrier')]
    Z=[I('s_lshl_b32 s26, s61, 2'), I('s_and_b32 s27, s25, 1'), I('s_lshl_b32 s27, s27, 1'), I('s_add_u32 s26, s26, s27'),
       I('s_lshl_b32 s30, s60, 2'), I('s_lshr_b32 s27, s25, 1'), I('s_lshl_b32 s27, s27, 1'), I('s_add_u32 s30, s30, s27'),
       I('s_lshl_b32 s31, s26, 6'), I('s_add_u32 s31, s31, s30'), I('s_lshl_b32 s31, s31, 11'),
       I('s_mul_i32 s32, s30, 56'), I('s_add_u32 s32, s32, s26'), I('s_lshl_b32 s32, s32, 11'),
       I('v_lshlrev_b32 v7, 4, v0')]
    Z+=srd(16,4,5,P1_OFF+96*131072,56*131072)+srd(36,64,65,0,4096)+srd(52,4,5,H_OFF,H_SIZE)
    for nf in range(2):
        for q in range(4): Z+=[I('buffer_load_dwordx4 %s, v7, s[16:19], s31 offen offset:%d'%(vr(128+16*nf+4*q,4),1024*q))]
        if nf==0: Z+=[I('s_add_u32 s31, s31, 131072')]
    Z+=[I('v_and_b32 v22, 31, v0'), I('v_lshlrev_b32 v22, 1, v22'), I('s_lshl_b32 s26, s30, 6'),
        I('v_mov_b32 v28, 0'), I('v_mov_b32 v30, 0'),
        I('buffer_load_short_d16_hi v28, v22, s[36:39], s26 offen'), I('buffer_load_short_d16_hi v30, v22, s[36:39], s26 offen offset:64')]
    E=[I('s_mov_b32 s28, 0x%x'%f2u(GC2)), I('s_mov_b32 s29, s28'), I('v_mov_b32 v8, 0x%x'%f2u(GC1)), I('v_mov_b32 v9, v8')]
    for nf in range(2):
        for m in range(2):
            a=ACC+16*(2*nf+m); z=128+16*nf+8*m
            E+=unpack8(z,64)+unpack8(z+4,72)+gelu_block([64+2*i for i in range(8)],80,8,28)
            for i in range(8): E+=[I('v_pk_add_f32 %s, %s, %s op_sel_hi:[1,0]'%(vr(a+2*i,2),vr(a+2*i,2),vr(28+2*m,2)))]
            for i in range(8): E+=[I('v_pk_mul_f32 %s, %s, %s'%(vr(a+2*i,2),vr(a+2*i,2),vr(64+2*i,2)))]
            for i in range(8): E+=[I('v_cvt_pk_bf16_f32 v%d, v%d, v%d'%(a+i,a+2*i,a+2*i+1))]
            E+=[I('s_add_u32 s26, s32, %d'%(m*56*2048+nf*2048))]
            for h in range(2): E+=[I('buffer_store_dwordx4 %s, v7, s[52:55], s26 offen offset:%d'%(vr(a+4*h,4),1024*h))]
    pre=S+PA+poll+Z+PB_+[I('s_waitcnt vmcnt(8)'), I('s_barrier')]+pro
    return pre,main,trace,E

def gen_k2(name='mid_kernel', opt={}):
    L=kernel_header(name)
    H=[I('s_cmp_ge_u32 s2, 256'), I('s_cbranch_scc1 L_k2_end')]+rt_begin(opt)
    H+=[I('s_load_dwordx2 s[4:5], s[0:1], %d'%KA_WS), I('s_load_dwordx2 s[6:7], s[0:1], %d'%KA_DBG),
        I('s_load_dwordx2 s[62:63], s[0:1], %d'%KA_WSP), I('s_load_dwordx2 s[64:65], s[0:1], %d'%KA_BSP),
        I('v_lshrrev_b32 v1, 6, v0'), I('v_and_b32 v0, 63, v0'), I('s_nop 0'), I('v_readfirstlane_b32 s25, v1'),
        I('s_and_b32 s26, s2, 7'), I('s_bfe_u32 s27, s2, 0x20003'), I('s_lshl_b32 s33, s26, 2'), I('s_add_u32 s33, s33, s27'),
        I('s_lshr_b32 s34, s2, 5'),
        I('s_and_b32 s60, s2, 3'), I('s_lshl_b32 s60, s60, 2'), I('s_add_u32 s60, s60, s27'),
        I('s_bfe_u32 s61, s2, 0x10002'), I('s_mul_i32 s61, s61, 7'), I('s_add_u32 s61, s61, s34'),
        I('s_waitcnt lgkmcnt(0)')]
    H+=srd(48,6,7,0,256)
    Ld,C=gen_slice(opt)
    S,D,R,loop,body,tail,E,bndc,F=gen_attn(opt)
    pre,main,trace,E2=gen_gemm2(opt)
    st=lambda k: ([I('s_memtime s[%d:%d]'%(66+2*k,67+2*k))]+([I('s_waitcnt lgkmcnt(0)')]) if opt.get('stamp') else [])
    p1=H+st(0)+Ld+S+D+[I('s_waitcnt vmcnt(28)')]+C+[I('s_waitcnt vmcnt(31)')]+R
    p2=tail+E+[I('s_cmp_ge_u32 s2, 224'), I('s_cbranch_scc1 L_k2_fin'), I('s_waitcnt vmcnt(4)'), I('s_barrier')]
    fin=['L_k2_fin:']
    if opt.get('stamp'):
        fin+=[I('s_waitcnt vmcnt(0)')]+st(5)+[I('s_cmp_lg_u32 s2, %d'%opt.get('stamp_wg',0)), I('s_cbranch_scc1 L_k2_nost'), I('s_lshl_b32 s26, s25, 5'), I('s_add_u32 s26, s26, 64'), I('v_mov_b32 v1, s26')]
        for k in range(5): fin+=[I('s_sub_u32 s26, s%d, s%d'%(68+2*k,66+2*k)), I('v_mov_b32 v2, s26'), I('buffer_store_dword v2, v1, s[48:51], 0 offen offset:%d'%(4*k))]
        fin+=['L_k2_nost:']
    fin+=rt_end(opt,2,'k2')+['L_k2_end:', I('s_endpgm')]
    code=p1+st(1)+loop+st(2)+p2+pre+st(3)+main+st(4)+E2+fin+bndc+F
    code,_=fix_hazards(code)
    tr,_=fix_hazards(p1+body+body+p2+pre+trace+E2)
    check_waits(tr,'k2')
    tr,_=fix_hazards(F); check_waits(tr,'k2fb')
    return L+code, kernel_desc(name,224,224,96), '; @launch kernel=%s grid=(256,1,1) block=(256,1,1) lds=163840'%name
```

```python
from common import *
def gen_k3(name='out_kernel', opt={}):
    L=kernel_header(name)
    vOB=1; vA=5; vB=7; vX=9
    FR=16; ACC=48; SS=80; XR=112; T=128
    PD=opt.get('k3_pd',2)
    st=lambda k: ([I('s_memtime s[%d:%d]'%(66+2*k,67+2*k)), I('s_waitcnt lgkmcnt(0)')] if opt.get('stamp') else [])
    H=[I('s_cmp_ge_u32 s2, 256'), I('s_cbranch_scc1 L_k3_end')]+rt_begin(opt)
    H+=[I('s_load_dwordx2 s[4:5], s[0:1], %d'%KA_WS), I('s_load_dwordx2 s[6:7], s[0:1], %d'%KA_WO), I('s_load_dwordx2 s[36:37], s[0:1], %d'%KA_WOUT),
        I('s_load_dwordx2 s[38:39], s[0:1], %d'%KA_X), I('s_load_dwordx2 s[40:41], s[0:1], %d'%KA_OUT),
        I('v_lshrrev_b32 v1, 6, v0'), I('v_and_b32 v0, 63, v0'), I('s_nop 0'), I('v_readfirstlane_b32 s25, v1'),
        I('s_and_b32 s26, s2, 3'), I('s_lshl_b32 s26, s26, 2'), I('s_bfe_u32 s27, s2, 0x20003'), I('s_add_u32 s33, s26, s27'),
        I('s_bfe_u32 s26, s2, 0x10002'), I('s_lshl_b32 s26, s26, 3'), I('s_lshr_b32 s27, s2, 5'), I('s_add_u32 s34, s26, s27'),
        I('s_lshl_b32 s35, s33, 2'), I('s_add_u32 s35, s35, s25'),
        I('v_lshrrev_b32 v10, 3, v0'), I('s_lshl_b32 s26, s25, 5'), I('v_add_u32 v10, s26, v10'), I('v_lshlrev_b32 v10, 11, v10'),
        I('v_and_b32 v11, 7, v0'), I('v_bfe_u32 v12, v0, 4, 1'), I('v_lshlrev_b32 v12, 2, v12'), I('v_xor_b32 v11, v11, v12'),
        I('v_lshl_add_u32 v%d, v11, 4, v10'%vOB)]
    for i in range(1,4): H+=[I('v_add_u32 v%d, %d, v%d'%(vOB+i,i*(8*2048-1024),vOB))]
    H+=[I('v_lshlrev_b32 v%d, 4, v0'%vA), I('v_add_u32 v%d, 4096, v%d'%(vA+1,vA)),
        I('s_lshl_b32 s28, s25, 12'),
        I('s_lshl_b32 s29, s34, 7'),
        I('s_lshl_b32 s30, s35, 16'), I('s_add_u32 s30, s30, 0x%x'%O_OFF), I('s_mul_i32 s31, s35, %d'%(56*2048)), I('s_add_u32 s31, s31, 0x%x'%H_OFF),
        I('s_mov_b32 s20, 0'), I('s_mov_b32 s21, 0'),
        I('s_waitcnt lgkmcnt(0)')]
    H+=srd(8,4,5,'s30',65536)
    H+=[I('s_sub_u32 s26, 0x200000, s29')]+srd(12,6,7,'s29','s26')
    def ldA(sl):
        G=[[I('buffer_load_dwordx4 %s, v%d, s[8:11], s20 offen offset:%d'%(ar(32*sl+4*i,4),vA+i//4,(i%4)*1024))] for i in range(8)]
        G[-1]+=[I('s_add_u32 s20, s20, %d'%(0 if opt.get('k3_fixA') else 8192))]
        return G
    def dmaB(sl):
        G=[[I('buffer_load_dwordx4 v%d, s[12:15], s21 offen offset:%d lds'%(vOB+i,i*1024))] for i in range(4)]
        G[-1]+=[I('s_add_u32 s21, s21, %d'%(0 if opt.get('k3_fixB') else 128*2048))]
        return [[I('s_add_u32 m0, s28, %d'%(sl*16384))]]+G
    P=[]
    for t in range(3):
        for g in dmaB(t)+ldA(t): P+=g
    P+=srd(44,4,5,'s31',56*2048)+[I('s_sub_u32 s26, 0x380000, s29')]+srd(48,36,37,'s29','s26')
    P+=srd(52,38,39,0,0x400000)+srd(56,40,41,0,0x400000)
    P+=[I('s_lshl_b32 s32, s35, 16'), I('s_add_u32 s32, s32, s29'),
        I('v_and_b32 v10, 31, v0'), I('v_lshlrev_b32 v10, 11, v10'), I('v_lshrrev_b32 v11, 5, v0'), I('v_lshl_add_u32 v%d, v11, 4, v10'%vX),
        I('v_bfe_u32 v10, v0, 2, 2'), I('v_lshl_add_u32 v10, v11, 2, v10'), I('v_lshlrev_b32 v10, 7, v10'),
        I('v_bfe_u32 v11, v0, 3, 1'), I('v_lshl_add_u32 v10, v11, 6, v10'),
        I('v_bfe_u32 v11, v0, 4, 1'), I('v_lshl_add_u32 v10, v11, 5, v10'),
        I('v_and_b32 v11, 3, v0'), I('v_lshl_add_u32 v%d, v11, 3, v10'%vB), I('v_xor_b32 v%d, 64, v%d'%(vB+1,vB))]
    for r in range(ACC,ACC+32): P+=[I('v_mov_b32 v%d, 0'%r)]
    def reads(sl,j):
        f=FR+8*(j%4)
        return [I('ds_read_b64_tr_b16 %s, v%d offset:%d'%(vr(f+4*nf+2*u,2),vB+nf,sl*16384+j*2048+u*1024)) for nf in range(2) for u in range(2)]
    def mf(sl,j,nf): return I('v_mfma_f32_32x32x16_bf16 %s, %s, %s, %s'%(vr(ACC+16*nf,16),vr(FR+8*(j%4)+4*nf,4),ar(32*sl+4*j,4),vr(ACC+16*nf,16)))
    P+=[I('s_mov_b32 s22, 0'), I('s_waitcnt vmcnt(24)'), I('s_barrier')]
    for j in range(PD): P+=reads(0,j)
    P+=[I('s_waitcnt lgkmcnt(0)')]
    def tile(kt, loads, nxt, wait, pre=[], preB=[]):
        sl=kt%4
        spine=[mf(sl,j,nf) for j in range(8) for nf in range(2)]
        fill={}
        def add(g,x): fill.setdefault(g,[]).extend(x)
        add(-1,pre)
        gb=2*(8-PD)-1
        if nxt: add(gb,[I('s_waitcnt vmcnt(%d)'%wait), I('s_barrier')])
        for j in range(8):
            jj=j+PD
            R = reads(sl,jj) if jj<8 else (reads((sl+1)%4,jj-8) if nxt else [])
            add(2*j,R[:2]); add(2*j+1,R[2:])
        if loads:
            pos=[(k*(gb+1))//8 for k in range(8)]
            for p,g in zip(pos,ldA((sl+3)%4)): add(p,g)
            G=dmaB((sl+3)%4)
            add(gb,preB+G[0])
            n=16-(gb+1)
            for k,g in enumerate(G[1:]): add(gb+1+(k*n)//4,g)
        return interleave(spine,fill)
    swA=[I('s_cmp_lg_u32 s22, 1'), I('s_cbranch_scc1 L_k3_ns'),
         I('s_mov_b64 s[8:9], s[44:45]'), I('s_mov_b32 s10, s46'), I('s_mov_b32 s20, 0'),
         I('s_mov_b64 s[12:13], s[48:49]'), I('s_mov_b32 s14, s50'), I('s_mov_b32 s21, 0'), 'L_k3_ns:']
    body=tile(0,True,True,20)+tile(1,True,True,20,pre=swA)+tile(2,True,True,20)+tile(3,True,True,20)
    body=auto_lgkm(body)
    fix_hazards(body+body,auto=False,tag='k3loop')
    mv=[I('s_nop 7'), I('s_nop 7')]+[I('v_mov_b32 v%d, v%d'%(SS+i,ACC+i)) for i in range(32)]+[I('v_mov_b32 v%d, 0'%(ACC+i)) for i in range(32)]+[I('s_nop 1')]
    loop=['L_k3_loop:']+body+[I('s_add_u32 s22, s22, 1'), I('s_cmp_lg_u32 s22, 2'), I('s_cbranch_scc1 L_k3_nm')]+mv+['L_k3_nm:', I('s_cmp_lg_u32 s22, 5'), I('s_cbranch_scc1 L_k3_loop')]
    xl=[I('buffer_load_dwordx4 %s, v%d, s[52:55], s32 offen offset:%d'%(vr(XR+4*q,4),vX,32*q)) for q in range(4)]
    tail=tile(20,False,True,16,pre=xl)+tile(21,False,False,0)
    tail=auto_lgkm(tail,pre=body)
    E=[I('s_waitcnt vmcnt(0)'), I('s_mov_b32 s26, 0x%x'%f2u(-math.log2(math.e))), I('s_mov_b32 s27, s26')]
    for q in range(4):
        E+=[I('v_permlane32_swap_b32 v%d, v%d'%(XR+4*q,XR+4*q+2)), I('v_permlane32_swap_b32 v%d, v%d'%(XR+4*q+1,XR+4*q+3))]
    p=lambda b: vr(b,2)
    for nf in range(2):
        y=ACC+16*nf; s=SS+16*nf
        for i in range(8): E+=[I('v_pk_mul_f32 %s, %s, s[26:27]'%(p(T+2*i),p(y+2*i)))]
        for i in range(16): E+=[I('v_exp_f32 v%d, v%d'%(T+i,T+i))]
        for i in range(8): E+=[I('v_pk_add_f32 %s, %s, 1.0 op_sel_hi:[1,0]'%(p(T+2*i),p(T+2*i)))]
        for i in range(16): E+=[I('v_rcp_f32 v%d, v%d'%(T+i,T+i))]
        for i in range(8): E+=[I('v_pk_mul_f32 %s, %s, %s'%(p(y+2*i),p(y+2*i),p(T+2*i)))]
        E+=unpack8(XR+8*nf,T)+unpack8(XR+8*nf+4,T+8)
        for i in range(8): E+=[I('v_pk_fma_f32 %s, %s, %s, %s'%(p(y+2*i),p(y+2*i),p(s+2*i),p(T+2*i)))]
        for i in range(8): E+=[I('v_cvt_pk_bf16_f32 v%d, v%d, v%d'%(y+i,y+2*i,y+2*i+1))]
        for h in range(2):
            E+=[I('v_permlane32_swap_b32 v%d, v%d'%(y+4*h,y+4*h+2)), I('v_permlane32_swap_b32 v%d, v%d'%(y+4*h+1,y+4*h+3))]
        for h in range(2):
            E+=[I('buffer_store_dwordx4 %s, v%d, s[56:59], s32 offen offset:%d'%(vr(y+4*h,4),vX,64*nf+32*h))]
    fin=[]
    if opt.get('stamp'):
        fin+=[I('s_waitcnt vmcnt(0)')]+st(4)+[I('s_cmp_lg_u32 s2, %d'%opt.get('stamp_wg',0)), I('s_cbranch_scc1 L_k3_nost'),
            I('s_load_dwordx2 s[36:37], s[0:1], %d'%KA_DBG), I('s_waitcnt lgkmcnt(0)')]+srd(52,36,37,0,256)
        fin+=[I('s_lshl_b32 s26, s25, 4'), I('v_mov_b32 v1, s26')]
        for k in range(4): fin+=[I('s_sub_u32 s26, s%d, s%d'%(68+2*k,66+2*k)), I('v_mov_b32 v2, s26'), I('buffer_store_dword v2, v1, s[52:55], 0 offen offset:%d'%(4*k))]
        fin+=['L_k3_nost:']
    fin+=rt_end(opt,opt.get('k3_idx',3),'k3')+['L_k3_end:', I('s_endpgm')]
    code=H+st(0)+P+st(1)+loop+st(2)+tail+st(3)+E+fin
    code,_=fix_hazards(code)
    tr,_=fix_hazards(H+P+body+body+mv+body+tail+E)
    check_waits(tr,'k3')
    return L+code, kernel_desc(name,144+128,144,96), '; @launch kernel=%s grid=(256,1,1) block=(256,1,1) lds=65536'%name
```

```python
import sys
from build import *
from k0 import gen_k0
from k1 import gen_k1
from k2c import gen_k2c
from k3 import gen_k3
opt=json.loads(sys.argv[2]) if len(sys.argv)>2 else {}
o1=dict(opt); o1.setdefault('dma_stride',2)
assemble([gen_k0(opt=opt),gen_k1(opt=o1),gen_k2c(opt=opt),gen_k3(opt=opt)], sys.argv[1])
```

```python
from asmlib import *
import re
XN_OFF  = 0x0000000
P1_OFF  = 0x0400000
Z2N_OFF = 0x2000000
O_OFF   = 0x2800000
H_OFF   = 0x2C00000
FLAG_OFF= 0x3400000
P1_SIZE = 208*64*2048
Z2N_SIZE= 56*64*2048
O_SIZE  = 64*32*2048
H_SIZE  = 64*56*2048
KA_X, KA_WQKV, KA_WO, KA_BX, KA_WIN, KA_WSP, KA_BSP, KA_WOUT, KA_OUT, KA_DBG, KA_WS = [8*i for i in range(11)]

def I(s): return '    '+s

def srd(d, lo, hi, off, size):
    L=[]
    if off==0 or off is None:
        L+= [I('s_mov_b32 s%d, s%d'%(d,lo)), I('s_mov_b32 s%d, s%d'%(d+1,hi))]
    else:
        o = off if isinstance(off,str) else hex(off)
        L+= [I('s_add_u32 s%d, s%d, %s'%(d,lo,o)), I('s_addc_u32 s%d, s%d, 0'%(d+1,hi))]
    sz = size if isinstance(size,str) else hex(size)
    L+= [I('s_mov_b32 s%d, %s'%(d+2,sz)), I('s_mov_b32 s%d, 0x20000'%(d+3))]
    return L

def auto_lgkm(body, pre=None):
    pre = body if pre is None else pre
    q=[]
    def step(ln, out):
        nonlocal q
        if not is_instr(ln):
            if out is not None: out.append(ln)
            return
        c=Ins(ln)
        if c.op=='s_waitcnt':
            m=re.search(r'lgkmcnt\((\d+)\)',ln.split(';')[0])
            if m:
                n=int(m.group(1))
                while len(q)>n: q.pop(0)
        else:
            touched=set(c.r)|(set(c.w) if c.kind!='ds' else set())
            idx=-1
            for i,e in enumerate(q):
                if e&touched: idx=i
            if idx>=0:
                n=min(len(q)-1-idx,15)
                if out is not None: out.append(I('s_waitcnt lgkmcnt(%d)'%n))
                while len(q)>n: q.pop(0)
            if c.kind in ('ds','dsw') and len(q)>=15:
                if out is not None: out.append(I('s_waitcnt lgkmcnt(14)'))
                while len(q)>14: q.pop(0)
            if c.kind=='ds': q.append(set(c.w))
            elif c.kind=='dsw': q.append(set())
            assert c.kind!='smem' or c.op in ('s_memtime','s_memrealtime')
        if out is not None: out.append(ln)
    for ln in pre: step(ln,None)
    out=[]
    for ln in body: step(ln,out)
    return out

def wave_sum(v,t):
    return [I('v_add_f32_dpp v%d, v%d, v%d quad_perm:[1,0,3,2] row_mask:0xf bank_mask:0xf'%(v,v,v)),
            I('v_add_f32_dpp v%d, v%d, v%d quad_perm:[2,3,0,1] row_mask:0xf bank_mask:0xf'%(v,v,v)),
            I('v_add_f32_dpp v%d, v%d, v%d row_half_mirror row_mask:0xf bank_mask:0xf'%(v,v,v)),
            I('v_add_f32_dpp v%d, v%d, v%d row_mirror row_mask:0xf bank_mask:0xf'%(v,v,v)),
            I('v_mov_b32 v%d, v%d'%(t,v)), I('v_permlane16_swap_b32 v%d, v%d'%(v,t)), I('v_add_f32 v%d, v%d, v%d'%(v,v,t)),
            I('v_mov_b32 v%d, v%d'%(t,v)), I('v_permlane32_swap_b32 v%d, v%d'%(v,t)), I('v_add_f32 v%d, v%d, v%d'%(v,v,t))]

ST_OFF = 0x8000000
def rt_begin(opt, sreg=90):
    if not opt.get('rt'): return []
    return [I('s_memrealtime s[%d:%d]'%(sreg,sreg+1)), I('s_memtime s[%d:%d]'%(sreg+2,sreg+3))]
def rt_end(opt, kidx, tag, wavereg=None, sreg=90, drain=True):
    if not opt.get('rt'): return []
    L=[]
    if drain: L+=[I('s_waitcnt vmcnt(0)')]
    L+=[I('s_memrealtime s[76:77]'), I('s_memtime s[78:79]'), I('s_load_dwordx2 s[80:81], s[0:1], %d'%KA_WS), I('s_waitcnt lgkmcnt(0)')]
    L+=srd(84,80,81,ST_OFF+kidx*65536,65536)
    L+=[I('s_lshl_b32 s82, s2, 4'), I('v_mov_b32 v1, s82'), I('v_mov_b32 v2, s%d'%sreg), I('v_mov_b32 v3, s76'), I('v_mov_b32 v4, s%d'%(sreg+2)), I('v_mov_b32 v5, s78'),
        I('s_nop 1'), I('buffer_store_dwordx4 v[2:5], v1, s[84:87], 0 offen')]
    return L

def ring_gemm(tag, ntiles, nslot, steps, mfmas, reads, dma, vm_per_tile, PD, dma_gaps, loop_sreg, extra_vm_before=0, first_c0=False, fillers=None, first_wait=None):
    NSETS=steps
    def tile(kt_mod, do_dma, has_next, c0=False, last_wait=None, fl=None, carry_in=True):
        slot=kt_mod%nslot
        spine=[]; fill={}
        def add(g,x): fill.setdefault(g,[]).extend(x)
        starts=[]
        for j in range(steps):
            starts.append(len(spine)); spine+=mfmas(j,j%NSETS,c0 and j==0)
        n=len(spine); per=n//steps
        for j in range(steps):
            jj=j+PD
            if jj<steps: R=reads(slot,jj,jj%NSETS)
            elif has_next: R=reads((slot+1)%nslot,jj-steps,jj%NSETS)
            else: R=[]
            g0=starts[j]
            if jj==steps and has_next:
                w = vm_per_tile*(nslot-3) if last_wait is None else last_wait
                add(g0-1 if g0>0 else -1,[I('s_waitcnt vmcnt(%d)'%w), I('s_barrier')])
            for k,r in enumerate(R): add(g0+(k*per)//len(R), [r])
        gb=starts[steps-PD]
        pos=[gb+x for x in dma_gaps]
        assert pos[-1]<n+gb-1
        if carry_in:
            G=dma((slot+nslot-2)%nslot)
            for p,g in zip(pos,G):
                if p>=n: add(p-n,g)
        if do_dma:
            G=dma((slot+nslot-1)%nslot)
            assert len(pos)==len(G)
            for p,g in zip(pos,G):
                if p<n: add(p,g)
        if fl:
            for g,x in fl.items(): add(g,x)
        return interleave(spine,fill)
    pro=[]
    for j in range(PD): pro+=reads(0,j,j%NSETS)
    pro+=[I('s_waitcnt lgkmcnt(0)')]
    nd=ntiles-nslot+1
    seq=[]
    k=0
    if first_c0:
        seq.append(('code',tile(0,True,True,c0=True,last_wait=first_wait,carry_in=False))); k=1
    nloop=(nd-k)//nslot
    body=[]
    for t in range(nslot): body+=tile(k+t,True,True)
    rest=[]
    kk=k+nloop*nslot
    while kk<ntiles:
        rem=ntiles-1-kk
        dd = kk<nd
        lw = None if dd else vm_per_tile*max(rem-1,0)
        rest+=tile(kk,dd,rem>0,last_wait=lw, fl=(fillers(kk) if fillers else None), carry_in=(kk<=nd))
        kk+=1
    head=[]
    for _,c in seq: head+=c
    head=auto_lgkm(head,pre=[])
    bodyw=auto_lgkm(body)
    restw=auto_lgkm(rest,pre=bodyw)
    Lp='L_%s_loop'%tag
    main=head+[I('s_mov_b32 s%d, %d'%(loop_sreg,nloop)), Lp+':']+bodyw+[I('s_sub_u32 s%d, s%d, 1'%(loop_sreg,loop_sreg)), I('s_cmp_lg_u32 s%d, 0'%loop_sreg), I('s_cbranch_scc1 %s'%Lp)]+restw
    trace=head+bodyw+bodyw+restw
    fix_hazards(bodyw+bodyw,auto=False,tag=tag+'_loop')
    return pro, main, trace

import struct, math
def f2u(x): return struct.unpack('<I',struct.pack('<f',x))[0]
GC1 = -2.0*math.sqrt(2.0/math.pi)*math.log2(math.e)
GC2 = GC1*0.044715
def gelu_pair(x, t, sC1, sC2):
    raise NotImplementedError
def gelu_block(xs, tmp, vC1, sC2pair):
    L=[]
    T=[tmp+2*i for i in range(len(xs))]
    p=lambda b: vr(b,2)
    for x,t in zip(xs,T): L.append(I('v_pk_mul_f32 %s, %s, %s'%(p(t),p(x),p(x))))
    for x,t in zip(xs,T): L.append(I('v_pk_fma_f32 %s, %s, %s, %s'%(p(t),p(t),sr(sC2pair,2),p(vC1))))
    for x,t in zip(xs,T): L.append(I('v_pk_mul_f32 %s, %s, %s'%(p(t),p(t),p(x))))
    for x,t in zip(xs,T): L+= [I('v_exp_f32 v%d, v%d'%(t,t)), I('v_exp_f32 v%d, v%d'%(t+1,t+1))]
    for x,t in zip(xs,T): L.append(I('v_pk_add_f32 %s, %s, 1.0 op_sel_hi:[1,0]'%(p(t),p(t))))
    for x,t in zip(xs,T): L+= [I('v_rcp_f32 v%d, v%d'%(t,t)), I('v_rcp_f32 v%d, v%d'%(t+1,t+1))]
    for x,t in zip(xs,T): L.append(I('v_pk_mul_f32 %s, %s, %s'%(p(x),p(x),p(t))))
    return L
def unpack8(src, dst):
    L=[]
    for i in range(4):
        L+=[I('v_lshlrev_b32 v%d, 16, v%d'%(dst+2*i,src+i)), I('v_and_b32 v%d, 0xffff0000, v%d'%(dst+2*i+1,src+i))]
    return L
```

```python
from common import *
from k2 import unswz_z2n, mf32, mf16
SPARE=131072
Q=16; KB=32; VB=48; SA=64; SB=80; PA=96; PB=104; OA=112; OB=128; LA=144; LB=148; ONES=152
vK0,vV00,vV10, vK,vV0,vV1 = 1,2,3,4,5,6
vD=7
vL16=11
vST=156
vOA=224; vOB=228; vA=230; vB=242; vBIAS=248
ACC=160; FR=64
REG=[0,32768,65536,131072,98304]

def gen_k2c(name='mid_kernel', opt={}):
    L=kernel_header(name)
    def st(k): return [I('s_memtime s[%d:%d]'%(78+2*k,79+2*k)), I('s_waitcnt lgkmcnt(0)')] if opt.get('stamp') and not opt.get('itst') else []
    H=[I('s_cmp_ge_u32 s2, 256'), I('s_cbranch_scc1 L_k2_end')]+rt_begin(opt)
    H+=[I('s_load_dwordx2 s[4:5], s[0:1], %d'%KA_WS),
        I('s_load_dwordx2 s[62:63], s[0:1], %d'%KA_WSP), I('s_load_dwordx2 s[64:65], s[0:1], %d'%KA_BSP),
        I('s_load_dwordx2 s[66:67], s[0:1], %d'%KA_WO), I('s_load_dwordx2 s[68:69], s[0:1], %d'%KA_WOUT),
        I('v_lshrrev_b32 v1, 6, v0'), I('v_and_b32 v0, 63, v0'), I('s_nop 0'), I('v_readfirstlane_b32 s25, v1'),
        I('s_and_b32 s26, s2, 7'), I('s_bfe_u32 s27, s2, 0x20003'), I('s_lshl_b32 s33, s26, 2'), I('s_add_u32 s33, s33, s27'),
        I('s_lshr_b32 s34, s2, 5'),
        I('s_and_b32 s60, s2, 3'), I('s_lshl_b32 s60, s60, 2'), I('s_add_u32 s60, s60, s27'),
        I('s_bfe_u32 s61, s2, 0x10002'), I('s_mul_i32 s61, s61, 7'), I('s_add_u32 s61, s61, s34'),
        I('s_and_b32 s42, s25, 3'), I('s_lshr_b32 s43, s25, 2'),
        I('v_lshlrev_b32 v%d, 4, v0'%vL16),
        I('s_lshl_b32 s30, s34, 14'), I('s_lshl_b32 s27, s42, 12'), I('s_add_u32 s30, s30, s27'),
        I('s_lshl_b32 s40, s25, 11'), I('s_lshl_b32 s41, s25, 12'), I('s_mov_b32 s24, 16384')]
    kvv=[I('v_mov_b32 v%d, v%d'%(vD,vL16)), I('v_mov_b32 v%d, v%d'%(vD+1,vL16)),
        I('v_lshrrev_b32 v12, 5, v0'), I('v_lshlrev_b32 v12, 6, v12'),
        I('v_xor_b32 v%d, v%d, v12'%(vD+2,vL16)), I('v_xor_b32 v%d, 128, v%d'%(vD+3,vD+2))]
    H+=kvv
    H+=[I('s_lshr_b32 s35, s2, 2'), I('s_lshl_b32 s35, s35, 11'), I('s_lshl_b32 s27, s25, 20'), I('s_add_u32 s35, s35, s27'),
        I('s_and_b32 s27, s2, 3'), I('s_lshl_b32 s27, s27, 3'),
        I('v_lshrrev_b32 v2, 5, v0'), I('v_lshlrev_b32 v2, 17, v2'),
        I('v_bfe_u32 v3, v0, 3, 2'), I('v_lshl_add_u32 v2, v3, 9, v2'),
        I('v_and_b32 v4, 7, v0'), I('v_add_u32 v4, s27, v4'),
        I('v_lshl_add_u32 v159, v4, 4, v2'),
        I('v_lshlrev_b32 v3, 2, v3'), I('v_xor_b32 v4, v4, v3'), I('v_lshl_add_u32 v%d, v4, 4, v2'%vST),
        I('s_lshl_b32 s26, s33, 17'), I('s_add_u32 s27, s26, 0x%x'%P1_OFF), I('s_mov_b32 m0, s41'),
        I('s_waitcnt lgkmcnt(0)')]
    H+=st(0)
    H+=srd(36,4,5,'s27',131072)
    for i in range(4): H+=[I('buffer_load_dwordx4 %s, v%d, s[36:39], s30 offen offset:%d'%(vr(Q+4*i,4),vL16,1024*i))]
    kvsrd=[I('s_lshl_b32 s26, s33, 17'), I('s_add_u32 s27, s26, 0x%x'%(P1_OFF+32*131072))]+srd(16,4,5,'s27',131072)
    kvsrd+=[I('s_add_u32 s27, s26, 0x%x'%(P1_OFF+64*131072-2048))]+srd(20,4,5,'s27',131072+2048)
    H+=kvsrd
    def dma4(): return [I('buffer_load_dwordx4 v%d, s[%d:%d], s40 offen offset:%d lds'%(vD+i,16+4*(i//2),19+4*(i//2),1024*i)) for i in range(4)]
    adv=[I('s_add_u32 s40, s40, s24'), I('s_add_u32 s41, s41, 32768'), I('s_and_b32 s41, s41, 0x1ffff')]
    H+=dma4()+adv
    LD=160; X=176; T=208
    H2=[I('s_mov_b32 m0, s41'), I('s_mov_b32 s27, s35')]+dma4()+adv
    for t in range(4):
        H2+=[I('buffer_load_dwordx4 %s, v159, s[8:11], s27 offen'%vr(LD+4*t,4))]
        if t<3: H2+=[I('s_add_u32 s27, s27, 262144')]
    H2+=[I('s_mov_b32 m0, s41'), I('s_nop 0')]+dma4()+adv
    H+=srd(8,4,5,P1_OFF+152*131072,56*131072)
    LATE=opt.get('late',1)
    if not LATE: H+=H2
    S=srd(48,4,5,FLAG_OFF,2048)+srd(12,4,5,Z2N_OFF,Z2N_SIZE)+srd(52,4,5,O_OFF,O_SIZE)
    S+=[I('s_lshl_b32 s26, s60, 19')]+srd(70,62,63,'s26',128*4096)[:2]
    S+=[I('s_lshl_b32 s26, s61, 19'), I('s_add_u32 s26, s26, 0x%x'%Z2N_OFF), I('s_add_u32 s72, s4, s26'), I('s_addc_u32 s73, s5, 0')]
    S+=[I('s_lshl_b32 s26, s34, 3'), I('s_lshl_b32 s27, s42, 1'), I('s_add_u32 s26, s26, s27'), I('s_add_u32 s26, s26, s43'),
        I('s_lshl_b32 s26, s26, 5'), I('s_add_u32 s26, s26, s33'), I('s_lshl_b32 s46, s26, 11')]
    S+=[I('s_lshl_b32 s26, s43, 14'), I('v_add_u32 v%d, s26, v%d'%(vK0,vL16)),
        I('v_bfe_u32 v12, v0, 4, 1'), I('v_and_b32 v13, 1, v0'), I('v_bfe_u32 v14, v0, 1, 1'), I('v_bfe_u32 v15, v0, 2, 2'), I('v_lshrrev_b32 v2, 5, v0'),
        I('v_xor_b32 v2, v2, v13'), I('v_lshl_add_u32 v15, v2, 2, v15'), I('v_lshl_add_u32 v15, v12, 3, v15'),
        I('v_lshlrev_b32 v15, 4, v15'), I('v_lshl_add_u32 v15, v14, 3, v15'),
        I('v_lshl_add_u32 v15, v13, 9, v15'), I('v_lshl_add_u32 v15, v12, 10, v15'),
        I('s_add_u32 s26, s26, 2048'), I('v_add_u32 v%d, s26, v15'%vV00), I('v_xor_b32 v%d, 128, v%d'%(vV10,vV00)),
        I('v_bfe_u32 v13, v0, 2, 1'), I('v_cmp_eq_u32 vcc, v13, v12'),
        I('v_mov_b32 v13, 0x3f803f80'), I('v_cndmask_b32 v%d, 0, v13, vcc'%ONES)]
    for i in range(1,4): S+=[I('v_mov_b32 v%d, v%d'%(ONES+i,ONES))]
    for r in list(range(OA,OA+40))+list(range(PB,PB+8))+list(range(VB+8,VB+16)): S+=[I('v_mov_b32 v%d, 0'%r)]
    S+=[I('v_lshrrev_b32 v12, 3, v0'), I('v_lshrrev_b32 v13, 4, v0'), I('v_and_b32 v14, 7, v0'),
        I('s_lshl_b32 s26, s42, 17'), I('v_lshlrev_b32 v12, 12, v12'), I('v_add_u32 v12, s26, v12'),
        I('v_xor_b32 v14, v14, v13'), I('v_xor_b32 v15, 4, v14'),
        I('v_lshl_add_u32 v14, v14, 4, v12'), I('v_lshl_add_u32 v15, v15, 4, v12')]
    for i in range(4): S+=[I('v_add_u32 v%d, %d, v%d'%(vOA+i, i*8*4096-i*1024, 14+(i&1)))]
    S+=[I('s_lshr_b32 s26, s42, 1'), I('s_lshl_b32 s26, s26, 11'), I('s_and_b32 s27, s42, 1'), I('s_lshl_b32 s27, s27, 18'), I('s_add_u32 s26, s26, s27'),
        I('v_add_u32 v%d, s26, v%d'%(vOB,vL16)), I('v_add_u32 v%d, %d, v%d'%(vOB+1,131072-2048,vOB))]
    S+=[I('v_and_b32 v12, 31, v0'), I('v_lshrrev_b32 v13, 5, v0'), I('v_bfe_u32 v14, v0, 1, 3'),
        I('s_lshr_b32 s26, s42, 1'), I('s_lshl_b32 s26, s26, 13'),
        I('v_lshlrev_b32 v12, 7, v12'), I('v_add_u32 v12, s26, v12')]
    for j in range(4):
        S+=[I('v_add_u32 v15, %d, v13'%(2*j)), I('v_xor_b32 v15, v15, v14'), I('v_lshl_add_u32 v%d, v15, 4, v12'%(vA+j)),
            I('v_add_u32 v%d, 65536, v%d'%(vA+4+j,vA+j)), I('v_add_u32 v%d, 131072, v%d'%(vA+8+j,vA+j))]
    S+=[I('v_bfe_u32 v12, v0, 4, 1'), I('v_and_b32 v13, 1, v0'), I('v_bfe_u32 v14, v0, 1, 1'), I('v_bfe_u32 v15, v0, 2, 2'),
        I('v_lshrrev_b32 v4, 5, v0'), I('v_xor_b32 v4, v4, v12'),
        I('v_lshl_add_u32 v15, v4, 3, v15'), I('v_lshl_add_u32 v15, v13, 2, v15'),
        I('v_lshlrev_b32 v15, 4, v15'), I('v_lshl_add_u32 v15, v14, 3, v15'),
        I('v_lshl_add_u32 v15, v13, 9, v15'), I('v_lshl_add_u32 v15, v12, 10, v15'),
        I('s_and_b32 s26, s42, 1'), I('s_lshl_b32 s26, s26, 12'), I('s_add_u32 s26, s26, 16384'),
        I('v_add_u32 v%d, s26, v15'%vB), I('v_xor_b32 v%d, 64, v%d'%(vB+1,vB))]
    for k in (1,2): S+=[I('v_add_u32 v%d, %d, v%d'%(vB+2*k+u,65536*k,vB+u)) for u in range(2)]
    S+=[I('s_lshl_b32 s26, s61, 2'), I('s_and_b32 s27, s42, 1'), I('s_lshl_b32 s27, s27, 1'), I('s_add_u32 s26, s26, s27'),
        I('s_lshl_b32 s30, s60, 2'), I('s_lshr_b32 s27, s42, 1'), I('s_lshl_b32 s27, s27, 1'), I('s_add_u32 s30, s30, s27'),
        I('s_lshl_b32 s31, s26, 6'), I('s_add_u32 s31, s31, s30'), I('s_lshl_b32 s31, s31, 11'),
        I('s_mul_i32 s32, s30, 56'), I('s_add_u32 s32, s32, s26'), I('s_lshl_b32 s32, s32, 11'),
        I('s_and_b32 s26, s42, 1'), I('s_lshl_b32 s26, s26, 14'), I('s_lshr_b32 s27, s42, 1'), I('s_lshl_b32 s27, s27, 16'), I('s_add_u32 s74, s26, s27'), I('s_add_u32 s74, s74, 65536'),
        I('s_mov_b32 s28, 0x%x'%f2u(GC2)), I('s_mov_b32 s29, s28'), I('v_mov_b32 v252, 0x%x'%f2u(GC1)), I('v_mov_b32 v253, v252'),
        I('v_and_b32 v254, 7, v0'), I('v_lshlrev_b32 v254, 6, v254'), I('v_add_u32 v254, %d, v254'%SPARE),
        I('s_lshl_b32 s27, s25, 3'), I('v_add_u32 v255, s27, v254')]
    CA=98304
    S+=[I('s_lshl_b32 s26, s25, 12'), I('s_add_u32 s26, s26, %d'%CA), I('v_add_u32 v157, s26, v%d'%vL16),
        I('s_lshl_b32 s26, s25, 8'), I('s_add_u32 s26, s26, %d'%(SPARE+2048)), I('v_lshlrev_b32 v158, 2, v0'), I('v_add_u32 v158, s26, v158')]
    S+=srd(36,4,5,P1_OFF+96*131072,56*131072)
    C=[]
    for t in range(4): C+=unpack8(LD+4*t,X+8*t)
    for b in range(0,16,8): C+=gelu_block([X+2*i for i in range(b,b+8)],T,252,28)
    C+=[I('v_pk_add_f32 v[248:249], %s, %s'%(vr(X,2),vr(X+2,2))), I('v_pk_mul_f32 v[250:251], %s, %s'%(vr(X,2),vr(X,2))),
        I('v_pk_fma_f32 v[250:251], %s, %s, v[250:251]'%(vr(X+2,2),vr(X+2,2)))]
    for i in range(2,16):
        C+=[I('v_pk_add_f32 v[248:249], v[248:249], %s'%vr(X+2*i,2)), I('v_pk_fma_f32 v[250:251], %s, %s, v[250:251]'%(vr(X+2*i,2),vr(X+2*i,2)))]
    C+=[I('v_add_f32 v248, v248, v249'), I('v_add_f32 v249, v250, v251')]
    for v in (248,249): C+=[I('v_add_f32_dpp v%d, v%d, v%d row_ror:8 row_mask:0xf bank_mask:0xf'%(v,v,v))]
    for sw in ('16','32'):
        C+=[I('v_mov_b32 v250, v248'), I('v_mov_b32 v251, v249'), I('v_permlane%s_swap_b32 v248, v250'%sw), I('v_permlane%s_swap_b32 v249, v251'%sw),
            I('v_pk_add_f32 v[248:249], v[248:249], v[250:251]')]
    C+=[I('ds_write_b64 v255, v[248:249]'), I('s_waitcnt lgkmcnt(0)'), I('s_barrier')]
    for k in range(4): C+=[I('ds_read_b128 %s, v254 offset:%d'%(vr(T+4*k,4),16*k))]
    C+=[I('s_waitcnt lgkmcnt(0)')]
    for k in range(4): C+=[I('v_pk_add_f32 %s, %s, %s'%(vr(T+4*k,2),vr(T+4*k,2),vr(T+4*k+2,2)))]
    C+=[I('v_pk_add_f32 %s, %s, %s'%(vr(T,2),vr(T,2),vr(T+4,2))), I('v_pk_add_f32 %s, %s, %s'%(vr(T+8,2),vr(T+8,2),vr(T+12,2))),
        I('v_pk_add_f32 %s, %s, %s'%(vr(T,2),vr(T,2),vr(T+8,2))),
        I('v_mul_f32 v248, 0x%x, v%d'%(f2u(1/1792),T)), I('v_mul_f32 v249, 0x%x, v%d'%(f2u(1/1792),T+1)),
        I('v_fma_f32 v249, -v248, v248, v249'), I('v_max_f32 v249, 0, v249'), I('v_add_f32 v249, 0x3727c5ac, v249'), I('v_rsq_f32 v250, v249'),
        I('s_nop 0'), I('v_mul_f32 v248, v248, v250')]
    for i in range(16):
        C+=[I('v_pk_fma_f32 %s, %s, v[250:251], v[248:249] op_sel_hi:[1,0,0] neg_lo:[0,0,1] neg_hi:[0,0,1]'%(vr(X+2*i,2),vr(X+2*i,2)))]
    for t in range(4):
        for i in range(4): C+=[I('v_cvt_pk_bf16_f32 v%d, v%d, v%d'%(LD+4*t+i,X+8*t+2*i,X+8*t+2*i+1))]
        C+=[I('buffer_store_dwordx4 %s, v%d, s[12:15], s35 offen sc0 sc1'%(vr(LD+4*t,4),vST))]
        if t<3: C+=[I('s_add_u32 s35, s35, 262144')]
    def rdK(i,base): return [I('ds_read_b128 %s, v%d offset:%d'%(vr(KB+8*(i&1)+4*f,4),vK,base+1024*f)) for f in range(2)]
    def rdV(i,base): return [I('ds_read_b64_tr_b16 %s, v%d offset:%d'%(vr(VB+8*(i&1)+4*f+2*u,2),(vV0,vV1)[u],base+256*f)) for f in range(2) for u in range(2)]
    R=[I('v_mov_b32 v%d, v%d'%(vK,vK0)), I('v_mov_b32 v%d, v%d'%(vV0,vV00)), I('v_mov_b32 v%d, v%d'%(vV1,vV10)),
       I('s_mov_b32 s44, 0'), I('s_mov_b32 s45, 0'), I('s_waitcnt vmcnt(%d)'%(0 if LATE else 12)), I('s_barrier')]+rdK(0,0)+(H2 if LATE else [])+[I('s_waitcnt lgkmcnt(0)'),
       mf32(SA,KB,Q,'0'), mf32(SA,KB+4,Q+4), I('s_nop 7'), I('s_nop 3')]
    def phase(S_,P_, mf, extra):
        ex=[I('v_exp_f32 v%d, v%d'%(S_+i,S_+i)) for i in range(16)]
        cv=[I('v_cvt_pk_bf16_f32 v%d, v%d, v%d'%(P_+i,S_+2*i,S_+2*i+1)) for i in range(8)]
        pat=opt.get('att_pat',[(3,0),(3,1),(3,2),(3,2),(2,1),(2,2)])
        out=[]; e=0;c=0
        for k,(ne,nc) in enumerate(pat):
            out.append(mf[k]); out+=extra.get(k,[])
            out+=ex[e:e+ne]; e+=ne
            out+=cv[c:c+nc]; c+=nc
        assert e==16 and c==8
        return out
    body=[]
    G=dma4()
    for i in range(4):
        kb=KB+8*(i&1); kn=KB+8*((i+1)&1); vb=VB+8*(i&1); vp=VB+8*((i+1)&1)
        rv=rdV(i,4096*i)
        exB={}
        if i<3:
            rk=rdK(i+1,4096*(i+1))
            ex={0:rv[:2],1:rv[2:],2:rk[:1],3:rk[1:]}
        else:
            rk=rdK(0,0)
            ex={0:rv[:2],1:rv[2:],2:[I('s_waitcnt lgkmcnt(0)'), 'L_att_bnd_ret:']+rk[:1],3:rk[1:]}
        if i==0: ex.setdefault(4,[]).append(I('s_mov_b32 m0, s41')); exB={1:[G[0]]}
        if i==1: ex.setdefault(4,[]).append(G[1]); exB={1:[G[2]]}
        if i==2: exB={1:[G[3]]}
        mfA=[mf32(SB,kb,Q+8,'0'), mf32(SB,kb+4,Q+12), mf32(OB,vp,PB), mf32(OB,vp+4,PB+4), mf16(LB,ONES,PB), mf16(LB,ONES,PB+4)]
        if opt.get('att_prio',1): body+=[I('s_setprio 1')]
        body+=phase(SA,PA,mfA,ex)
        if opt.get('att_prio',1): body+=[I('s_setprio 0')]
        mfB=[mf32(SA,kn,Q,'0'), mf32(SA,kn+4,Q+4), mf32(OA,vb,PA), mf32(OA,vb+4,PA+4), mf16(LA,ONES,PA), mf16(LA,ONES,PA+4)]
        body+=phase(SB,PB,mfB,exB)
    hb=auto_lgkm(body)
    idx=[k for k,x in enumerate(hb) if x=='L_att_bnd_ret:'][0]
    assert 'lgkmcnt(0)' in hb[idx-1]
    body=hb[:idx-1]+[I('s_branch L_att_bnd')]+hb[idx:]
    fix_hazards(hb+hb,auto=False,tag='att_loop')
    loop=['L_att_loop:']+body+[I('s_cmp_lg_u32 s45, 8'), I('s_cbranch_scc1 L_att_loop')]
    tail=[mf32(OB,VB+8,PB), mf32(OB,VB+12,PB+4), mf16(LB,ONES,PB), mf16(LB,ONES,PB+4)]
    ret=[I('s_branch L_att_bnd_ret')]
    notw7=[I('s_cmp_lg_u32 s25, 7'), I('s_cbranch_scc1 L_att_bnd_ret')]
    upd=[I('v_add_u32 v%d, s44, v%d'%(vK,vK0)), I('v_add_u32 v%d, s44, v%d'%(vV0,vV00)), I('v_add_u32 v%d, s44, v%d'%(vV1,vV10))]
    B=['L_att_bnd:']+adv+[I('s_add_u32 s44, s44, 32768'), I('s_and_b32 s44, s44, 0x1ffff'), I('s_add_u32 s45, s45, 1')]+upd
    if opt.get('hkst'):
        B+=[I('s_memtime s[94:95]'), I('s_waitcnt lgkmcnt(0)'), I('s_sub_u32 s26, s94, s78'), I('s_lshl_b32 s27, s45, 1'), I('s_sub_u32 m0, s27, 2'), I('s_nop 1'), I('v_writelane_b32 v159, s26, m0')]
        hk2=[I('s_memtime s[94:95]'), I('s_waitcnt lgkmcnt(0)'), I('s_sub_u32 s26, s94, s78'), I('s_lshl_b32 s27, s45, 1'), I('s_sub_u32 m0, s27, 1'), I('s_nop 1'), I('v_writelane_b32 v159, s26, m0')]
        k=body.index('L_att_bnd_ret:'); body[k+1:k+1]=hk2
        loop=['L_att_loop:']+body+[I('s_cmp_lg_u32 s45, 8'), I('s_cbranch_scc1 L_att_loop')]
        tail=[I('s_cmp_lg_u32 s2, %d'%opt.get('stamp_wg',0)), I('s_cbranch_scc1 L_hk_no'), I('s_and_b32 s26, s25, 3'), I('s_cmp_lg_u32 s26, 3'), I('s_cbranch_scc1 L_hk_no'),
              I('s_load_dwordx2 s[6:7], s[0:1], %d'%KA_DBG), I('s_waitcnt lgkmcnt(0)')]+srd(8,6,7,0,256)+[I('s_lshl_b32 s26, s43, 6'), I('s_add_u32 s26, s26, 128'), I('v_lshlrev_b32 v12, 2, v0'),
              I('s_mov_b64 exec, 0xffff'), I('buffer_store_dword v159, v12, s[8:11], s26 offen'), I('s_waitcnt vmcnt(0)'), I('s_mov_b64 exec, -1'), 'L_hk_no:']+tail
    B+=[I('s_lshl_b32 s26, 1, s45'), I('s_and_b32 s27, s26, 0x130'), I('s_cbranch_scc1 L_bnd_w4'),
        I('s_and_b32 s27, s26, 0x6'), I('s_cbranch_scc1 L_bnd_12'),
        I('s_waitcnt vmcnt(8) lgkmcnt(0)'), I('s_barrier'),
        I('s_cmp_eq_u32 s45, 6'), I('s_cbranch_scc1 L_att_bnd_ret'),
        I('s_cmp_eq_u32 s45, 7'), I('s_cbranch_scc1 L_bnd_7')]
    pollv=[I('v_lshlrev_b32 v12, 7, v0'), I('buffer_load_dword v15, v12, s[48:51], 0 offen sc1')]
    B+=notw7+[I('s_mov_b64 exec, 0xffff')]+pollv+[I('s_mov_b64 exec, -1')]+ret
    Z=160
    B7=['L_bnd_7:', I('s_cmp_ge_u32 s2, 224'), I('s_cbranch_scc1 L_att_bnd_ret'), I('s_cmp_eq_u32 s43, 0'), I('s_cbranch_scc1 L_att_bnd_ret'),
        I('s_lshl_b32 s26, s42, 12'), I('s_add_u32 m0, s26, %d'%(REG[3]+16384)), I('s_mov_b32 s26, %d'%(3*4096))]
    B7+=[I('buffer_load_dwordx4 v%d, s[20:23], s26 offen offset:%d lds'%(vOB+i//2,1024*i)) for i in range(4)]
    for nf in range(2):
        for q in range(4): B7+=[I('buffer_load_dwordx4 %s, v%d, s[36:39], s31 offen offset:%d'%(vr(Z+16*nf+4*q,4),vL16,1024*q))]
        if nf==0: B7+=[I('s_add_u32 s31, s31, 131072')]
    B+=B7+ret
    pf=[]; pf2=[]; pfe=[]; pfh=[]
    if opt.get('pf',1):
        pfh=['L_bnd_pf:', I('s_sub_u32 s26, s45, 1'), I('s_cmp_lg_u32 s26, s25'), I('s_cbranch_scc1 L_att_bnd_ret'),
            I('s_mov_b32 s8, s70'), I('s_mov_b32 s9, s71'), I('s_mov_b32 s10, %d'%(128*4096)),
            I('s_lshl_b32 s26, s26, 9'), I('s_lshl_b32 s27, s34, 16'), I('s_add_u32 s26, s26, s27'),
            I('v_lshrrev_b32 v13, 2, v0'), I('v_lshlrev_b32 v13, 12, v13'), I('v_and_b32 v14, 3, v0'), I('v_lshl_add_u32 v13, v14, 7, v13'),
            I('buffer_load_dword v14, v13, s[8:11], s26 offen'), I('s_branch L_att_bnd_ret')]
        pfe=['L_pfe:', I('s_bfe_u32 s26, s2, 0x20003'), I('s_lshl_b32 s26, s26, 3'), I('s_add_u32 s26, s26, s25'),
             I('s_bfe_u32 s27, s2, 0x10002'), I('s_mul_i32 s27, s27, 28'), I('s_add_u32 s27, s27, s26'), I('s_lshl_b32 s27, s27, 17'),
             I('s_cmp_lt_u32 s26, 28'), I('s_cselect_b32 s27, s27, %d'%Z2N_SIZE), I('v_lshlrev_b32 v12, 7, v0'),
             I('s_add_u32 s27, s27, %d'%(opt.get('pfe0',3)*8192)), I('s_mov_b32 s47, %d'%(16-opt.get('pfe0',3))),
             'L_pfe_l:', I('buffer_load_dword v13, v12, s[12:15], s27 offen'), I('s_add_u32 s27, s27, 8192'), I('s_waitcnt vmcnt(%d)'%opt.get('pfe_d',1)),
             I('s_sub_u32 s47, s47, 1'), I('s_cmp_lg_u32 s47, 0'), I('s_cbranch_scc1 L_pfe_l')]
        if opt.get('nopfz',1): pfe=pfe[:1]+[I('v_lshlrev_b32 v12, 7, v0')]
        pfe+=[I('s_sub_u32 s26, s2, 224'), I('s_lshl_b32 s26, s26, 3'), I('s_add_u32 s26, s26, s25'), I('s_lshl_b32 s26, s26, 13'),
              I('s_mov_b32 s8, s66'), I('s_mov_b32 s9, s67'), I('s_mov_b32 s10, 0x200000'), I('buffer_load_dword v13, v12, s[8:11], s26 offen'),
              I('s_mov_b32 s8, s68'), I('s_mov_b32 s9, s69'), I('s_mov_b32 s10, 0x380000'), I('buffer_load_dword v13, v12, s[8:11], s26 offen'),
              I('s_add_u32 s26, s26, 0x200000'), I('buffer_load_dword v13, v12, s[8:11], s26 offen'), I('s_waitcnt vmcnt(0)'), I('s_branch L_k2_fin')]
    B+=['L_bnd_12:', I('s_cmp_eq_u32 s45, 2'), I('s_cbranch_scc1 L_bnd_2'), I('s_waitcnt vmcnt(8)')]+C+ret
    B+=['L_bnd_2:', I('s_waitcnt vmcnt(4) lgkmcnt(0)'), I('s_barrier'), I('s_cmp_lg_u32 s25, 7'), I('s_cbranch_scc1 L_bnd_2b')]+[
        I('s_and_b32 s26, s2, 15'), I('s_lshl_b32 s26, s26, 7'),
        I('s_mov_b64 exec, 1'), I('v_mov_b32 v12, 1'), I('v_mov_b32 v15, 0'), I('buffer_atomic_add v12, v15, s[48:51], s26 offen sc1'), I('s_mov_b64 exec, -1'), 'L_bnd_2b:']+pf+ret
    B+=['L_bnd_w4:', I('s_waitcnt vmcnt(4) lgkmcnt(0)'), I('s_barrier'),
        I('s_cmp_eq_u32 s45, 8'), I('s_cbranch_scc1 L_att_bnd_ret'), I('s_cmp_eq_u32 s45, 5'), I('s_cbranch_scc1 L_bnd_5')]
    B+=notw7+[I('s_mov_b64 exec, 0xffff'), I('s_mov_b32 s27, 0x10000'),
        'L_bnd_4p:', I('v_cmp_gt_u32 vcc, 16, v15'), I('s_nop 1'), I('s_and_b32 s26, vcc_lo, 0xffff'), I('s_cbranch_scc0 L_bnd_4g'),
        I('s_sleep 2')]+pollv+[I('s_waitcnt vmcnt(0)'), I('s_sub_u32 s27, s27, 1'), I('s_cmp_lg_u32 s27, 0'), I('s_cbranch_scc1 L_bnd_4p'),
        'L_bnd_4g:', I('buffer_inv sc1'), I('s_mov_b64 exec, -1')]+ret
    B+=['L_bnd_5:']+pf2+[I('s_cmp_ge_u32 s2, 224'), I('s_cbranch_scc1 L_att_bnd_ret'),
        I('s_mov_b32 s40, 0'), I('s_mov_b32 s18, %d'%(128*4096)), I('s_mov_b32 s22, s18'),
        I('s_cmp_eq_u32 s43, 0'), I('s_cselect_b32 s16, s70, s72'), I('s_cselect_b32 s17, s71, s73'), I('s_cselect_b32 s20, s70, s72'), I('s_cselect_b32 s21, s71, s73'),
        I('s_mov_b32 s24, 4096'), I('s_cbranch_scc0 L_bnd_5b'), I('s_mov_b32 s24, 128')]
    B+=[I('v_mov_b32 v%d, v%d'%(vD+i,vOA+i)) for i in range(4)]+ret+['L_bnd_5b:']
    B+=[I('v_mov_b32 v%d, v%d'%(vD+i,vOB+i//2)) for i in range(4)]+ret
    if pfh: B=[x.replace('L_att_bnd_ret','L_bnd_pf') for x in B]+pfh
    def reads(slot,j):
        so=REG[slot]&0xffff; hi=REG[slot]>>16; f=FR+16*j
        Lr=[I('ds_read_b128 %s, v%d offset:%d'%(vr(f+4*m,4),vA+4*hi+j,so+m*4096)) for m in range(2)]
        for nf in range(2):
            for u in range(2):
                Lr.append(I('ds_read_b64_tr_b16 %s, v%d offset:%d'%(vr(f+8+4*nf+2*u,2),vB+2*hi+u,so+(j>>1)*8192+nf*2048+(j&1)*256)))
        return [Lr[2],Lr[3],Lr[0],Lr[1],Lr[4],Lr[5]]
    EARLY=opt.get('g2_early',1)
    if EARLY:
        rp1=opt.get('g2_rp1',[0,0,1,1,2,2,3,3,4,4,5,5]); rp2=opt.get('g2_rp2',[8,8,9,9,10,10,11,11,12,12,13,13])
    else:
        rp1=opt.get('g2_rp1',[0,0,1,2,2,3,4,4,5,6,6,7]); rp2=opt.get('g2_rp2',[8,8,9,10,10,11,12,12,13,14,14,15])
    gbar=opt.get('g2_bar',7)
    LA_=5 if EARLY else 4
    def dmaA(slot):
        G=[[I('buffer_load_dwordx4 v%d, s[16:19], s40 offen offset:%d lds'%(vOA+i,1024*i))] for i in range(4)]
        G[-1]+=[I('s_add_u32 m0, s41, %d'%(REG[slot]+16384)), I('s_add_u32 s40, s40, %d'%(0 if opt.get('g2_fixA') else 128))]
        return G
    def dmaB(slot):
        G=[[I('buffer_load_dwordx4 v%d, s[20:23], s44 offen offset:%d lds'%(vOB+i//2,1024*i))] for i in range(4)]
        G[-1]+=[I('s_add_u32 s44, s44, %d'%(0 if opt.get('g2_fixB') else 4096))]
        return G
    dgA=opt.get('g2_dgA',[8,10,12,14]); dgB=opt.get('g2_dgB',[0,2,4,6])
    def tile(kt):
        slot=kt%5; c0=(kt==0); nxt=kt<31
        spine=[mf32(ACC+16*(2*nf+m), FR+16*j+8+4*nf, FR+16*j+4*m, '0' if (c0 and j==0) else None) for j in range(4) for nf in range(2) for m in range(2)]
        fill={}
        def add(g,x): fill.setdefault(g,[]).extend(x)
        for p,r in zip(rp1,reads(slot,2)+reads(slot,3)): add(p,[r])
        if kt>=1 and kt-1+LA_<=31:
            for p,g in zip(dgB,dmaB((kt-1+LA_)%5)): add(p,g)
        if nxt:
            w=8*min(LA_-2, 31-(kt+1))
            if kt==0: w=4
            if opt.get('itst') and kt in (0,1,26):
                add(gbar,[I('s_memtime s[94:95]'), I('s_waitcnt vmcnt(%d) lgkmcnt(0)'%w), I('s_barrier')]+[I('s_mov_b32 s%d, s%d'%(78+2*k,80+2*k)) for k in range(5)]+[I('s_mov_b32 s88, s94')])
            else:
                add(gbar,[I('s_waitcnt vmcnt(%d)%s'%(w,' lgkmcnt(0)' if EARLY else '')), I('s_barrier')])
            for p,r in zip(rp2,reads((slot+1)%5,0)+reads((slot+1)%5,1)): add(p,[r])
        if kt+LA_<=31:
            add(gbar,[I('s_add_u32 m0, s41, %d'%REG[(kt+LA_)%5])])
            for p,g in zip(dgA,dmaA((kt+LA_)%5)): add(p,g)
        return interleave(spine,fill)
    g2srd=[I('s_mov_b32 s16, s70'), I('s_mov_b32 s17, s71'), I('s_mov_b32 s18, %d'%(128*4096)), I('s_mov_b32 s19, 0x20000'),
         I('s_mov_b32 s20, s72'), I('s_mov_b32 s21, s73'), I('s_mov_b32 s22, s18'), I('s_mov_b32 s23, 0x20000'), I('s_lshl_b32 s41, s42, 12')]
    E=[I('v_xor_b32 v13, 16384, v157'), I('v_xor_b32 v15, 1024, v158'), I('v_add_u32 v159, s74, v%d'%vL16),
       I('v_mov_b32 v248, 0x1f800000'), I('v_mov_b32 v249, 0x5f800000'), I('s_cmp_eq_u32 s43, 0'), I('s_cbranch_scc0 L_cmb1')]
    def send(O_,L_): return [I('ds_write_b128 v157, %s offset:%d'%(vr(O_+4*j,4),1024*j)) for j in range(4)]+[I('ds_write_b32 v158, v%d'%L_)]
    r01=reads(0,0)+reads(0,1)
    E0=r01+[I('s_nop 3')]+send(OB,LB)+[I('s_branch L_cmb2')]
    E1=['L_cmb1:']+send(OA,LA)+[I('s_nop 7')]+[I('v_mov_b32 v%d, v%d'%(Q+i,Q+8+i)) for i in range(8)]+[I('v_mov_b32 v%d, v%d'%(OA+i,OB+i)) for i in range(16)]+[I('v_mov_b32 v%d, v%d'%(LA,LB))]
    E2=['L_cmb2:', I('s_waitcnt lgkmcnt(0)'), I('s_barrier')]
    E2+=[I('ds_read_b128 %s, v13 offset:%d'%(vr(OB+4*j,4),1024*j)) for j in range(4)]+[I('ds_read_b32 v%d, v15'%LB)]
    E2+=[I('s_waitcnt lgkmcnt(0)'), I('v_add_f32 v%d, v%d, v%d'%(LA,LA,LB))]
    for i in range(8): E2+=[I('v_pk_add_f32 %s, %s, %s'%(vr(OA+2*i,2),vr(OA+2*i,2),vr(OB+2*i,2)))]
    E2+=[I('v_pk_mul_f32 v[250:251], %s, 0 op_sel_hi:[1,0]'%vr(OA,2))]
    for i in range(1,8): E2+=[I('v_pk_fma_f32 v[250:251], %s, 0, v[250:251] op_sel_hi:[1,0,1]'%vr(OA+2*i,2))]
    E2+=[I('v_add_f32 v250, v250, v251'), I('v_add_f32 v250, v250, v%d'%LA),
         I('v_cmp_nge_f32 vcc, v250, v248'), I('v_cmp_nle_f32 s[56:57], v250, v249'), I('s_nop 0'), I('s_or_b64 s[56:57], s[56:57], vcc'),
         I('s_cbranch_scc1 L_att_fb'), 'L_att_fb_ret:', I('v_rcp_f32 v248, v%d'%LA), I('s_nop 0')]
    for i in range(8): E2+=[I('v_pk_mul_f32 %s, %s, v[248:249] op_sel_hi:[1,0]'%(vr(OA+2*i,2),vr(OA+2*i,2)))]
    for i in range(8): E2+=[I('v_cvt_pk_bf16_f32 v%d, v%d, v%d'%(OA+i,OA+2*i,OA+2*i+1))]
    for h in range(2): E2+=[I('buffer_store_dwordx4 %s, v%d, s[52:55], s46 offen offset:%d'%(vr(OA+4*h,4),vL16,1024*h))]
    E2+=[I('s_cmp_ge_u32 s2, 224'), I('s_cbranch_scc1 %s'%('L_pfe' if pfe else 'L_k2_fin'))]+g2srd+[I('s_cmp_eq_u32 s43, 0'), I('s_cbranch_scc0 L_helper')]
    FS=176
    F=['L_att_fb:', I('s_waitcnt vmcnt(0)')]+kvsrd+kvv
    F+=[I('s_xor_b32 s26, s25, 4'), I('s_lshl_b32 s26, s26, 12'), I('s_add_u32 s58, s26, %d'%(CA-2048)), I('s_mov_b32 m0, s58'),
        I('s_lshl_b32 s26, s43, 14'), I('s_sub_u32 s58, s58, s26'),
        I('v_add_u32 v%d, s58, v%d'%(vV0,vV00)), I('v_add_u32 v%d, s58, v%d'%(vV1,vV10))]
    FS=OB
    F+=[I('v_mov_b32 v%d, 0'%(OA+i)) for i in range(16)]
    F+=[I('v_mov_b32 v%d, 0'%LA), I('v_mov_b32 v12, 0xff800000'), I('s_mov_b32 s59, 0'), 'L_att_fbl:',
        I('buffer_load_dwordx4 %s, v%d, s[16:19], s59 offen'%(vr(KB,4),vL16)),
        I('buffer_load_dwordx4 %s, v%d, s[16:19], s59 offen offset:1024'%(vr(KB+4,4),vL16)),
        I('buffer_load_dwordx4 v%d, s[20:23], s59 offen offset:2048 lds'%(vD+2)),
        I('buffer_load_dwordx4 v%d, s[20:23], s59 offen offset:3072 lds'%(vD+3)),
        I('s_waitcnt vmcnt(0)')]
    F+=rdV(0,0)
    F+=[mf32(FS,KB,Q,'0'), mf32(FS,KB+4,Q+4), I('v_max3_f32 v13, v%d, v%d, v12'%(FS,FS+1))]
    for i in range(1,8): F+=[I('v_max3_f32 v13, v%d, v%d, v13'%(FS+2*i,FS+2*i+1))]
    F+=[I('v_mov_b32 v14, v13'), I('v_permlane32_swap_b32 v13, v14'), I('v_max_f32 v13, v13, v14'),
        I('v_sub_f32 v14, v12, v13'), I('v_exp_f32 v14, v14'), I('v_mov_b32 v12, v13')]
    for i in range(16): F+=[I('v_sub_f32 v%d, v%d, v13'%(FS+i,FS+i))]
    for i in range(16): F+=[I('v_exp_f32 v%d, v%d'%(FS+i,FS+i))]
    F+=[I('v_mul_f32 v%d, v%d, v14'%(LA,LA))]
    for i in range(16): F+=[I('v_add_f32 v%d, v%d, v%d'%(LA,LA,FS+i)), I('v_mul_f32 v%d, v%d, v14'%(OA+i,OA+i))]
    for i in range(8): F+=[I('v_cvt_pk_bf16_f32 v%d, v%d, v%d'%(PA+i,FS+2*i,FS+2*i+1))]
    F+=[I('s_waitcnt lgkmcnt(0)'), mf32(OA,VB,PA), mf32(OA,VB+4,PA+4),
        I('s_add_u32 s59, s59, 2048'), I('s_cmp_lg_u32 s59, 131072'), I('s_nop 7'), I('s_nop 7'), I('s_cbranch_scc1 L_att_fbl'),
        I('v_mov_b32 v14, v%d'%LA), I('v_permlane32_swap_b32 v%d, v14'%LA), I('v_add_f32 v%d, v%d, v14'%(LA,LA)), I('s_branch L_att_fb_ret')]
    M=[I('s_setprio %d'%opt.get('g2_prio',2))]+srd(36,64,65,0,4096)
    M+=[I('v_and_b32 v12, 31, v0'), I('v_lshlrev_b32 v12, 1, v12'), I('s_lshl_b32 s26, s30, 6'),
        I('v_mov_b32 v%d, 0'%vBIAS), I('v_mov_b32 v%d, 0'%(vBIAS+2)),
        I('buffer_load_short_d16_hi v%d, v12, s[36:39], s26 offen'%vBIAS), I('buffer_load_short_d16_hi v%d, v12, s[36:39], s26 offen offset:64'%(vBIAS+2))]
    M+=srd(52,4,5,H_OFF,H_SIZE)+[I('s_mov_b32 s47, 5'), I('s_mov_b32 s40, %d'%(LA_*128)), I('s_mov_b32 s44, %d'%(LA_*4096)), I('s_barrier')]
    head=auto_lgkm(tile(0),pre=[])
    gb=[]
    for t in range(1,6): gb+=tile(t)
    gb=auto_lgkm(gb)
    fix_hazards(gb+gb,auto=False,tag='g2loop')
    pen=[]
    for t in range(26,31): pen+=tile(t)
    def gr(j): return I('ds_read_b128 %s, v159 offset:%d'%(vr(FR+4*j,4),1024*j))
    o=[]; n=0
    for x in tile(31):
        o.append(x)
        if 'v_mfma' in x:
            n+=1
            if n>=9: o.append(gr(n-9))
    last=o+[gr(j) for j in range(8,16)]
    Ep=[]
    for nf in range(2):
        for m in range(2):
            a=ACC+16*(2*nf+m); g=FR+16*(2*nf+m)
            for i in range(8): Ep+=[I('v_pk_add_f32 %s, %s, %s op_sel_hi:[1,0]'%(vr(a+2*i,2),vr(a+2*i,2),vr(vBIAS+2*m,2)))]
            for i in range(8): Ep+=[I('v_pk_mul_f32 %s, %s, %s'%(vr(a+2*i,2),vr(a+2*i,2),vr(g+2*i,2)))]
            for i in range(8): Ep+=[I('v_cvt_pk_bf16_f32 v%d, v%d, v%d'%(a+i,a+2*i,a+2*i+1))]
            Ep+=[I('s_add_u32 s26, s32, %d'%(m*56*2048+nf*2048))]
            for h in range(2): Ep+=[I('buffer_store_dwordx4 %s, v%d, s[52:55], s26 offen offset:%d'%(vr(a+4*h,4),vL16,1024*h))]
    pen=auto_lgkm(pen,pre=gb)
    lastE=auto_lgkm(last+Ep,pre=pen)
    gloop=['L_g2_loop:']+gb+[I('s_sub_u32 s47, s47, 1'), I('s_cmp_lg_u32 s47, 0'), I('s_cbranch_scc1 L_g2_loop')]
    ZX=64; ZT=160
    bar=[I('s_barrier')]
    Hh=['L_helper:', I('s_mov_b32 s40, %d'%(3*128)), I('s_mov_b32 s44, %d'%(4*4096)), I('s_add_u32 m0, s41, %d'%REG[3])]+bar
    for g in dmaA(3): Hh+=g
    n4=0
    if EARLY:
        Hh+=[I('s_add_u32 m0, s41, %d'%REG[4]), I('s_nop 0')]
        for g in dmaA(4)+[[I('s_nop 0')]]+dmaB(4): Hh+=g
        n4=8
    Hh+=bar+[I('s_waitcnt vmcnt(%d)'%(6+n4))]+bar+[I('s_waitcnt vmcnt(%d)'%n4)]+bar
    NP=opt.get('g2_np',24)
    gl=[]
    for p in range(8): gl+=unpack8(Z+4*p,ZX+8*p)
    gl+=gelu_block([ZX+2*i for i in range(32)],ZT,252,28)
    if opt.get('nogelu'): gl=[]
    if opt.get('h_prio'): Hh+=[I('s_setprio %d'%opt['h_prio'])]
    for p in range(NP):
        Hh+=gl[(p*len(gl))//NP:((p+1)*len(gl))//NP]
        if p==0: Hh+=[I('s_waitcnt vmcnt(0)')]
        Hh+=bar
    nb=28 if EARLY else 29
    Hl=[I('s_mov_b32 s47, %d'%(nb-2-NP)), 'L_h_loop:']+bar+[I('s_sub_u32 s47, s47, 1'), I('s_cmp_lg_u32 s47, 0'), I('s_cbranch_scc1 L_h_loop')]
    Ht=[I('ds_write_b128 v159, %s offset:%d'%(vr(ZX+4*j,4),1024*j)) for j in range(16)]
    Ht+=bar*(29-nb)+[I('s_waitcnt lgkmcnt(0)')]+bar+[I('s_branch L_k2_fin')]
    fin=['L_k2_fin:']
    if opt.get('stamp'):
        fin+=[I('s_waitcnt vmcnt(0)')]+st(5)+[I('s_cmp_lg_u32 s2, %d'%opt.get('stamp_wg',0)), I('s_cbranch_scc1 L_k2_nost'), I('s_cmp_gt_u32 s25, 3'), I('s_cbranch_scc1 L_k2_nost'),
              I('s_load_dwordx2 s[6:7], s[0:1], %d'%KA_DBG), I('s_waitcnt lgkmcnt(0)')]+srd(48,6,7,0,256)+[
              I('s_mul_i32 s26, s25, 20'), I('v_mov_b32 v1, s26')]
        for k in range(5): fin+=[I('s_sub_u32 s26, s%d, s%d'%(80+2*k,78+2*k)), I('v_mov_b32 v2, s26'), I('buffer_store_dword v2, v1, s[48:51], 0 offen offset:%d'%(4*k))]
        fin+=['L_k2_nost:']
    if opt.get('rt'): fin+=[I('s_cmp_lg_u32 s25, 0'), I('s_cbranch_scc1 L_k2_end')]
    fin+=rt_end(opt,opt.get('k2_idx',2),'k2')+['L_k2_end:', I('s_endpgm')]
    code=H+S+R+st(1)+loop+st(2)+tail+E+E0+E1+E2+M+st(3)+head+gloop+pen+st(4)+lastE+fin+B+F+Hh+Hl+Ht+pfe
    code,_=fix_hazards(code)
    tr,_=fix_hazards(H+S+R+hb+[I('s_waitcnt vmcnt(8)')]+C+hb+tail+E+E0+E2+M+head+gb+gb+pen+lastE); check_waits(tr,'k2')
    tr,_=fix_hazards(F); check_waits(tr,'k2fb')
    tr,_=fix_hazards(B7+dma4()+[I('s_waitcnt vmcnt(4)')]+E+E1+E2+Hh+Ht); check_waits(tr,'k2h')
    return L+code, kernel_desc(name,256,256,96), '; @launch kernel=%s grid=(256,1,1) block=(512,1,1) lds=163840'%name
```

```python
from common import *
ACC0=32
B_LDS=65536
STAT_OFF=0
QSCALE = f2u(32**-0.5*math.log2(math.e))
aD=44; aS=48; vIDX=27; vST=28

def half_sum(v,t):
    return [I('v_add_f32_dpp v%d, v%d, v%d quad_perm:[1,0,3,2] row_mask:0xf bank_mask:0xf'%(v,v,v)),
            I('v_add_f32_dpp v%d, v%d, v%d quad_perm:[2,3,0,1] row_mask:0xf bank_mask:0xf'%(v,v,v)),
            I('v_add_f32_dpp v%d, v%d, v%d row_half_mirror row_mask:0xf bank_mask:0xf'%(v,v,v)),
            I('v_add_f32_dpp v%d, v%d, v%d row_mirror row_mask:0xf bank_mask:0xf'%(v,v,v)),
            I('v_mov_b32 v%d, v%d'%(t,v)), I('v_permlane16_swap_b32 v%d, v%d'%(v,t)), I('v_add_f32 v%d, v%d, v%d'%(v,v,t))]

def gen_variant(NF, strideB, tag, scale_q, opt):
    BS = NF*4096; RB = NF*64; CPR=NF*4
    vOA=1; vOB=9; vA=16; vB=20
    T=112
    aA=lambda s,mf: 8*s+4*mf
    aB=lambda nf: 16+4*nf
    acc=lambda nf,mf: ACC0+16*(2*nf+mf)
    t=lambda i: 'v%d'%(T+i)
    def F(s): return I(re.sub(r't(\d)\b',lambda m:'v%d'%(T+int(m.group(1))),s))
    SB=[]
    M=-(-65536//CPR)
    SB+=[I('s_mul_i32 s26, s25, %d'%(NF*64)), I('s_mov_b32 s27, %d'%strideB), F('v_add_u32 t5, s26, v0')]
    for i in range(NF):
        SB+=[F('v_add_u32 t0, %d, t5'%(i*64)),
            F('v_mul_u32_u24 t1, %d, t0'%M), F('v_lshrrev_b32 t1, 16, t1'),
            F('v_mul_u32_u24 t2, %d, t1'%CPR), F('v_sub_u32 t2, t0, t2')]
        if NF%2==0:
            SB+=[F('v_lshlrev_b32 t3, 1, t1'), F('v_and_b32 t3, 4, t3'), F('v_xor_b32 t2, t2, t3')]
        SB+=[F('v_mul_u32_u24 t1, s27, t1'), F('v_lshl_add_u32 t1, t2, 4, t1'),
            F('v_subrev_u32 v%d, %d, t1'%(vOB+i,(i%4)*1024))]
    SB+=[I('s_mul_i32 s29, s25, %d'%(NF*1024)), I('s_add_u32 s29, s29, %d'%B_LDS)]
    S=[]
    S+=[F('v_and_b32 t0, 31, v0'), F('v_lshrrev_b32 t1, 5, v0'),
        F('v_bfe_u32 t2, v0, 1, 3'),
        F('v_lshlrev_b32 t0, 7, t0'), F('v_add_u32 t0, s28, t0')]
    for j in range(4):
        S+=[F('v_add_u32 t3, %d, t1'%(2*j)), F('v_xor_b32 t3, t3, t2'), F('v_lshl_add_u32 v%d, t3, 4, t0'%(vA+j))]
    S+=[F('v_lshrrev_b32 t0, 5, v0'), F('v_bfe_u32 t1, v0, 2, 2'),
        F('v_lshl_add_u32 t0, t0, 3, t1'), F('v_mul_u32_u24 t0, %d, t0'%RB),
        F('v_bfe_u32 t2, v0, 4, 1'), F('v_and_b32 t3, 3, v0'),
        F('v_lshlrev_b32 t2, 5, t2'), F('v_lshl_add_u32 t2, t3, 3, t2'),
        F('v_add_u32 t0, t0, t2'), F('v_add_u32 t4, %d, t0'%B_LDS)]
    if NF%2==0:
        S+=[F('v_bfe_u32 t1, v0, 3, 1'), F('v_lshlrev_b32 t1, 6, t1'),
            F('v_sub_u32 t5, t4, t1'), F('v_add_u32 t4, t4, t1')]
    def phys(i): return [I('s_add_u32 s26, s46, %d'%i), I('s_cmp_ge_u32 s26, %d'%NF), I('s_cselect_b32 s27, %d, 0'%NF), I('s_sub_u32 s26, s26, s27')]
    for i in range(NF):
        S+=phys(i)+[I('s_lshl_b32 s26, s26, 6'), F('v_add_u32 v%d, s26, %s'%(vB+i,'t5' if (NF%2==0 and i%2==1) else 't4'))]
    S+=[F('v_bfe_u32 t0, v0, 1, 1'), F('v_lshrrev_b32 t1, 5, v0'), F('v_bfe_u32 t2, v0, 2, 1'),
        F('v_xor_b32 t0, t0, t1'),
        F('v_or_b32 t1, t0, t2'), F('v_xor_b32 t2, 1, t2'), F('v_or_b32 t2, t0, t2'),
        F('v_mov_b32 t3, 0x3f803f80'),
        F('v_cmp_eq_u32 vcc, 0, t1'), F('v_cndmask_b32 t1, 0, t3, vcc'),
        F('v_cmp_eq_u32 vcc, 0, t2'), F('v_cndmask_b32 t2, 0, t3, vcc'),
        F('v_accvgpr_write_b32 a%d, t1'%aS), F('v_accvgpr_write_b32 a%d, t1'%(aS+1)), F('v_accvgpr_write_b32 a%d, t2'%(aS+2)), F('v_accvgpr_write_b32 a%d, t2'%(aS+3)),
        F('v_and_b32 t0, 1, v0'), F('v_mul_u32_u24 t0, 0xaaaa, t0'), F('v_add_u32 v%d, 0x4444, t0'%vIDX)]
    for i in range(4): S+=[I('v_accvgpr_write_b32 a%d, 0'%(aD+i))]
    def dmaA(st):
        G=[]
        for i in range(8):
            g=[]
            if i%4==0: g.append(I('s_add_u32 m0, s28, %d'%(st*32768+(i//4)*4096)))
            g.append(I('buffer_load_dwordx4 v%d, s[8:11], s20 offen offset:%d lds'%(vOA+i,(i%4)*1024)))
            G.append(g)
        return G
    def dmaB(st):
        G=[]
        for i in range(NF):
            g=[]
            if i%4==0: g.append(I('s_add_u32 m0, s29, %d'%(st*BS+(i//4)*4096)))
            g.append(I('buffer_load_dwordx4 v%d, s[12:15], s21 offen offset:%d lds'%(vOB+i,(i%4)*1024)))
            G.append(g)
        return G
    def dma(st):
        G=dmaB(st)+dmaA(st)
        for k in range(1,len(G)):
            if len(G[k])==2:
                G[k-1].append(G[k][0]); G[k]=G[k][1:]
        G=[G[0][:1]]+[G[0][1:]]+G[1:]
        G[-1]=G[-1]+[I('s_add_u32 s20, s20, %d'%(0 if opt.get('fixA') else 128)), I('s_add_u32 s21, s21, %d'%(0 if opt.get('fixB') else 64*strideB))]
        return G
    def rdA(st,j,mf): return I('ds_read_b128 %s, v%d offset:%d'%(ar(aA(j&1,mf),4), vA+j, st*32768+mf*4096))
    def rdB(st,j,nf):
        return [I('ds_read_b64_tr_b16 %s, v%d offset:%d'%(ar(aB(nf)+2*u,2), vB+nf, st*BS+(16*j+4*u)*RB)) for u in range(2)]
    def mf(j,nf,m,c0): return I('v_mfma_f32_32x32x16_bf16 %s, %s, %s, %s'%(vr(acc(nf,m),16), ar(aB(nf),4), ar(aA(j&1,m),4), '0' if c0 else vr(acc(nf,m),16)))
    SMF=I('v_smfmac_f32_16x16x64_bf16 %s, %s, %s, v%d'%(ar(aD,4),ar(aS,4),ar(aB(0),8),vIDX))
    if opt.get('nosm'): SMF=None
    BP=opt.get('bar_pair',1); DS=opt.get('dma_stride',2); D0=opt.get('dma_start',0)
    NS=2*NF
    def tile(st, do_dma, has_next, carry_in, c0=False, extra=None, barw='vmcnt(0) lgkmcnt(0)', cds=DS):
        spine=[]; fill={}
        def add(g,x): fill.setdefault(g,[]).extend(x)
        for j in range(4):
            for nf in range(NF):
                for m in range(2): spine.append(mf(j,nf,m,c0 and j==0))
            if SMF: add(j*NS+1,[SMF])
        for j in range(3):
            add(j*NS+0,[rdA(st,j+1,0)]); add(j*NS+2,[rdA(st,j+1,1)])
            for nf in range(NF):
                r=rdB(st,j+1,nf)
                add(j*NS+2*nf+1,r[:1])
                if 2*nf+2<NS: add(j*NS+2*nf+2,r[1:])
                else: add(j*NS+2*nf+1,r[1:])
        g=0
        for grp in carry_in:
            add(g,grp); g+=cds
        carry=[]
        if has_next:
            gb=3*NS+2*BP+1
            add(gb,[I('s_waitcnt %s'%barw), I('s_barrier')])
            pend=[rdA(st^1,0,0),rdA(st^1,0,1)]
            seq=[rdB(st^1,0,nf) for nf in range(NF)]
            q=[]
            for nf in range(BP+1): q+=seq[nf]
            q=q[:2]+pend+q[2:]
            avail={gb:list(q)}
            for nf in range(BP+1,NF): avail.setdefault(3*NS+2*nf+1,[]).extend(seq[nf])
            queue=[]
            for g2 in range(gb,4*NS):
                queue+=avail.get(g2,[])
                n=2 if g2<4*NS-1 else len(queue)
                add(g2,queue[:n]); queue=queue[n:]
            if do_dma:
                G=dma(st); g=gb+D0
                while G and g<4*NS:
                    add(g,G.pop(0)); g+=DS
                carry=G
        if extra:
            for g,x in extra.items(): add(g,x)
        return interleave(spine,fill), carry
    flat=lambda G:[x for g in G for x in g]
    def nopm0(L):
        o=[]
        for x in L:
            o.append(x)
        return o
    L1=opt.get('late1',1)
    P=SB+flat(dmaB(0))+[I('s_add_u32 s20, s20, 128'), I('s_add_u32 s21, s21, %d'%(64*strideB))]+([] if L1 else flat(dma(1)))+S
    X=80
    pst=lambda k: [I('s_memtime s[%d:%d]'%(60+2*k,61+2*k)), I('s_waitcnt lgkmcnt(0)')] if opt.get('pst') else []
    P+=pst(2)+[I('s_waitcnt vmcnt(%d)'%((1 if L1 else 2)*(8+NF)))]+pst(3)
    for k in range(4): P+=unpack8(64+4*k,X+8*k)
    p=lambda b: vr(b,2)
    for i in range(4): P+=[I('v_pk_add_f32 %s, %s, %s'%(p(64+2*i),p(X+2*i),p(X+8+2*i)))]
    for k in (2,3):
        for i in range(4): P+=[I('v_pk_add_f32 %s, %s, %s'%(p(64+2*i),p(64+2*i),p(X+8*k+2*i)))]
    P+=[I('v_pk_add_f32 v[64:65], v[64:65], v[66:67]'), I('v_pk_add_f32 v[68:69], v[68:69], v[70:71]'), I('v_pk_add_f32 v[64:65], v[64:65], v[68:69]'),
        I('v_add_f32 v64, v64, v65')]+half_sum(64,65)+[I('v_mul_f32 v%d, 0xba800000, v64'%vST)]
    for i in range(16): P+=[I('v_pk_add_f32 %s, %s, %s op_sel_hi:[1,0]'%(p(X+2*i),p(X+2*i),p(vST)))]
    for i in range(4): P+=[I('v_pk_mul_f32 %s, %s, %s'%(p(64+2*i),p(X+2*i),p(X+2*i)))]
    for k in (1,2,3):
        for i in range(4): P+=[I('v_pk_fma_f32 %s, %s, %s, %s'%(p(64+2*i),p(X+8*k+2*i),p(X+8*k+2*i),p(64+2*i)))]
    P+=[I('v_pk_add_f32 v[64:65], v[64:65], v[66:67]'), I('v_pk_add_f32 v[68:69], v[68:69], v[70:71]'), I('v_pk_add_f32 v[64:65], v[64:65], v[68:69]'),
        I('v_add_f32 v64, v64, v65')]+half_sum(64,65)
    P+=[I('v_mov_b32 v65, 0x3727c5ac'), I('v_fmac_f32 v65, 0x3a800000, v64'), I('v_rsq_f32 v%d, v65'%(vST+1)), I('s_nop 0'),
        I('buffer_store_dwordx2 %s, v30, s[40:43], 0 offen sc0 sc1'%p(vST))]
    P+=pst(4)+[I('s_waitcnt vmcnt(%d)'%(1 if L1 else 8+NF+1)), I('s_barrier')]+pst(5)
    P+=[rdA(0,0,0),rdA(0,0,1)]
    for nf in range(NF): P+=rdB(0,0,nf)
    P+=[I('s_mov_b32 s22, 6'), I('s_waitcnt lgkmcnt(0)')]
    _,c=tile(0,True,True,[])
    ncarry=len(c)
    t0,c0_=tile(0,True,True,dma(1)[-ncarry:] if ncarry else [], extra={5:[I('s_cmp_eq_u32 s22, s52'), I('s_cbranch_scc1 L_k1_poll_%s'%tag), 'L_k1_pret_%s:'%tag]})
    t1,c1=tile(1,True,True,c0_)
    pub=[I('s_cmp_lg_u32 s25, 0'), I('s_cbranch_scc1 L_k1_np_%s'%tag), I('v_mov_b32 v28, 1'), I('v_mov_b32 v29, 0'), I('s_mov_b64 exec, 1'),
         I('buffer_atomic_add v28, v29, s[48:51], s47 offen sc1'), I('s_mov_b64 exec, -1'), 'L_k1_np_%s:'%tag]
    f0,fc=tile(0,True,True,dma(1) if L1 else [],c0=True,cds=opt.get('l1ds',DS))
    f1,_=tile(1,True,True,fc,extra={2*ncarry+1:pub})
    first=auto_lgkm(f0+f1,pre=[])
    body=auto_lgkm(t0+t1)
    ask=[I('s_mov_b64 exec, 1'), I('buffer_load_dword v28, v29, s[48:51], s47 offen sc1'), I('s_mov_b64 exec, -1')]
    PO=['L_k1_poll_%s:'%tag, I('s_sub_u32 s52, s52, 1'), I('s_add_u32 s53, s53, 1'), I('s_cmp_eq_u32 s53, 2'), I('s_cbranch_scc1 L_k1_chk_%s'%tag)]+ask+[I('s_branch L_k1_pret_%s'%tag),
        'L_k1_chk_%s:'%tag, I('s_mov_b32 s27, 0x40000'), 'L_k1_chl_%s:'%tag, I('v_readfirstlane_b32 s26, v28'), I('s_nop 1'), I('s_cmp_ge_u32 s26, 32'), I('s_cbranch_scc1 L_k1_pret_%s'%tag),
        I('s_sleep 2')]+ask+[I('s_waitcnt vmcnt(0)'), I('s_sub_u32 s27, s27, 1'), I('s_cmp_lg_u32 s27, 0'), I('s_cbranch_scc1 L_k1_chl_%s'%tag), I('s_branch L_k1_pret_%s'%tag)]
    g=DS*ncarry+1
    ex14={g:[I('v_bfe_u32 v1, v0, 3, 2'), I('v_and_b32 v2, 7, v0'), I('s_lshl_b32 s26, s23, 12')],
          g+1:[I('v_lshlrev_b32 v1, 7, v1'), I('v_lshl_add_u32 v1, v2, 3, v1'), I('s_lshl_b32 s27, s25, 10')],
          g+2:[I('s_add_u32 s26, s26, s27'), I('buffer_load_dwordx2 v[28:29], v1, s[40:43], s26 offen sc1')],
          g+4:[I('buffer_load_dwordx2 v[30:31], v1, s[40:43], s26 offen offset:512 sc1')],
          g+6:[I('v_lshrrev_b32 v3, 5, v0'), I('v_add_u32 v2, s46, v3'), I('v_cmp_gt_u32 vcc, %d, v2'%NF)],
          g+7:[I('v_lshlrev_b32 v3, 4, v3'), I('v_cndmask_b32 v2, 16, v2, vcc'), I('s_lshl_b32 s26, s46, 7')],
          g+8:[I('v_and_b32 v4, 31, v0'), I('v_lshlrev_b32 v2, 7, v2'), I('v_add_u32 v3, s26, v3')],
          g+9:[I('v_lshl_add_u32 v2, v4, 2, v2'), I('v_cmp_gt_u32 vcc, 32, v0')]}
    e0,_=tile(0,False,True,c1,extra=ex14,barw='vmcnt(2) lgkmcnt(0)')
    def rdc(i,q,dst): return I('ds_read_b128 %s, v3 offset:%d'%(vr(dst,4),i*128+q*32))
    def cdst(i,q):
        if i==0: return 8+4*q
        if q>=2: return acc(i-1,0)+8+4*(q-2)
        if i==1: return (4,24)[q]
        return acc(i-2,1)+8+4*q
    g=3*NS+4
    ex15={g:[I('v_accvgpr_read_b32 v%d, a%d'%(4+i,aD+i)) for i in range(4)],
          g+1:[I('v_add_f32 v4, v4, v5'), I('v_add_f32 v6, v6, v7'), I('v_cndmask_b32 v4, v6, v4, vcc')],
          g+2:[I('ds_write_b32 v2, v4'), I('ds_write_b32 v2, v4 offset:%d'%(NF*128))],
          g+4:[I('s_waitcnt lgkmcnt(0)'), I('s_barrier')]+[rdc(0,q,cdst(0,q)) for q in range(2)],
          g+5:[rdc(0,q,cdst(0,q)) for q in range(2,4)],
          g+6:[rdc(1,q,cdst(1,q)) for q in range(2)]}
    e1,_=tile(1,False,False,[],extra=ex15)
    Lp='L_k1_loop_%s'%tag
    loop=[Lp+':']+body+[I('s_sub_u32 s22, s22, 1'), I('s_cmp_lg_u32 s22, 0'), I('s_cbranch_scc1 %s'%Lp)]
    E=[I('v_lshlrev_b32 v1, 4, v0'), I('s_lshl_b32 s26, s25, 12'), I('v_add_u32 v1, s26, v1'), I('s_waitcnt vmcnt(0)')]
    sc=opt.get('st_mod','')
    for nf in range(NF):
        E+=phys(nf)+[I('s_lshl_b32 s27, s26, 17'), I('s_add_u32 s27, s27, s31')]
        if scale_q:
            E+=[I('s_add_u32 s26, s30, s26'), I('s_cmp_lt_u32 s26, 32'), I('s_cselect_b32 s34, 0x%x, 1.0'%QSCALE),
                I('v_mul_f32 v2, s34, v29'), I('v_mul_f32 v0, s34, v31')]
        for m in range(2):
            a=acc(nf,m)
            for i in range(8):
                c=cdst(nf,i//2)+2*(i%2)
                E.append(I('v_pk_fma_f32 %s, %s, %s, %s op_sel_hi:[1,0,1]'%(p(a+2*i),p(c),p(vST+2*m),p(a+2*i))))
            for i in range(8):
                if scale_q: E.append(I('v_pk_mul_f32 %s, %s, %s op_sel_hi:[1,0]'%(p(a+2*i),p(a+2*i),p((2,0)[m]))))
                else: E.append(I('v_pk_mul_f32 %s, %s, %s op_sel:[0,1]'%(p(a+2*i),p(a+2*i),p(vST+2*m))))
            for i in range(8): E.append(I('v_cvt_pk_bf16_f32 v%d, v%d, v%d'%(a+i,a+2*i,a+2*i+1)))
            for h in range(2):
                E.append(I('buffer_store_dwordx4 %s, v1, s[16:19], s27 offen offset:%d %s'%(vr(a+4*h,4), m*2048+h*1024,sc)))
            if m==0 and nf+1<NF:
                E+=[rdc(nf+1,q,cdst(nf+1,q)) for q in (range(4) if nf>=1 else range(2,4))]
    tail=auto_lgkm(e0+e1+E,pre=body)
    ne=len(E)
    Z=rt_end(opt,opt.get('k1_idx',0),tag)+[I('s_endpgm')]
    def stamp(k):
        if not opt.get('stamp') or opt.get('pst'): return []
        return [I('s_memtime s[%d:%d]'%(60+2*k,61+2*k)), I('s_waitcnt lgkmcnt(0)')]
    if opt.get('stamp'):
        k=[i for i,x in enumerate(tail) if 'v_mfma' in x][-1]
        tail=stamp(2)+tail[:k+1]+stamp(3)+tail[k+1:]
        Z=[I('s_waitcnt vmcnt(0)')]+stamp(4)+[I('s_cmp_lg_u32 s2, %d'%opt.get('stamp_wg',0)), I('s_cbranch_scc1 L_k1_nost_%s'%tag)]
        Z+=[I('s_mul_i32 s26, s25, 20'), I('v_mov_b32 v1, s26')]
        for k in range(5):
            Z+=[I('s_sub_u32 s26, s%d, s%d'%(62+2*k,60+2*k)), I('v_mov_b32 v2, s26'), I('buffer_store_dword v2, v1, s[48:51], 0 offen offset:%d'%(4*k+8*opt.get('stoff',0)))]
        Z+=['L_k1_nost_%s:'%tag]+rt_end(opt,opt.get('k1_idx',0),tag)+[I('s_endpgm')]
    code = P+stamp(1)+first+loop+tail+Z+PO
    return code, P+first+body+body+tail, body

def gen_k1b(name='gemm1_kernel', opt={}):
    L=kernel_header(name)
    B=[I('s_cmp_ge_u32 s2, 256'), I('s_cbranch_scc1 L_k1_end')]
    if opt.get('stamp'): B+=[I('s_memtime s[60:61]')]
    B+=rt_begin(opt)
    B+=[I('s_load_dwordx2 s[38:39], s[0:1], %d'%KA_X), I('s_load_dwordx2 s[6:7], s[0:1], %d'%KA_WQKV), I('s_load_dwordx2 s[36:37], s[0:1], %d'%KA_WIN),
        I('s_load_dwordx4 s[44:47], s[0:1], %d'%KA_DBG),
        I('v_lshrrev_b32 v1, 6, v0'), I('v_and_b32 v0, 63, v0'), I('s_nop 0'), I('v_readfirstlane_b32 s25, v1'),
        I('s_and_b32 s23, s2, 1'), I('s_lshl_b32 s23, s23, 2'), I('s_bfe_u32 s24, s2, 0x20003'), I('s_add_u32 s23, s23, s24'),
        I('s_bfe_u32 s24, s2, 0x20001'), I('s_lshl_b32 s24, s24, 3'), I('s_lshr_b32 s26, s2, 5'), I('s_add_u32 s24, s24, s26'),
        I('s_lshr_b32 s33, s24, 1'),
        I('s_lshl_b32 s26, s24, 14'), I('s_lshl_b32 s27, s25, 12'), I('s_add_u32 s21, s26, s27'),
        I('v_lshrrev_b32 v22, 5, v0'), I('v_and_b32 v23, 31, v0'), I('v_lshlrev_b32 v24, 11, v22'), I('v_lshl_add_u32 v24, v23, 4, v24'),
        I('v_lshrrev_b32 v25, 3, v0'), I('v_lshrrev_b32 v26, 4, v0'), I('v_and_b32 v27, 7, v0'),
        I('s_lshl_b32 s26, s25, 17'),
        I('v_lshlrev_b32 v25, 11, v25'), I('v_add_u32 v25, s26, v25'),
        I('v_xor_b32 v27, v27, v26'), I('v_xor_b32 v26, 4, v27'),
        I('v_lshl_add_u32 v27, v27, 4, v25'), I('v_lshl_add_u32 v26, v26, 4, v25')]
    for i in range(8): B+=[I('v_add_u32 v%d, %d, v%d'%(1+i, i*8*2048-(i%4)*1024, (27,26)[i&1]))]
    B+=[I('s_lshl_b32 s28, s25, 13'), I('s_mov_b32 s20, 0'), I('s_lshl_b32 s26, s23, 19'), I('s_mov_b32 m0, s28'),
        I('s_waitcnt lgkmcnt(0)')]
    if opt.get('pst'): B+=[I('s_memtime s[62:63]'), I('s_waitcnt lgkmcnt(0)')]
    B+=srd(8,38,39,'s26',256*2048)
    for k in range(4): B+=[I('buffer_load_dwordx4 %s, v24, s[8:11], s21 offen offset:%d'%(vr(64+4*k,4),512*k))]
    for i in range(8):
        if i==4: B+=[I('s_add_u32 m0, s28, 4096'), I('s_nop 0')]
        B+=[I('buffer_load_dwordx4 v%d, s[8:11], s20 offen offset:%d lds'%(1+i,(i%4)*1024))]
    B+=[I('s_mov_b32 s4, s46'), I('s_mov_b32 s5, s47'), I('s_mov_b32 s21, 0')]
    B+=srd(16,4,5,P1_OFF,P1_SIZE)+srd(40,4,5,STAT_OFF,256*128)+srd(48,44,45,0,256)
    B+=[I('s_lshl_b32 s26, s23, 5'), I('s_add_u32 s26, s26, s24'), I('s_lshl_b32 s26, s26, 7'), I('s_lshl_b32 s27, s25, 4'), I('s_add_u32 s26, s26, s27'),
        I('v_lshlrev_b32 v22, 3, v22'), I('v_add_u32 v22, s26, v22'), I('v_cmp_eq_u32 vcc, 0, v23'), I('v_mov_b32 v30, 0x7fff0000'), I('v_cndmask_b32 v30, v30, v22, vcc'),
        I('s_lshl_b32 s47, s23, 5'), I('s_lshl_b32 s46, s25, 1'), I('s_and_b32 s52, s33, 3'), I('s_add_u32 s52, s52, 2'),
        I('s_cmp_lg_u32 s25, 0'), I('s_cselect_b32 s52, 100, s52'), I('s_mov_b32 s53, 0')]
    B+=[I('s_bitcmp1_b32 s24, 0'), I('s_cbranch_scc1 L_k1_win')]
    V=[I('s_mul_i32 s30, s33, 6'), I('s_lshl_b32 s26, s30, 6'), I('s_sub_u32 s27, 0x600000, s26')]
    V+=srd(12,6,7,'s26','s27')
    V+=[I('s_lshl_b32 s31, s30, 17'), I('s_lshl_b32 s26, s23, 14'), I('s_add_u32 s31, s31, s26')]
    c1,tr1,b1=gen_variant(6,6144,'q',True,opt)
    FZ=[I('s_or_b32 s26, s2, s25'), I('s_cbranch_scc1 L_k1_nz')]+srd(12,4,5,FLAG_OFF,8192)+[I('v_lshlrev_b32 v1, 3, v1'), I('v_mov_b32 v2, 0'), I('buffer_store_dword v2, v1, s[12:15], 0 offen'), 'L_k1_nz:']
    k=[i for i,x in enumerate(c1) if 'buffer_store_dwordx4' in x and 's[16:19]' in x][-1]
    c1=c1[:k+1]+FZ+c1[k+1:]
    W=['L_k1_win:', I('s_mul_i32 s30, s33, 7'), I('s_lshl_b32 s26, s30, 6'), I('s_sub_u32 s27, 0x700000, s26')]
    W+=srd(12,36,37,'s26','s27')
    W+=[I('s_add_u32 s30, s30, 96'), I('s_lshl_b32 s31, s30, 17'), I('s_lshl_b32 s26, s23, 14'), I('s_add_u32 s31, s31, s26')]
    c2,tr2,b2=gen_variant(7,7168,'w',False,opt)
    code,_=fix_hazards(B+V+c1+W+c2+['L_k1_end:', I('s_endpgm')])
    for pre,tr,b,tg in ((V,tr1,b1,'q'),(W,tr2,b2,'w')):
        t,_=fix_hazards(B+pre+tr); check_waits(t,'k1'+tg)
        fix_hazards(b+b,auto=False,tag='k1loop'+tg)
    lds=65536+2*7*4096
    return L+code, kernel_desc(name,256+56,256,96), '; @launch kernel=%s grid=(256,1,1) block=(256,1,1) lds=%d'%(name,lds)
```

```python
import sys
from build import *
from k1b import gen_k1b
from k2c import gen_k2c
from k3 import gen_k3
opt=json.loads(sys.argv[2]) if len(sys.argv)>2 else {}
opt.setdefault('k2_idx',1); opt.setdefault('k3_idx',2)
o1=dict(opt); o2=dict(opt); o3=dict(opt)
for o,k in ((o1,1),(o2,2),(o3,3)):
    if opt.get('stamp') and opt['stamp']!=k: o['stamp']=0
assemble([gen_k1b(opt=o1),gen_k2c(opt=o2),gen_k3(opt=o3)], sys.argv[1])
```

```python
from common import *
from k2 import mf32, mf16
Q=16; KB=32; VB=48; SA=64; SB=80; PA=96; PB=104; OA=112; OB=128; LA=144; LB=148; ONES=152
vK,vV0,vV1,vD=4,5,6,7
vL16=11
KV=131072
FR=32; G=96; ACC=160
vOA=224; vOB=228; vA=230; vB=238; vBIAS=242; vST=246; vSL=247
REG=[0,32768,65536,98304]
AR=32; FR3=160; Y=192; XR=224; S0=240; S1=208; SAT=192
vW=16; vA3=20; vB3=22; vX=28
WSL=lambda t: KV+(t-20)*16384 if t>=20 else (t%8)*16384
CB=98304
STA=98304
def gen_k2e(name='mid_kernel', opt={}):
    L=kernel_header(name)
    STAMP=opt.get('stamp')
    def st(k): return [I('%s s[%d:%d]'%('s_memrealtime' if opt.get('real') else 's_memtime',76+2*k,77+2*k)), I('s_waitcnt lgkmcnt(0)')] if STAMP else []
    bar=[I('s_barrier')]
    TRC=opt.get('trace')
    gbr=bar+([I('%s s[94:95]'%('s_memrealtime' if opt.get('real') else 's_memtime')), I('s_mov_b32 s92, m0'), I('s_mov_b32 m0, s93'), I('s_waitcnt lgkmcnt(0)'), I('s_sub_u32 s94, s94, s76'),
              I('v_writelane_b32 v9, s94, m0'), I('s_mov_b32 m0, s92'), I('s_add_u32 s93, s93, 1')] if TRC else [])
    NA=opt.get('na',15)
    NS=opt.get('ns',3)
    PBW=opt.get('pbw',5); PB1=opt.get('pb1',8); PB2=opt.get('pb2',11)
    H=[I('s_cmp_ge_u32 s2, 256'), I('s_cbranch_scc1 L_k2_end')]+rt_begin(opt,sreg=96)
    H+=[I('s_load_dwordx2 s[4:5], s[0:1], %d'%KA_WS),
        I('s_load_dwordx4 s[60:63], s[0:1], %d'%KA_WSP),
        I('s_load_dwordx2 s[66:67], s[0:1], %d'%KA_WO), I('s_load_dwordx4 s[68:71], s[0:1], %d'%KA_WOUT),
        I('s_load_dwordx2 s[72:73], s[0:1], %d'%KA_X),
        I('v_lshrrev_b32 v1, 6, v0'), I('v_and_b32 v0, 63, v0'), I('s_nop 0'), I('v_readfirstlane_b32 s25, v1'),
        I('s_bfe_u32 s27, s2, 0x20003'), I('s_lshr_b32 s34, s2, 5'),
        I('s_and_b32 s42, s25, 3'), I('v_lshlrev_b32 v%d, 4, v0'%vL16),
        I('s_and_b32 s64, s2, 3'), I('s_lshl_b32 s64, s64, 2'), I('s_add_u32 s64, s64, s27'),
        I('s_cmp_ge_u32 s25, 4'), I('s_cbranch_scc1 L_gemm')]
    NC=opt.get('nc',13); CW=opt.get('cw',3); CQ=opt.get('cq',6); CK=opt.get('ck',9)
    jE=63-(NA+32+NC); JK=opt.get('jk',8); JP=opt.get('jp',jE+3); JQ=opt.get('jq',JK-1)
    JW=opt.get('jw',JP)
    FBAR=opt.get('fbar',1)
    assert 0<=jE+FBAR<JP<=JQ<JK<=10
    b3addr=[I('v_lshrrev_b32 v13, 5, v0'), I('v_bfe_u32 v12, v0, 2, 2'), I('v_lshl_add_u32 v12, v13, 2, v12'), I('v_lshlrev_b32 v12, 7, v12'),
        I('v_bfe_u32 v13, v0, 3, 1'), I('v_lshl_add_u32 v12, v13, 6, v12'),
        I('v_bfe_u32 v13, v0, 4, 1'), I('v_lshl_add_u32 v12, v13, 5, v12'),
        I('v_and_b32 v13, 3, v0'), I('v_lshl_add_u32 v%d, v13, 3, v12'%vB3), I('v_xor_b32 v%d, 64, v%d'%(vB3+1,vB3))]
    for k in (1,2): b3addr+=[I('v_add_u32 v%d, %d, v%d'%(vB3+2*k+u,65536*k,vB3+u)) for u in range(2)]
    b3addr+=[I('v_mov_b32 v%d, v%d'%(vA3,vL16)), I('v_add_u32 v%d, 4096, v%d'%(vA3+1,vL16)),
        I('s_lshl_b32 s43, s64, 2'), I('s_add_u32 s43, s43, s42')]
    def ldA(st_):
        Gr=[[I('buffer_load_dwordx4 %s, v%d, s[8:11], s24 offen offset:%d'%(vr(AR+32*st_+4*i,4),vA3+i//4,(i%4)*1024))] for i in range(8)]
        Gr[-1]+=[I('s_add_u32 s24, s24, 8192')]
        return Gr
    def dmaW(t):
        Gr=[[I('buffer_load_dwordx4 v%d, s[12:15], s58 offen offset:%d lds'%(vW+i,i*1024))] for i in range(4)]
        return [[I('s_add_u32 m0, s41, %d'%WSL(t)), I('s_mov_b32 s58, %d'%((t if t<14 else t-14)*128*2048))]]+Gr
    def rd3(t,j):
        f=FR3+8*(j%4); a=WSL(t)
        return [I('ds_read_b64_tr_b16 %s, v%d offset:%d'%(vr(f+4*nf+2*u,2),vB3+2*(a>>16)+nf,(a&0xffff)+j*2048+u*1024)) for nf in range(2) for u in range(2)]
    def tile3(t, aset, acc, c0, nxt, mid, early={}, late=[]):
        spine=[mf32(acc[nf],FR3+8*(j%4)+4*nf,AR+32*aset+4*j,'0' if (c0 and j==0) else None) for j in range(8) for nf in range(2)]
        fill={}
        def add(g,x): fill.setdefault(g,[]).extend(x)
        add(11,mid)
        for j in range(8):
            R = rd3(t,j+2) if j+2<8 else (rd3(nxt,j-6) if nxt is not None else [])
            add(2*j,R[:2]); add(2*j+1,R[2:])
        for g,x in early.items(): add(g,x)
        for k,g in enumerate(late): add(12+(k*4)//len(late),g)
        return interleave(spine,fill)
    flat=lambda Gr:[x for g in Gr for x in g]
    def pub1(lab,wave,off):
        return [I('s_cmp_lg_u32 s25, %d'%wave), I('s_cbranch_scc1 %s'%lab), I('s_mov_b64 exec, 1'), I('v_mov_b32 v12, 1'), I('v_mov_b32 v15, 0'),
                I('buffer_atomic_add v12, v15, s[48:51], %s offen sc1'%off), I('s_mov_b64 exec, -1'), lab+':']
    def ask1(lab,wave,off):
        return [I('s_cmp_lg_u32 s25, %d'%wave), I('s_cbranch_scc1 %s'%lab), I('s_mov_b64 exec, 1'), I('v_mov_b32 v12, 0'),
                I('buffer_load_dword v15, v12, s[48:51], %s offen sc1'%off), I('s_mov_b64 exec, -1'), lab+':']
    def chk1(lab,wave,off,n):
        return [I('s_cmp_lg_u32 s25, %d'%wave), I('s_cbranch_scc1 %s'%lab), I('s_mov_b64 exec, 1'), I('s_mov_b32 s27, 0x40000'),
                lab+'_l:', I('s_waitcnt vmcnt(0)'), I('v_readfirstlane_b32 s26, v15'), I('s_sub_u32 s27, s27, 1'), I('s_cmp_ge_u32 s26, %d'%n), I('s_cbranch_scc1 %s_g'%lab),
                I('s_sleep %d'%opt.get('slp',1)), I('buffer_load_dword v15, v12, s[48:51], %s offen sc1'%off), I('s_cmp_lg_u32 s27, 0'), I('s_cbranch_scc1 %s_l'%lab),
                lab+'_g:', I('s_mov_b64 exec, -1'), lab+':']
    A=[I('s_and_b32 s26, s2, 7'), I('s_lshl_b32 s33, s26, 2'), I('s_add_u32 s33, s33, s27'),
       I('s_lshl_b32 s30, s34, 14'), I('s_lshl_b32 s27, s42, 12'), I('s_add_u32 s30, s30, s27'),
       I('s_and_b32 s26, s42, 1'), I('s_lshl_b32 s40, s26, 10'), I('s_lshl_b32 s41, s42, 10'), I('s_add_u32 s41, s41, %d'%KV),
       I('s_lshl_b32 s26, s26, 7'), I('v_lshrrev_b32 v12, 5, v0'), I('v_lshlrev_b32 v12, 6, v12'), I('v_xor_b32 v12, s26, v12'),
       I('s_cmp_ge_u32 s42, 2'), I('s_cselect_b32 s26, -1, 0'), I('v_and_b32 v12, s26, v12'), I('v_xor_b32 v%d, v%d, v12'%(vD,vL16)),
       I('s_lshl_b32 s26, s33, 17'), I('s_add_u32 s27, s26, 0x%x'%P1_OFF),
       I('s_lshr_b32 s35, s42, 1'), I('s_add_u32 s35, s35, 1'), I('s_lshl_b32 s35, s35, 22'), I('s_add_u32 s35, s35, s27'),
       I('s_mov_b32 m0, s41'), I('s_waitcnt lgkmcnt(0)')]+st(0)
    A+=srd(36,4,5,'s27',131072)+srd(16,4,5,'s35',131072)
    def kvd(sl): return [I('s_add_u32 m0, s41, %d'%(sl*4096)), I('buffer_load_dwordx4 v%d, s[16:19], s40 offen lds'%vD), I('s_add_u32 s40, s40, 2048')]
    A+=kvd(0)[1:]
    for i in range(4): A+=[I('buffer_load_dwordx4 %s, v%d, s[36:39], s30 offen offset:%d'%(vr(Q+4*i,4),vL16,1024*i))]
    KF=opt.get('kvfirst',2)
    for sl in range(1,KF): A+=kvd(sl)
    A+=[I('s_setprio %d'%opt.get('pa',1))]+srd(52,4,5,O_OFF,O_SIZE)
    A+=[I('s_lshl_b32 s26, s34, 3'), I('s_lshl_b32 s27, s42, 1'), I('s_add_u32 s26, s26, s27'),
        I('s_lshl_b32 s26, s26, 5'), I('s_add_u32 s26, s26, s33'), I('s_lshl_b32 s46, s26, 11'),
        I('v_add_u32 v%d, %d, v%d'%(vK,KV,vL16)),
        I('v_bfe_u32 v12, v0, 4, 1'), I('v_and_b32 v13, 1, v0'), I('v_bfe_u32 v14, v0, 1, 1'), I('v_bfe_u32 v15, v0, 2, 2'), I('v_lshrrev_b32 v2, 5, v0'),
        I('v_xor_b32 v2, v2, v13'), I('v_lshl_add_u32 v15, v2, 2, v15'), I('v_lshl_add_u32 v15, v12, 3, v15'),
        I('v_lshlrev_b32 v15, 4, v15'), I('v_lshl_add_u32 v15, v14, 3, v15'),
        I('v_lshl_add_u32 v15, v13, 9, v15'), I('v_lshl_add_u32 v15, v12, 10, v15'),
        I('v_add_u32 v%d, %d, v15'%(vV0,KV+2048)), I('v_xor_b32 v%d, 128, v%d'%(vV1,vV0)),
        I('v_bfe_u32 v13, v0, 2, 1'), I('v_cmp_eq_u32 vcc, v13, v12'),
        I('v_mov_b32 v13, 0x3f803f80'), I('v_cndmask_b32 v%d, 0, v13, vcc'%ONES)]
    for i in range(1,4): A+=[I('v_mov_b32 v%d, v%d'%(ONES+i,ONES))]
    for r in list(range(OA,OA+40))+list(range(PB,PB+8))+list(range(VB+8,VB+16)): A+=[I('v_mov_b32 v%d, 0'%r)]
    def rdK(i,base): return [I('ds_read_b128 %s, v%d offset:%d'%(vr(KB+8*(i&1)+4*f,4),vK,base+1024*f)) for f in range(2)]
    def rdV(i,base,v0=vV0,v1=vV1): return [I('ds_read_b64_tr_b16 %s, v%d offset:%d'%(vr(VB+8*(i&1)+4*f+2*u,2),(v0,v1)[u],base+256*f)) for f in range(2) for u in range(2)]
    A+=[I('s_mov_b32 s45, 8'), I('s_waitcnt vmcnt(%d)'%(KF-1))]+bar+rdK(0,0)+flat([kvd(sl) for sl in range(KF,7)])+[I('s_waitcnt lgkmcnt(0)'),
       mf32(SA,KB,Q,'0'), mf32(SA,KB+4,Q+4), I('s_nop 7'), I('s_nop 3')]
    def phase(S_,P_, mf, extra):
        ex=[I('v_exp_f32 v%d, v%d'%(S_+i,S_+i)) for i in range(16)]
        cv=[I('v_cvt_pk_bf16_f32 v%d, v%d, v%d'%(P_+i,S_+2*i,S_+2*i+1)) for i in range(8)]
        pat=opt.get('att_pat',[(3,0),(3,1),(3,2),(3,2),(2,1),(2,2)])
        out=[]; e=0;c=0
        for k,(ne,nc) in enumerate(pat):
            out.append(mf[k]); out+=extra.get(k,[])
            out+=ex[e:e+ne]; e+=ne
            out+=cv[c:c+nc]; c+=nc
        assert e==16 and c==8
        return out
    body=[]
    for i in range(8):
        kb=KB+8*(i&1); kn=KB+8*((i+1)&1); vb=VB+8*(i&1); vp=VB+8*((i+1)&1)
        rv=rdV(i,4096*i); rk=rdK(i+1,4096*((i+1)&7)); d=kvd((i+7)&7)
        ex={0:rv[:2],1:rv[2:],2:[I('s_waitcnt vmcnt(5)')]+bar+rk[:1]+d[:1],3:rk[1:]}
        mfA=[mf32(SB,kb,Q+8,'0'), mf32(SB,kb+4,Q+12), mf32(OB,vp,PB), mf32(OB,vp+4,PB+4), mf16(LB,ONES,PB), mf16(LB,ONES,PB+4)]
        mfB=[mf32(SA,kn,Q,'0'), mf32(SA,kn+4,Q+4), mf32(OA,vb,PA), mf32(OA,vb+4,PA+4), mf16(LA,ONES,PA), mf16(LA,ONES,PA+4)]
        body+=phase(SA,PA,mfA,ex)+phase(SB,PB,mfB,{1:d[1:]})
    body=auto_lgkm(body)
    fix_hazards(body+body,auto=False,tag='att_loop')
    aloop=['L_att_loop:']+body+[I('s_sub_u32 s45, s45, 1'), I('s_cmp_lg_u32 s45, 0'), I('s_cbranch_scc1 L_att_loop')]
    AT=[mf32(OB,VB+8,PB), mf32(OB,VB+12,PB+4), mf16(LB,ONES,PB), mf16(LB,ONES,PB+4),
        I('v_mov_b32 v160, 0x1f800000'), I('v_mov_b32 v161, 0x5f800000')]
    FB=[]
    p=lambda b: vr(b,2)
    for X,(O_,L_,Q_) in enumerate(((OA,LA,Q),(OB,LB,Q+8))):
        AT+=[I('v_pk_mul_f32 v[162:163], %s, 0 op_sel_hi:[1,0]'%p(O_))]
        for i in range(1,8): AT+=[I('v_pk_fma_f32 v[162:163], %s, 0, v[162:163] op_sel_hi:[1,0,1]'%p(O_+2*i))]
        AT+=[I('v_add_f32 v162, v162, v163'), I('v_add_f32 v162, v162, v%d'%L_),
             I('v_cmp_nge_f32 vcc, v162, v160'), I('v_cmp_nle_f32 s[56:57], v162, v161'), I('s_nop 0'), I('s_or_b64 s[56:57], s[56:57], vcc'),
             I('s_cbranch_scc1 L_att_fb%d'%X), 'L_att_fb_ret%d:'%X, I('v_rcp_f32 v162, v%d'%L_), I('s_nop 0')]
        for i in range(8): AT+=[I('v_pk_mul_f32 %s, %s, v[162:163] op_sel_hi:[1,0]'%(p(O_+2*i),p(O_+2*i)))]
        for i in range(8): AT+=[I('v_cvt_pk_bf16_f32 v%d, v%d, v%d'%(O_+i,O_+2*i,O_+2*i+1))]
        if X: AT+=[I('s_add_u32 s46, s46, 65536')]
        for h in range(2): AT+=[I('buffer_store_dwordx4 %s, v%d, s[52:55], s46 offen offset:%d sc0 sc1'%(vr(O_+4*h,4),vL16,1024*h))]
        if X==0:
            AT+=[I('s_setprio %d'%opt.get('pa2',0))]+bar*FBAR
        FS=SA
        F=['L_att_fb%d:'%X, I('s_waitcnt vmcnt(0)'),
           I('s_lshl_b32 s26, s33, 17'), I('s_add_u32 s27, s26, 0x%x'%(P1_OFF+32*131072))]+srd(16,4,5,'s27',131072)
        F+=[I('s_add_u32 s27, s26, 0x%x'%(P1_OFF+64*131072))]+srd(20,4,5,'s27',131072)
        F+=[I('v_lshrrev_b32 v12, 5, v0'), I('v_lshlrev_b32 v12, 6, v12'), I('v_xor_b32 v8, v%d, v12'%vL16), I('v_xor_b32 v9, 128, v8'), I('v_add_u32 v9, 1024, v9'),
            I('v_bfe_u32 v12, v0, 4, 1'), I('v_mul_u32_u24 v12, 3072, v12'), I('s_lshl_b32 s26, s42, 10'), I('s_add_u32 s26, s26, 2048'), I('v_add_u32 v12, s26, v12'),
            I('v_add_u32 v2, v12, v%d'%vV0), I('v_add_u32 v3, v12, v%d'%vV1)]
        F+=[I('v_mov_b32 v%d, 0'%(O_+i)) for i in range(16)]
        F+=[I('v_mov_b32 v%d, 0'%L_), I('v_mov_b32 v12, 0xff800000'), I('s_mov_b32 s59, 0'), 'L_att_fbl%d:'%X,
            I('buffer_load_dwordx4 %s, v%d, s[16:19], s59 offen'%(vr(KB,4),vL16)),
            I('buffer_load_dwordx4 %s, v%d, s[16:19], s59 offen offset:1024'%(vr(KB+4,4),vL16)),
            I('s_add_u32 m0, s41, 4096'), I('s_nop 0'), I('buffer_load_dwordx4 v8, s[20:23], s59 offen lds'),
            I('s_add_u32 m0, s41, 8192'), I('s_nop 0'), I('buffer_load_dwordx4 v9, s[20:23], s59 offen lds'),
            I('s_waitcnt vmcnt(0)')]
        F+=rdV(0,0,2,3)
        F+=[mf32(FS,KB,Q_,'0'), mf32(FS,KB+4,Q_+4), I('v_max3_f32 v13, v%d, v%d, v12'%(FS,FS+1))]
        for i in range(1,8): F+=[I('v_max3_f32 v13, v%d, v%d, v13'%(FS+2*i,FS+2*i+1))]
        F+=[I('v_mov_b32 v14, v13'), I('v_permlane32_swap_b32 v13, v14'), I('v_max_f32 v13, v13, v14'),
            I('v_sub_f32 v14, v12, v13'), I('v_exp_f32 v14, v14'), I('v_mov_b32 v12, v13')]
        for i in range(16): F+=[I('v_sub_f32 v%d, v%d, v13'%(FS+i,FS+i))]
        for i in range(16): F+=[I('v_exp_f32 v%d, v%d'%(FS+i,FS+i))]
        F+=[I('v_mul_f32 v%d, v%d, v14'%(L_,L_))]
        for i in range(16): F+=[I('v_add_f32 v%d, v%d, v%d'%(L_,L_,FS+i)), I('v_mul_f32 v%d, v%d, v14'%(O_+i,O_+i))]
        for i in range(8): F+=[I('v_cvt_pk_bf16_f32 v%d, v%d, v%d'%(PA+i,FS+2*i,FS+2*i+1))]
        F+=[I('s_waitcnt lgkmcnt(0)'), mf32(O_,VB,PA), mf32(O_,VB+4,PA+4),
            I('s_add_u32 s59, s59, 2048'), I('s_cmp_lg_u32 s59, 131072'), I('s_nop 7'), I('s_nop 7'), I('s_cbranch_scc1 L_att_fbl%d'%X),
            I('v_mov_b32 v14, v%d'%L_), I('v_permlane32_swap_b32 v%d, v14'%L_), I('v_add_f32 v%d, v%d, v14'%(L_,L_)), I('s_branch L_att_fb_ret%d'%X)]
        FB+=F
    AT+=st(3)+b3addr+srd(48,4,5,FLAG_OFF,8192)
    AT+=[I('s_lshl_b32 s26, s43, 16'), I('s_add_u32 s26, s26, 0x%x'%O_OFF)]+srd(8,4,5,'s26',65536)+[I('s_mov_b32 s24, 0'),
         I('s_lshl_b32 s30, s34, 7'), I('s_add_u32 s30, s30, 4096'), I('s_lshr_b32 s31, s64, 1'), I('s_lshl_b32 s31, s31, 7'), I('s_add_u32 s31, s31, 4096'),
         I('s_lshl_b32 s26, s42, 13'), I('s_add_u32 s26, s26, %d'%CB), I('v_add_u32 v%d, s26, v%d'%(vX,vL16)),
         I('s_lshl_b32 s26, s64, 18'), I('s_add_u32 s26, s26, 0x%x'%O_OFF)]+srd(20,4,5,'s26',262144)
    AT+=[I('s_lshl_b32 s35, s34, 15'), I('s_lshl_b32 s26, s42, 13'), I('s_add_u32 s35, s35, s26'), I('v_lshlrev_b32 v3, 7, v0')]
    for j in range(jE+1+FBAR,JK+1):
        if j==JP: AT+=[I('s_waitcnt vmcnt(0)')]
        if j==JK: AT+=chk1('L_a_ck',0,'s31',32)
        AT+=bar
        if j==JP: AT+=st(6)+pub1('L_a_pb',0,'s30')
        if j==JQ: AT+=ask1('L_a_ak',0,'s31')
    AT+=st(4)
    if opt.get('opf',1): AT+=[I('buffer_load_dword v2, v3, s[20:23], s35 offen')]
    alp=opt.get('alp',[JK,JK,JK+1,JK+2])
    n1=opt.get('ae1',0); mids=opt.get('aem',[0,1,2,3])
    assert n1+len(mids)==4 and mids[-1]>=2
    AE=[]
    assert alp==sorted(alp) and alp[0]>=JK and alp[3]<=10+n1
    for b in range(JK,10+n1+1):
        for k in range(4):
            if alp[k]==b: AE+=flat(ldA(k))
        if b<10+n1: AE+=bar
    AE+=rd3(14,0)+rd3(14,1)+[I('s_waitcnt vmcnt(24)')]
    for k in range(4):
        assert k==3 or 10+n1+sum(1 for m in mids if m<=k)>=11+k
        AE+=tile3(14+k,k,(SAT,SAT+16),k==0,15+k if k<3 else None,([I('s_waitcnt vmcnt(%d)'%(16-8*k))] if k<3 else [])+bar*mids.count(k))
    AE+=[I('ds_write_b128 v%d, %s offset:%d'%(vX,vr(SAT+4*q,4),1024*q)) for q in range(8)]
    AT+=auto_lgkm(AE,pre=[])+st(5)+[I('s_waitcnt lgkmcnt(0)')]+bar+[I('s_branch L_k2_fin')]
    LD=32; X=160; T=96; Z=60
    S=['L_gemm:',
       I('s_bfe_u32 s65, s2, 0x10002'), I('s_mul_i32 s65, s65, 7'), I('s_add_u32 s65, s65, s34'),
       I('s_lshr_b32 s35, s2, 2'), I('s_lshl_b32 s35, s35, 11'), I('s_mul_i32 s27, s42, %d'%(14*131072)), I('s_add_u32 s35, s35, s27'),
       I('s_and_b32 s27, s2, 3'), I('s_lshl_b32 s27, s27, 3'),
       I('v_lshrrev_b32 v2, 5, v0'), I('v_lshlrev_b32 v2, 17, v2'),
       I('v_bfe_u32 v3, v0, 3, 2'), I('v_lshl_add_u32 v2, v3, 9, v2'),
       I('v_and_b32 v4, 7, v0'), I('v_add_u32 v4, s27, v4'),
       I('v_lshl_add_u32 v%d, v4, 4, v2'%vSL),
       I('v_lshlrev_b32 v3, 2, v3'), I('v_xor_b32 v4, v4, v3'), I('v_lshl_add_u32 v%d, v4, 4, v2'%vST),
       I('s_mov_b32 s27, s35'), I('s_waitcnt lgkmcnt(0)')]+st(0)
    S+=srd(8,4,5,P1_OFF+152*131072,56*131072)
    for t in range(7):
        S+=[I('buffer_load_dwordx4 %s, v%d, s[8:11], s27 offen'%(vr(LD+4*t,4),vSL))]
        if t<6: S+=[I('s_add_u32 s27, s27, 262144')]
    S+=[I('s_setprio 3'), I('s_mov_b32 s93, 0')]
    ZL=[]
    S+=[I('s_lshl_b32 s26, s65, 2'), I('s_and_b32 s27, s42, 1'), I('s_lshl_b32 s27, s27, 1'), I('s_add_u32 s26, s26, s27'),
        I('s_lshl_b32 s30, s64, 2'), I('s_lshr_b32 s27, s42, 1'), I('s_lshl_b32 s27, s27, 1'), I('s_add_u32 s30, s30, s27'),
        I('s_lshl_b32 s31, s26, 6'), I('s_add_u32 s31, s31, s30'), I('s_lshl_b32 s31, s31, 11'),
        I('s_mul_i32 s32, s30, 56'), I('s_add_u32 s32, s32, s26'), I('s_lshl_b32 s32, s32, 11')]
    ZL+=srd(36,4,5,P1_OFF+96*131072,56*131072)
    for nf in range(2):
        for q in range(4): ZL+=[I('buffer_load_dwordx4 %s, v%d, s[36:39], s31 offen offset:%d'%(vr(Z+16*nf+4*q,4),vL16,1024*q))]
        if nf==0: ZL+=[I('s_add_u32 s31, s31, 131072')]
    ZL+=srd(36,62,63,0,4096)
    ZL+=[I('v_and_b32 v12, 31, v0'), I('v_lshlrev_b32 v12, 1, v12'), I('s_lshl_b32 s26, s30, 6'),
        I('v_mov_b32 v%d, 0'%vBIAS), I('v_mov_b32 v%d, 0'%(vBIAS+2)),
        I('buffer_load_short_d16_hi v%d, v12, s[36:39], s26 offen'%vBIAS), I('buffer_load_short_d16_hi v%d, v12, s[36:39], s26 offen offset:64'%(vBIAS+2))]
    S+=srd(48,4,5,FLAG_OFF,8192)+srd(12,4,5,Z2N_OFF,Z2N_SIZE)+srd(52,4,5,H_OFF,H_SIZE)
    S+=[I('s_lshl_b32 s26, s64, 19')]+srd(16,60,61,'s26',128*4096)
    S+=[I('s_lshl_b32 s26, s65, 19'), I('s_add_u32 s26, s26, 0x%x'%Z2N_OFF)]+srd(20,4,5,'s26',128*4096)
    S+=[I('v_lshrrev_b32 v12, 3, v0'), I('v_lshrrev_b32 v13, 4, v0'), I('v_and_b32 v14, 7, v0'),
        I('s_lshl_b32 s26, s42, 17'), I('v_lshlrev_b32 v12, 12, v12'), I('v_add_u32 v12, s26, v12'),
        I('v_xor_b32 v14, v14, v13'), I('v_xor_b32 v15, 4, v14'),
        I('v_lshl_add_u32 v14, v14, 4, v12'), I('v_lshl_add_u32 v15, v15, 4, v12')]
    for i in range(4): S+=[I('v_add_u32 v%d, %d, v%d'%(vOA+i, i*8*4096-i*1024, 14+(i&1)))]
    S+=[I('s_lshr_b32 s26, s42, 1'), I('s_lshl_b32 s26, s26, 11'), I('s_and_b32 s27, s42, 1'), I('s_lshl_b32 s27, s27, 18'), I('s_add_u32 s26, s26, s27'),
        I('v_add_u32 v%d, s26, v%d'%(vOB,vL16)), I('v_add_u32 v%d, %d, v%d'%(vOB+1,131072-2048,vOB))]
    S+=[I('v_and_b32 v12, 31, v0'), I('v_lshrrev_b32 v13, 5, v0'), I('v_bfe_u32 v14, v0, 1, 3'),
        I('s_lshr_b32 s26, s42, 1'), I('s_lshl_b32 s26, s26, 13'),
        I('v_lshlrev_b32 v12, 7, v12'), I('v_add_u32 v12, s26, v12')]
    for j in range(4):
        S+=[I('v_add_u32 v15, %d, v13'%(2*j)), I('v_xor_b32 v15, v15, v14'), I('v_lshl_add_u32 v%d, v15, 4, v12'%(vA+j)),
            I('v_add_u32 v%d, 65536, v%d'%(vA+4+j,vA+j))]
    S+=[I('v_bfe_u32 v12, v0, 4, 1'), I('v_and_b32 v13, 1, v0'), I('v_bfe_u32 v14, v0, 1, 1'), I('v_bfe_u32 v15, v0, 2, 2'),
        I('v_lshrrev_b32 v4, 5, v0'), I('v_xor_b32 v4, v4, v12'),
        I('v_lshl_add_u32 v15, v4, 3, v15'), I('v_lshl_add_u32 v15, v13, 2, v15'),
        I('v_lshlrev_b32 v15, 4, v15'), I('v_lshl_add_u32 v15, v14, 3, v15'),
        I('v_lshl_add_u32 v15, v13, 9, v15'), I('v_lshl_add_u32 v15, v12, 10, v15'),
        I('s_and_b32 s26, s42, 1'), I('s_lshl_b32 s26, s26, 12'), I('s_add_u32 s26, s26, 16384'),
        I('v_add_u32 v%d, s26, v15'%vB), I('v_xor_b32 v%d, 64, v%d'%(vB+1,vB))]
    S+=[I('v_add_u32 v%d, 65536, v%d'%(vB+2+u,vB+u)) for u in range(2)]
    S+=[I('s_mov_b32 s28, 0x%x'%f2u(GC2)), I('s_mov_b32 s29, s28'), I('v_mov_b32 v252, 0x%x'%f2u(GC1)), I('v_mov_b32 v253, v252'),
        I('v_and_b32 v254, 7, v0'), I('v_lshlrev_b32 v254, 5, v254'), I('v_add_u32 v254, %d, v254'%STA),
        I('s_lshl_b32 s27, s42, 3'), I('v_add_u32 v255, s27, v254'),
        I('s_lshl_b32 s41, s42, 12'), I('s_mov_b32 s40, 0'), I('s_mov_b32 s44, 0'),
        I('s_bfe_u32 s26, s2, 0x10002'), I('s_lshl_b32 s26, s26, 3'), I('s_add_u32 s59, s26, s34'), I('s_lshl_b32 s59, s59, 7'),
        I('v_lshrrev_b32 v10, 3, v0'), I('s_lshl_b32 s26, s42, 5'), I('v_add_u32 v10, s26, v10'), I('v_lshlrev_b32 v10, 11, v10'),
        I('v_and_b32 v13, 7, v0'), I('v_bfe_u32 v12, v0, 4, 1'), I('v_lshlrev_b32 v12, 2, v12'), I('v_xor_b32 v13, v13, v12'),
        I('v_lshl_add_u32 v%d, v13, 4, v10'%vW)]
    for i in range(1,4): S+=[I('v_add_u32 v%d, %d, v%d'%(vW+i,i*(8*2048-1024),vW))]
    S+=[I('v_and_b32 v10, 31, v0'), I('v_lshlrev_b32 v10, 11, v10'), I('v_lshrrev_b32 v12, 5, v0'), I('v_lshl_add_u32 v%d, v12, 4, v10'%vX)]+b3addr
    ZP=opt.get('zpos',1)
    S+=(ZL if ZP==0 else [])+bar
    C=[I('s_waitcnt vmcnt(%d)'%(10 if ZP==0 else 0))]+st(1)+(ZL if ZP==1 else [])
    C1=[]
    for t in range(7): C1+=unpack8(LD+4*t,X+8*t)
    for b in range(0,28,7): C1+=gelu_block([X+2*i for i in range(b,b+7)],T,252,28)
    cut=opt.get('scut',[0.4,0.8])
    assert len(cut)==NS-1
    pos=[0]+[int(c*len(C1)) for c in cut]+[len(C1)]
    for k in range(NS): C+=C1[pos[k]:pos[k+1]]+(gbr if k<NS-1 else [])+(ZL if ZP==2 and k==0 else [])
    C+=[I('v_pk_add_f32 v[248:249], %s, %s'%(p(X),p(X+2))), I('v_pk_mul_f32 v[250:251], %s, %s'%(p(X),p(X))),
        I('v_pk_fma_f32 v[250:251], %s, %s, v[250:251]'%(p(X+2),p(X+2)))]
    for i in range(2,28):
        C+=[I('v_pk_add_f32 v[248:249], v[248:249], %s'%p(X+2*i)), I('v_pk_fma_f32 v[250:251], %s, %s, v[250:251]'%(p(X+2*i),p(X+2*i)))]
    C+=[I('v_add_f32 v248, v248, v249'), I('v_add_f32 v249, v250, v251')]
    for v in (248,249): C+=[I('v_add_f32_dpp v%d, v%d, v%d row_ror:8 row_mask:0xf bank_mask:0xf'%(v,v,v))]
    for sw in ('16','32'):
        C+=[I('v_mov_b32 v250, v248'), I('v_mov_b32 v251, v249'), I('v_permlane%s_swap_b32 v248, v250'%sw), I('v_permlane%s_swap_b32 v249, v251'%sw),
            I('v_pk_add_f32 v[248:249], v[248:249], v[250:251]')]
    C+=[I('ds_write_b64 v255, v[248:249]'), I('s_waitcnt lgkmcnt(0)')]+gbr
    for k in range(2): C+=[I('ds_read_b128 %s, v254 offset:%d'%(vr(T+4*k,4),16*k))]
    C+=[I('s_waitcnt lgkmcnt(0)')]
    for k in range(2): C+=[I('v_pk_add_f32 %s, %s, %s'%(p(T+4*k),p(T+4*k),p(T+4*k+2)))]
    C+=[I('v_pk_add_f32 %s, %s, %s'%(p(T),p(T),p(T+4))),
        I('v_mul_f32 v248, 0x%x, v%d'%(f2u(1/1792),T)), I('v_mul_f32 v249, 0x%x, v%d'%(f2u(1/1792),T+1)),
        I('v_fma_f32 v249, -v248, v248, v249'), I('v_max_f32 v249, 0, v249'), I('v_add_f32 v249, 0x3727c5ac, v249'), I('v_rsq_f32 v250, v249'),
        I('s_nop 0'), I('v_mul_f32 v248, v248, v250')]
    for t in range(7):
        for i in range(4*t,4*t+4):
            C+=[I('v_pk_fma_f32 %s, %s, v[250:251], v[248:249] op_sel_hi:[1,0,0] neg_lo:[0,0,1] neg_hi:[0,0,1]'%(p(X+2*i),p(X+2*i)))]
        for i in range(4): C+=[I('v_cvt_pk_bf16_f32 v%d, v%d, v%d'%(LD+4*t+i,X+8*t+2*i,X+8*t+2*i+1))]
        C+=[I('buffer_store_dwordx4 %s, v%d, s[12:15], s35 offen sc0 sc1'%(vr(LD+4*t,4),vST))]
        if t<6: C+=[I('s_add_u32 s35, s35, 262144')]
    C+=[I('s_setprio %d'%opt.get('pg',0))]+st(2)+gbr
    gl=[]
    for q in range(8): gl+=unpack8(Z+4*q,G+8*q)
    for b in range(0,32,8): gl+=gelu_block([G+2*i for i in range(b,b+8)],ACC,252,28)
    def dmaA(slot):
        Gr=[[I('buffer_load_dwordx4 v%d, s[16:19], s40 offen offset:%d lds'%(vOA+i,1024*i))] for i in range(4)]
        Gr[-1]+=[I('s_add_u32 m0, s41, %d'%(REG[slot]+16384)), I('s_add_u32 s40, s40, 128')]
        return Gr
    def dmaB(slot):
        Gr=[[I('buffer_load_dwordx4 v%d, s[20:23], s44 offen offset:%d lds'%(vOB+i//2,1024*i))] for i in range(4)]
        Gr[-1]+=[I('s_add_u32 s44, s44, 4096')]
        return Gr
    notw7=lambda lab: [I('s_cmp_lg_u32 s25, 7'), I('s_cbranch_scc1 %s'%lab)]
    pollv=[I('v_lshlrev_b32 v12, 7, v0'), I('buffer_load_dword v15, v12, s[48:51], 0 offen sc1')]
    pub=notw7('L_g_np')+[I('s_and_b32 s26, s2, 15'), I('s_lshl_b32 s26, s26, 7'),
        I('s_mov_b64 exec, 1'), I('v_mov_b32 v12, 1'), I('v_mov_b32 v15, 0'), I('buffer_atomic_add v12, v15, s[48:51], s26 offen sc1'), I('s_mov_b64 exec, -1'), 'L_g_np:']
    ask=notw7('L_g_na')+[I('s_mov_b64 exec, 0xffff')]+pollv+[I('s_mov_b64 exec, -1'), 'L_g_na:']
    chk=notw7('L_g_nc')+[I('s_mov_b64 exec, 0xffff'), I('s_mov_b32 s27, 0x10000'), I('s_waitcnt vmcnt(0)'),
        'L_g_cp:', I('v_cmp_gt_u32 vcc, 16, v15'), I('s_nop 1'), I('s_and_b32 s26, vcc_lo, 0xffff'), I('s_cbranch_scc0 L_g_cg'),
        I('s_sleep 2')]+pollv+[I('s_waitcnt vmcnt(0)'), I('s_sub_u32 s27, s27, 1'), I('s_cmp_lg_u32 s27, 0'), I('s_cbranch_scc1 L_g_cp'),
        'L_g_cg:']+([I('buffer_inv sc1')] if opt.get('inv') else [])+[I('s_mov_b64 exec, -1'), 'L_g_nc:']
    pf=lambda k: []
    wsrd=[I('s_sub_u32 s26, 0x380000, s59')]+srd(12,68,69,'s59','s26')
    npc=PB2-NS
    pieces=[gl[(k*len(gl))//npc:((k+1)*len(gl))//npc] for k in range(npc)]
    W=[]
    for k in range(NS+1,PB2+1):
        pre=[]
        if k==NS+1: pre=[I('s_waitcnt vmcnt(7)')]
        if k==PBW+1: pre=pub
        if PBW+1<=k<=PBW+4: pre=pre+[I('s_add_u32 m0, s41, %d'%REG[k-PBW-1])]+[x for x in flat(dmaA(k-PBW-1)) if 'm0' not in x]
        if k==PB1+1: pre=pre+ask
        W+=pre+pieces[k-NS-1]
        if k==PBW: W+=[I('s_waitcnt vmcnt(0)')]
        if k==PB2: W+=chk
        W+=gbr
    assert PB2>=PBW+4 and PBW>NS and PBW<=PB1<PB2 and NA>=PB2+2
    W+=st(3)+wsrd+[I('s_cmp_ge_u32 s2, 224'), I('s_cbranch_scc1 L_g_idle')]
    for t in range(3): W+=[I('s_add_u32 m0, s41, %d'%(REG[t]+16384))]+flat(dmaB(t))
    W+=[I('s_add_u32 m0, s41, %d'%(REG[3]+16384))]
    W+=gbr*(NA-1-(PB2+1))+[I('s_waitcnt vmcnt(8)')]+gbr
    def reads(slot,j):
        so=REG[slot]&0xffff; hi=REG[slot]>>16; f=FR+16*j
        Lr=[I('ds_read_b128 %s, v%d offset:%d'%(vr(f+4*m,4),vA+4*hi+j,so+m*4096)) for m in range(2)]
        for nf in range(2):
            for u in range(2):
                Lr.append(I('ds_read_b64_tr_b16 %s, v%d offset:%d'%(vr(f+8+4*nf+2*u,2),vB+2*hi+u,so+(j>>1)*8192+nf*2048+(j&1)*256)))
        return [Lr[2],Lr[3],Lr[0],Lr[1],Lr[4],Lr[5]]
    rp1=opt.get('g2_rp1',[0,0,1,1,2,2,3,3,4,4,5,5]); rp2=opt.get('g2_rp2',[8,8,9,9,10,10,11,11,12,12,13,13])
    gbar=opt.get('g2_bar',7)
    dgA=opt.get('g2_dgA',[8,10,12,14]); dgB=opt.get('g2_dgB',[0,2,4,6])
    def tile(kt):
        slot=kt%4; c0=(kt==0); nxt=kt<31
        spine=[mf32(ACC+16*(2*nf+m), FR+16*j+8+4*nf, FR+16*j+4*m, '0' if (c0 and j==0) else None) for j in range(4) for nf in range(2) for m in range(2)]
        fill={}
        def add(g,x): fill.setdefault(g,[]).extend(x)
        for pp,r in zip(rp1,reads(slot,2)+reads(slot,3)): add(pp,[r])
        if kt+3<=31:
            for pp,g in zip(dgB,dmaB((kt+3)%4)): add(pp,g)
        else:
            Gw=dmaW(2*(kt-29)+1); add(-1,Gw[0])
            for pp,g in zip(dgB,Gw[1:]): add(pp,g)
        w={0:8,1:12,31:63}.get(kt,16)
        add(gbar,[I('s_waitcnt vmcnt(%d) lgkmcnt(0)'%w)]+gbr)
        if nxt:
            for pp,r in zip(rp2,reads((slot+1)%4,0)+reads((slot+1)%4,1)): add(pp,[r])
        if kt+4<=31:
            add(gbar,[I('s_add_u32 m0, s41, %d'%REG[slot])])
            for pp,g in zip(dgA,dmaA(slot)): add(pp,g)
        else:
            Gw=dmaW(2*(kt-28)); add(gbar,Gw[0])
            for pp,g in zip(dgA,Gw[1:]): add(pp,g)
        return interleave(spine,fill)
    W+=reads(0,0)+reads(0,1)+[I('s_mov_b32 s47, 6'), I('s_waitcnt lgkmcnt(0)')]+st(4)
    head=[]
    for t in range(4): head+=tile(t)
    head=auto_lgkm(head,pre=[])
    gb=[]
    for t in range(4,8): gb+=tile(t)
    gb=auto_lgkm(gb)
    fix_hazards(gb+gb,auto=False,tag='g2loop')
    pen=[]
    for t in range(28,32): pen+=tile(t)
    pen=auto_lgkm(pen,pre=gb)
    gloop=['L_g2_loop:']+gb+[I('s_sub_u32 s47, s47, 1'), I('s_cmp_lg_u32 s47, 0'), I('s_cbranch_scc1 L_g2_loop')]
    Ep=[]
    for nf in range(2):
        for m in range(2):
            a=ACC+16*(2*nf+m); g=G+16*(2*nf+m)
            for i in range(8): Ep+=[I('v_pk_add_f32 %s, %s, %s op_sel_hi:[1,0]'%(p(a+2*i),p(a+2*i),p(vBIAS+2*m)))]
            for i in range(8): Ep+=[I('v_pk_mul_f32 %s, %s, %s'%(p(a+2*i),p(a+2*i),p(g+2*i)))]
            for i in range(8): Ep+=[I('v_cvt_pk_bf16_f32 v%d, v%d, v%d'%(a+i,a+2*i,a+2*i+1))]
            Ep+=[I('s_add_u32 s26, s32, %d'%(m*56*2048+nf*2048))]
            for h in range(2): Ep+=[I('buffer_store_dwordx4 %s, v%d, s[52:55], s26 offen offset:%d sc0 sc1'%(vr(a+4*h,4),vL16,1024*h))]
        if nf==0: Ep+=gbr
    def bars(n,tag):
        if n<=2: return gbr*n
        return [I('s_mov_b32 s47, %d'%n), 'L_%s:'%tag]+gbr+[I('s_sub_u32 s47, s47, 1'), I('s_cmp_lg_u32 s47, 0'), I('s_cbranch_scc1 L_%s'%tag)]
    Ep+=flat(dmaW(7))+st(6)+gbr*(CW-1)+[I('s_waitcnt vmcnt(4)')]+gbr
    Ep+=[I('s_lshl_b32 s30, s64, 7'), I('s_add_u32 s30, s30, 2048')]+pub1('L_c_pb',7,'s30')
    D=['L_gC:', I('s_lshl_b32 s30, s64, 7'), I('s_add_u32 s30, s30, 2048')]+srd(52,72,73,0,0x400000)
    D+=[I('s_lshl_b32 s32, s43, 16'), I('s_add_u32 s32, s32, s59')]
    D+=[I('buffer_load_dwordx4 %s, v%d, s[52:55], s32 offen offset:%d'%(vr(XR+4*q,4),vX,32*q)) for q in range(4)]
    D+=[I('s_mul_i32 s26, s43, %d'%(56*2048)), I('s_add_u32 s26, s26, 0x%x'%H_OFF)]+srd(8,4,5,'s26',56*2048)+[I('s_mov_b32 s24, 0')]
    D+=[I('s_lshl_b32 s26, s43, 16'), I('s_add_u32 s26, s26, 0x%x'%O_OFF)]+srd(16,4,5,'s26',65536)
    D+=[I('s_sub_u32 s26, 0x200000, s59')]+srd(20,66,67,'s59','s26')+srd(52,70,71,0,0x400000)
    if CQ==CW: D+=ask1('L_c_ak',7,'s30')
    for k in range(CW+1,CK+1):
        if k==CK: D+=chk1('L_c_ck',7,'s30',14)
        D+=gbr
        if k==CQ: D+=ask1('L_c_ak',7,'s30')
    if opt.get('hpf',0):
        D+=[I('s_mul_i32 s26, s64, %d'%(4*56*2048)), I('s_add_u32 s26, s26, 0x%x'%H_OFF)]+srd(36,4,5,'s26',4*56*2048)
        D+=[I('s_lshl_b32 s26, s34, 2'), I('s_add_u32 s26, s26, s42'), I('s_mul_i32 s26, s26, %d'%(112*128)), I('v_lshlrev_b32 v12, 7, v0'),
            I('buffer_load_dword v13, v12, s[36:39], s26 offen'), I('s_add_u32 s26, s26, %d'%(48*128)), I('buffer_load_dword v13, v12, s[36:39], s26 offen')]
    nb=NC-2-CK
    for k in range(3):
        D+=flat(ldA(k))
        if k<2 and nb>0: D+=gbr; nb-=1
    D+=gbr*nb+[I('s_waitcnt vmcnt(16)')]+gbr+st(5)+rd3(0,0)+rd3(0,1)
    DT=[]
    assert JP<=JW<=11 and JW>=3
    swW=[I('s_mov_b64 s[12:13], s[20:21]'), I('s_mov_b32 s14, s22')]
    swA=[I('s_mov_b64 s[8:9], s[16:17]'), I('s_mov_b32 s10, s18'), I('s_mov_b32 s24, %d'%(4*8192))]
    def earlyA(st_): return {(k*12)//8:g for k,g in enumerate(ldA(st_))}
    for j in range(14):
        w={0:16,1:16,2:20,13:20}.get(j,24)+4*sum(1 for x in (JW,JW+1) if x in (j-1,j-2))
        mid=[I('s_waitcnt vmcnt(%d)'%w)]+gbr
        late=[]
        if 1<=j<=12:
            Gw=dmaW(j+7); mid=mid+(swW if j==7 else [])+Gw[0]; late=Gw[1:]
        if j in (JW,JW+1):
            Gx=[[x.replace('s[12:15]','s[20:23]') for x in g] for g in dmaW(20+j-JW)]
            late=[late[0]+late[1],late[2]+late[3]+Gx[0],Gx[1]+Gx[2],Gx[3]+Gx[4]]
        if j==10: late[-1]=late[-1]+swA
        DT+=tile3(j,j%4,(Y,Y+16),j==0,j+1 if j<13 else 18,mid,earlyA((j+3)%4),late)
    T3=FR3+16
    DT+=[I('s_mov_b32 s28, 0x%x'%f2u(-math.log2(math.e))), I('s_mov_b32 s29, s28')]
    for nf in range(2):
        y=Y+16*nf
        for i in range(8): DT+=[I('v_pk_mul_f32 %s, %s, s[28:29]'%(p(T3+2*i),p(y+2*i)))]
        for i in range(16): DT+=[I('v_exp_f32 v%d, v%d'%(T3+i,T3+i))]
        for i in range(8): DT+=[I('v_pk_add_f32 %s, %s, 1.0 op_sel_hi:[1,0]'%(p(T3+2*i),p(T3+2*i)))]
        for i in range(16): DT+=[I('v_rcp_f32 v%d, v%d'%(T3+i,T3+i))]
        for i in range(8): DT+=[I('v_pk_mul_f32 %s, %s, %s'%(p(y+2*i),p(y+2*i),p(T3+2*i)))]
        for i in range(8): DT+=[I('v_cvt_pk_bf16_f32 v%d, v%d, v%d'%(Y+8*nf+i,y+2*i,y+2*i+1))]
    for q in range(4):
        DT+=[I('v_permlane32_swap_b32 v%d, v%d'%(XR+4*q,XR+4*q+2)), I('v_permlane32_swap_b32 v%d, v%d'%(XR+4*q+1,XR+4*q+3))]
    DT+=[I('s_lshl_b32 s26, s42, 13'), I('s_add_u32 s26, s26, %d'%CB), I('v_add_u32 v13, s26, v%d'%vL16)]
    for k in range(4):
        DT+=tile3(18+k,(2+k)%4,(S0,S1),k==0,19+k if k<3 else None,([I('s_waitcnt vmcnt(%d)'%(16-8*k))] if k<3 else [])+(gbr if k==0 else []),earlyA(1) if k==0 else {})
    DT+=gbr+[I('ds_read_b128 %s, v13 offset:%d'%(vr(AR+4*q,4),1024*q)) for q in range(8)]
    for nf in range(2):
        y=(S0,S1)[nf]; T4=AR+32+32*nf
        DT+=unpack8(Y+8*nf,T4)+unpack8(Y+8*nf+4,T4+8)+unpack8(XR+8*nf,T4+16)+unpack8(XR+8*nf+4,T4+24)
    for nf in range(2):
        y=(S0,S1)[nf]; T4=AR+32+32*nf
        for i in range(8): DT+=[I('v_pk_add_f32 %s, %s, %s'%(p(y+2*i),p(y+2*i),p(AR+16*nf+2*i)))]
        for i in range(8): DT+=[I('v_pk_fma_f32 %s, %s, %s, %s'%(p(y+2*i),p(y+2*i),p(T4+2*i),p(T4+16+2*i)))]
        for i in range(8): DT+=[I('v_cvt_pk_bf16_f32 v%d, v%d, v%d'%(y+i,y+2*i,y+2*i+1))]
        for h in range(2):
            DT+=[I('v_permlane32_swap_b32 v%d, v%d'%(y+4*h,y+4*h+2)), I('v_permlane32_swap_b32 v%d, v%d'%(y+4*h+1,y+4*h+3))]
        for h in range(2):
            DT+=[I('buffer_store_dwordx4 %s, v%d, s[52:55], s32 offen offset:%d'%(vr(y+4*h,4),vX,64*nf+32*h))]
    k0=len(D)-8
    D=D[:k0]+auto_lgkm(D[k0:]+DT,pre=[])
    ID=['L_g_idle:', I('v_lshlrev_b32 v12, 7, v0'), I('s_sub_u32 s26, s2, 224'), I('s_lshl_b32 s26, s26, 2'), I('s_add_u32 s26, s26, s42'), I('s_lshl_b32 s26, s26, 13')]
    ID+=srd(8,66,67,0,0x200000)+srd(20,68,69,0,0x380000)
    for k in range(2): ID+=[I('s_add_u32 s27, s26, %d'%(k*0x100000)), I('buffer_load_dword v13, v12, s[8:11], s27 offen')]
    for k in range(4): ID+=[I('s_add_u32 s27, s26, %d'%(k*0x100000)), I('buffer_load_dword v13, v12, s[20:23], s27 offen')]
    ID+=[I('s_waitcnt vmcnt(0)')]
    for t in range(8): ID+=gbr+flat(dmaW(t))
    ID+=bars(NA+32+CW+1-(PB2+1)-8,'g_idl')+[I('s_branch L_gC')]
    fin=['L_k2_fin:']
    if STAMP:
        fin+=[I('s_waitcnt vmcnt(0)')]+st(7)+[I('s_cmp_lg_u32 s2, %d'%opt.get('stamp_wg',0)), I('s_cbranch_scc1 L_k2_nost'), I('s_cmp_lg_u32 s42, %d'%opt.get('stamp_w',3)), I('s_cbranch_scc1 L_k2_nost'),
              I('s_load_dwordx2 s[6:7], s[0:1], %d'%KA_DBG), I('s_waitcnt lgkmcnt(0)')]+srd(48,6,7,0,256)+[
              I('s_lshr_b32 s26, s25, 2'), I('s_lshl_b32 s26, s26, 5'), I('v_mov_b32 v1, s26')]
        for k in range(1,8 if not TRC else 0): fin+=[I('s_sub_u32 s26, s%d, s76'%(76+2*k)), I('v_mov_b32 v2, s26'), I('buffer_store_dword v2, v1, s[48:51], 0 offen offset:%d'%(4*k))]
        if TRC: fin+=[I('s_cmp_lt_u32 s25, 4'), I('s_cbranch_scc1 L_k2_nost'), I('s_waitcnt vmcnt(0)'), I('v_lshlrev_b32 v1, 2, v0'), I('buffer_store_dword v9, v1, s[48:51], 0 offen')]
        fin+=['L_k2_nost:']
    if opt.get('wgst'):
        fin+=[I('s_cmp_lg_u32 s25, %d'%opt.get('wgw',0)), I('s_cbranch_scc1 L_k2_nowg')]+srd(48,4,5,ST_OFF+2*65536,65536)+[I('s_lshl_b32 s26, s2, 4'), I('v_mov_b32 v1, s26')]
        fin+=[I('v_mov_b32 v%d, s%d'%(4+i,76+2*k)) for i,k in enumerate(opt['wgst'])]+[I('s_nop 1'), I('buffer_store_dwordx4 v[4:7], v1, s[48:51], 0 offen'), 'L_k2_nowg:']
    if opt.get('rt'): fin+=[I('s_cmp_lg_u32 s25, 4'), I('s_cbranch_scc1 L_k2_end')]
    fin+=rt_end(opt,opt.get('k2_idx',1),'k2',sreg=96)+['L_k2_end:', I('s_endpgm')]
    code=H+A+st(1)+aloop+st(2)+AT+S+C+W+head+gloop+pen+Ep+D+fin+ID+FB
    code,_=fix_hazards(code)
    tr,_=fix_hazards(H+A+body+body+AT); check_waits(tr,'k2a')
    tr,_=fix_hazards(FB); check_waits(tr,'k2fb')
    tr,_=fix_hazards(H+S+C+W+head+gb+gb+pen+Ep+D); check_waits(tr,'k2g')
    return L+code, kernel_desc(name,256,256,102), '; @launch kernel=%s grid=(256,1,1) block=(512,1,1) lds=163840'%name
```

```python
import sys
from build import *
from k1b import gen_k1b
from k2e import gen_k2e
opt=json.loads(sys.argv[2]) if len(sys.argv)>2 else {}
opt.setdefault('k2_idx',1)
o1=dict(opt); o2=dict(opt)
for o,k in ((o1,1),(o2,2)):
    if opt.get('stamp') and opt['stamp']!=k: o['stamp']=0
assemble([gen_k1b(opt=o1),gen_k2e(opt=o2)], sys.argv[1])
```

```python
from common import *
A_LDS=65536
CS=0
STAT_OFF=0
PST_OFF=0x100000
ZC_OFF=FLAG_OFF+8192
QSCALE = f2u(32**-0.5*math.log2(math.e))
vP=1; vQ=5; vOB=1; vOA=5; vA=9; vB=11; vIDX=15; ST=16
AB=32; BF=64; SEL=96; CD=100; ACC=128
def m16(d,a,b,c=None): return I('v_mfma_f32_16x16x32_bf16 %s, %s, %s, %s'%(vr(d,4),vr(a,4),vr(b,4),vr(d,4) if c is None else c))
p=lambda b: vr(b,2)
flat=lambda G:[x for g in G for x in g]
acc=lambda a,t: ACC+16*a+4*t
creg=lambda a: (32+4*a) if a<4 else (104+4*(a-4))

def gen_variant(NB, strideB, tag, isz, opt):
    NQ=NB; NFR=2*NB; NM=4*NFR
    STM=opt.get('st_mod','')
    SB=[I('v_bfe_u32 v24, v0, 3, 1'), I('v_bfe_u32 v25, v0, 1, 2'), I('v_lshl_add_u32 v24, v24, 3, v25'),
        I('s_lshr_b32 s26, s25, 2'), I('s_lshl_b32 s26, s26, 5'), I('s_and_b32 s27, s25, 1'), I('s_lshl_b32 s27, s27, 4'), I('s_add_u32 s26, s26, s27'),
        I('s_and_b32 s27, s25, 2'), I('s_lshl_b32 s27, s27, 1'), I('s_add_u32 s26, s26, s27'),
        I('v_add_u32 v24, s26, v24'), I('s_mov_b32 s27, %d'%strideB), I('v_mul_u32_u24 v24, s27, v24'),
        I('v_lshrrev_b32 v25, 4, v0'), I('v_and_b32 v26, 1, v0'), I('v_lshl_add_u32 v24, v25, 5, v24'), I('v_lshl_add_u32 v24, v26, 4, v24')]
    if opt.get('bhack'):
        SB+=[I('v_lshrrev_b32 v24, 3, v0'), I('v_add_u32 v24, s26, v24'), I('v_mul_u32_u24 v24, s27, v24'), I('v_and_b32 v25, 7, v0'), I('v_lshl_add_u32 v24, v25, 4, v24')]
    for q in range(NQ):
        k=q*128-q*1024
        if not isz: SB+=[I('v_add_u32 v%d, %d, v24'%(vOB+q,k&0xffffffff))]
        else:
            lo,hi=[(3584 if (2*q+b)<NB else -NB*64)+k for b in range(2)]
            if lo==hi: SB+=[I('v_add_u32 v%d, %d, v24'%(vOB+q,lo&0xffffffff))]
            else: SB+=[I('v_mov_b32 v25, %d'%(lo&0xffffffff)), I('v_mov_b32 v26, %d'%(hi&0xffffffff)), I('v_cmp_gt_u32 vcc, 32, v0'),
                       I('v_cndmask_b32 v25, v26, v25, vcc'), I('v_add_u32 v%d, v25, v24'%(vOB+q))]
    SB+=[I('v_mov_b32 v%d, 0'%(vOB+q)) for q in range(NQ,4)]
    SB+=[I('s_and_b32 s26, s25, 3'), I('s_mul_i32 s28, s26, %d'%(NQ*1024)), I('s_lshr_b32 s26, s25, 2'), I('s_lshl_b32 s26, s26, 14'), I('s_add_u32 s28, s28, s26')]
    S=[]
    S+=[I('v_and_b32 v24, 15, v0'), I('v_lshrrev_b32 v25, 4, v0'), I('v_bfe_u32 v26, v0, 1, 3'),
        I('s_and_b32 s26, s25, 3'), I('s_lshl_b32 s26, s26, 13'), I('s_add_u32 s26, s26, %d'%A_LDS),
        I('v_lshlrev_b32 v24, 7, v24'), I('v_add_u32 v24, s26, v24'),
        I('v_xor_b32 v27, v25, v26'), I('v_lshl_add_u32 v%d, v27, 4, v24'%vA), I('v_xor_b32 v%d, 64, v%d'%(vA+1,vA))]
    S+=[I('v_lshrrev_b32 v24, 5, v0'), I('v_mul_u32_u24 v24, %d, v24'%(NQ*1024)), I('v_and_b32 v25, 31, v0'), I('v_lshl_add_u32 v24, v25, 3, v24'),
        I('s_lshr_b32 s26, s25, 2'), I('s_mul_i32 s35, s26, %d'%NB),
        I('s_and_b32 s46, s25, 3')]
    if NB<4: S+=[I('s_cmp_ge_u32 s46, %d'%NB), I('s_cselect_b32 s27, %d, 0'%NB), I('s_sub_u32 s46, s46, s27')]
    def phys(i): return [I('s_add_u32 s26, s46, %d'%i), I('s_cmp_ge_u32 s26, %d'%NB), I('s_cselect_b32 s27, %d, 0'%NB), I('s_sub_u32 s26, s26, s27')]
    for i in range(NB):
        S+=phys(i)+[I('s_add_u32 s26, s26, s35'), I('s_lshl_b32 s26, s26, 9'), I('v_add_u32 v%d, s26, v24'%(vB+i))]
    S+=[I('v_bfe_u32 v24, v0, 1, 1'), I('v_lshrrev_b32 v25, 5, v0'), I('v_cmp_eq_u32 vcc, v24, v25'), I('v_mov_b32 v24, 0x3f803f80'),
        I('v_cndmask_b32 v%d, 0, v24, vcc'%SEL)]+[I('v_mov_b32 v%d, v%d'%(SEL+i,SEL)) for i in range(1,4)]
    S+=[I('v_and_b32 v24, 1, v0'), I('v_mul_u32_u24 v24, 0xaaaa, v24'), I('v_add_u32 v%d, 0x4444, v24'%vIDX)]+[I('v_mov_b32 v%d, 0'%(CD+i)) for i in range(4)]
    uid=[0]
    def guard(h,X):
        uid[0]+=1; lab='L_k1_g%d_%s'%(uid[0],tag)
        return [I('s_cmp_lt_u32 s25, 4'), I('s_cbranch_scc%d %s'%(h,lab))]+X+[lab+':']
    def dma(q, only=None):
        srdn,so,inc,mp,lim,wr,vo=((8,20,74,28,76,77,vP),(12,21,75,29,78,79,vQ))[q]
        G=[]
        for i in range(4):
            ld=[I('buffer_load_dwordx4 v%d, s[%d:%d], s%d offen offset:%d lds'%(vo+i,srdn,srdn+3,so,i*1024))]
            if i>=opt.get('ndma',4): ld=[I('s_nop 0')]
            if only is None: G.append(ld if i<NQ else guard(1-q,ld))
            elif only==1-q or i<NQ: G.append(guard(only,ld))
            else: G.append([])
        adv=[I('s_add_u32 s%d, s%d, s%d'%(so,so,inc)), I('s_add_u32 s%d, s%d, 32768'%(mp,mp)), I('s_cmp_ge_u32 s%d, s%d'%(mp,lim)), I('s_cselect_b32 s26, s%d, 0'%wr), I('s_sub_u32 s%d, s%d, s26'%(mp,mp))]
        G[-1]=G[-1]+(adv if only is None else guard(only,adv))
        return [[I('s_mov_b32 m0, s%d'%mp)]]+G
    def rdA(j): return [I('ds_read_b128 %s, v%d offset:%d'%(vr(AB+16*j+4*t,4),vA+j,t*2048)) for t in range(4)]
    advA=lambda j: [I('v_add_u32 v%d, s59, v%d'%(vA+j,vA+j))]
    nxtA=[I('s_add_u32 s58, s58, 1'), I('s_cmp_eq_u32 s58, 3'), I('s_cselect_b32 s58, 0, s58'), I('s_cmp_eq_u32 s58, 2'), I('s_cselect_b32 s59, s80, s81')]
    def rdB(a):
        R=[[I('ds_read_b64_tr_b16 %s, v%d offset:%d'%(vr(BF+4*a+2*u,2),vB+a//2,2*u*NQ*1024+(a&1)*256))] for u in range(2)]
        if a&1: R[1]+=[I('v_add_u16 v%d, 0x4000, v%d'%(vB+a//2,vB+a//2))]
        return R
    SMF=I('v_smfmac_f32_16x16x64_bf16 %s, %s, %s, v%d'%(vr(CD,4),vr(SEL,4),vr(BF,8),vIDX))
    GB=opt.get('k1gb',3); D0=opt.get('k1d0',2); DS=opt.get('k1ds',(NM-GB-D0-1)//4+(1 if NM>16 else 0))
    VW='vmcnt(%d) '%(4+NQ)
    def step(j, G, has_next=True, c0=False, extra=None, vw=VW, dense=False):
        spine=[m16(acc(a,t),BF+4*a,AB+16*j+4*t,'0' if c0 else None) for a in range(NFR) for t in range(4)]
        fill={}
        def add(g,x): fill.setdefault(g,[]).extend(x)
        if has_next:
            nb=opt.get('nobar',0)
            add(GB,([I('s_waitcnt %slgkmcnt(0)'%vw)] if nb<2 else [])+([I('s_barrier')] if not nb or dense or not G else []))
            ra=[[x] for x in rdA(1-j)]; ra[-1]+=advA(1-j)+(nxtA if j==0 else [])
            avail={GB:rdB(0)+ra}
            for a in range(1,NFR): avail.setdefault(max(GB,4*a+3),[]).extend(rdB(a))
            queue=[]
            for g2 in range(GB,NM):
                queue+=avail.get(g2,[])
                n=1 if g2<NM-1 else len(queue)
                add(g2,flat(queue[:n])); queue=queue[n:]
            if not opt.get('nosmf'): add(NM-3,[SMF])
        if G:
            if dense:
                for g,x in G: add(g,x)
            else:
                add(GB,G[0])
                for k,g in enumerate(G[1:]): add(min(GB+D0+k*DS,NM-1),g)
        if extra:
            for g,x in extra.items(): add(g,x)
        return interleave(spine,fill)
    P=SB+[I('s_mov_b32 m0, s28'), I('s_nop 0')]+[I('buffer_load_dwordx4 v%d, s[68:71], 0 offen offset:%d lds'%(vOB+i,i*1024)) for i in range(NQ)]
    P+=[I('s_add_u32 s28, s28, 32768'), I('s_lshl_b32 s29, s25, 12'), I('s_add_u32 s29, s29, %d'%(A_LDS+32768)),
        I('s_mov_b32 s20, %d'%(64*strideB)), I('s_mov_b32 s21, 128'), I('s_mov_b32 s74, %d'%(0 if opt.get('fixB') else 64*strideB)), I('s_mov_b32 s75, %d'%(0 if opt.get('fixA') else 128)),
        I('s_mov_b32 s76, 65536'), I('s_mov_b32 s77, 65536'), I('s_mov_b32 s78, 163840'), I('s_mov_b32 s79, 98304'),
        I('s_mov_b32 s58, 0'), I('s_mov_b32 s59, 32768'), I('s_mov_b32 s80, 0xffff0000'), I('s_mov_b32 s81, 32768'),
        I('s_cmp_lt_u32 s25, 4')]
    for k in range(3): P+=[I('s_cselect_b32 s%d, s%d, s%d'%(8+k,68+k,64+k)), I('s_cselect_b32 s%d, s%d, s%d'%(12+k,64+k,68+k))]
    P+=[I('s_mov_b32 s11, 0x20000'), I('s_mov_b32 s15, 0x20000'), I('s_cbranch_scc1 L_k1_ns_%s'%tag)]
    for x,y in ((20,21),(74,75),(28,29),(76,78),(77,79)): P+=[I('s_mov_b32 s26, s%d'%x), I('s_mov_b32 s%d, s%d'%(x,y)), I('s_mov_b32 s%d, s26'%y)]
    P+=[I('v_swap_b32 v%d, v%d'%(vP+i,vQ+i)) for i in range(4)]+['L_k1_ns_%s:'%tag]+S
    X=ACC+16
    nd=4+NQ
    P+=[I('s_waitcnt vmcnt(%d)'%nd)]
    for k in range(2): P+=unpack8(ACC+4*k,X+8*k)
    R=ACC
    P+=[I('v_pk_add_f32 %s, %s, %s'%(p(R+2*i),p(X+2*i),p(X+8+2*i))) for i in range(4)]
    P+=[I('v_pk_add_f32 %s, %s, %s'%(p(R),p(R),p(R+2))), I('v_pk_add_f32 %s, %s, %s'%(p(R+4),p(R+4),p(R+6))), I('v_pk_add_f32 %s, %s, %s'%(p(R),p(R),p(R+4))),
        I('v_add_f32 v%d, v%d, v%d'%(R,R,R+1))]+wave_sum(R,R+1)+[I('v_mul_f32 v%d, 0xba800000, v%d'%(ST,R))]
    P+=[I('v_pk_add_f32 %s, %s, %s op_sel_hi:[1,0]'%(p(X+2*i),p(X+2*i),p(ST))) for i in range(8)]
    P+=[I('v_pk_mul_f32 %s, %s, %s'%(p(R+2*i),p(X+2*i),p(X+2*i))) for i in range(4)]
    P+=[I('v_pk_fma_f32 %s, %s, %s, %s'%(p(R+2*i),p(X+8+2*i),p(X+8+2*i),p(R+2*i))) for i in range(4)]
    P+=[I('v_pk_add_f32 %s, %s, %s'%(p(R),p(R),p(R+2))), I('v_pk_add_f32 %s, %s, %s'%(p(R+4),p(R+4),p(R+6))), I('v_pk_add_f32 %s, %s, %s'%(p(R),p(R),p(R+4))),
        I('v_add_f32 v%d, v%d, v%d'%(R,R,R+1))]+wave_sum(R,R+1)
    P+=[I('v_mov_b32 v%d, 0x3727c5ac'%(R+1)), I('v_fmac_f32 v%d, 0x3a800000, v%d'%(R+1,R)), I('v_rsq_f32 v%d, v%d'%(ST+1,R+1)), I('s_nop 0'),
        I('buffer_store_dwordx2 %s, v30, s[40:43], 0 offen sc0 sc1'%p(ST)), I('buffer_store_dword v31, v29, s[52:55], 0 offen sc0 sc1')]
    P+=[I('s_waitcnt vmcnt(2)'), I('s_barrier')]
    k0=len(P)
    P+=flat(rdB(0))+rdA(0)+advA(0)
    for a in range(1,NFR): P+=flat(rdB(a))
    P+=[I('s_mov_b32 s22, 12'), SMF]
    t0=step(0,dma(0),extra={1:[I('s_cmp_eq_u32 s22, s56'), I('s_cbranch_scc1 L_k1_poll_%s'%tag), 'L_k1_pret_%s:'%tag]})
    t1=step(1,dma(1))
    pub=[I('s_cmp_lg_u32 s25, 0'), I('s_cbranch_scc1 L_k1_np_%s'%tag), I('v_mov_b32 v28, 1'), I('v_mov_b32 v29, 0'), I('s_mov_b64 exec, 1'),
         I('buffer_atomic_add v28, v29, s[48:51], s47 offen sc1'), I('s_mov_b64 exec, -1'), 'L_k1_np_%s:'%tag]
    seq=dma(1,only=0)+dma(0)+dma(1)
    n0=len(seq); seq+=dma(0)
    pos=[(-1+(k*(NM))//len(seq)) if k<n0 else max(GB,-1+(k*NM)//len(seq)) for k in range(len(seq))]
    f0=step(0,list(zip(pos,seq)),c0=True,vw='',dense=True)
    f1=step(1,dma(1),extra={GB+1:pub})
    first=P[:k0]+auto_lgkm(P[k0:]+f0+f1,pre=[])
    body=auto_lgkm(t0+t1)
    ask=[I('s_mov_b64 exec, 1'), I('buffer_load_dword v28, v29, s[48:51], s47 offen sc1'), I('s_mov_b64 exec, -1')]
    PO=['L_k1_poll_%s:'%tag, I('s_sub_u32 s56, s56, 2'), I('s_add_u32 s57, s57, 1'), I('s_cmp_eq_u32 s57, 2'), I('s_cbranch_scc1 L_k1_chk_%s'%tag)]+ask+[I('s_branch L_k1_pret_%s'%tag),
        'L_k1_chk_%s:'%tag, I('s_mov_b32 s27, 0x40000'), 'L_k1_chl_%s:'%tag, I('v_readfirstlane_b32 s26, v28'), I('s_nop 1'), I('s_cmp_ge_u32 s26, 32'), I('s_cbranch_scc1 L_k1_pret_%s'%tag),
        I('s_sleep 2')]+ask+[I('s_waitcnt vmcnt(0)'), I('s_sub_u32 s27, s27, 1'), I('s_cmp_lg_u32 s27, 0'), I('s_cbranch_scc1 L_k1_chl_%s'%tag), I('s_branch L_k1_pret_%s'%tag)]
    g=GB+1
    ex29={0:[I('v_bfe_u32 v1, v0, 3, 1'), I('v_and_b32 v2, 7, v0'), I('s_lshl_b32 s26, s23, 12')],
          1:[I('v_lshlrev_b32 v1, 7, v1'), I('s_and_b32 s27, s25, 3'), I('s_lshl_b32 s27, s27, 10')],
          2:[I('v_lshl_add_u32 v1, v2, 3, v1'), I('s_add_u32 s26, s26, s27')],
          g+1:[I('buffer_load_dwordx2 %s, v1, s[40:43], s26 offen sc1'%p(ST))],
          g+3:[I('buffer_load_dwordx2 %s, v1, s[40:43], s26 offen offset:256 sc1'%p(ST+2))],
          g+5:[I('buffer_load_dwordx2 %s, v1, s[40:43], s26 offen offset:512 sc1'%p(ST+4))],
          g+7:[I('buffer_load_dwordx2 %s, v1, s[40:43], s26 offen offset:768 sc1'%p(ST+6))]}
    ex30={0:[I('v_and_b32 v2, 31, v0'), I('s_add_u32 s26, s35, s46'), I('s_lshl_b32 s26, s26, 7'), I('s_add_u32 s26, s26, %d'%CS)],
          1:[I('v_lshl_add_u32 v2, v2, 2, s26'), I('v_lshrrev_b32 v3, 4, v0')],
          2:[I('v_lshlrev_b32 v3, 4, v3'), I('v_bfe_u32 v5, v0, 4, 1')],
          GB+7:[I('v_cmp_eq_u32 vcc, 0, v5'), I('v_lshlrev_b32 v4, 4, v0')]}
    e0=step(0,dma(0))+step(1,dma(1,only=1))+step(0,None)+step(1,None,extra=ex29,vw='vmcnt(0) ')+step(0,None,extra=ex30,vw='')
    rdc=[]
    for i in range(NB):
        rdc+=phys(i)+[I('s_add_u32 s26, s26, s35'), I('s_lshl_b32 s26, s26, 7'), I('s_add_u32 s26, s26, %d'%CS), I('v_add_u32 v5, s26, v3')]
        rdc+=[I('ds_read_b128 %s, v5 offset:%d'%(vr(creg(2*i+f),4),64*f)) for f in range(2)]
    g=2
    ex15={g:[I('v_add_f32 v%d, v%d, v%d'%(CD,CD,CD+1)), I('v_add_f32 v%d, v%d, v%d'%(CD+2,CD+2,CD+3))],
          g+1:[I('v_cndmask_b32 v%d, v%d, v%d, vcc'%(CD,CD+2,CD)), I('ds_write_b32 v2, v%d'%CD)],
          g+3:[I('s_waitcnt lgkmcnt(0)'), I('s_barrier')]+rdc[:10]}
    for i in range(1,NB): ex15[g+3+i]=rdc[10*i:10*i+10]
    e1=step(1,None,has_next=False,extra=ex15)
    Lp='L_k1_loop_%s'%tag
    loop=[Lp+':']+body+[I('s_sub_u32 s22, s22, 1'), I('s_cmp_lg_u32 s22, 0'), I('s_cbranch_scc1 %s'%Lp)]
    def fold(a):
        E=[]
        for t in range(4):
            for i in range(2): E.append(I('v_pk_fma_f32 %s, %s, %s, %s op_sel_hi:[1,0,1]'%(p(acc(a,t)+2*i),p(creg(a)+2*i),p(ST+2*t),p(acc(a,t)+2*i))))
        for t in range(4):
            for i in range(2):
                if opt.get('pkv',1)==0: E.append(I('v_pk_mul_f32 %s, %s, %s op_sel:[0,1]'%(p(acc(a,t)+2*i),p(acc(a,t)+2*i),p(ST+2*t))))
                elif opt.get('pkv',1)==1: E.append(I('v_pk_mul_f32 %s, %s, %s op_sel_hi:[1,0]'%(p(acc(a,t)+2*i),p(acc(a,t)+2*i),p(6+2*t))))
                else: E+=[I('v_mul_f32 v%d, v%d, v%d'%(acc(a,t)+2*i+k,acc(a,t)+2*i+k,ST+2*t+1)) for k in range(2)]
        return E
    def put(i,sw=False):
        E=phys(i)+[I('s_lshl_b32 s26, s26, 17'), I('s_add_u32 s27, s26, s31')]
        for t in range(4):
            a=acc(2*i,t); b=acc(2*i+1,t)
            E+=[I('v_cvt_pk_bf16_f32 v%d, v%d, v%d'%(a,a,a+1)), I('v_cvt_pk_bf16_f32 v%d, v%d, v%d'%(a+1,a+2,a+3)),
                I('v_cvt_pk_bf16_f32 v%d, v%d, v%d'%(a+2,b,b+1)), I('v_cvt_pk_bf16_f32 v%d, v%d, v%d'%(a+3,b+2,b+3))]
            if sw: E+=[I('v_permlane%d_swap_b32 v%d, v%d'%(w,a+k,a+2+k)) for w in (16,32) for k in range(2)]
            E+=[I('buffer_store_dwordx4 %s, v4, s[16:19], s27 offen offset:%d %s'%(vr(a,4),t*1024,STM))]
        return E
    E=[I('s_waitcnt vmcnt(0) lgkmcnt(0)')]
    E2=[]
    if isz and opt.get('pkv',1)==1: E+=[I('v_mov_b32 v%d, v%d'%(6+2*t,ST+2*t+1)) for t in range(4)]
    if not isz:
        E+=[I('v_mul_f32 v%d, s34, v%d'%((6+2*t if opt.get('pkv',1)==1 else ST+2*t+1),ST+2*t+1)) for t in range(4)]
        for i in range(NB): E+=fold(2*i)+fold(2*i+1)+put(i)
    else:
        T=64
        gel=lambda a: gelu_block([acc(a,0)+2*k for k in range(8)],T+16*(a&1),24,36)
        E+=[I('s_mov_b32 s36, 0x%x'%f2u(GC2)), I('s_mov_b32 s37, s36'), I('v_mov_b32 v24, 0x%x'%f2u(GC1)), I('v_mov_b32 v25, v24'),
            I('s_cmp_lt_u32 s25, 4'), I('s_cbranch_scc1 L_k1_z2_%s'%tag)]
        for i in range(NB): E+=fold(2*i)+gel(2*i)+fold(2*i+1)+gel(2*i+1)+put(i,True)
        SS=112; QQ=120
        Z=['L_k1_z2_%s:'%tag, I('s_setprio %d'%opt.get('z2p',2))]
        for a in range(NFR):
            Z+=fold(a)+gel(a)
            for t in range(4):
                x=acc(a,t)
                if a==0: Z+=[I('v_pk_add_f32 %s, %s, %s'%(p(SS+2*t),p(x),p(x+2))), I('v_pk_mul_f32 %s, %s, %s'%(p(QQ+2*t),p(x),p(x)))]
                else: Z+=[I('v_pk_add_f32 %s, %s, %s'%(p(SS+2*t),p(SS+2*t),p(x))), I('v_pk_fma_f32 %s, %s, %s, %s'%(p(QQ+2*t),p(x),p(x),p(QQ+2*t))),
                          I('v_pk_add_f32 %s, %s, %s'%(p(SS+2*t),p(SS+2*t),p(x+2)))]
                Z+=[I('v_pk_fma_f32 %s, %s, %s, %s'%(p(QQ+2*t),p(x+2),p(x+2),p(QQ+2*t)))]
        for b in (SS,QQ): Z+=[I('v_add_f32 v%d, v%d, v%d'%(b+2*t,b+2*t,b+2*t+1)) for t in range(4)]
        for b in (SS,QQ): Z+=[I('v_permlane16_swap_b32 v%d, v%d'%(b,b+2)), I('v_permlane16_swap_b32 v%d, v%d'%(b+4,b+6))]
        for b in (SS,QQ): Z+=[I('v_add_f32 v%d, v%d, v%d'%(b,b,b+2)), I('v_add_f32 v%d, v%d, v%d'%(b+4,b+4,b+6))]
        for b in (SS,QQ): Z+=[I('v_permlane32_swap_b32 v%d, v%d'%(b,b+4))]
        Z+=[I('v_add_f32 v26, v%d, v%d'%(SS,SS+4)), I('v_add_f32 v27, v%d, v%d'%(QQ,QQ+4)),
            I('v_lshlrev_b32 v5, 3, v0'), I('s_mul_i32 s26, s23, %d'%(20*2048)), I('s_lshl_b32 s27, s25, 9'), I('s_add_u32 s38, s26, s27'), I('s_add_u32 s38, s38, 0x%x'%PST_OFF),
            I('s_lshl_b32 s26, s33, 11'), I('s_add_u32 s26, s26, s38'),
            I('buffer_store_dwordx2 v[26:27], v5, s[16:19], s26 offen sc0 sc1'),
            I('s_lshl_b32 s39, s23, 2'), I('s_add_u32 s39, s39, s25'), I('s_lshl_b32 s39, s39, 7'),
            I('v_mov_b32 v28, 1'), I('v_mov_b32 v29, 0'), I('s_mov_b64 exec, 1'), I('s_waitcnt vmcnt(0)'),
            I('buffer_atomic_add v28, v29, s[52:55], s39 offen sc1'), I('s_setprio 0'), I('s_mov_b32 s27, 0x40000'),
            I('s_sleep %d'%opt.get('zs0',20)),
            'L_k1_zp_%s:'%tag, I('buffer_load_dword v28, v29, s[52:55], s39 offen sc1'), I('s_waitcnt vmcnt(0)'), I('v_readfirstlane_b32 s26, v28'), I('s_sub_u32 s27, s27, 1'),
            I('s_cmp_ge_u32 s26, 20'), I('s_cbranch_scc1 L_k1_zg_%s'%tag), I('s_sleep %d'%opt.get('zs1',6)), I('s_cmp_lg_u32 s27, 0'), I('s_cbranch_scc1 L_k1_zp_%s'%tag),
            'L_k1_zg_%s:'%tag, I('s_mov_b64 exec, -1'), I('s_setprio %d'%opt.get('z2p',2))]
        for k in range(20):
            Z+=[I('buffer_load_dwordx2 %s, v5, s[16:19], s38 offen offset:%d sc1'%(p(T+2*k),(k&1)*2048))]
            if k&1: Z+=[I('s_add_u32 s38, s38, 4096')]
        Z+=[I('s_waitcnt vmcnt(10)')]+[I('v_pk_add_f32 %s, %s, %s'%(p(T+2*k),p(T+2*k),p(T+2*k+10))) for k in range(5)]
        Z+=[I('s_waitcnt vmcnt(0)')]+[I('v_pk_add_f32 %s, %s, %s'%(p(T+20+2*k),p(T+20+2*k),p(T+30+2*k))) for k in range(5)]
        Z+=[I('v_pk_add_f32 %s, %s, %s'%(p(T+2*k),p(T+2*k),p(T+20+2*k))) for k in range(5)]
        Z+=[I('v_pk_add_f32 %s, %s, %s'%(p(T),p(T),p(T+2))), I('v_pk_add_f32 %s, %s, %s'%(p(T+4),p(T+4),p(T+6))),
            I('v_pk_add_f32 %s, %s, %s'%(p(T),p(T),p(T+8))), I('v_pk_add_f32 %s, %s, %s'%(p(T),p(T),p(T+4))),
            I('v_mul_f32 v26, 0x%x, v%d'%(f2u(1/1792),T)), I('v_mul_f32 v27, 0x%x, v%d'%(f2u(1/1792),T+1)),
            I('v_fma_f32 v27, -v26, v26, v27'), I('v_max_f32 v27, 0, v27'), I('v_add_f32 v27, 0x3727c5ac, v27'), I('v_rsq_f32 v%d, v27'%ST),
            I('s_nop 0'), I('v_mul_f32 v%d, -v26, v%d'%(ST+1,ST))]
        Z+=[I('v_mov_b32 v%d, v%d'%(ST+4+i,ST+i)) for i in range(2)]+[I('v_permlane32_swap_b32 v%d, v%d'%(ST+i,ST+4+i)) for i in range(2)]
        Z+=[I('v_mov_b32 v%d, v%d'%(ST+2+i+4*k,ST+i+4*k)) for k in range(2) for i in range(2)]
        Z+=[I('v_permlane16_swap_b32 v%d, v%d'%(ST+i+4*k,ST+2+i+4*k)) for k in range(2) for i in range(2)]
        Z+=[I('v_mov_b32 v%d, v%d'%(6+2*t,ST+2*t+1)) for t in range(4)]
        for i in range(NB):
            for a in (2*i,2*i+1):
                for t in range(4):
                    for k in range(2): Z+=[I('v_pk_fma_f32 %s, %s, %s, %s op_sel_hi:[1,0,0]'%(p(acc(a,t)+2*k),p(acc(a,t)+2*k),p(ST+2*t),p(6+2*t)))]
            Z+=put(i)
        E2=Z
    tail=auto_lgkm(e0+e1+E,pre=body)
    def stamp(k):
        if not opt.get('stamp'): return []
        return [I('%s s[%d:%d]'%('s_memrealtime' if opt.get('real') else 's_memtime',84+2*k,85+2*k)), I('s_waitcnt lgkmcnt(0)')]
    if opt.get('stamp'):
        k=[i for i,x in enumerate(tail) if 'v_mfma' in x][-1]
        tail=stamp(2)+tail[:k+1]+stamp(3)+tail[k+1:]
        k=[i for i,x in enumerate(first) if 'v_mfma' in x][0]
        first=first[:k]+stamp(1)+first[k:]
        if E2:
            k=[i for i,x in enumerate(E2) if 'buffer_atomic_add' in x][0]
            k2=[i for i,x in enumerate(E2) if x.startswith('L_k1_zg')][0]
            E2=E2[:k]+stamp(4)+E2[k:k2+1]+stamp(5)+E2[k2+1:]
    br=[I('s_branch L_k1_done')]
    code = first+loop+tail+br+(E2+br if E2 else [])+PO
    trs=[first+body+body+tail]
    if E2:
        k=[i for i,x in enumerate(tail) if 'L_k1_z2_' in x][0]
        trs.append(first+body+body+tail[:k+1]+E2)
    return code, trs, body

def gen_k1d(name='gemm1_kernel', opt={}):
    L=kernel_header(name)
    B=[I('s_cmp_ge_u32 s2, 256'), I('s_cbranch_scc1 L_k1_end')]
    if opt.get('stamp'): B+=[I('%s s[84:85]'%('s_memrealtime' if opt.get('real') else 's_memtime'))]
    B+=rt_begin(opt)
    B+=[I('s_load_dwordx2 s[38:39], s[0:1], %d'%KA_X), I('s_load_dwordx2 s[6:7], s[0:1], %d'%KA_WQKV), I('s_load_dwordx2 s[36:37], s[0:1], %d'%KA_WIN),
        I('s_load_dwordx4 s[44:47], s[0:1], %d'%KA_DBG),
        I('v_lshrrev_b32 v1, 6, v0'), I('v_and_b32 v0, 63, v0'), I('s_nop 0'), I('v_readfirstlane_b32 s25, v1'),
        I('s_and_b32 s23, s2, 1'), I('s_lshl_b32 s23, s23, 2'), I('s_bfe_u32 s24, s2, 0x20003'), I('s_add_u32 s23, s23, s24'),
        I('s_bfe_u32 s32, s2, 0x20001'), I('s_lshr_b32 s30, s2, 5'), I('s_lshl_b32 s24, s32, 3'), I('s_add_u32 s24, s24, s30'),
        I('s_lshl_b32 s26, s24, 14'), I('s_lshl_b32 s27, s25, 11'), I('s_add_u32 s21, s26, s27'),
        I('v_lshlrev_b32 v24, 4, v0'),
        I('v_lshrrev_b32 v25, 3, v0'), I('v_lshrrev_b32 v26, 4, v0'), I('v_and_b32 v27, 7, v0'),
        I('s_lshl_b32 s26, s25, 16'),
        I('v_lshlrev_b32 v25, 11, v25'), I('v_add_u32 v25, s26, v25'),
        I('v_xor_b32 v27, v27, v26'), I('v_xor_b32 v26, 4, v27'),
        I('v_lshl_add_u32 v27, v27, 4, v25'), I('v_lshl_add_u32 v26, v26, 4, v25')]
    for i in range(4): B+=[I('v_add_u32 v%d, %d, v%d'%(vOA+i, i*8*2048-i*1024, (27,26)[i&1]))]
    B+=[I('s_lshl_b32 s28, s25, 12'), I('s_lshl_b32 s26, s23, 19'), I('s_add_u32 m0, s28, %d'%A_LDS),
        I('s_waitcnt lgkmcnt(0)')]
    B+=srd(64,38,39,'s26',256*2048)
    for k in range(2): B+=[I('buffer_load_dwordx4 %s, v24, s[64:67], s21 offen offset:%d'%(vr(ACC+4*k,4),1024*k))]
    for i in range(4): B+=[I('buffer_load_dwordx4 v%d, s[64:67], 0 offen offset:%d lds'%(vOA+i,i*1024))]
    B+=[I('s_mov_b32 s4, s46'), I('s_mov_b32 s5, s47')]
    B+=srd(16,4,5,0,O_OFF)+srd(40,4,5,STAT_OFF,256*128)+srd(48,44,45,0,256)+srd(52,4,5,ZC_OFF,4096)
    B+=[I('s_lshl_b32 s26, s23, 5'), I('s_add_u32 s26, s26, s24'), I('s_lshl_b32 s26, s26, 7'), I('s_lshl_b32 s27, s25, 3'), I('s_add_u32 s26, s26, s27'),
        I('v_mov_b32 v22, s26'), I('v_cmp_eq_u32 vcc, 0, v0'), I('v_mov_b32 v29, 0x7fff0000'), I('v_cndmask_b32 v30, v29, v22, vcc'),
        I('s_lshl_b32 s26, s23, 2'), I('s_add_u32 s26, s26, s24'), I('s_lshl_b32 s26, s26, 7'),
        I('s_lshr_b32 s27, s24, 2'), I('s_or_b32 s27, s27, s25'), I('s_cselect_b32 s26, 0x7fff0000, s26'),
        I('v_mov_b32 v22, s26'), I('v_cndmask_b32 v29, v29, v22, vcc'), I('v_mov_b32 v31, 0'),
        I('s_lshl_b32 s47, s23, 5'), I('s_and_b32 s56, s24, 3'), I('s_add_u32 s56, s56, 5'),
        I('s_cmp_lg_u32 s25, 0'), I('s_cselect_b32 s56, 100, s56'), I('s_mov_b32 s57, 0'),
        I('s_lshl_b32 s31, s23, 14'), I('s_and_b32 s26, s25, 3'), I('s_lshl_b32 s26, s26, 12'), I('s_add_u32 s31, s31, s26'),
        I('s_cmp_ge_u32 s30, 3'), I('s_cbranch_scc1 L_k1_z')]
    V=[I('s_mul_i32 s33, s32, 3'), I('s_add_u32 s33, s33, s30'), I('s_lshl_b32 s26, s33, 9'), I('s_sub_u32 s27, 0x600000, s26')]
    V+=srd(68,6,7,'s26','s27')
    V+=[I('s_lshl_b32 s26, s33, 1'), I('s_lshr_b32 s27, s25, 2'), I('s_add_u32 s26, s26, s27'), I('s_lshl_b32 s26, s26, 19'), I('s_add_u32 s31, s31, s26'), I('s_add_u32 s31, s31, 0x%x'%P1_OFF),
        I('s_cmp_lt_u32 s33, 4'), I('s_cselect_b32 s34, 0x%x, 1.0'%QSCALE)]
    c1,tr1,b1=gen_variant(4,6144,'q',False,opt)
    def zhead():
        return [I('s_lshl_b32 s26, s34, 6'), I('s_sub_u32 s27, 0x700000, s26')]+srd(68,36,37,'s26','s27')+[
            I('s_lshl_b32 s26, s34, 17'), I('s_add_u32 s31, s31, s26'), I('s_cmp_lt_u32 s25, 4'), I('s_cselect_b32 s26, 0x%x, s82'%Z2N_OFF), I('s_add_u32 s31, s31, s26')]
    W=['L_k1_z:', I('s_mov_b32 s82, 0x%x'%(P1_OFF+96*131072)), I('s_cmp_eq_u32 s30, 7'), I('s_cbranch_scc1 L_k1_z4'),
       I('s_lshl_b32 s33, s32, 2'), I('s_add_u32 s33, s33, s30'), I('s_sub_u32 s33, s33, 3'), I('s_mul_i32 s34, s33, 3')]+zhead()
    c2,tr2,b2=gen_variant(3,7168,'z6',True,opt)
    W4=['L_k1_z4:', I('s_add_u32 s33, s32, 16'), I('s_lshl_b32 s34, s32, 1'), I('s_add_u32 s34, s34, 48')]+zhead()
    c3,tr3,b3=gen_variant(2,7168,'z4',True,opt)
    FZ=['L_k1_done:', I('s_or_b32 s26, s2, s25'), I('s_cbranch_scc1 L_k1_nz')]+srd(12,4,5,FLAG_OFF,8192)+[I('v_lshlrev_b32 v1, 7, v0')]+[I('v_mov_b32 v%d, 0'%r) for r in range(8,12)]+[
        I('buffer_store_dwordx4 v[8:11], v1, s[12:15], 0 offen'), I('buffer_store_dwordx4 v[8:11], v1, s[12:15], 0 offen offset:16'), 'L_k1_nz:']
    Zs=[]
    if opt.get('stamp'):
        Zs=[I('s_waitcnt vmcnt(0)'), I('%s s[96:97]'%('s_memrealtime' if opt.get('real') else 's_memtime')), I('s_waitcnt lgkmcnt(0)'),
            I('s_cmp_lg_u32 s2, %d'%opt.get('stamp_wg',0)), I('s_cbranch_scc1 L_k1_nost'), I('s_lshl_b32 s26, s25, 5'), I('s_and_b32 s26, s26, 0x9f'), I('s_bitcmp1_b32 s25, 0'), I('s_cbranch_scc1 L_k1_nost'),
            I('s_bitcmp1_b32 s25, 1'), I('s_cbranch_scc1 L_k1_nost'), I('s_lshr_b32 s26, s26, 2'), I('s_add_u32 s26, s26, 4'), I('v_mov_b32 v1, s26')]
        for k in range(1,7):
            Zs+=[I('s_sub_u32 s26, s%d, s84'%(84+2*k)), I('v_mov_b32 v2, s26'), I('buffer_store_dword v2, v1, s[48:51], 0 offen offset:%d'%(4*(k-1)))]
        Zs+=['L_k1_nost:']
    if opt.get('rt'): Zs+=[I('s_waitcnt vmcnt(0)'), I('s_barrier'), I('s_cmp_lg_u32 s25, 0'), I('s_cbranch_scc1 L_k1_end')]
    Zs+=rt_end(opt,opt.get('k1_idx',0),'k1')
    code,_=fix_hazards(B+V+c1+W+c2+W4+c3+FZ+Zs+['L_k1_end:', I('s_endpgm')])
    for pre,trs,b,tg in ((V,tr1,b1,'q'),(W,tr2,b2,'z6'),(W4,tr3,b3,'z4')):
        for tr in trs:
            t,_=fix_hazards(B+pre+tr); check_waits(t,'k1'+tg)
        fix_hazards(b+b,auto=False,tag='k1loop'+tg)
    lds=163840
    return L+code, kernel_desc(name,256,256,102), '; @launch kernel=%s grid=(256,1,1) block=(512,1,1) lds=%d'%(name,lds)
```

```python
from common import *
def m16(d,a,b,c=None): return I('v_mfma_f32_16x16x32_bf16 %s, %s, %s, %s'%(vr(d,4),vr(a,4),vr(b,4),vr(d,4) if c is None else c))
Q=16; KB=32; VB=48; SA=64; SB=80; PA=96; PB=104; OA=112; OB=128; LA=144; LB=148; ONES=152; vIDX=156
vK,vV0,vV1,vD=4,5,6,7
vL16=11
KV=131072
FR=32; G=96; ACC=160
vOA=224; vOB=228; vA=230; vB=238; vBIAS=242
REG=[0,32768,65536,98304]
AR=32; FR3=160; Y=192; XR=224; S0=240; S1=208; SAT=192
vW=16; vA3=20; vB3=22; vX=28
WSL=lambda t: (t%8)*16384
CB=KV
def gen_k2g(name='mid_kernel', opt={}):
    L=kernel_header(name)
    STAMP=opt.get('stamp')
    def st(k): return [I('%s s[%d:%d]'%('s_memrealtime' if opt.get('real') else 's_memtime',76+2*k,77+2*k)), I('s_waitcnt lgkmcnt(0)')] if STAMP else []
    bar=[I('s_barrier')]
    TRC=opt.get('trace')
    gbr=bar+([I('%s s[94:95]'%('s_memrealtime' if opt.get('real') else 's_memtime')), I('s_mov_b32 s92, m0'), I('s_mov_b32 m0, s93'), I('s_waitcnt lgkmcnt(0)'), I('s_sub_u32 s94, s94, s76'),
              I('v_writelane_b32 v9, s94, m0'), I('s_mov_b32 m0, s92'), I('s_add_u32 s93, s93, 1')] if TRC else [])
    NA=opt.get('na',8)
    H=[I('s_cmp_ge_u32 s2, 256'), I('s_cbranch_scc1 L_k2_end')]+rt_begin(opt,sreg=96)
    H+=[I('s_load_dwordx2 s[4:5], s[0:1], %d'%KA_WS),
        I('s_load_dwordx4 s[60:63], s[0:1], %d'%KA_WSP),
        I('s_load_dwordx2 s[66:67], s[0:1], %d'%KA_WO), I('s_load_dwordx4 s[68:71], s[0:1], %d'%KA_WOUT),
        I('s_load_dwordx2 s[72:73], s[0:1], %d'%KA_X),
        I('v_lshrrev_b32 v1, 6, v0'), I('v_and_b32 v0, 63, v0'), I('s_nop 0'), I('v_readfirstlane_b32 s25, v1'),
        I('s_bfe_u32 s27, s2, 0x20003'), I('s_lshr_b32 s34, s2, 5'),
        I('s_and_b32 s42, s25, 3'), I('v_lshlrev_b32 v%d, 4, v0'%vL16),
        I('s_and_b32 s64, s2, 3'), I('s_lshl_b32 s64, s64, 2'), I('s_add_u32 s64, s64, s27'),
        I('s_cmp_ge_u32 s25, 4'), I('s_cbranch_scc1 L_gemm')]
    NC=opt.get('nc',13); CW=opt.get('cw',3); CQ=opt.get('cq',6); CK=opt.get('ck',9)
    jE=63-(NA+32+NC); JP=opt.get('jp',jE+3); JK=opt.get('jk',max(15,JP+1)); JQ=JP
    FBAR=opt.get('fbar',1)
    assert 0<=jE+FBAR<JP<=JQ<JK and JK>=15
    b3addr=[I('v_lshrrev_b32 v13, 5, v0'), I('v_and_b32 v12, 31, v0'), I('v_lshlrev_b32 v12, 3, v12'), I('v_lshl_add_u32 v%d, v13, 10, v12'%vB3),
        I('v_add_u32 v%d, 65536, v%d'%(vB3+1,vB3))]
    b3addr+=[I('v_mov_b32 v%d, v%d'%(vA3,vL16)), I('v_add_u32 v%d, 4096, v%d'%(vA3+1,vL16)),
        I('s_lshl_b32 s43, s64, 2'), I('s_add_u32 s43, s43, s42')]
    def ldA(st_):
        Gr=[[I('buffer_load_dwordx4 %s, v%d, s[8:11], s24 offen offset:%d'%(vr(AR+32*st_+4*i,4),vA3+i//4,(i%4)*1024))] for i in range(8)]
        Gr[-1]+=[I('s_add_u32 s24, s24, 8192')]
        return Gr
    def dmaW(t):
        Gr=[[I('buffer_load_dwordx4 v%d, s[12:15], s58 offen offset:%d lds'%(vW+i,i*1024))] for i in range(4)]
        return [[I('s_add_u32 m0, s41, %d'%WSL(t)), I('s_mov_b32 s58, %d'%((t if t<14 else t-14)*128*2048))]]+Gr
    def rd3(t,j):
        f=FR3+16*(j&1); a=WSL(t)
        return [I('ds_read_b64_tr_b16 %s, v%d offset:%d'%(vr(f+4*n+2*u,2),vB3+(a>>16),(a&0xffff)+j*4096+u*2048+n*256)) for n in range(4) for u in range(2)]
    def tile3(t, aset, acc, c0, nxt, mid, early={}, late=[]):
        spine=[m16(acc[h]+4*n,FR3+16*(j&1)+4*n,AR+32*aset+8*j+4*h,'0' if (c0 and j==0) else None) for j in range(4) for n in range(4) for h in range(2)]
        fill={}
        def add(g,x): fill.setdefault(g,[]).extend(x)
        add(23,mid)
        for j in range(4):
            R = rd3(t,j+1) if j<3 else (rd3(nxt,0) if nxt is not None else [])
            for k,r in enumerate(R): add(8*j+k,[r])
        for g,x in early.items(): add(g,x)
        for k,g in enumerate(late): add(24+(k*8)//len(late),g)
        return interleave(spine,fill)
    flat=lambda Gr:[x for g in Gr for x in g]
    def pub1(lab,wave,off):
        return [I('s_cmp_lg_u32 s25, %d'%wave), I('s_cbranch_scc1 %s'%lab), I('s_mov_b64 exec, 1'), I('v_mov_b32 v12, 1'), I('v_mov_b32 v15, 0'),
                I('buffer_atomic_add v12, v15, s[48:51], %s offen sc1'%off), I('s_mov_b64 exec, -1'), lab+':']
    def ask1(lab,wave,off):
        return [I('s_cmp_lg_u32 s25, %d'%wave), I('s_cbranch_scc1 %s'%lab), I('s_mov_b64 exec, 1'), I('v_mov_b32 v12, 0'),
                I('buffer_load_dword v15, v12, s[48:51], %s offen sc1'%off), I('s_mov_b64 exec, -1'), lab+':']
    def chk1(lab,wave,off,n):
        return [I('s_cmp_lg_u32 s25, %d'%wave), I('s_cbranch_scc1 %s'%lab), I('s_mov_b64 exec, 1'), I('s_mov_b32 s27, 0x40000'),
                lab+'_l:', I('s_waitcnt vmcnt(0)'), I('v_readfirstlane_b32 s26, v15'), I('s_sub_u32 s27, s27, 1'), I('s_cmp_ge_u32 s26, %d'%n), I('s_cbranch_scc1 %s_g'%lab),
                I('s_sleep %d'%opt.get('slp',1)), I('buffer_load_dword v15, v12, s[48:51], %s offen sc1'%off), I('s_cmp_lg_u32 s27, 0'), I('s_cbranch_scc1 %s_l'%lab),
                lab+'_g:', I('s_mov_b64 exec, -1'), lab+':']
    A=[I('s_and_b32 s26, s2, 7'), I('s_lshl_b32 s33, s26, 2'), I('s_add_u32 s33, s33, s27'),
       I('s_lshl_b32 s30, s34, 14'), I('s_lshl_b32 s27, s42, 12'), I('s_add_u32 s30, s30, s27'),
       I('s_and_b32 s26, s42, 1'), I('s_lshl_b32 s40, s26, 10'), I('s_lshl_b32 s41, s42, 10'), I('s_add_u32 s41, s41, %d'%KV),
       I('v_bfe_u32 v12, v0, 4, 1'), I('v_lshlrev_b32 v12, 7, v12'),
       I('s_cmp_ge_u32 s42, 2'), I('s_cselect_b32 s26, -1, 0'), I('v_and_b32 v12, s26, v12'), I('v_xor_b32 v%d, v%d, v12'%(vD,vL16)),
       I('s_lshl_b32 s26, s33, 17'), I('s_add_u32 s27, s26, 0x%x'%P1_OFF),
       I('s_lshr_b32 s35, s42, 1'), I('s_add_u32 s35, s35, 1'), I('s_lshl_b32 s35, s35, 22'), I('s_add_u32 s35, s35, s27'),
       I('s_mov_b32 m0, s41'), I('s_waitcnt lgkmcnt(0)')]+st(0)
    A+=srd(36,4,5,'s27',131072)+srd(16,4,5,'s35',131072)
    def kvd(sl): return [I('s_add_u32 m0, s41, %d'%(sl*4096)), I('buffer_load_dwordx4 v%d, s[16:19], s40 offen lds'%vD), I('s_add_u32 s40, s40, 2048')]
    A+=kvd(0)[1:]
    for i in range(4): A+=[I('buffer_load_dwordx4 %s, v%d, s[36:39], s30 offen offset:%d'%(vr(Q+4*i,4),vL16,1024*i))]
    KF=opt.get('kvfirst',2)
    for sl in range(1,KF): A+=kvd(sl)
    A+=[I('s_setprio %d'%opt.get('pa',1))]+srd(52,4,5,O_OFF,O_SIZE)
    A+=[I('s_lshl_b32 s26, s34, 3'), I('s_lshl_b32 s27, s42, 1'), I('s_add_u32 s26, s26, s27'),
        I('s_lshl_b32 s26, s26, 5'), I('s_add_u32 s26, s26, s33'), I('s_lshl_b32 s46, s26, 11'),
        I('v_add_u32 v%d, %d, v%d'%(vK,KV,vL16)),
        I('v_bfe_u32 v14, v0, 1, 1'), I('v_and_b32 v13, 1, v0'), I('v_lshrrev_b32 v15, 2, v0'), I('v_lshlrev_b32 v12, 3, v14'), I('v_xor_b32 v15, v15, v12'),
        I('v_lshlrev_b32 v15, 4, v15'), I('v_lshl_add_u32 v15, v13, 3, v15'), I('v_lshl_add_u32 v15, v14, 8, v15'),
        I('v_add_u32 v%d, %d, v15'%(vV0,KV+2048)),
        I('v_lshrrev_b32 v12, 5, v0'), I('v_cmp_eq_u32 vcc, v14, v12'),
        I('v_mul_u32_u24 v13, 0xaaaa, v13'), I('v_add_u32 v%d, 0x4444, v13'%vIDX),
        I('v_mov_b32 v13, 0x3f803f80'), I('v_cndmask_b32 v%d, 0, v13, vcc'%ONES)]
    for i in range(1,4): A+=[I('v_mov_b32 v%d, v%d'%(ONES+i,ONES))]
    for r in list(range(OA,OA+40))+list(range(PB,PB+8))+list(range(VB+8,VB+16)): A+=[I('v_mov_b32 v%d, 0'%r)]
    def rdK(i,base): return [I('ds_read_b128 %s, v%d offset:%d'%(vr(KB+8*(i&1)+4*f,4),vK,base+1024*f)) for f in range(2)]
    def rdV(i,base,v0=vV0,hs=1024): return [I('ds_read_b64_tr_b16 %s, v%d offset:%d'%(vr(VB+8*(i&1)+4*f+2*u,2),v0,base+512*f+hs*u)) for f in range(2) for u in range(2)]
    qk=lambda S_,k,q: [m16(S_+8*x+4*f,k+4*f,q+4*x,'0') for x in range(2) for f in range(2)]
    pv=lambda O_,v,P_: [m16(O_+8*x+4*f,v+4*f,P_+4*x) for x in range(2) for f in range(2)]
    smf=lambda L_,P_: [I('v_smfmac_f32_16x16x64_bf16 %s, %s, %s, v%d'%(vr(L_,4),vr(ONES,4),vr(P_,8),vIDX))]
    A+=[I('s_mov_b32 s45, 8'), I('s_waitcnt vmcnt(%d)'%(KF-1))]+bar+rdK(0,0)+flat([kvd(sl) for sl in range(KF,7)])+[I('s_waitcnt lgkmcnt(0)')]+qk(SA,KB,Q)+[I('s_nop 7')]
    def phase(S_,P_, mf, extra):
        ex=[I('v_exp_f32 v%d, v%d'%(S_+i,S_+i)) for i in range(16)]
        cv=[I('v_cvt_pk_bf16_f32 v%d, v%d, v%d'%(P_+i,S_+2*i,S_+2*i+1)) for i in range(8)]
        pat=opt.get('att_pat',[(2,0),(2,1),(2,1),(2,1),(2,1),(2,1),(2,1),(2,1),(0,1)])
        mf=[mf[k] for k in opt.get('att_ord',range(9))]
        out=[]; e=0;c=0
        for k,(ne,nc) in enumerate(pat):
            out.append(mf[k]); out+=extra.get(k,[])
            out+=ex[e:e+ne]; e+=ne
            out+=cv[c:c+nc]; c+=nc
        assert e==16 and c==8
        return out
    body=[]
    AB=opt.get('att_bar',4); AD=opt.get('att_dma',2)
    for i in range(8):
        kb=KB+8*(i&1); kn=KB+8*((i+1)&1); vb=VB+8*(i&1); vp=VB+8*((i+1)&1)
        rv=rdV(i,4096*i); rk=rdK(i+1,4096*((i+1)&7)); d=kvd((i+7)&7)
        ex={}
        for k in range(4): ex.setdefault((k*AB)//4,[]).append(rv[k])
        ex[AB]=[I('s_waitcnt vmcnt(5)')]+bar+rk[:1]+d[:1]; ex[AB+1]=rk[1:]
        body+=phase(SA,PA,qk(SB,kb,Q+8)+pv(OB,vp,PB)+smf(LB,PB),ex)+phase(SB,PB,qk(SA,kn,Q)+pv(OA,vb,PA)+smf(LA,PA),{AD:d[1:]})
    body=auto_lgkm(body)
    fix_hazards(body+body,auto=False,tag='att_loop')
    aloop=['L_att_loop:']+body+[I('s_sub_u32 s45, s45, 1'), I('s_cmp_lg_u32 s45, 0'), I('s_cbranch_scc1 L_att_loop')]
    AT=pv(OB,VB+8,PB)+smf(LB,PB)+[I('v_mov_b32 v160, 0x1f800000'), I('v_mov_b32 v161, 0x5f800000')]
    FB=[]
    p=lambda b: vr(b,2)
    for X,(O_,L_,Q_) in enumerate(((OA,LA,Q),(OB,LB,Q+8))):
        AT+=[I('v_pk_mul_f32 v[162:163], %s, 0 op_sel_hi:[1,0]'%p(O_))]
        for i in range(1,8): AT+=[I('v_pk_fma_f32 v[162:163], %s, 0, v[162:163] op_sel_hi:[1,0,1]'%p(O_+2*i))]
        AT+=[I('v_add_f32 v%d, v%d, v%d'%(L_,L_,L_+1)), I('v_add_f32 v%d, v%d, v%d'%(L_+2,L_+2,L_+3)),
             I('v_add_f32 v162, v162, v163'), I('v_add_f32 v163, v162, v%d'%(L_+2)), I('v_add_f32 v162, v162, v%d'%L_),
             I('v_cmp_nge_f32 vcc, v162, v160'), I('v_cmp_nle_f32 s[56:57], v162, v161'), I('v_cmp_nge_f32 s[26:27], v163, v160'), I('v_cmp_nle_f32 s[58:59], v163, v161'),
             I('s_or_b64 s[56:57], s[56:57], vcc'), I('s_or_b64 s[26:27], s[26:27], s[58:59]'), I('s_or_b64 s[56:57], s[56:57], s[26:27]'),
             I('s_cbranch_scc1 L_att_fb%d'%X), 'L_att_fb_ret%d:'%X, I('v_rcp_f32 v162, v%d'%L_), I('v_rcp_f32 v164, v%d'%(L_+2)), I('s_nop 0')]
        for i in range(8): AT+=[I('v_pk_mul_f32 %s, %s, %s op_sel_hi:[1,0]'%(p(O_+2*i),p(O_+2*i),p(162+2*(i//4))))]
        for i in range(8): AT+=[I('v_cvt_pk_bf16_f32 v%d, v%d, v%d'%(O_+i,O_+2*i,O_+2*i+1))]
        if X: AT+=[I('s_add_u32 s46, s46, 65536')]
        for h in range(2): AT+=[I('buffer_store_dwordx4 %s, v%d, s[52:55], s46 offen offset:%d sc0 sc1'%(vr(O_+4*h,4),vL16,1024*h))]
        if X==0:
            AT+=[I('s_setprio %d'%opt.get('pa2',0))]+bar*FBAR
        FS=SA
        F=['L_att_fb%d:'%X, I('s_waitcnt vmcnt(0)'),
           I('s_lshl_b32 s26, s33, 17'), I('s_add_u32 s27, s26, 0x%x'%(P1_OFF+32*131072))]+srd(16,4,5,'s27',131072)
        F+=[I('s_add_u32 s27, s26, 0x%x'%(P1_OFF+64*131072))]+srd(20,4,5,'s27',131072)
        F+=[I('v_bfe_u32 v12, v0, 4, 1'), I('v_lshlrev_b32 v12, 7, v12'), I('v_xor_b32 v8, v%d, v12'%vL16), I('v_add_u32 v9, 1024, v8'),
            I('s_lshl_b32 s26, s42, 10'), I('s_add_u32 s26, s26, 2048'), I('v_add_u32 v2, s26, v%d'%vV0)]
        F+=[I('v_mov_b32 v%d, 0'%(O_+i)) for i in range(16)]
        F+=[I('v_mov_b32 v%d, 0'%L_), I('v_mov_b32 v%d, 0'%(L_+2)), I('v_mov_b32 v164, 0xff800000'), I('v_mov_b32 v165, 0xff800000'), I('s_mov_b32 s59, 0'), 'L_att_fbl%d:'%X,
            I('buffer_load_dwordx4 %s, v%d, s[16:19], s59 offen'%(vr(KB,4),vL16)),
            I('buffer_load_dwordx4 %s, v%d, s[16:19], s59 offen offset:1024'%(vr(KB+4,4),vL16)),
            I('s_add_u32 m0, s41, 4096'), I('s_nop 0'), I('buffer_load_dwordx4 v8, s[20:23], s59 offen lds'),
            I('s_add_u32 m0, s41, 8192'), I('s_nop 0'), I('buffer_load_dwordx4 v9, s[20:23], s59 offen lds'),
            I('s_waitcnt vmcnt(0)')]
        F+=rdV(0,0,2,4096)+qk(FS,KB,Q_)
        for x in range(2):
            s8=FS+8*x; mo=164+x; lx=L_+2*x
            F+=[I('v_max3_f32 v13, v%d, v%d, v%d'%(s8,s8+1,mo))]+[I('v_max3_f32 v13, v%d, v%d, v13'%(s8+2*i,s8+2*i+1)) for i in range(1,4)]
            for sw in (16,32): F+=[I('v_mov_b32 v14, v13'), I('v_permlane%d_swap_b32 v13, v14'%sw), I('v_max_f32 v13, v13, v14')]
            F+=[I('v_sub_f32 v14, v%d, v13'%mo), I('v_exp_f32 v14, v14'), I('v_mov_b32 v%d, v13'%mo)]
            F+=[I('v_sub_f32 v%d, v%d, v13'%(s8+i,s8+i)) for i in range(8)]+[I('v_exp_f32 v%d, v%d'%(s8+i,s8+i)) for i in range(8)]
            F+=[I('v_mul_f32 v%d, v%d, v14'%(lx,lx))]
            for i in range(8): F+=[I('v_add_f32 v%d, v%d, v%d'%(lx,lx,s8+i)), I('v_mul_f32 v%d, v%d, v14'%(O_+8*x+i,O_+8*x+i))]
        for i in range(8): F+=[I('v_cvt_pk_bf16_f32 v%d, v%d, v%d'%(PA+i,FS+2*i,FS+2*i+1))]
        F+=[I('s_waitcnt lgkmcnt(0)')]+pv(O_,VB,PA)+[
            I('s_add_u32 s59, s59, 2048'), I('s_cmp_lg_u32 s59, 131072'), I('s_nop 7'), I('s_nop 7'), I('s_cbranch_scc1 L_att_fbl%d'%X)]
        for lx in (L_,L_+2):
            for sw in (16,32): F+=[I('v_mov_b32 v14, v%d'%lx), I('v_permlane%d_swap_b32 v%d, v14'%(sw,lx)), I('v_add_f32 v%d, v%d, v14'%(lx,lx))]
        F+=[I('s_branch L_att_fb_ret%d'%X)]
        FB+=F
    AT+=st(3)+b3addr+srd(48,4,5,FLAG_OFF,8192)
    AT+=[I('s_lshl_b32 s26, s43, 16'), I('s_add_u32 s26, s26, 0x%x'%O_OFF)]+srd(8,4,5,'s26',65536)+[I('s_mov_b32 s24, 0'),
         I('s_lshl_b32 s30, s34, 7'), I('s_add_u32 s30, s30, 4096'), I('s_lshr_b32 s31, s64, 1'), I('s_lshl_b32 s31, s31, 7'), I('s_add_u32 s31, s31, 4096'),
         I('s_and_b32 s26, s2, 7'), I('s_lshl_b32 s26, s26, 2'), I('s_add_u32 s30, s30, s26'),
         I('s_lshl_b32 s26, s42, 13'), I('s_add_u32 s26, s26, %d'%CB), I('v_add_u32 v%d, s26, v%d'%(vX,vL16)),
         I('s_lshl_b32 s26, s64, 18'), I('s_add_u32 s26, s26, 0x%x'%O_OFF)]+srd(20,4,5,'s26',262144)
    AT+=[I('s_lshr_b32 s35, s34, 1'), I('s_lshl_b32 s35, s35, 16'), I('s_and_b32 s26, s34, 1'), I('s_lshl_b32 s26, s26, 12'), I('s_add_u32 s35, s35, s26'),
         I('v_and_b32 v3, 31, v0'), I('v_lshrrev_b32 v2, 5, v0'), I('v_lshlrev_b32 v3, 7, v3'), I('v_lshl_add_u32 v3, v2, 13, v3'),
         I('v_lshlrev_b32 v14, 2, v0'), I('s_mov_b32 s58, 0')]
    askO=[I('s_mov_b64 exec, 0xff'), I('buffer_load_dword v15, v14, s[48:51], s31 offen sc1'), I('s_mov_b64 exec, -1')]
    OPF=opt.get('opf',1)
    lookO=[I('s_waitcnt vmcnt(%d)'%(4 if OPF else 0)), I('v_cmp_le_u32 vcc, 4, v15'), I('s_nop 1'), I('s_and_b32 s59, vcc_lo, 0xff'), I('s_andn2_b32 s26, s59, s58'), I('s_mov_b32 s58, s59')]
    pfO=[]
    if OPF:
        for i in range(4):
            pfO+=[I('s_bitcmp1_b32 s26, %d'%(2*i)), I('s_cselect_b32 s56, -1, 0'), I('s_bitcmp1_b32 s26, %d'%(2*i+1)), I('s_cselect_b32 s57, -1, 0'),
                I('v_cndmask_b32 v%d, v13, v3, s[56:57]'%(4+i)), I('s_add_u32 s27, s35, %d'%(16384*i)), I('buffer_load_dword v2, v%d, s[20:23], s27 offen'%(4+i))]
    AT+=[I('v_mov_b32 v13, 0x7ffff000')]
    w0=lambda lab,X: [I('s_cmp_lg_u32 s25, 0'), I('s_cbranch_scc1 %s'%lab)]+X+[lab+':']
    JQ=opt.get('jq',JP)
    for j in range(jE+1+FBAR,JK+1):
        if j==JP: AT+=[I('s_waitcnt vmcnt(0)')]
        if j==JK: AT+=w0('L_a_ck',[I('s_mov_b32 s47, 0x40000'), 'L_a_cl:']+lookO+[I('s_cmp_eq_u32 s59, 0xff'), I('s_cbranch_scc1 L_a_ck'),
                         I('s_sleep %d'%opt.get('slp',1))]+askO+pfO+[I('s_sub_u32 s47, s47, 1'), I('s_cmp_lg_u32 s47, 0'), I('s_cbranch_scc1 L_a_cl')])
        AT+=bar
        if j==JP: AT+=st(6)+pub1('L_a_pb',0,'s30')
        if JQ<=j<JK: AT+=w0('L_a_q%d'%j,(lookO if j>JQ else [I('s_mov_b32 s26, 0')])+askO+pfO)
    AT+=st(4)
    AE=[]
    for k in range(4): AE+=flat(ldA(k))
    AE+=rd3(14,0)+[I('s_waitcnt vmcnt(24)')]
    for k in range(4):
        AE+=tile3(14+k,k,(SAT,SAT+16),k==0,15+k if k<3 else None,([I('s_waitcnt vmcnt(%d)'%(16-8*k))] if k<3 else []))
    AE+=[I('ds_write_b128 v%d, %s offset:%d'%(vX,vr(SAT+4*q,4),1024*q)) for q in range(8)]
    AT+=auto_lgkm(AE,pre=[])+st(5)+[I('s_waitcnt lgkmcnt(0)')]+bar+[I('s_branch L_k2_fin')]
    Z=G+32
    S=['L_gemm:',
       I('s_bfe_u32 s65, s2, 0x10002'), I('s_mul_i32 s65, s65, 7'), I('s_add_u32 s65, s65, s34'),
       I('s_mov_b32 s93, 0')]
    ZL=[]
    S+=[I('s_lshl_b32 s26, s65, 2'), I('s_and_b32 s27, s42, 1'), I('s_lshl_b32 s27, s27, 1'), I('s_add_u32 s26, s26, s27'),
        I('s_lshl_b32 s30, s64, 2'), I('s_lshr_b32 s27, s42, 1'), I('s_lshl_b32 s27, s27, 1'), I('s_add_u32 s30, s30, s27'),
        I('s_lshl_b32 s31, s26, 6'), I('s_add_u32 s31, s31, s30'), I('s_lshl_b32 s31, s31, 11'),
        I('s_mul_i32 s32, s30, 56'), I('s_add_u32 s32, s32, s26'), I('s_lshl_b32 s32, s32, 11')]
    ZL+=srd(36,4,5,P1_OFF+96*131072,56*131072)
    for nf in range(2):
        for q in range(4): ZL+=[I('buffer_load_dwordx4 %s, v%d, s[36:39], s31 offen offset:%d'%(vr(Z+16*nf+4*q,4),vL16,1024*q))]
        if nf==0: ZL+=[I('s_add_u32 s31, s31, 131072')]
    ZL+=srd(36,62,63,0,4096)
    ZL+=[I('v_and_b32 v12, 15, v0'), I('v_lshlrev_b32 v12, 1, v12'), I('s_lshl_b32 s26, s30, 6')]
    ZL+=[I('v_mov_b32 v%d, 0'%(vBIAS+2*t)) for t in range(4)]
    ZL+=[I('buffer_load_short_d16_hi v%d, v12, s[36:39], s26 offen offset:%d'%(vBIAS+2*t,32*t)) for t in range(4)]
    SR=[I('s_lshl_b32 s26, s64, 19')]+srd(16,60,61,'s26',128*4096)
    SR+=[I('s_lshl_b32 s26, s65, 19'), I('s_add_u32 s26, s26, 0x%x'%Z2N_OFF)]+srd(20,4,5,'s26',128*4096)
    S+=[I('v_lshrrev_b32 v12, 3, v0'), I('v_lshrrev_b32 v13, 4, v0'), I('v_and_b32 v14, 7, v0'),
        I('s_lshl_b32 s26, s42, 17'), I('v_lshlrev_b32 v12, 12, v12'), I('v_add_u32 v12, s26, v12'),
        I('v_xor_b32 v14, v14, v13'), I('v_xor_b32 v15, 4, v14'),
        I('v_lshl_add_u32 v14, v14, 4, v12'), I('v_lshl_add_u32 v15, v15, 4, v12')]
    for i in range(4): S+=[I('v_add_u32 v%d, %d, v%d'%(vOA+i, i*8*4096-i*1024, 14+(i&1)))]
    S+=[I('v_and_b32 v13, 1, v13'), I('v_lshlrev_b32 v13, 6, v13'), I('v_xor_b32 v13, v%d, v13'%vL16), I('v_add_u32 v%d, s26, v13'%vOB)]
    S+=[I('s_lshl_b32 s41, s42, 12'), I('s_mov_b32 s40, 0'), I('s_mov_b32 s44, 0'), I('s_waitcnt lgkmcnt(0)')]+st(0)
    def dmaA(slot):
        Gr=[[I('buffer_load_dwordx4 v%d, s[16:19], s40 offen offset:%d lds'%(vOA+i,1024*i))] for i in range(4)]
        Gr[-1]+=[I('s_add_u32 m0, s41, %d'%(REG[slot]+16384)), I('s_add_u32 s40, s40, 128')]
        return Gr
    def dmaB(slot):
        Gr=[[I('buffer_load_dwordx4 v%d, s[20:23], s44 offen offset:%d lds'%(vOB,1024*i))] for i in range(4)]
        Gr[-1]+=[I('s_add_u32 s44, s44, 4096')]
        return Gr
    m0A=lambda slot: [I('s_add_u32 m0, s41, %d'%REG[slot]), I('s_nop 0')]
    S+=SR+[I('s_cmp_ge_u32 s2, 224'), I('s_cbranch_scc1 L_g_nd')]
    GD=opt.get('gd',0)
    D01=m0A(0)+flat(dmaA(0))+flat(dmaB(0))+m0A(1)+flat(dmaA(1))+flat(dmaB(1))
    if GD==0: S+=D01
    S+=['L_g_nd:']+srd(48,4,5,FLAG_OFF,8192)+srd(52,4,5,H_OFF,H_SIZE)
    S+=[I('v_and_b32 v12, 15, v0'), I('v_lshrrev_b32 v13, 4, v0'), I('v_bfe_u32 v14, v0, 1, 3'),
        I('s_lshr_b32 s26, s42, 1'), I('s_lshl_b32 s26, s26, 13'),
        I('v_lshlrev_b32 v12, 7, v12'), I('v_add_u32 v12, s26, v12'),
        I('v_xor_b32 v15, v13, v14'), I('v_lshl_add_u32 v%d, v15, 4, v12'%vA), I('v_xor_b32 v%d, 64, v%d'%(vA+1,vA))]
    S+=[I('v_add_u32 v%d, 65536, v%d'%(vA+2+j,vA+j)) for j in range(2)]
    S+=[I('v_bfe_u32 v12, v0, 4, 1'), I('v_and_b32 v13, 1, v0'), I('v_bfe_u32 v14, v0, 1, 1'), I('v_bfe_u32 v15, v0, 2, 2'),
        I('v_lshl_add_u32 v15, v12, 3, v15'), I('v_lshl_add_u32 v15, v14, 2, v15'),
        I('v_lshlrev_b32 v15, 4, v15'), I('v_lshl_add_u32 v15, v13, 3, v15'),
        I('v_lshl_add_u32 v15, v14, 8, v15'), I('v_lshrrev_b32 v12, 5, v0'), I('v_lshl_add_u32 v15, v12, 10, v15'),
        I('s_and_b32 s26, s42, 1'), I('s_lshl_b32 s26, s26, 13'), I('s_add_u32 s26, s26, 16384'),
        I('v_add_u32 v%d, s26, v15'%vB), I('v_xor_b32 v%d, 64, v%d'%(vB+1,vB))]
    S+=[I('v_add_u32 v%d, 65536, v%d'%(vB+2+u,vB+u)) for u in range(2)]
    S+=[
        I('s_bfe_u32 s26, s2, 0x10002'), I('s_lshl_b32 s26, s26, 3'), I('s_add_u32 s59, s26, s34'), I('s_lshl_b32 s59, s59, 7'),
        I('v_bfe_u32 v10, v0, 3, 1'), I('v_bfe_u32 v12, v0, 1, 2'), I('v_lshl_add_u32 v10, v10, 4, v12'), I('s_lshl_b32 s26, s42, 5'), I('v_add_u32 v10, s26, v10'), I('v_lshlrev_b32 v10, 11, v10'),
        I('v_lshrrev_b32 v13, 4, v0'), I('v_lshl_add_u32 v10, v13, 5, v10'), I('v_and_b32 v12, 1, v0'), I('v_lshl_add_u32 v%d, v12, 4, v10'%vW)]
    for i in range(1,4): S+=[I('v_add_u32 v%d, %d, v%d'%(vW+i,i*(4*2048-1024),vW))]
    S+=[I('v_and_b32 v10, 15, v0'), I('v_lshlrev_b32 v10, 11, v10'), I('v_lshrrev_b32 v12, 5, v0'), I('v_lshl_add_u32 v10, v12, 4, v10'),
        I('v_bfe_u32 v12, v0, 4, 1'), I('v_lshl_add_u32 v%d, v12, 5, v10'%vX)]+b3addr
    wsrd=[I('s_sub_u32 s26, 0x380000, s59')]+srd(12,68,69,'s59','s26')
    S+=wsrd+[I('s_setprio %d'%opt.get('pg',0))]+bar
    C=[]
    W=[I('s_cmp_ge_u32 s2, 224'), I('s_cbranch_scc1 L_g_idle')]
    if GD: W+=D01
    G2=opt.get('g2',1)
    W+=gbr*G2+m0A(2)+flat(dmaA(2))+flat(dmaB(2))+m0A(3)+flat(dmaA(3))
    W+=gbr*(NA-1-G2)+[I('s_waitcnt vmcnt(20)')]+st(1)+gbr
    UP=[]
    for q in range(8): UP+=unpack8(Z+4*q,G+8*q)
    ZT=opt.get('zt',1)
    def reads(slot,j):
        so=REG[slot]&0xffff; hi=REG[slot]>>16; f=FR+32*j
        Ra=[I('ds_read_b128 %s, v%d offset:%d'%(vr(f+4*t,4),vA+2*hi+j,so+t*2048)) for t in range(4)]
        Rb=[I('ds_read_b64_tr_b16 %s, v%d offset:%d'%(vr(f+16+4*n+2*u,2),vB+2*hi+u,so+(n>>1)*4096+j*2048+(n&1)*512)) for n in range(4) for u in range(2)]
        return Rb[:2]+Ra+Rb[2:]
    gbar=opt.get('g2_bar',15)
    rp1=opt.get('g2_rp1',list(range(12))); rp2=opt.get('g2_rp2',list(range(gbar+1,gbar+13)))
    dgA=opt.get('g2_dgA',[17,21,25,29]); dgB=opt.get('g2_dgB',[1,5,9,13])
    def tile(kt):
        slot=kt%4; c0=(kt==0); nxt=kt<31
        spine=[m16(ACC+32*(n>>1)+8*t+4*(n&1), FR+32*j+16+4*n, FR+32*j+4*t, '0' if (c0 and j==0) else None) for j in range(2) for n in range(4) for t in range(4)]
        fill={}
        def add(g,x): fill.setdefault(g,[]).extend(x)
        for pp,r in zip(rp1,reads(slot,1)): add(pp,[r])
        if kt+3<=31:
            for pp,g in zip(dgB,dmaB((kt+3)%4)): add(pp,g)
        else:
            Gw=dmaW(2*(kt-29)+1); add(-1,Gw[0])
            for pp,g in zip(dgB,Gw[1:]): add(pp,g)
        w={31:63,ZT+1:28,ZT+2:28}.get(kt,16)
        add(gbar,[I('s_waitcnt vmcnt(%d) lgkmcnt(0)'%w)]+gbr)
        if kt==ZT:
            zl=[[x] for x in ZL]
            for k,g in enumerate(zl): add(gbar+1+(k*16)//len(zl),g)
        if kt in (28,29):
            u=UP[32*(kt-28):32*(kt-27)]
            for k in range(32): add(k,u[k:k+1])
        if nxt:
            for pp,r in zip(rp2,reads((slot+1)%4,0)): add(pp,[r])
        if kt+4<=31:
            add(gbar,[I('s_add_u32 m0, s41, %d'%REG[slot])])
            for pp,g in zip(dgA,dmaA(slot)): add(pp,g)
        else:
            Gw=dmaW(2*(kt-28)); add(gbar,Gw[0])
            for pp,g in zip(dgA,Gw[1:]): add(pp,g)
        return interleave(spine,fill)
    W+=reads(0,0)+[I('s_mov_b32 s47, 6'), I('s_waitcnt lgkmcnt(0)')]+st(4)
    head=[]
    for t in range(4): head+=tile(t)
    head=auto_lgkm(head,pre=[])
    gb=[]
    for t in range(4,8): gb+=tile(t)
    gb=auto_lgkm(gb)
    fix_hazards(gb+gb,auto=False,tag='g2loop')
    pen=[]
    for t in range(28,32): pen+=tile(t)
    pen=auto_lgkm(pen,pre=gb)
    gloop=['L_g2_loop:']+gb+[I('s_sub_u32 s47, s47, 1'), I('s_cmp_lg_u32 s47, 0'), I('s_cbranch_scc1 L_g2_loop')]
    Ep=[]
    for nf in range(2):
        for m in range(2):
            a=ACC+16*(2*nf+m); g=G+16*(2*nf+m)
            for i in range(8): Ep+=[I('v_pk_add_f32 %s, %s, %s op_sel_hi:[1,0]'%(p(a+2*i),p(a+2*i),p(vBIAS+4*m+2*(i//4))))]
            for i in range(8): Ep+=[I('v_pk_mul_f32 %s, %s, %s'%(p(a+2*i),p(a+2*i),p(g+2*i)))]
            for i in range(8): Ep+=[I('v_cvt_pk_bf16_f32 v%d, v%d, v%d'%(a+i,a+2*i,a+2*i+1))]
            Ep+=[I('s_add_u32 s26, s32, %d'%(m*56*2048+nf*2048))]
            for h in range(2): Ep+=[I('buffer_store_dwordx4 %s, v%d, s[52:55], s26 offen offset:%d sc0 sc1'%(vr(a+4*h,4),vL16,1024*h))]
        if nf==0: Ep+=gbr
    def bars(n,tag):
        if n<=2: return gbr*n
        return [I('s_mov_b32 s47, %d'%n), 'L_%s:'%tag]+gbr+[I('s_sub_u32 s47, s47, 1'), I('s_cmp_lg_u32 s47, 0'), I('s_cbranch_scc1 L_%s'%tag)]
    Ep+=flat(dmaW(7))+st(6)+gbr*(CW-1)+[I('s_waitcnt vmcnt(4)')]+gbr
    Ep+=[I('s_lshl_b32 s30, s64, 7'), I('s_add_u32 s30, s30, 2048')]+pub1('L_c_pb',7,'s30')
    D=['L_gC:', I('s_lshl_b32 s30, s64, 7'), I('s_add_u32 s30, s30, 2048')]+srd(52,72,73,0,0x400000)
    D+=[I('s_lshl_b32 s32, s43, 16'), I('s_add_u32 s32, s32, s59'), I('s_add_u32 s33, s32, 32768')]
    D+=[I('buffer_load_dwordx4 %s, v%d, s[52:55], s%d offen offset:%d'%(vr(XR+4*q,4),vX,32+q//2,64*(q&1))) for q in range(4)]
    D+=[I('s_mul_i32 s26, s43, %d'%(56*2048)), I('s_add_u32 s26, s26, 0x%x'%H_OFF)]+srd(8,4,5,'s26',56*2048)+[I('s_mov_b32 s24, 0')]
    D+=[I('s_lshl_b32 s26, s43, 16'), I('s_add_u32 s26, s26, 0x%x'%O_OFF)]+srd(16,4,5,'s26',65536)
    D+=[I('s_sub_u32 s26, 0x200000, s59')]+srd(20,66,67,'s59','s26')+srd(52,70,71,0,0x400000)
    if CQ==CW: D+=ask1('L_c_ak',7,'s30')
    for k in range(CW+1,CK+1):
        if k==CK: D+=chk1('L_c_ck',7,'s30',14)
        D+=gbr
        if k==CQ: D+=ask1('L_c_ak',7,'s30')
    if opt.get('hpf',0):
        D+=[I('s_mul_i32 s26, s64, %d'%(4*56*2048)), I('s_add_u32 s26, s26, 0x%x'%H_OFF)]+srd(36,4,5,'s26',4*56*2048)
        D+=[I('s_lshl_b32 s26, s34, 2'), I('s_add_u32 s26, s26, s42'), I('s_mul_i32 s26, s26, %d'%(112*128)), I('v_lshlrev_b32 v12, 7, v0'),
            I('buffer_load_dword v13, v12, s[36:39], s26 offen'), I('s_add_u32 s26, s26, %d'%(48*128)), I('buffer_load_dword v13, v12, s[36:39], s26 offen')]
    nb=NC-2-CK
    for k in range(3):
        D+=flat(ldA(k))
        if k<2 and nb>0: D+=gbr; nb-=1
    D+=gbr*nb+[I('s_waitcnt vmcnt(16)')]+gbr+st(5)+rd3(0,0)
    DT=[]
    swW=[I('s_mov_b64 s[12:13], s[20:21]'), I('s_mov_b32 s14, s22')]
    swA=[I('s_mov_b64 s[8:9], s[16:17]'), I('s_mov_b32 s10, s18'), I('s_mov_b32 s24, %d'%(4*8192))]
    def earlyA(st_): return {3*k:g for k,g in enumerate(ldA(st_))}
    for j in range(14):
        w={0:16,1:16,2:20,11:16,12:8,13:63}.get(j,24)
        mid=[I('s_waitcnt vmcnt(%d)'%w)]+gbr
        late=[]
        if j>=1:
            Gw=dmaW(j+7); mid=mid+(swW if j==7 else [])+Gw[0]; late=Gw[1:]
        DT+=tile3(j,j%4,(Y,Y+16),j==0,j+1 if j<13 else None,mid,earlyA((j+3)%4) if j<=10 else {},late)
    DT+=[I('s_waitcnt lgkmcnt(0)')]+gbr+flat(dmaW(21))+swA
    T3=FR3+16
    DT+=[I('s_mov_b32 s28, 0x%x'%f2u(-math.log2(math.e))), I('s_mov_b32 s29, s28')]
    for nf in range(2):
        y=Y+16*nf
        for i in range(8): DT+=[I('v_pk_mul_f32 %s, %s, s[28:29]'%(p(T3+2*i),p(y+2*i)))]
        for i in range(16): DT+=[I('v_exp_f32 v%d, v%d'%(T3+i,T3+i))]
        for i in range(8): DT+=[I('v_pk_add_f32 %s, %s, 1.0 op_sel_hi:[1,0]'%(p(T3+2*i),p(T3+2*i)))]
        for i in range(16): DT+=[I('v_rcp_f32 v%d, v%d'%(T3+i,T3+i))]
        for i in range(8): DT+=[I('v_pk_mul_f32 %s, %s, %s'%(p(y+2*i),p(y+2*i),p(T3+2*i)))]
        for i in range(8): DT+=[I('v_cvt_pk_bf16_f32 v%d, v%d, v%d'%(Y+8*nf+i,y+2*i,y+2*i+1))]
    for q in range(4):
        DT+=[I('v_permlane16_swap_b32 v%d, v%d'%(XR+4*q,XR+4*q+2)), I('v_permlane16_swap_b32 v%d, v%d'%(XR+4*q+1,XR+4*q+3))]
    DT+=[I('s_lshl_b32 s26, s42, 13'), I('s_add_u32 s26, s26, %d'%CB), I('v_add_u32 v13, s26, v%d'%vL16)]
    DT+=[I('s_waitcnt vmcnt(0)')]+gbr*(JK-14)+st(3)
    for k in range(4): DT+=flat(ldA(k))
    DT+=rd3(18,0)+[I('s_waitcnt vmcnt(24)')]
    for k in range(4):
        DT+=tile3(18+k,k,(S0,S1),k==0,19+k if k<3 else None,([I('s_waitcnt vmcnt(%d)'%(16-8*k))] if k<3 else []))
    DT+=gbr+[I('ds_read_b128 %s, v13 offset:%d'%(vr(AR+4*q,4),1024*q)) for q in range(8)]
    for nf in range(2):
        y=(S0,S1)[nf]; T4=AR+32+32*nf
        DT+=unpack8(Y+8*nf,T4)+unpack8(Y+8*nf+4,T4+8)+unpack8(XR+8*nf,T4+16)+unpack8(XR+8*nf+4,T4+24)
    for nf in range(2):
        y=(S0,S1)[nf]; T4=AR+32+32*nf
        for i in range(8): DT+=[I('v_pk_add_f32 %s, %s, %s'%(p(y+2*i),p(y+2*i),p(AR+16*nf+2*i)))]
        for i in range(8): DT+=[I('v_pk_fma_f32 %s, %s, %s, %s'%(p(y+2*i),p(y+2*i),p(T4+2*i),p(T4+16+2*i)))]
        for i in range(8): DT+=[I('v_cvt_pk_bf16_f32 v%d, v%d, v%d'%(y+i,y+2*i,y+2*i+1))]
        for h in range(2):
            DT+=[I('v_permlane16_swap_b32 v%d, v%d'%(y+4*h,y+4*h+2)), I('v_permlane16_swap_b32 v%d, v%d'%(y+4*h+1,y+4*h+3))]
        for h in range(2):
            DT+=[I('buffer_store_dwordx4 %s, v%d, s[52:55], s%d offen offset:%d'%(vr(y+4*h,4),vX,32+nf,64*h))]
    k0=len(D)-8
    D=D[:k0]+auto_lgkm(D[k0:]+DT,pre=[])
    ID=['L_g_idle:', I('v_lshlrev_b32 v12, 7, v0'), I('s_sub_u32 s26, s2, 224'), I('s_lshl_b32 s26, s26, 2'), I('s_add_u32 s26, s26, s42'), I('s_lshl_b32 s26, s26, 13')]
    ID+=srd(8,66,67,0,0x200000)+srd(20,68,69,0,0x380000)
    for k in range(2): ID+=[I('s_add_u32 s27, s26, %d'%(k*0x100000)), I('buffer_load_dword v13, v12, s[8:11], s27 offen')]
    for k in range(4): ID+=[I('s_add_u32 s27, s26, %d'%(k*0x100000)), I('buffer_load_dword v13, v12, s[20:23], s27 offen')]
    ID+=[I('s_waitcnt vmcnt(0)')]
    for t in range(8): ID+=gbr+flat(dmaW(t))
    ID+=bars(NA+32+CW+1-8,'g_idl')+[I('s_branch L_gC')]
    fin=['L_k2_fin:']
    if STAMP:
        fin+=[I('s_waitcnt vmcnt(0)')]+st(7)+[I('s_cmp_lg_u32 s2, %d'%opt.get('stamp_wg',0)), I('s_cbranch_scc1 L_k2_nost'), I('s_cmp_lg_u32 s42, %d'%opt.get('stamp_w',3)), I('s_cbranch_scc1 L_k2_nost'),
              I('s_load_dwordx2 s[6:7], s[0:1], %d'%KA_DBG), I('s_waitcnt lgkmcnt(0)')]+srd(48,6,7,0,256)+[
              I('s_lshr_b32 s26, s25, 2'), I('s_lshl_b32 s26, s26, 5'), I('v_mov_b32 v1, s26')]
        for k in range(1,8 if not TRC else 0): fin+=[I('s_sub_u32 s26, s%d, s76'%(76+2*k)), I('v_mov_b32 v2, s26'), I('buffer_store_dword v2, v1, s[48:51], 0 offen offset:%d'%(4*k))]
        if TRC: fin+=[I('s_cmp_lt_u32 s25, 4'), I('s_cbranch_scc1 L_k2_nost'), I('s_waitcnt vmcnt(0)'), I('v_lshlrev_b32 v1, 2, v0'), I('buffer_store_dword v9, v1, s[48:51], 0 offen')]
        fin+=['L_k2_nost:']
    if opt.get('wgst'):
        fin+=[I('s_cmp_lg_u32 s25, %d'%opt.get('wgw',0)), I('s_cbranch_scc1 L_k2_nowg')]+srd(48,4,5,ST_OFF+2*65536,65536)+[I('s_lshl_b32 s26, s2, 4'), I('v_mov_b32 v1, s26')]
        fin+=[I('v_mov_b32 v%d, s%d'%(4+i,76+2*k)) for i,k in enumerate(opt['wgst'])]+[I('s_nop 1'), I('buffer_store_dwordx4 v[4:7], v1, s[48:51], 0 offen'), 'L_k2_nowg:']
    if opt.get('rt'): fin+=[I('s_cmp_lg_u32 s25, 4'), I('s_cbranch_scc1 L_k2_end')]
    fin+=rt_end(opt,opt.get('k2_idx',1),'k2',sreg=96)+['L_k2_end:', I('s_endpgm')]
    code=H+A+st(1)+aloop+st(2)+AT+S+C+W+head+gloop+pen+Ep+D+fin+ID+FB
    code,_=fix_hazards(code)
    tr,_=fix_hazards(H+A+body+body+AT); check_waits(tr,'k2a')
    tr,_=fix_hazards(FB); check_waits(tr,'k2fb')
    tr,_=fix_hazards(H+S+C+W+head+gb+gb+pen+Ep+D); check_waits(tr,'k2g')
    return L+code, kernel_desc(name,256,256,102), '; @launch kernel=%s grid=(256,1,1) block=(512,1,1) lds=163840'%name
```

```python
import sys
from build import *
from k1d import gen_k1d
from k2g import gen_k2g
opt=json.loads(sys.argv[2]) if len(sys.argv)>2 else {}
opt.setdefault('k2_idx',1)
o1=dict(opt); o2=dict(opt)
for o,k in ((o1,1),(o2,2)):
    if opt.get('stamp') and opt['stamp']!=k: o['stamp']=0
assemble([gen_k1d(opt=o1),gen_k2g(opt=o2)], sys.argv[1])
```

```python
from common import *
A_LDS=65536
CS=0
STAT_OFF=0
PST_OFF=0x100000
ZC_OFF=FLAG_OFF+8192
QSCALE = f2u(32**-0.5*math.log2(math.e))
vP=1; vQ=5; vOB=1; vOA=5; vA=9; vB=11; vIDX=15; ST=16
AB=32; BF=64; SEL=96; CD=100; ACC=128
def m16(d,a,b,c=None): return I('v_mfma_f32_16x16x32_bf16 %s, %s, %s, %s'%(vr(d,4),vr(a,4),vr(b,4),vr(d,4) if c is None else c))
p=lambda b: vr(b,2)
flat=lambda G:[x for g in G for x in g]
acc=lambda a,t: ACC+16*a+4*t
creg=lambda a: (32+4*a) if a<4 else (104+4*(a-4))

def gen_variant(NB, strideB, tag, isz, opt):
    NQ=NB; NFR=2*NB; NM=4*NFR
    RZ=opt.get('rz',4); FU=opt.get('fused'); STM=opt.get('st_mod','sc0 sc1' if FU else '')
    SB=[I('v_bfe_u32 v24, v0, 3, 1'), I('v_bfe_u32 v25, v0, 1, 2'), I('v_lshl_add_u32 v24, v24, 3, v25'),
        I('s_lshr_b32 s26, s25, 2'), I('s_lshl_b32 s26, s26, 5'), I('s_and_b32 s27, s25, 1'), I('s_lshl_b32 s27, s27, 4'), I('s_add_u32 s26, s26, s27'),
        I('s_and_b32 s27, s25, 2'), I('s_lshl_b32 s27, s27, 1'), I('s_add_u32 s26, s26, s27'),
        I('v_add_u32 v24, s26, v24'), I('s_mov_b32 s27, %d'%strideB), I('v_mul_u32_u24 v24, s27, v24'),
        I('v_lshrrev_b32 v25, 4, v0'), I('v_and_b32 v26, 1, v0'), I('v_lshl_add_u32 v24, v25, 5, v24'), I('v_lshl_add_u32 v24, v26, 4, v24')]
    if opt.get('bhack'):
        SB+=[I('v_lshrrev_b32 v24, 3, v0'), I('v_add_u32 v24, s26, v24'), I('v_mul_u32_u24 v24, s27, v24'), I('v_and_b32 v25, 7, v0'), I('v_lshl_add_u32 v24, v25, 4, v24')]
    for q in range(NQ):
        k=q*128-q*1024
        if not isz: SB+=[I('v_add_u32 v%d, %d, v24'%(vOB+q,k&0xffffffff))]
        else:
            lo,hi=[(3584 if (2*q+b)<NB else -NB*64)+k for b in range(2)]
            if lo==hi: SB+=[I('v_add_u32 v%d, %d, v24'%(vOB+q,lo&0xffffffff))]
            else: SB+=[I('v_mov_b32 v25, %d'%(lo&0xffffffff)), I('v_mov_b32 v26, %d'%(hi&0xffffffff)), I('v_cmp_gt_u32 vcc, 32, v0'),
                       I('v_cndmask_b32 v25, v26, v25, vcc'), I('v_add_u32 v%d, v25, v24'%(vOB+q))]
    SB+=[I('v_mov_b32 v%d, 0'%(vOB+q)) for q in range(NQ,4)]
    SB+=[I('s_and_b32 s26, s25, 3'), I('s_mul_i32 s28, s26, %d'%(NQ*1024)), I('s_lshr_b32 s26, s25, 2'), I('s_lshl_b32 s26, s26, 14'), I('s_add_u32 s28, s28, s26')]
    S=[]
    S+=[I('v_and_b32 v24, 15, v0'), I('v_lshrrev_b32 v25, 4, v0'), I('v_bfe_u32 v26, v0, 1, 3'),
        I('s_and_b32 s26, s25, 3'), I('s_lshl_b32 s26, s26, 13'), I('s_add_u32 s26, s26, %d'%A_LDS),
        I('v_lshlrev_b32 v24, 7, v24'), I('v_add_u32 v24, s26, v24'),
        I('v_xor_b32 v27, v25, v26'), I('v_lshl_add_u32 v%d, v27, 4, v24'%vA), I('v_xor_b32 v%d, 64, v%d'%(vA+1,vA))]
    S+=[I('v_lshrrev_b32 v24, 5, v0'), I('v_mul_u32_u24 v24, %d, v24'%(NQ*1024)), I('v_and_b32 v25, 31, v0'), I('v_lshl_add_u32 v24, v25, 3, v24'),
        I('s_lshr_b32 s26, s25, 2'), I('s_mul_i32 s35, s26, %d'%NB),
        I('s_and_b32 s46, s25, 3')]
    if NB<4: S+=[I('s_cmp_ge_u32 s46, %d'%NB), I('s_cselect_b32 s27, %d, 0'%NB), I('s_sub_u32 s46, s46, s27')]
    def phys(i): return [I('s_add_u32 s26, s46, %d'%i), I('s_cmp_ge_u32 s26, %d'%NB), I('s_cselect_b32 s27, %d, 0'%NB), I('s_sub_u32 s26, s26, s27')]
    for i in range(NB):
        S+=phys(i)+[I('s_add_u32 s26, s26, s35'), I('s_lshl_b32 s26, s26, 9'), I('v_add_u32 v%d, s26, v24'%(vB+i))]
    S+=[I('v_bfe_u32 v24, v0, 1, 1'), I('v_lshrrev_b32 v25, 5, v0'), I('v_cmp_eq_u32 vcc, v24, v25'), I('v_mov_b32 v24, 0x3f803f80'),
        I('v_cndmask_b32 v%d, 0, v24, vcc'%SEL)]+[I('v_mov_b32 v%d, v%d'%(SEL+i,SEL)) for i in range(1,4)]
    S+=[I('v_and_b32 v24, 1, v0'), I('v_mul_u32_u24 v24, 0xaaaa, v24'), I('v_add_u32 v%d, 0x4444, v24'%vIDX)]+[I('v_mov_b32 v%d, 0'%(CD+i)) for i in range(4)]
    uid=[0]
    def guard(h,X):
        uid[0]+=1; lab='L_k1_g%d_%s'%(uid[0],tag)
        return [I('s_cmp_lt_u32 s25, 4'), I('s_cbranch_scc%d %s'%(h,lab))]+X+[lab+':']
    def dma(q, only=None):
        srdn,so,inc,mp,lim,wr,vo=((8,20,74,28,76,77,vP),(12,21,75,29,78,79,vQ))[q]
        G=[]
        for i in range(4):
            ld=[I('buffer_load_dwordx4 v%d, s[%d:%d], s%d offen offset:%d lds'%(vo+i,srdn,srdn+3,so,i*1024))]
            if i>=opt.get('ndma',4): ld=[I('s_nop 0')]
            if only is None: G.append(ld if i<NQ else guard(1-q,ld))
            elif only==1-q or i<NQ: G.append(guard(only,ld))
            else: G.append([])
        adv=[I('s_add_u32 s%d, s%d, s%d'%(so,so,inc)), I('s_add_u32 s%d, s%d, 32768'%(mp,mp)), I('s_cmp_ge_u32 s%d, s%d'%(mp,lim)), I('s_cselect_b32 s26, s%d, 0'%wr), I('s_sub_u32 s%d, s%d, s26'%(mp,mp))]
        G[-1]=G[-1]+(adv if only is None else guard(only,adv))
        return [[I('s_mov_b32 m0, s%d'%mp)]]+G
    def rdA(j): return [I('ds_read_b128 %s, v%d offset:%d'%(vr(AB+16*j+4*t,4),vA+j,t*2048)) for t in range(4)]
    advA=lambda j: [I('v_add_u32 v%d, s59, v%d'%(vA+j,vA+j))]
    nxtA=[I('s_add_u32 s58, s58, 1'), I('s_cmp_eq_u32 s58, 3'), I('s_cselect_b32 s58, 0, s58'), I('s_cmp_eq_u32 s58, 2'), I('s_cselect_b32 s59, s80, s81')]
    def rdB(a):
        R=[[I('ds_read_b64_tr_b16 %s, v%d offset:%d'%(vr(BF+4*a+2*u,2),vB+a//2,2*u*NQ*1024+(a&1)*256))] for u in range(2)]
        if a&1: R[1]+=[I('v_add_u16 v%d, 0x4000, v%d'%(vB+a//2,vB+a//2))]
        return R
    SMF=I('v_smfmac_f32_16x16x64_bf16 %s, %s, %s, v%d'%(vr(CD,4),vr(SEL,4),vr(BF,8),vIDX))
    GB=opt.get('k1gb',3); D0=opt.get('k1d0',2); DS=opt.get('k1ds',(NM-GB-D0-1)//4+(1 if NM>16 else 0))
    VW='vmcnt(%d) '%(4+NQ)
    def step(j, G, has_next=True, c0=False, extra=None, vw=VW, dense=False):
        spine=[m16(acc(a,t),BF+4*a,AB+16*j+4*t,'0' if c0 else None) for a in range(NFR) for t in range(4)]
        fill={}
        def add(g,x): fill.setdefault(g,[]).extend(x)
        if has_next:
            nb=opt.get('nobar',0)
            add(GB,([I('s_waitcnt %slgkmcnt(0)'%vw)] if nb<2 else [])+([I('s_barrier')] if not nb or dense or not G else []))
            ra=[[x] for x in rdA(1-j)]; ra[-1]+=advA(1-j)+(nxtA if j==0 else [])
            avail={GB:rdB(0)+ra}
            for a in range(1,NFR): avail.setdefault(max(GB,4*a+3),[]).extend(rdB(a))
            queue=[]
            for g2 in range(GB,NM):
                queue+=avail.get(g2,[])
                n=1 if g2<NM-1 else len(queue)
                add(g2,flat(queue[:n])); queue=queue[n:]
            if not opt.get('nosmf'): add(NM-3,[SMF])
        if G:
            if dense:
                for g,x in G: add(g,x)
            else:
                add(GB,G[0])
                for k,g in enumerate(G[1:]): add(min(GB+D0+k*DS,NM-1),g)
        if extra:
            for g,x in extra.items(): add(g,x)
        return interleave(spine,fill)
    P=SB+[I('s_mov_b32 m0, s28'), I('s_nop 0')]+[I('buffer_load_dwordx4 v%d, s[68:71], 0 offen offset:%d lds'%(vOB+i,i*1024)) for i in range(NQ)]
    P+=[I('s_add_u32 s28, s28, 32768'), I('s_lshl_b32 s29, s25, 12'), I('s_add_u32 s29, s29, %d'%(A_LDS+32768)),
        I('s_mov_b32 s20, %d'%(64*strideB)), I('s_mov_b32 s21, 128'), I('s_mov_b32 s74, %d'%(0 if opt.get('fixB') else 64*strideB)), I('s_mov_b32 s75, %d'%(0 if opt.get('fixA') else 128)),
        I('s_mov_b32 s76, 65536'), I('s_mov_b32 s77, 65536'), I('s_mov_b32 s78, 163840'), I('s_mov_b32 s79, 98304'),
        I('s_mov_b32 s58, 0'), I('s_mov_b32 s59, 32768'), I('s_mov_b32 s80, 0xffff0000'), I('s_mov_b32 s81, 32768'),
        I('s_cmp_lt_u32 s25, 4')]
    for k in range(3): P+=[I('s_cselect_b32 s%d, s%d, s%d'%(8+k,68+k,64+k)), I('s_cselect_b32 s%d, s%d, s%d'%(12+k,64+k,68+k))]
    P+=[I('s_mov_b32 s11, 0x20000'), I('s_mov_b32 s15, 0x20000'), I('s_cbranch_scc1 L_k1_ns_%s'%tag)]
    for x,y in ((20,21),(74,75),(28,29),(76,78),(77,79)): P+=[I('s_mov_b32 s26, s%d'%x), I('s_mov_b32 s%d, s%d'%(x,y)), I('s_mov_b32 s%d, s26'%y)]
    P+=[I('v_swap_b32 v%d, v%d'%(vP+i,vQ+i)) for i in range(4)]+['L_k1_ns_%s:'%tag]+S
    X=ACC+16
    nd=4+NQ
    P+=[I('s_waitcnt vmcnt(%d)'%nd)]
    for k in range(2): P+=unpack8(ACC+4*k,X+8*k)
    R=ACC
    P+=[I('v_pk_add_f32 %s, %s, %s'%(p(R+2*i),p(X+2*i),p(X+8+2*i))) for i in range(4)]
    P+=[I('v_pk_add_f32 %s, %s, %s'%(p(R),p(R),p(R+2))), I('v_pk_add_f32 %s, %s, %s'%(p(R+4),p(R+4),p(R+6))), I('v_pk_add_f32 %s, %s, %s'%(p(R),p(R),p(R+4))),
        I('v_add_f32 v%d, v%d, v%d'%(R,R,R+1))]+wave_sum(R,R+1)+[I('v_mul_f32 v%d, 0xba800000, v%d'%(ST,R))]
    P+=[I('v_pk_add_f32 %s, %s, %s op_sel_hi:[1,0]'%(p(X+2*i),p(X+2*i),p(ST))) for i in range(8)]
    P+=[I('v_pk_mul_f32 %s, %s, %s'%(p(R+2*i),p(X+2*i),p(X+2*i))) for i in range(4)]
    P+=[I('v_pk_fma_f32 %s, %s, %s, %s'%(p(R+2*i),p(X+8+2*i),p(X+8+2*i),p(R+2*i))) for i in range(4)]
    P+=[I('v_pk_add_f32 %s, %s, %s'%(p(R),p(R),p(R+2))), I('v_pk_add_f32 %s, %s, %s'%(p(R+4),p(R+4),p(R+6))), I('v_pk_add_f32 %s, %s, %s'%(p(R),p(R),p(R+4))),
        I('v_add_f32 v%d, v%d, v%d'%(R,R,R+1))]+wave_sum(R,R+1)
    P+=[I('v_mov_b32 v%d, 0x3727c5ac'%(R+1)), I('v_fmac_f32 v%d, 0x3a800000, v%d'%(R+1,R)), I('v_rsq_f32 v%d, v%d'%(ST+1,R+1)), I('s_nop 0'),
        I('buffer_store_dwordx2 %s, v30, s[40:43], 0 offen sc0 sc1'%p(ST)), I('buffer_store_dword v31, v29, s[52:55], 0 offen sc0 sc1')]
    P+=[I('s_waitcnt vmcnt(2)'), I('s_barrier')]
    k0=len(P)
    P+=flat(rdB(0))+rdA(0)+advA(0)
    for a in range(1,NFR): P+=flat(rdB(a))
    P+=[I('s_mov_b32 s22, 12'), SMF]
    t0=step(0,dma(0),extra={1:[I('s_cmp_eq_u32 s22, s56'), I('s_cbranch_scc1 L_k1_poll_%s'%tag), 'L_k1_pret_%s:'%tag]})
    t1=step(1,dma(1))
    pub=[I('s_cmp_lg_u32 s25, 0'), I('s_cbranch_scc1 L_k1_np_%s'%tag), I('v_mov_b32 v28, 1'), I('v_mov_b32 v29, 0'), I('s_mov_b64 exec, 1'),
         I('buffer_atomic_add v28, v29, s[48:51], s47 offen sc1'), I('s_mov_b64 exec, -1'), I('v_lshlrev_b32 v27, 5, v0'), 'L_k1_np_%s:'%tag]
    seq=dma(1,only=0)+dma(0)+dma(1)
    n0=len(seq); seq+=dma(0)
    pos=[(-1+(k*(NM))//len(seq)) if k<n0 else max(GB,-1+(k*NM)//len(seq)) for k in range(len(seq))]
    f0=step(0,list(zip(pos,seq)),c0=True,vw='',dense=True)
    f1=step(1,dma(1),extra={GB+1:pub})
    first=P[:k0]+auto_lgkm(P[k0:]+f0+f1,pre=[])
    body=auto_lgkm(t0+t1)
    if 1:
        ask=[I('s_mov_b64 exec, 0xff'), I('buffer_load_dword v28, v27, s[48:51], 0 offen sc1'), I('s_mov_b64 exec, -1')]
        look=[I('v_cmp_le_u32 vcc, 32, v28'), I('s_nop 1'), I('s_and_b32 s26, vcc_lo, 0xff'), I('s_cmp_eq_u32 s26, 0xff')]
    PO=['L_k1_poll_%s:'%tag, I('s_sub_u32 s56, s56, 2'), I('s_add_u32 s57, s57, 1'), I('s_cmp_eq_u32 s57, 2'), I('s_cbranch_scc1 L_k1_chk_%s'%tag)]+ask+[I('s_branch L_k1_pret_%s'%tag),
        'L_k1_chk_%s:'%tag, I('s_mov_b32 s27, 0x40000'), 'L_k1_chl_%s:'%tag]+look+[I('s_cbranch_scc1 L_k1_pret_%s'%tag),
        I('s_sleep 2')]+ask+[I('s_waitcnt vmcnt(0)'), I('s_sub_u32 s27, s27, 1'), I('s_cmp_lg_u32 s27, 0'), I('s_cbranch_scc1 L_k1_chl_%s'%tag), I('s_branch L_k1_pret_%s'%tag)]
    g=GB+1
    ex29={0:[I('v_bfe_u32 v1, v0, 3, 1'), I('v_and_b32 v2, 7, v0'), I('s_lshl_b32 s26, s23, 12')],
          1:[I('v_lshlrev_b32 v1, 7, v1'), I('s_and_b32 s27, s25, 3'), I('s_lshl_b32 s27, s27, 10')],
          2:[I('v_lshl_add_u32 v1, v2, 3, v1'), I('s_add_u32 s26, s26, s27')],
          g+1:[I('buffer_load_dwordx2 %s, v1, s[40:43], s26 offen sc1'%p(ST))],
          g+3:[I('buffer_load_dwordx2 %s, v1, s[40:43], s26 offen offset:256 sc1'%p(ST+2))],
          g+5:[I('buffer_load_dwordx2 %s, v1, s[40:43], s26 offen offset:512 sc1'%p(ST+4))],
          g+7:[I('buffer_load_dwordx2 %s, v1, s[40:43], s26 offen offset:768 sc1'%p(ST+6))]}
    ex30={0:[I('v_and_b32 v2, 31, v0'), I('s_add_u32 s26, s35, s46'), I('s_lshl_b32 s26, s26, 7'), I('s_add_u32 s26, s26, %d'%CS)],
          1:[I('v_lshl_add_u32 v2, v2, 2, s26'), I('v_lshrrev_b32 v3, 4, v0')],
          2:[I('v_lshlrev_b32 v3, 4, v3'), I('v_bfe_u32 v5, v0, 4, 1')],
          GB+7:[I('v_cmp_eq_u32 vcc, 0, v5'), I('v_lshlrev_b32 v4, 4, v0')]}
    e0=step(0,dma(0))+step(1,dma(1,only=1))+step(0,None)+step(1,None,extra=ex29,vw='vmcnt(0) ')+step(0,None,extra=ex30,vw='')
    rdc=[]
    for i in range(NB):
        rdc+=phys(i)+[I('s_add_u32 s26, s26, s35'), I('s_lshl_b32 s26, s26, 7'), I('s_add_u32 s26, s26, %d'%CS), I('v_add_u32 v5, s26, v3')]
        rdc+=[I('ds_read_b128 %s, v5 offset:%d'%(vr(creg(2*i+f),4),64*f)) for f in range(2)]
    g=2
    ex15={g:[I('v_add_f32 v%d, v%d, v%d'%(CD,CD,CD+1)), I('v_add_f32 v%d, v%d, v%d'%(CD+2,CD+2,CD+3))],
          g+1:[I('v_cndmask_b32 v%d, v%d, v%d, vcc'%(CD,CD+2,CD)), I('ds_write_b32 v2, v%d'%CD)],
          g+3:[I('s_waitcnt lgkmcnt(0)'), I('s_barrier')]+rdc[:10]}
    for i in range(1,NB): ex15[g+3+i]=rdc[10*i:10*i+10]
    e1=step(1,None,has_next=False,extra=ex15)
    Lp='L_k1_loop_%s'%tag
    loop=[Lp+':']+body+[I('s_sub_u32 s22, s22, 1'), I('s_cmp_lg_u32 s22, 0'), I('s_cbranch_scc1 %s'%Lp)]
    def fold(a):
        E=[]
        for t in range(4):
            for i in range(2): E.append(I('v_pk_fma_f32 %s, %s, %s, %s op_sel_hi:[1,0,1]'%(p(acc(a,t)+2*i),p(creg(a)+2*i),p(ST+2*t),p(acc(a,t)+2*i))))
        for t in range(4):
            for i in range(2):
                if opt.get('pkv',1)==0: E.append(I('v_pk_mul_f32 %s, %s, %s op_sel:[0,1]'%(p(acc(a,t)+2*i),p(acc(a,t)+2*i),p(ST+2*t))))
                elif opt.get('pkv',1)==1: E.append(I('v_pk_mul_f32 %s, %s, %s op_sel_hi:[1,0]'%(p(acc(a,t)+2*i),p(acc(a,t)+2*i),p(6+2*t))))
                else: E+=[I('v_mul_f32 v%d, v%d, v%d'%(acc(a,t)+2*i+k,acc(a,t)+2*i+k,ST+2*t+1)) for k in range(2)]
        return E
    def put(i,sw=False):
        E=phys(i)+[I('s_lshl_b32 s26, s26, 17'), I('s_add_u32 s27, s26, s31')]
        for t in range(4):
            a=acc(2*i,t); b=acc(2*i+1,t)
            E+=[I('v_cvt_pk_bf16_f32 v%d, v%d, v%d'%(a,a,a+1)), I('v_cvt_pk_bf16_f32 v%d, v%d, v%d'%(a+1,a+2,a+3)),
                I('v_cvt_pk_bf16_f32 v%d, v%d, v%d'%(a+2,b,b+1)), I('v_cvt_pk_bf16_f32 v%d, v%d, v%d'%(a+3,b+2,b+3))]
            if sw: E+=[I('v_permlane%d_swap_b32 v%d, v%d'%(w,a+k,a+2+k)) for w in (16,32) for k in range(2)]
            E+=[I('buffer_store_dwordx4 %s, v4, s[16:19], s27 offen offset:%d %s'%(vr(a,4),t*1024,STM))]
        return E
    E=[I('s_waitcnt vmcnt(0) lgkmcnt(0)')]
    E2=[]
    if isz and opt.get('pkv',1)==1: E+=[I('v_mov_b32 v%d, v%d'%(6+2*t,ST+2*t+1)) for t in range(4)]
    if not isz:
        E+=[I('v_mul_f32 v%d, s34, v%d'%((6+2*t if opt.get('pkv',1)==1 else ST+2*t+1),ST+2*t+1)) for t in range(4)]
        for i in range(NB): E+=fold(2*i)+fold(2*i+1)+put(i)
    else:
        T=64
        gel=lambda a: gelu_block([acc(a,0)+2*k for k in range(8)],T+16*(a&1),24,36)
        E+=[I('s_mov_b32 s36, 0x%x'%f2u(GC2)), I('s_mov_b32 s37, s36'), I('v_mov_b32 v24, 0x%x'%f2u(GC1)), I('v_mov_b32 v25, v24'),
            I('s_cmp_lt_u32 s25, 4'), I('s_cbranch_scc1 L_k1_z2_%s'%tag)]
        for i in range(NB): E+=fold(2*i)+gel(2*i)+fold(2*i+1)+gel(2*i+1)+put(i,True)
        SS=112; QQ=120
        Z=['L_k1_z2_%s:'%tag, I('s_setprio %d'%opt.get('z2p',2))]
        for a in range(NFR):
            Z+=fold(a)+gel(a)
            for t in range(4):
                x=acc(a,t)
                if a==0: Z+=[I('v_pk_add_f32 %s, %s, %s'%(p(SS+2*t),p(x),p(x+2))), I('v_pk_mul_f32 %s, %s, %s'%(p(QQ+2*t),p(x),p(x)))]
                else: Z+=[I('v_pk_add_f32 %s, %s, %s'%(p(SS+2*t),p(SS+2*t),p(x))), I('v_pk_fma_f32 %s, %s, %s, %s'%(p(QQ+2*t),p(x),p(x),p(QQ+2*t))),
                          I('v_pk_add_f32 %s, %s, %s'%(p(SS+2*t),p(SS+2*t),p(x+2)))]
                Z+=[I('v_pk_fma_f32 %s, %s, %s, %s'%(p(QQ+2*t),p(x+2),p(x+2),p(QQ+2*t)))]
        for b in (SS,QQ): Z+=[I('v_add_f32 v%d, v%d, v%d'%(b+2*t,b+2*t,b+2*t+1)) for t in range(4)]
        for b in (SS,QQ): Z+=[I('v_permlane16_swap_b32 v%d, v%d'%(b,b+2)), I('v_permlane16_swap_b32 v%d, v%d'%(b+4,b+6))]
        for b in (SS,QQ): Z+=[I('v_add_f32 v%d, v%d, v%d'%(b,b,b+2)), I('v_add_f32 v%d, v%d, v%d'%(b+4,b+4,b+6))]
        for b in (SS,QQ): Z+=[I('v_permlane32_swap_b32 v%d, v%d'%(b,b+4))]
        Z+=[I('v_add_f32 v26, v%d, v%d'%(SS,SS+4)), I('v_add_f32 v27, v%d, v%d'%(QQ,QQ+4)),
            I('v_lshlrev_b32 v5, 3, v0'), I('s_mul_i32 s26, s23, %d'%(20*2048)), I('s_lshl_b32 s27, s25, 9'), I('s_add_u32 s38, s26, s27'), I('s_add_u32 s38, s38, 0x%x'%PST_OFF),
            I('s_lshl_b32 s26, s33, 11'), I('s_add_u32 s26, s26, s38'),
            I('buffer_store_dwordx2 v[26:27], v5, s[16:19], s26 offen sc0 sc1'),
            I('s_lshl_b32 s39, s23, 2'), I('s_add_u32 s39, s39, s25'), I('s_lshl_b32 s39, s39, 9'), I('s_add_u32 s39, s39, %d'%(384*128)),
            I('v_mov_b32 v28, 1'), I('v_lshlrev_b32 v29, 7, v0'), I('s_mov_b64 exec, %d'%((1<<RZ)-1)), I('s_waitcnt vmcnt(0)'),
            I('buffer_atomic_add v28, v29, s[52:55], s39 offen sc1'), I('s_setprio 0'), I('s_mov_b64 exec, 1'),
            I('s_and_b32 s27, s33, %d'%(RZ-1)), I('s_lshl_b32 s27, s27, 7'), I('s_add_u32 s39, s39, s27'), I('s_mov_b32 s27, 0x40000'),
            I('s_sleep %d'%opt.get('zs0',20)),
            'L_k1_zp_%s:'%tag, I('buffer_load_dword v30, v29, s[52:55], s39 offen sc1'), I('s_waitcnt vmcnt(0)'), I('v_readfirstlane_b32 s26, v30'), I('s_sub_u32 s27, s27, 1'),
            I('s_cmp_ge_u32 s26, 20'), I('s_cbranch_scc1 L_k1_zg_%s'%tag), I('s_sleep %d'%opt.get('zs1',6)), I('s_cmp_lg_u32 s27, 0'), I('s_cbranch_scc1 L_k1_zp_%s'%tag),
            'L_k1_zg_%s:'%tag, I('s_mov_b64 exec, -1'), I('s_setprio %d'%opt.get('z2p',2))]
        for k in range(20):
            Z+=[I('buffer_load_dwordx2 %s, v5, s[16:19], s38 offen offset:%d sc1'%(p(T+2*k),(k&1)*2048))]
            if k&1: Z+=[I('s_add_u32 s38, s38, 4096')]
        Z+=[I('s_waitcnt vmcnt(10)')]+[I('v_pk_add_f32 %s, %s, %s'%(p(T+2*k),p(T+2*k),p(T+2*k+10))) for k in range(5)]
        Z+=[I('s_waitcnt vmcnt(0)')]+[I('v_pk_add_f32 %s, %s, %s'%(p(T+20+2*k),p(T+20+2*k),p(T+30+2*k))) for k in range(5)]
        Z+=[I('v_pk_add_f32 %s, %s, %s'%(p(T+2*k),p(T+2*k),p(T+20+2*k))) for k in range(5)]
        Z+=[I('v_pk_add_f32 %s, %s, %s'%(p(T),p(T),p(T+2))), I('v_pk_add_f32 %s, %s, %s'%(p(T+4),p(T+4),p(T+6))),
            I('v_pk_add_f32 %s, %s, %s'%(p(T),p(T),p(T+8))), I('v_pk_add_f32 %s, %s, %s'%(p(T),p(T),p(T+4))),
            I('v_mul_f32 v26, 0x%x, v%d'%(f2u(1/1792),T)), I('v_mul_f32 v27, 0x%x, v%d'%(f2u(1/1792),T+1)),
            I('v_fma_f32 v27, -v26, v26, v27'), I('v_max_f32 v27, 0, v27'), I('v_add_f32 v27, 0x3727c5ac, v27'), I('v_rsq_f32 v%d, v27'%ST),
            I('s_nop 0'), I('v_mul_f32 v%d, -v26, v%d'%(ST+1,ST))]
        Z+=[I('v_mov_b32 v%d, v%d'%(ST+4+i,ST+i)) for i in range(2)]+[I('v_permlane32_swap_b32 v%d, v%d'%(ST+i,ST+4+i)) for i in range(2)]
        Z+=[I('v_mov_b32 v%d, v%d'%(ST+2+i+4*k,ST+i+4*k)) for k in range(2) for i in range(2)]
        Z+=[I('v_permlane16_swap_b32 v%d, v%d'%(ST+i+4*k,ST+2+i+4*k)) for k in range(2) for i in range(2)]
        Z+=[I('v_mov_b32 v%d, v%d'%(6+2*t,ST+2*t+1)) for t in range(4)]
        for i in range(NB):
            for a in (2*i,2*i+1):
                for t in range(4):
                    for k in range(2): Z+=[I('v_pk_fma_f32 %s, %s, %s, %s op_sel_hi:[1,0,0]'%(p(acc(a,t)+2*k),p(acc(a,t)+2*k),p(ST+2*t),p(6+2*t)))]
            Z+=put(i)
        E2=Z
    tail=auto_lgkm(e0+e1+E,pre=body)
    def stamp(k):
        if not opt.get('stamp'): return []
        return [I('%s s[%d:%d]'%('s_memrealtime' if opt.get('real') else 's_memtime',84+2*k,85+2*k)), I('s_waitcnt lgkmcnt(0)')]
    if opt.get('stamp'):
        k=[i for i,x in enumerate(tail) if 'v_mfma' in x][-1]
        tail=stamp(2)+tail[:k+1]+stamp(3)+tail[k+1:]
        k=[i for i,x in enumerate(first) if 'v_mfma' in x][0]
        first=first[:k]+stamp(1)+first[k:]
        if E2:
            k=[i for i,x in enumerate(E2) if 'buffer_atomic_add' in x][0]
            k2=[i for i,x in enumerate(E2) if x.startswith('L_k1_zg')][0]
            E2=E2[:k]+stamp(4)+E2[k:k2+1]+stamp(5)+E2[k2+1:]
    br=[I('s_branch L_k1_done')]
    code = first+loop+tail+br+(E2+br if E2 else [])+PO
    trs=[first+body+body+tail]
    if E2:
        k=[i for i,x in enumerate(tail) if 'L_k1_z2_' in x][0]
        trs.append(first+body+body+tail[:k+1]+E2)
    return code, trs, body

def gen_k1d(name='gemm1_kernel', opt={}):
    L=kernel_header(name); FU=opt.get('fused')
    B=[I('s_cmp_ge_u32 s2, 256'), I('s_cbranch_scc1 %s'%('L_k2_end' if FU else 'L_k1_end'))]
    if opt.get('stamp'): B+=[I('%s s[84:85]'%('s_memrealtime' if opt.get('real') else 's_memtime'))]
    B+=rt_begin(opt,sreg=96 if FU else 90)
    B+=[I('s_load_dwordx2 s[38:39], s[0:1], %d'%KA_X), I('s_load_dwordx2 s[6:7], s[0:1], %d'%KA_WQKV), I('s_load_dwordx2 s[36:37], s[0:1], %d'%KA_WIN),
        I('s_load_dwordx4 s[44:47], s[0:1], %d'%KA_DBG),
        I('v_lshrrev_b32 v1, 6, v0'), I('v_and_b32 v0, 63, v0'), I('s_nop 0'), I('v_readfirstlane_b32 s25, v1'),
        I('s_and_b32 s23, s2, 1'), I('s_lshl_b32 s23, s23, 2'), I('s_bfe_u32 s24, s2, 0x20003'), I('s_add_u32 s23, s23, s24'),
        I('s_bfe_u32 s32, s2, 0x20001'), I('s_lshr_b32 s30, s2, 5'), I('s_lshl_b32 s24, s32, 3'), I('s_add_u32 s24, s24, s30'),
        I('s_lshl_b32 s26, s24, 14'), I('s_lshl_b32 s27, s25, 11'), I('s_add_u32 s21, s26, s27'),
        I('v_lshlrev_b32 v24, 4, v0'),
        I('v_lshrrev_b32 v25, 3, v0'), I('v_lshrrev_b32 v26, 4, v0'), I('v_and_b32 v27, 7, v0'),
        I('s_lshl_b32 s26, s25, 16'),
        I('v_lshlrev_b32 v25, 11, v25'), I('v_add_u32 v25, s26, v25'),
        I('v_xor_b32 v27, v27, v26'), I('v_xor_b32 v26, 4, v27'),
        I('v_lshl_add_u32 v27, v27, 4, v25'), I('v_lshl_add_u32 v26, v26, 4, v25')]
    for i in range(4): B+=[I('v_add_u32 v%d, %d, v%d'%(vOA+i, i*8*2048-i*1024, (27,26)[i&1]))]
    B+=[I('s_lshl_b32 s28, s25, 12'), I('s_lshl_b32 s26, s23, 19'), I('s_add_u32 m0, s28, %d'%A_LDS),
        I('s_waitcnt lgkmcnt(0)')]
    B+=srd(64,38,39,'s26',256*2048)
    for k in range(2): B+=[I('buffer_load_dwordx4 %s, v24, s[64:67], s21 offen offset:%d'%(vr(ACC+4*k,4),1024*k))]
    for i in range(4): B+=[I('buffer_load_dwordx4 v%d, s[64:67], 0 offen offset:%d lds'%(vOA+i,i*1024))]
    B+=[I('s_mov_b32 s4, s46'), I('s_mov_b32 s5, s47')]
    B+=srd(16,4,5,0,O_OFF)+srd(40,4,5,STAT_OFF,256*128)+srd(48,44,45,0,256)+srd(52,4,5,FLAG_OFF,65536)
    B+=[I('s_lshl_b32 s26, s23, 5'), I('s_add_u32 s26, s26, s24'), I('s_lshl_b32 s26, s26, 7'), I('s_lshl_b32 s27, s25, 3'), I('s_add_u32 s26, s26, s27'),
        I('v_mov_b32 v22, s26'), I('v_cmp_eq_u32 vcc, 0, v0'), I('v_mov_b32 v29, 0x7fff0000'), I('v_cndmask_b32 v30, v29, v22, vcc'),
        ]
    B+=[I('s_lshl_b32 s26, s2, 8'), I('s_cmp_lg_u32 s25, 0'), I('s_cselect_b32 s26, 0x7fff0000, s26'),
        I('v_and_b32 v22, 7, v0'), I('v_lshl_add_u32 v22, v22, 2, s26'), I('v_lshrrev_b32 v23, 3, v0'), I('v_lshl_add_u32 v22, v23, 7, v22'), I('v_cmp_gt_u32 vcc, 16, v0')]
    B+=[I('v_cndmask_b32 v29, v29, v22, vcc'), I('v_mov_b32 v31, 0'),
        I('s_lshl_b32 s47, s23, 5'), I('s_and_b32 s56, s24, 3'), I('s_add_u32 s56, s56, 5'),
        I('s_cmp_lg_u32 s25, 0'), I('s_cselect_b32 s56, 100, s56'), I('s_mov_b32 s57, 0'),
        I('s_lshl_b32 s31, s23, 14'), I('s_and_b32 s26, s25, 3'), I('s_lshl_b32 s26, s26, 12'), I('s_add_u32 s31, s31, s26'),
        I('s_cmp_ge_u32 s30, 3'), I('s_cbranch_scc1 L_k1_z')]
    V=[I('s_mul_i32 s33, s32, 3'), I('s_add_u32 s33, s33, s30'), I('s_lshl_b32 s26, s33, 9'), I('s_sub_u32 s27, 0x600000, s26')]
    V+=srd(68,6,7,'s26','s27')
    V+=[I('s_lshl_b32 s26, s33, 1'), I('s_lshr_b32 s27, s25, 2'), I('s_add_u32 s26, s26, s27'), I('s_lshl_b32 s26, s26, 19'), I('s_add_u32 s31, s31, s26'), I('s_add_u32 s31, s31, 0x%x'%P1_OFF),
        I('s_cmp_lt_u32 s33, 4'), I('s_cselect_b32 s34, 0x%x, 1.0'%QSCALE), I('s_lshl_b32 s83, s33, 10')]
    c1,tr1,b1=gen_variant(4,6144,'q',False,opt)
    def zhead():
        return [I('s_lshl_b32 s26, s34, 6'), I('s_sub_u32 s27, 0x700000, s26')]+srd(68,36,37,'s26','s27')+[
            I('s_lshl_b32 s26, s34, 17'), I('s_add_u32 s31, s31, s26'), I('s_cmp_lt_u32 s25, 4'), I('s_cselect_b32 s26, 0x%x, s82'%Z2N_OFF), I('s_add_u32 s31, s31, s26'),
            I('s_lshl_b32 s83, s33, 10'), I('s_add_u32 s83, s83, %d'%(12*1024))]
    W=['L_k1_z:', I('s_mov_b32 s82, 0x%x'%(P1_OFF+96*131072)), I('s_cmp_eq_u32 s30, 7'), I('s_cbranch_scc1 L_k1_z4'),
       I('s_lshl_b32 s33, s32, 2'), I('s_add_u32 s33, s33, s30'), I('s_sub_u32 s33, s33, 3'), I('s_mul_i32 s34, s33, 3')]+zhead()
    c2,tr2,b2=gen_variant(3,7168,'z6',True,opt)
    W4=['L_k1_z4:', I('s_add_u32 s33, s32, 16'), I('s_lshl_b32 s34, s32, 1'), I('s_add_u32 s34, s34, 48')]+zhead()
    c3,tr3,b3=gen_variant(2,7168,'z4',True,opt)
    FZ=['L_k1_done:', I('s_or_b32 s26, s2, s25'), I('s_cbranch_scc1 L_k1_nz')]+srd(12,4,5,FLAG_OFF,8192)+[I('v_lshlrev_b32 v1, 7, v0')]+[I('v_mov_b32 v%d, 0'%r) for r in range(8,12)]+[
        I('buffer_store_dwordx4 v[8:11], v1, s[12:15], 0 offen'), I('buffer_store_dwordx4 v[8:11], v1, s[12:15], 0 offen offset:16'), 'L_k1_nz:']
    Zs=[]
    if opt.get('stamp'):
        Zs=[I('s_waitcnt vmcnt(0)'), I('%s s[96:97]'%('s_memrealtime' if opt.get('real') else 's_memtime')), I('s_waitcnt lgkmcnt(0)'),
            I('s_cmp_lg_u32 s2, %d'%opt.get('stamp_wg',0)), I('s_cbranch_scc1 L_k1_nost'), I('s_lshl_b32 s26, s25, 5'), I('s_and_b32 s26, s26, 0x9f'), I('s_bitcmp1_b32 s25, 0'), I('s_cbranch_scc1 L_k1_nost'),
            I('s_bitcmp1_b32 s25, 1'), I('s_cbranch_scc1 L_k1_nost'), I('s_lshr_b32 s26, s26, 2'), I('s_add_u32 s26, s26, 4'), I('v_mov_b32 v1, s26')]
        for k in range(1,7):
            Zs+=[I('s_sub_u32 s26, s%d, s84'%(84+2*k)), I('v_mov_b32 v2, s26'), I('buffer_store_dword v2, v1, s[48:51], 0 offen offset:%d'%(4*(k-1)))]
        Zs+=['L_k1_nost:']
    if opt.get('rt'): Zs+=[I('s_waitcnt vmcnt(0)'), I('s_barrier'), I('s_cmp_lg_u32 s25, 0'), I('s_cbranch_scc1 L_k1_end')]
    Zs+=rt_end(opt,opt.get('k1_idx',0),'k1')
    code,_=fix_hazards(B+V+c1+W+c2+W4+c3+(['L_k1_done:'] if FU else ['L_k1_done:']+Zs+['L_k1_end:', I('s_endpgm')]))
    for pre,trs,b,tg in ((V,tr1,b1,'q'),(W,tr2,b2,'z6'),(W4,tr3,b3,'z4')):
        for tr in trs:
            t,_=fix_hazards(B+pre+tr); check_waits(t,'k1'+tg)
        fix_hazards(b+b,auto=False,tag='k1loop'+tg)
    lds=163840
    if FU: return L+code
    return L+code, kernel_desc(name,256,256,102), '; @launch kernel=%s grid=(256,1,1) block=(512,1,1) lds=%d'%(name,lds)
```

```python
from common import *
def m16(d,a,b,c=None): return I('v_mfma_f32_16x16x32_bf16 %s, %s, %s, %s'%(vr(d,4),vr(a,4),vr(b,4),vr(d,4) if c is None else c))
Q=16; KB=32; VB=48; SA=64; SB=80; PA=96; PB=104; OA=112; OB=128; LA=144; LB=148; ONES=152; vIDX=156
vK,vV0,vV1,vD=4,5,6,7
vL16=11
KV=131072
FR=32; G=96; ACC=160
vOA=224; vOB=228; vA=230; vB=238; vBIAS=242
REG=[0,32768,65536,98304]
AR=32; FR3=160; Y=192; XR=224; S0=240; S1=208; SAT=192
vW=16; vA3=20; vB3=22; vX=28
WSL=lambda t: (t%8)*16384
CB=KV
def gen_k2g(name='mid_kernel', opt={}):
    FU=opt.get('fused'); TST=opt.get('tst')
    RP=opt.get('rp',8); RO=opt.get('ro',8); RH=opt.get('rh',4)
    L=FU if FU else kernel_header(name)
    STAMP=opt.get('stamp')
    def st(k): return [I('%s s[%d:%d]'%('s_memrealtime' if opt.get('real') else 's_memtime',76+2*k,77+2*k)), I('s_waitcnt lgkmcnt(0)')] if STAMP else []
    bar=[I('s_barrier')]
    TRC=opt.get('trace')
    gbr=bar+([I('%s s[94:95]'%('s_memrealtime' if opt.get('real') else 's_memtime')), I('s_mov_b32 s92, m0'), I('s_mov_b32 m0, s93'), I('s_waitcnt lgkmcnt(0)'), I('s_sub_u32 s94, s94, s76'),
              I('v_writelane_b32 v9, s94, m0'), I('s_mov_b32 m0, s92'), I('s_add_u32 s93, s93, 1')] if TRC else [])
    NA=opt.get('na',8)
    H=[I('s_mov_b32 s74, s83')] if FU else [I('s_cmp_ge_u32 s2, 256'), I('s_cbranch_scc1 L_k2_end')]+rt_begin(opt,sreg=96)
    H+=[I('s_load_dwordx2 s[4:5], s[0:1], %d'%KA_WS),
        I('s_load_dwordx4 s[60:63], s[0:1], %d'%KA_WSP),
        I('s_load_dwordx2 s[66:67], s[0:1], %d'%KA_WO), I('s_load_dwordx4 s[68:71], s[0:1], %d'%KA_WOUT),
        I('s_load_dwordx2 s[72:73], s[0:1], %d'%KA_X),
        ]+([] if FU else [I('v_lshrrev_b32 v1, 6, v0'), I('v_and_b32 v0, 63, v0'), I('s_nop 0'), I('v_readfirstlane_b32 s25, v1')])+[
        I('s_bfe_u32 s27, s2, 0x20003'), I('s_lshr_b32 s34, s2, 5'),
        I('s_and_b32 s42, s25, 3'), I('v_lshlrev_b32 v%d, 4, v0'%vL16),
        I('s_and_b32 s64, s2, 3'), I('s_lshl_b32 s64, s64, 2'), I('s_add_u32 s64, s64, s27'),
        I('s_cmp_ge_u32 s25, 4'), I('s_cbranch_scc1 L_gemm')]
    NC=opt.get('nc',13); CW=opt.get('cw',3); CQ=opt.get('cq',6); CK=opt.get('ck',9)
    jE=63-(NA+32+NC); JP=opt.get('jp',jE+3); JK=opt.get('jk',max(15,JP+1)); JQ=JP
    FBAR=opt.get('fbar',1)
    assert 0<=jE+FBAR<JP<=JQ<JK and JK>=15
    b3addr=[I('v_lshrrev_b32 v13, 5, v0'), I('v_and_b32 v12, 31, v0'), I('v_lshlrev_b32 v12, 3, v12'), I('v_lshl_add_u32 v%d, v13, 10, v12'%vB3),
        I('v_add_u32 v%d, 65536, v%d'%(vB3+1,vB3))]
    b3addr+=[I('v_mov_b32 v%d, v%d'%(vA3,vL16)), I('v_add_u32 v%d, 4096, v%d'%(vA3+1,vL16)),
        I('s_lshl_b32 s43, s64, 2'), I('s_add_u32 s43, s43, s42')]
    def ldA(st_):
        Gr=[[I('buffer_load_dwordx4 %s, v%d, s[8:11], s24 offen offset:%d'%(vr(AR+32*st_+4*i,4),vA3+i//4,(i%4)*1024))] for i in range(8)]
        Gr[-1]+=[I('s_add_u32 s24, s24, 8192')]
        return Gr
    def dmaW(t):
        Gr=[[I('buffer_load_dwordx4 v%d, s[12:15], s58 offen offset:%d lds'%(vW+i,i*1024))] for i in range(4)]
        return [[I('s_add_u32 m0, s41, %d'%WSL(t)), I('s_mov_b32 s58, %d'%((t if t<14 else t-14)*128*2048))]]+Gr
    def rd3(t,j):
        f=FR3+16*(j&1); a=WSL(t)
        return [I('ds_read_b64_tr_b16 %s, v%d offset:%d'%(vr(f+4*n+2*u,2),vB3+(a>>16),(a&0xffff)+j*4096+u*2048+n*256)) for n in range(4) for u in range(2)]
    def tile3(t, aset, acc, c0, nxt, mid, early={}, late=[]):
        spine=[m16(acc[h]+4*n,FR3+16*(j&1)+4*n,AR+32*aset+8*j+4*h,'0' if (c0 and j==0) else None) for j in range(4) for n in range(4) for h in range(2)]
        fill={}
        def add(g,x): fill.setdefault(g,[]).extend(x)
        add(23,mid)
        for j in range(4):
            R = rd3(t,j+1) if j<3 else (rd3(nxt,0) if nxt is not None else [])
            for k,r in enumerate(R): add(8*j+k,[r])
        for g,x in early.items(): add(g,x)
        for k,g in enumerate(late): add(24+(k*8)//len(late),g)
        return interleave(spine,fill)
    flat=lambda Gr:[x for g in Gr for x in g]
    def pub1(lab,wave,off,n):
        return [I('s_cmp_lg_u32 s25, %d'%wave), I('s_cbranch_scc1 %s'%lab), I('s_mov_b64 exec, %d'%((1<<n)-1)), I('v_mov_b32 v12, 1'), I('v_lshlrev_b32 v15, 7, v0'),
                I('buffer_atomic_add v12, v15, s[48:51], %s offen sc1'%off), I('s_mov_b64 exec, -1'), lab+':']
    def ask1(lab,wave,off):
        return [I('s_cmp_lg_u32 s25, %d'%wave), I('s_cbranch_scc1 %s'%lab), I('s_mov_b64 exec, 1'), I('v_mov_b32 v12, 0'),
                I('buffer_load_dword v15, v12, s[48:51], %s offen sc1'%off), I('s_mov_b64 exec, -1'), lab+':']
    def chk1(lab,wave,off,n):
        return [I('s_cmp_lg_u32 s25, %d'%wave), I('s_cbranch_scc1 %s'%lab), I('s_mov_b64 exec, 1'), I('s_mov_b32 s27, 0x40000'),
                lab+'_l:', I('s_waitcnt vmcnt(0)'), I('v_readfirstlane_b32 s26, v15'), I('s_sub_u32 s27, s27, 1'), I('s_cmp_ge_u32 s26, %d'%n), I('s_cbranch_scc1 %s_g'%lab),
                I('s_sleep %d'%opt.get('slp',1)), I('buffer_load_dword v15, v12, s[48:51], %s offen sc1'%off), I('s_cmp_lg_u32 s27, 0'), I('s_cbranch_scc1 %s_l'%lab),
                lab+'_g:', I('s_mov_b64 exec, -1'), lab+':']
    A=[I('s_and_b32 s26, s2, 7'), I('s_lshl_b32 s33, s26, 2'), I('s_add_u32 s33, s33, s27'),
       I('s_lshl_b32 s30, s34, 14'), I('s_lshl_b32 s27, s42, 12'), I('s_add_u32 s30, s30, s27'),
       I('s_and_b32 s26, s42, 1'), I('s_lshl_b32 s40, s26, 10'), I('s_lshl_b32 s41, s42, 10'), I('s_add_u32 s41, s41, %d'%KV),
       I('v_bfe_u32 v12, v0, 4, 1'), I('v_lshlrev_b32 v12, 7, v12'),
       I('s_cmp_ge_u32 s42, 2'), I('s_cselect_b32 s26, -1, 0'), I('v_and_b32 v12, s26, v12'), I('v_xor_b32 v%d, v%d, v12'%(vD,vL16)),
       I('s_lshl_b32 s26, s33, 17'), I('s_add_u32 s27, s26, 0x%x'%P1_OFF),
       I('s_lshr_b32 s35, s42, 1'), I('s_add_u32 s35, s35, 1'), I('s_lshl_b32 s35, s35, 22'), I('s_add_u32 s35, s35, s27'),
       I('s_mov_b32 m0, s41'), I('s_waitcnt lgkmcnt(0)')]+st(0)
    A+=srd(36,4,5,'s27',131072)+srd(16,4,5,'s35',131072)
    def kvd(sl): return [I('s_add_u32 m0, s41, %d'%(sl*4096)), I('buffer_load_dwordx4 v%d, s[16:19], s40 offen lds'%vD), I('s_add_u32 s40, s40, 2048')]
    AL=kvd(0)[1:]
    for i in range(4): AL+=[I('buffer_load_dwordx4 %s, v%d, s[36:39], s30 offen offset:%d'%(vr(Q+4*i,4),vL16,1024*i))]
    KF=opt.get('kvfirst',2)
    for sl in range(1,KF): AL+=kvd(sl)
    if not FU: A+=AL
    A+=[I('s_setprio %d'%opt.get('pa',1))]+srd(52,4,5,O_OFF,O_SIZE)
    A+=[I('s_lshl_b32 s26, s34, 3'), I('s_lshl_b32 s27, s42, 1'), I('s_add_u32 s26, s26, s27'),
        I('s_lshl_b32 s26, s26, 5'), I('s_add_u32 s26, s26, s33'), I('s_lshl_b32 s46, s26, 11'),
        I('v_add_u32 v%d, %d, v%d'%(vK,KV,vL16)),
        I('v_bfe_u32 v14, v0, 1, 1'), I('v_and_b32 v13, 1, v0'), I('v_lshrrev_b32 v15, 2, v0'), I('v_lshlrev_b32 v12, 3, v14'), I('v_xor_b32 v15, v15, v12'),
        I('v_lshlrev_b32 v15, 4, v15'), I('v_lshl_add_u32 v15, v13, 3, v15'), I('v_lshl_add_u32 v15, v14, 8, v15'),
        I('v_add_u32 v%d, %d, v15'%(vV0,KV+2048)),
        I('v_lshrrev_b32 v12, 5, v0'), I('v_cmp_eq_u32 vcc, v14, v12'),
        I('v_mul_u32_u24 v13, 0xaaaa, v13'), I('v_add_u32 v%d, 0x4444, v13'%vIDX),
        I('v_mov_b32 v13, 0x3f803f80'), I('v_cndmask_b32 v%d, 0, v13, vcc'%ONES)]
    for i in range(1,4): A+=[I('v_mov_b32 v%d, v%d'%(ONES+i,ONES))]
    for r in list(range(OA,OA+40))+list(range(PB,PB+8))+list(range(VB+8,VB+16)): A+=[I('v_mov_b32 v%d, 0'%r)]
    def wait_lines(lab,nl,tgt,first=True):
        msk=(1<<nl)-1
        ld=[I('buffer_load_dword v15, v12, s[48:51], 0 offen sc1')]
        return [I('s_mov_b64 exec, %d'%msk), I('s_mov_b32 s47, 0x40000')]+(ld if first else [])+[lab+'_l:', I('s_waitcnt vmcnt(0)'), I('v_cmp_le_u32 vcc, %d, v15'%tgt), I('s_sub_u32 s47, s47, 1'),
                I('s_nop 0'), I('s_cmp_eq_u32 vcc_lo, %d'%msk), I('s_cbranch_scc1 %s_g'%lab), I('s_sleep %d'%opt.get('slp1',1))]+ld+[I('s_cmp_lg_u32 s47, 0'), I('s_cbranch_scc1 %s_l'%lab),
                lab+'_g:', I('s_mov_b64 exec, -1')]
    if FU:
        A+=srd(48,4,5,FLAG_OFF,65536)+[I('s_bfe_u32 s26, s2, 0x20001'), I('s_lshl_b32 s26, s26, 3'), I('s_and_b32 s27, s34, %d'%(RP-1)), I('s_add_u32 s26, s26, s27'), I('s_lshl_b32 s26, s26, 7'),
            I('v_lshlrev_b32 v12, 12, v0'), I('v_add_u32 v12, s26, v12'), I('v_mov_b32 v13, 1'), I('v_lshlrev_b32 v14, 7, v0'), I('s_waitcnt vmcnt(0)')]+(st(3) if TST else [])+bar
        A+=[I('s_cmp_lg_u32 s25, 0'), I('s_cbranch_scc1 L_t_a'), I('s_mov_b64 exec, %d'%((1<<RP)-1)), I('buffer_atomic_add v13, v14, s[48:51], s74 offen sc1')]+wait_lines('L_t_w',3,8)+['L_t_a:']+bar+(st(4) if TST else [])+AL
    def rdK(i,base): return [I('ds_read_b128 %s, v%d offset:%d'%(vr(KB+8*(i&1)+4*f,4),vK,base+1024*f)) for f in range(2)]
    def rdV(i,base,v0=vV0,hs=1024): return [I('ds_read_b64_tr_b16 %s, v%d offset:%d'%(vr(VB+8*(i&1)+4*f+2*u,2),v0,base+512*f+hs*u)) for f in range(2) for u in range(2)]
    qk=lambda S_,k,q: [m16(S_+8*x+4*f,k+4*f,q+4*x,'0') for x in range(2) for f in range(2)]
    pv=lambda O_,v,P_: [m16(O_+8*x+4*f,v+4*f,P_+4*x) for x in range(2) for f in range(2)]
    smf=lambda L_,P_: [I('v_smfmac_f32_16x16x64_bf16 %s, %s, %s, v%d'%(vr(L_,4),vr(ONES,4),vr(P_,8),vIDX))]
    A+=[I('s_mov_b32 s45, 8'), I('s_waitcnt vmcnt(%d)'%(KF-1))]+bar+rdK(0,0)+flat([kvd(sl) for sl in range(KF,7)])+[I('s_waitcnt lgkmcnt(0)')]+qk(SA,KB,Q)+[I('s_nop 7')]
    def phase(S_,P_, mf, extra):
        ex=[I('v_exp_f32 v%d, v%d'%(S_+i,S_+i)) for i in range(16)]
        cv=[I('v_cvt_pk_bf16_f32 v%d, v%d, v%d'%(P_+i,S_+2*i,S_+2*i+1)) for i in range(8)]
        pat=opt.get('att_pat',[(2,0),(2,1),(2,1),(2,1),(2,1),(2,1),(2,1),(2,1),(0,1)])
        mf=[mf[k] for k in opt.get('att_ord',range(9))]
        out=[]; e=0;c=0
        for k,(ne,nc) in enumerate(pat):
            out.append(mf[k]); out+=extra.get(k,[])
            out+=ex[e:e+ne]; e+=ne
            out+=cv[c:c+nc]; c+=nc
        assert e==16 and c==8
        return out
    body=[]
    AB=opt.get('att_bar',4); AD=opt.get('att_dma',2)
    for i in range(8):
        kb=KB+8*(i&1); kn=KB+8*((i+1)&1); vb=VB+8*(i&1); vp=VB+8*((i+1)&1)
        rv=rdV(i,4096*i); rk=rdK(i+1,4096*((i+1)&7)); d=kvd((i+7)&7)
        ex={}
        for k in range(4): ex.setdefault((k*AB)//4,[]).append(rv[k])
        ex[AB]=[I('s_waitcnt vmcnt(5)')]+bar+rk[:1]+d[:1]; ex[AB+1]=rk[1:]
        body+=phase(SA,PA,qk(SB,kb,Q+8)+pv(OB,vp,PB)+smf(LB,PB),ex)+phase(SB,PB,qk(SA,kn,Q)+pv(OA,vb,PA)+smf(LA,PA),{AD:d[1:]})
    body=auto_lgkm(body)
    if opt.get('hk_nexp'): body=[x.replace('v_exp_f32','v_mov_b32') for x in body]
    if opt.get('hk_nval'): body=[x for x in body if 'v_exp' not in x and 'v_cvt' not in x]
    fix_hazards(body+body,auto=False,tag='att_loop')
    aloop=['L_att_loop:']+body+[I('s_sub_u32 s45, s45, 1'), I('s_cmp_lg_u32 s45, 0'), I('s_cbranch_scc1 L_att_loop')]
    AT=pv(OB,VB+8,PB)+smf(LB,PB)+[I('v_mov_b32 v160, 0x1f800000'), I('v_mov_b32 v161, 0x5f800000')]
    FB=[]
    p=lambda b: vr(b,2)
    for X,(O_,L_,Q_) in enumerate(((OA,LA,Q),(OB,LB,Q+8))):
        AT+=[I('v_pk_mul_f32 v[162:163], %s, 0 op_sel_hi:[1,0]'%p(O_))]
        for i in range(1,8): AT+=[I('v_pk_fma_f32 v[162:163], %s, 0, v[162:163] op_sel_hi:[1,0,1]'%p(O_+2*i))]
        AT+=[I('v_add_f32 v%d, v%d, v%d'%(L_,L_,L_+1)), I('v_add_f32 v%d, v%d, v%d'%(L_+2,L_+2,L_+3)),
             I('v_add_f32 v162, v162, v163'), I('v_add_f32 v163, v162, v%d'%(L_+2)), I('v_add_f32 v162, v162, v%d'%L_),
             I('v_cmp_nge_f32 vcc, v162, v160'), I('v_cmp_nle_f32 s[56:57], v162, v161'), I('v_cmp_nge_f32 s[26:27], v163, v160'), I('v_cmp_nle_f32 s[58:59], v163, v161'),
             I('s_or_b64 s[56:57], s[56:57], vcc'), I('s_or_b64 s[26:27], s[26:27], s[58:59]'), I('s_or_b64 s[56:57], s[56:57], s[26:27]'),
             I('s_cbranch_scc1 L_att_fb%d'%X), 'L_att_fb_ret%d:'%X, I('v_rcp_f32 v162, v%d'%L_), I('v_rcp_f32 v164, v%d'%(L_+2)), I('s_nop 0')]
        for i in range(8): AT+=[I('v_pk_mul_f32 %s, %s, %s op_sel_hi:[1,0]'%(p(O_+2*i),p(O_+2*i),p(162+2*(i//4))))]
        for i in range(8): AT+=[I('v_cvt_pk_bf16_f32 v%d, v%d, v%d'%(O_+i,O_+2*i,O_+2*i+1))]
        if X: AT+=[I('s_add_u32 s46, s46, 65536')]
        for h in range(2): AT+=[I('buffer_store_dwordx4 %s, v%d, s[52:55], s46 offen offset:%d sc0 sc1'%(vr(O_+4*h,4),vL16,1024*h))]
        if X==0:
            AT+=[I('s_setprio %d'%opt.get('pa2',0))]+bar*FBAR
        FS=SA
        F=['L_att_fb%d:'%X, I('s_waitcnt vmcnt(0)'),
           I('s_lshl_b32 s26, s33, 17'), I('s_add_u32 s27, s26, 0x%x'%(P1_OFF+32*131072))]+srd(16,4,5,'s27',131072)
        F+=[I('s_add_u32 s27, s26, 0x%x'%(P1_OFF+64*131072))]+srd(20,4,5,'s27',131072)
        F+=[I('v_bfe_u32 v12, v0, 4, 1'), I('v_lshlrev_b32 v12, 7, v12'), I('v_xor_b32 v8, v%d, v12'%vL16), I('v_add_u32 v9, 1024, v8'),
            I('s_lshl_b32 s26, s42, 10'), I('s_add_u32 s26, s26, 2048'), I('v_add_u32 v2, s26, v%d'%vV0)]
        F+=[I('v_mov_b32 v%d, 0'%(O_+i)) for i in range(16)]
        F+=[I('v_mov_b32 v%d, 0'%L_), I('v_mov_b32 v%d, 0'%(L_+2)), I('v_mov_b32 v164, 0xff800000'), I('v_mov_b32 v165, 0xff800000'), I('s_mov_b32 s59, 0'), 'L_att_fbl%d:'%X,
            I('buffer_load_dwordx4 %s, v%d, s[16:19], s59 offen'%(vr(KB,4),vL16)),
            I('buffer_load_dwordx4 %s, v%d, s[16:19], s59 offen offset:1024'%(vr(KB+4,4),vL16)),
            I('s_add_u32 m0, s41, 4096'), I('s_nop 0'), I('buffer_load_dwordx4 v8, s[20:23], s59 offen lds'),
            I('s_add_u32 m0, s41, 8192'), I('s_nop 0'), I('buffer_load_dwordx4 v9, s[20:23], s59 offen lds'),
            I('s_waitcnt vmcnt(0)')]
        F+=rdV(0,0,2,4096)+qk(FS,KB,Q_)
        for x in range(2):
            s8=FS+8*x; mo=164+x; lx=L_+2*x
            F+=[I('v_max3_f32 v13, v%d, v%d, v%d'%(s8,s8+1,mo))]+[I('v_max3_f32 v13, v%d, v%d, v13'%(s8+2*i,s8+2*i+1)) for i in range(1,4)]
            for sw in (16,32): F+=[I('v_mov_b32 v14, v13'), I('v_permlane%d_swap_b32 v13, v14'%sw), I('v_max_f32 v13, v13, v14')]
            F+=[I('v_sub_f32 v14, v%d, v13'%mo), I('v_exp_f32 v14, v14'), I('v_mov_b32 v%d, v13'%mo)]
            F+=[I('v_sub_f32 v%d, v%d, v13'%(s8+i,s8+i)) for i in range(8)]+[I('v_exp_f32 v%d, v%d'%(s8+i,s8+i)) for i in range(8)]
            F+=[I('v_mul_f32 v%d, v%d, v14'%(lx,lx))]
            for i in range(8): F+=[I('v_add_f32 v%d, v%d, v%d'%(lx,lx,s8+i)), I('v_mul_f32 v%d, v%d, v14'%(O_+8*x+i,O_+8*x+i))]
        for i in range(8): F+=[I('v_cvt_pk_bf16_f32 v%d, v%d, v%d'%(PA+i,FS+2*i,FS+2*i+1))]
        F+=[I('s_waitcnt lgkmcnt(0)')]+pv(O_,VB,PA)+[
            I('s_add_u32 s59, s59, 2048'), I('s_cmp_lg_u32 s59, 131072'), I('s_nop 7'), I('s_nop 7'), I('s_cbranch_scc1 L_att_fbl%d'%X)]
        for lx in (L_,L_+2):
            for sw in (16,32): F+=[I('v_mov_b32 v14, v%d'%lx), I('v_permlane%d_swap_b32 v%d, v14'%(sw,lx)), I('v_add_f32 v%d, v%d, v14'%(lx,lx))]
        F+=[I('s_branch L_att_fb_ret%d'%X)]
        FB+=F
    AT+=([] if TST else st(3))+b3addr+srd(48,4,5,FLAG_OFF,65536)
    AT+=[I('s_lshl_b32 s26, s43, 16'), I('s_add_u32 s26, s26, 0x%x'%O_OFF)]+srd(8,4,5,'s26',65536)+[I('s_mov_b32 s24, 0'),
         I('s_lshl_b32 s30, s34, 10'), I('s_add_u32 s30, s30, %d'%(256*128)), I('s_lshr_b32 s31, s64, 1'), I('s_lshl_b32 s31, s31, 3'), I('s_and_b32 s26, s34, %d'%(RO-1)), I('s_add_u32 s31, s31, s26'),
         I('s_lshl_b32 s31, s31, 7'), I('s_add_u32 s31, s31, %d'%(256*128)),
         I('s_and_b32 s26, s2, 7'), I('s_lshl_b32 s26, s26, 2'), I('s_add_u32 s30, s30, s26'),
         I('s_lshl_b32 s26, s42, 13'), I('s_add_u32 s26, s26, %d'%CB), I('v_add_u32 v%d, s26, v%d'%(vX,vL16)),
         I('s_lshl_b32 s26, s64, 18'), I('s_add_u32 s26, s26, 0x%x'%O_OFF)]+srd(20,4,5,'s26',262144)
    AT+=[I('s_lshr_b32 s35, s34, 1'), I('s_lshl_b32 s35, s35, 16'), I('s_and_b32 s26, s34, 1'), I('s_lshl_b32 s26, s26, 12'), I('s_add_u32 s35, s35, s26'),
         I('v_and_b32 v3, 31, v0'), I('v_lshrrev_b32 v2, 5, v0'), I('v_lshlrev_b32 v3, 7, v3'), I('v_lshl_add_u32 v3, v2, 13, v3'),
         I('v_lshlrev_b32 v14, 2, v0'), I('s_mov_b32 s58, 0')]
    askO=[I('s_mov_b64 exec, 0xff'), I('buffer_load_dword v15, v14, s[48:51], s31 offen sc1'), I('s_mov_b64 exec, -1')]
    OPF=opt.get('opf',1)
    lookO=[I('s_waitcnt vmcnt(%d)'%(4 if OPF else 0)), I('v_cmp_le_u32 vcc, 4, v15'), I('s_nop 1'), I('s_and_b32 s59, vcc_lo, 0xff'), I('s_andn2_b32 s26, s59, s58'), I('s_mov_b32 s58, s59')]
    pfO=[]
    if OPF:
        for i in range(4):
            pfO+=[I('s_bitcmp1_b32 s26, %d'%(2*i)), I('s_cselect_b32 s56, -1, 0'), I('s_bitcmp1_b32 s26, %d'%(2*i+1)), I('s_cselect_b32 s57, -1, 0'),
                I('v_cndmask_b32 v%d, v13, v3, s[56:57]'%(4+i)), I('s_add_u32 s27, s35, %d'%(16384*i)), I('buffer_load_dword v2, v%d, s[20:23], s27 offen'%(4+i))]
    AT+=[I('v_mov_b32 v13, 0x7ffff000')]
    w0=lambda lab,X: [I('s_cmp_lg_u32 s25, 0'), I('s_cbranch_scc1 %s'%lab)]+X+[lab+':']
    JQ=opt.get('jq',JP)
    for j in range(jE+1+FBAR,JK+1):
        if j==JP: AT+=[I('s_waitcnt vmcnt(0)')]
        if j==JK: AT+=w0('L_a_ck',[I('s_mov_b32 s47, 0x40000'), 'L_a_cl:']+lookO+[I('s_cmp_eq_u32 s59, 0xff'), I('s_cbranch_scc1 L_a_ck'),
                         I('s_sleep %d'%opt.get('slp',1))]+askO+pfO+[I('s_sub_u32 s47, s47, 1'), I('s_cmp_lg_u32 s47, 0'), I('s_cbranch_scc1 L_a_cl')])
        AT+=bar
        if j==JP: AT+=st(6)+pub1('L_a_pb',0,'s30',RO)
        if JQ<=j<JK: AT+=w0('L_a_q%d'%j,(lookO if j>JQ else [I('s_mov_b32 s26, 0')])+askO+pfO)
    AT+=[] if TST else st(4)
    AE=[]
    for k in range(4): AE+=flat(ldA(k))
    AE+=rd3(14,0)+[I('s_waitcnt vmcnt(24)')]
    for k in range(4):
        AE+=tile3(14+k,k,(SAT,SAT+16),k==0,15+k if k<3 else None,([I('s_waitcnt vmcnt(%d)'%(16-8*k))] if k<3 else []))
    AE+=[I('ds_write_b128 v%d, %s offset:%d'%(vX,vr(SAT+4*q,4),1024*q)) for q in range(8)]
    AT+=auto_lgkm(AE,pre=[])+st(5)+[I('s_waitcnt lgkmcnt(0)')]+bar+[I('s_branch L_k2_fin')]
    Z=G+32
    S=['L_gemm:',
       I('s_bfe_u32 s65, s2, 0x10002'), I('s_mul_i32 s65, s65, 7'), I('s_add_u32 s65, s65, s34'),
       I('s_mov_b32 s93, 0')]
    ZL=[]
    S+=[I('s_lshl_b32 s26, s65, 2'), I('s_and_b32 s27, s42, 1'), I('s_lshl_b32 s27, s27, 1'), I('s_add_u32 s26, s26, s27'),
        I('s_lshl_b32 s30, s64, 2'), I('s_lshr_b32 s27, s42, 1'), I('s_lshl_b32 s27, s27, 1'), I('s_add_u32 s30, s30, s27'),
        I('s_lshl_b32 s31, s26, 6'), I('s_add_u32 s31, s31, s30'), I('s_lshl_b32 s31, s31, 11'),
        I('s_mul_i32 s32, s30, 56'), I('s_add_u32 s32, s32, s26'), I('s_lshl_b32 s32, s32, 11')]
    ZL+=srd(36,4,5,P1_OFF+96*131072,56*131072)
    for nf in range(2):
        for q in range(4): ZL+=[I('buffer_load_dwordx4 %s, v%d, s[36:39], s31 offen offset:%d'%(vr(Z+16*nf+4*q,4),vL16,1024*q))]
        if nf==0: ZL+=[I('s_add_u32 s31, s31, 131072')]
    ZL+=srd(36,62,63,0,4096)
    ZL+=[I('v_and_b32 v12, 15, v0'), I('v_lshlrev_b32 v12, 1, v12'), I('s_lshl_b32 s26, s30, 6')]
    ZL+=[I('v_mov_b32 v%d, 0'%(vBIAS+2*t)) for t in range(4)]
    ZL+=[I('buffer_load_short_d16_hi v%d, v12, s[36:39], s26 offen offset:%d'%(vBIAS+2*t,32*t)) for t in range(4)]
    SR=[I('s_lshl_b32 s26, s64, 19')]+srd(16,60,61,'s26',128*4096)
    SR+=[I('s_lshl_b32 s26, s65, 19'), I('s_add_u32 s26, s26, 0x%x'%Z2N_OFF)]+srd(20,4,5,'s26',128*4096)
    S+=[I('v_lshrrev_b32 v12, 3, v0'), I('v_lshrrev_b32 v13, 4, v0'), I('v_and_b32 v14, 7, v0'),
        I('s_lshl_b32 s26, s42, 17'), I('v_lshlrev_b32 v12, 12, v12'), I('v_add_u32 v12, s26, v12'),
        I('v_xor_b32 v14, v14, v13'), I('v_xor_b32 v15, 4, v14'),
        I('v_lshl_add_u32 v14, v14, 4, v12'), I('v_lshl_add_u32 v15, v15, 4, v12')]
    for i in range(4): S+=[I('v_add_u32 v%d, %d, v%d'%(vOA+i, i*8*4096-i*1024, 14+(i&1)))]
    S+=[I('v_and_b32 v13, 1, v13'), I('v_lshlrev_b32 v13, 6, v13'), I('v_xor_b32 v13, v%d, v13'%vL16), I('v_add_u32 v%d, s26, v13'%vOB)]
    S+=[I('s_lshl_b32 s41, s42, 12'), I('s_mov_b32 s40, 0'), I('s_mov_b32 s44, 0'), I('s_waitcnt lgkmcnt(0)')]+st(0)
    def dmaA(slot):
        Gr=[[I('buffer_load_dwordx4 v%d, s[16:19], s40 offen offset:%d lds'%(vOA+i,1024*i))] for i in range(4)]
        Gr[-1]+=[I('s_add_u32 m0, s41, %d'%(REG[slot]+16384)), I('s_add_u32 s40, s40, 128')]
        return Gr
    def dmaB(slot):
        Gr=[[I('buffer_load_dwordx4 v%d, s[20:23], s44 offen offset:%d lds'%(vOB,1024*i))] for i in range(4)]
        Gr[-1]+=[I('s_add_u32 s44, s44, 4096')]
        return Gr
    m0A=lambda slot: [I('s_add_u32 m0, s41, %d'%REG[slot]), I('s_nop 0')]
    S+=SR+[I('s_cmp_ge_u32 s2, 224'), I('s_cbranch_scc1 L_g_nd')]
    GD=1 if FU else opt.get('gd',0)
    D01=m0A(0)+flat(dmaA(0))+flat(dmaB(0))+m0A(1)+flat(dmaA(1))+flat(dmaB(1))
    if GD==0: S+=D01
    S+=['L_g_nd:']+srd(48,4,5,FLAG_OFF,65536)+srd(52,4,5,H_OFF,H_SIZE)
    S+=[I('v_and_b32 v12, 15, v0'), I('v_lshrrev_b32 v13, 4, v0'), I('v_bfe_u32 v14, v0, 1, 3'),
        I('s_lshr_b32 s26, s42, 1'), I('s_lshl_b32 s26, s26, 13'),
        I('v_lshlrev_b32 v12, 7, v12'), I('v_add_u32 v12, s26, v12'),
        I('v_xor_b32 v15, v13, v14'), I('v_lshl_add_u32 v%d, v15, 4, v12'%vA), I('v_xor_b32 v%d, 64, v%d'%(vA+1,vA))]
    S+=[I('v_add_u32 v%d, 65536, v%d'%(vA+2+j,vA+j)) for j in range(2)]
    S+=[I('v_bfe_u32 v12, v0, 4, 1'), I('v_and_b32 v13, 1, v0'), I('v_bfe_u32 v14, v0, 1, 1'), I('v_bfe_u32 v15, v0, 2, 2'),
        I('v_lshl_add_u32 v15, v12, 3, v15'), I('v_lshl_add_u32 v15, v14, 2, v15'),
        I('v_lshlrev_b32 v15, 4, v15'), I('v_lshl_add_u32 v15, v13, 3, v15'),
        I('v_lshl_add_u32 v15, v14, 8, v15'), I('v_lshrrev_b32 v12, 5, v0'), I('v_lshl_add_u32 v15, v12, 10, v15'),
        I('s_and_b32 s26, s42, 1'), I('s_lshl_b32 s26, s26, 13'), I('s_add_u32 s26, s26, 16384'),
        I('v_add_u32 v%d, s26, v15'%vB), I('v_xor_b32 v%d, 64, v%d'%(vB+1,vB))]
    S+=[I('v_add_u32 v%d, 65536, v%d'%(vB+2+u,vB+u)) for u in range(2)]
    S+=[
        I('s_bfe_u32 s26, s2, 0x10002'), I('s_lshl_b32 s26, s26, 3'), I('s_add_u32 s59, s26, s34'), I('s_lshl_b32 s59, s59, 7'),
        I('v_bfe_u32 v10, v0, 3, 1'), I('v_bfe_u32 v12, v0, 1, 2'), I('v_lshl_add_u32 v10, v10, 4, v12'), I('s_lshl_b32 s26, s42, 5'), I('v_add_u32 v10, s26, v10'), I('v_lshlrev_b32 v10, 11, v10'),
        I('v_lshrrev_b32 v13, 4, v0'), I('v_lshl_add_u32 v10, v13, 5, v10'), I('v_and_b32 v12, 1, v0'), I('v_lshl_add_u32 v%d, v12, 4, v10'%vW)]
    for i in range(1,4): S+=[I('v_add_u32 v%d, %d, v%d'%(vW+i,i*(4*2048-1024),vW))]
    S+=[I('v_and_b32 v10, 15, v0'), I('v_lshlrev_b32 v10, 11, v10'), I('v_lshrrev_b32 v12, 5, v0'), I('v_lshl_add_u32 v10, v12, 4, v10'),
        I('v_bfe_u32 v12, v0, 4, 1'), I('v_lshl_add_u32 v%d, v12, 5, v10'%vX)]+b3addr
    wsrd=[I('s_sub_u32 s26, 0x380000, s59')]+srd(12,68,69,'s59','s26')
    S+=wsrd+[I('s_setprio %d'%opt.get('pg',0))]
    if FU: S+=[I('s_mul_i32 s26, s65, 11'), I('s_lshr_b32 s26, s26, 5'), I('s_add_u32 s26, s26, s65'), I('s_cmp_eq_u32 s65, 13'), I('s_addc_u32 s26, s26, 12'),
               I('v_add_u32 v12, s26, v0'), I('s_lshr_b32 s26, s64, 1'), I('s_and_b32 s26, s26, %d'%(RP-1)), I('v_lshl_add_u32 v12, v12, 3, s26'), I('v_lshlrev_b32 v12, 7, v12'), I('s_waitcnt vmcnt(0)')]+bar+bar
    S+=bar
    C=[]
    W=[I('s_cmp_ge_u32 s2, 224'), I('s_cbranch_scc1 L_g_idle')]
    CZ=opt.get('cz',1) if FU else 0
    if FU:
        w7=lambda lab,X: [I('s_cmp_lg_u32 s25, 7'), I('s_cbranch_scc1 %s'%lab)]+X+[lab+':']
        W+=w7('L_t_z0',[I('s_mov_b64 exec, 3'), I('buffer_load_dword v15, v12, s[48:51], 0 offen sc1'), I('s_mov_b64 exec, -1')])+gbr*(CZ-1)+w7('L_t_z1',wait_lines('L_t_z',2,8,False))+gbr
    if GD: W+=D01
    G2=opt.get('g2',1)
    W+=gbr*G2+m0A(2)+flat(dmaA(2))+flat(dmaB(2))+m0A(3)+flat(dmaA(3))
    W+=gbr*(NA-1-G2-CZ)+[I('s_waitcnt vmcnt(20)')]+st(1)+gbr
    UP=[]
    for q in range(8): UP+=unpack8(Z+4*q,G+8*q)
    ZT=opt.get('zt',1)
    def reads(slot,j):
        so=REG[slot]&0xffff; hi=REG[slot]>>16; f=FR+32*j
        Ra=[I('ds_read_b128 %s, v%d offset:%d'%(vr(f+4*t,4),vA+2*hi+j,so+t*2048)) for t in range(4)]
        Rb=[I('ds_read_b64_tr_b16 %s, v%d offset:%d'%(vr(f+16+4*n+2*u,2),vB+2*hi+u,so+(n>>1)*4096+j*2048+(n&1)*512)) for n in range(4) for u in range(2)]
        return Rb[:2]+Ra+Rb[2:]
    gbar=opt.get('g2_bar',15)
    rp1=opt.get('g2_rp1',list(range(12))); rp2=opt.get('g2_rp2',list(range(gbar+1,gbar+13)))
    dgA=opt.get('g2_dgA',[17,21,25,29]); dgB=opt.get('g2_dgB',[1,5,9,13])
    def tile(kt):
        slot=kt%4; c0=(kt==0); nxt=kt<31
        spine=[m16(ACC+32*(n>>1)+8*t+4*(n&1), FR+32*j+16+4*n, FR+32*j+4*t, '0' if (c0 and j==0) else None) for j in range(2) for n in range(4) for t in range(4)]
        fill={}
        def add(g,x): fill.setdefault(g,[]).extend(x)
        for pp,r in zip(rp1,reads(slot,1)): add(pp,[r])
        if kt+3<=31:
            for pp,g in zip(dgB,dmaB((kt+3)%4)): add(pp,g)
        else:
            Gw=dmaW(2*(kt-29)+1); add(-1,Gw[0])
            for pp,g in zip(dgB,Gw[1:]): add(pp,g)
        w={31:63,ZT+1:28,ZT+2:28}.get(kt,16)
        add(gbar,[I('s_waitcnt vmcnt(%d) lgkmcnt(0)'%w)]+gbr)
        if kt==ZT:
            zl=[[x] for x in ZL]
            for k,g in enumerate(zl): add(gbar+1+(k*16)//len(zl),g)
        if kt in (28,29):
            u=UP[32*(kt-28):32*(kt-27)]
            for k in range(32): add(k,u[k:k+1])
        if nxt:
            for pp,r in zip(rp2,reads((slot+1)%4,0)): add(pp,[r])
        if kt+4<=31:
            add(gbar,[I('s_add_u32 m0, s41, %d'%REG[slot])])
            for pp,g in zip(dgA,dmaA(slot)): add(pp,g)
        else:
            Gw=dmaW(2*(kt-28)); add(gbar,Gw[0])
            for pp,g in zip(dgA,Gw[1:]): add(pp,g)
        return interleave(spine,fill)
    W+=reads(0,0)+[I('s_mov_b32 s47, 6'), I('s_waitcnt lgkmcnt(0)')]+st(4)
    head=[]
    for t in range(4): head+=tile(t)
    head=auto_lgkm(head,pre=[])
    gb=[]
    for t in range(4,8): gb+=tile(t)
    gb=auto_lgkm(gb)
    if opt.get('hk_nda'): gb=[x for x in gb if not ('s[16:19]' in x and ' lds' in x)]
    if opt.get('hk_ndb'): gb=[x for x in gb if not ('s[20:23]' in x and ' lds' in x)]
    if opt.get('hk_nrd'): gb=[x for x in gb if 'ds_read' not in x]
    fix_hazards(gb+gb,auto=False,tag='g2loop')
    pen=[]
    for t in range(28,32): pen+=tile(t)
    pen=auto_lgkm(pen,pre=gb)
    gloop=['L_g2_loop:']+gb+[I('s_sub_u32 s47, s47, 1'), I('s_cmp_lg_u32 s47, 0'), I('s_cbranch_scc1 L_g2_loop')]
    Ep=[]
    for nf in range(2):
        for m in range(2):
            a=ACC+16*(2*nf+m); g=G+16*(2*nf+m)
            for i in range(8): Ep+=[I('v_pk_add_f32 %s, %s, %s op_sel_hi:[1,0]'%(p(a+2*i),p(a+2*i),p(vBIAS+4*m+2*(i//4))))]
            for i in range(8): Ep+=[I('v_pk_mul_f32 %s, %s, %s'%(p(a+2*i),p(a+2*i),p(g+2*i)))]
            for i in range(8): Ep+=[I('v_cvt_pk_bf16_f32 v%d, v%d, v%d'%(a+i,a+2*i,a+2*i+1))]
            Ep+=[I('s_add_u32 s26, s32, %d'%(m*56*2048+nf*2048))]
            for h in range(2): Ep+=[I('buffer_store_dwordx4 %s, v%d, s[52:55], s26 offen offset:%d sc0 sc1'%(vr(a+4*h,4),vL16,1024*h))]
        if nf==0: Ep+=gbr
    def bars(n,tag):
        if n<=2: return gbr*n
        return [I('s_mov_b32 s47, %d'%n), 'L_%s:'%tag]+gbr+[I('s_sub_u32 s47, s47, 1'), I('s_cmp_lg_u32 s47, 0'), I('s_cbranch_scc1 L_%s'%tag)]
    Ep+=flat(dmaW(7))+st(6)+gbr*(CW-1)+[I('s_waitcnt vmcnt(4)')]+gbr
    Ep+=[I('s_lshl_b32 s30, s64, 9'), I('s_add_u32 s30, s30, %d'%(320*128))]+pub1('L_c_pb',7,'s30',RH)
    D=['L_gC:', I('s_lshl_b32 s30, s64, 2'), I('s_and_b32 s26, s34, %d'%(RH-1)), I('s_add_u32 s30, s30, s26'), I('s_lshl_b32 s30, s30, 7'), I('s_add_u32 s30, s30, %d'%(320*128))]+srd(52,72,73,0,0x400000)
    D+=[I('s_lshl_b32 s32, s43, 16'), I('s_add_u32 s32, s32, s59'), I('s_add_u32 s33, s32, 32768')]
    D+=[I('buffer_load_dwordx4 %s, v%d, s[52:55], s%d offen offset:%d'%(vr(XR+4*q,4),vX,32+q//2,64*(q&1))) for q in range(4)]
    D+=[I('s_mul_i32 s26, s43, %d'%(56*2048)), I('s_add_u32 s26, s26, 0x%x'%H_OFF)]+srd(8,4,5,'s26',56*2048)+[I('s_mov_b32 s24, 0')]
    D+=[I('s_lshl_b32 s26, s43, 16'), I('s_add_u32 s26, s26, 0x%x'%O_OFF)]+srd(16,4,5,'s26',65536)
    D+=[I('s_sub_u32 s26, 0x200000, s59')]+srd(20,66,67,'s59','s26')+srd(52,70,71,0,0x400000)
    if CQ==CW: D+=ask1('L_c_ak',7,'s30')
    for k in range(CW+1,CK+1):
        if k==CK: D+=chk1('L_c_ck',7,'s30',14)
        D+=gbr
        if k==CQ: D+=ask1('L_c_ak',7,'s30')
    if opt.get('hpf',0):
        D+=[I('s_mul_i32 s26, s64, %d'%(4*56*2048)), I('s_add_u32 s26, s26, 0x%x'%H_OFF)]+srd(36,4,5,'s26',4*56*2048)
        D+=[I('s_lshl_b32 s26, s34, 2'), I('s_add_u32 s26, s26, s42'), I('s_mul_i32 s26, s26, %d'%(112*128)), I('v_lshlrev_b32 v12, 7, v0'),
            I('buffer_load_dword v13, v12, s[36:39], s26 offen'), I('s_add_u32 s26, s26, %d'%(48*128)), I('buffer_load_dword v13, v12, s[36:39], s26 offen')]
    nb=NC-2-CK
    for k in range(3):
        D+=flat(ldA(k))
        if k<2 and nb>0: D+=gbr; nb-=1
    D+=gbr*nb+[I('s_waitcnt vmcnt(16)')]+gbr+st(5)+rd3(0,0)
    DT=[]
    swW=[I('s_mov_b64 s[12:13], s[20:21]'), I('s_mov_b32 s14, s22')]
    swA=[I('s_mov_b64 s[8:9], s[16:17]'), I('s_mov_b32 s10, s18'), I('s_mov_b32 s24, %d'%(4*8192))]
    def earlyA(st_): return {3*k:g for k,g in enumerate(ldA(st_))}
    for j in range(14):
        w={0:16,1:16,2:20,11:16,12:8,13:63}.get(j,24)
        mid=[I('s_waitcnt vmcnt(%d)'%w)]+gbr
        late=[]
        if j>=1:
            Gw=dmaW(j+7); mid=mid+(swW if j==7 else [])+Gw[0]; late=Gw[1:]
        DT+=tile3(j,j%4,(Y,Y+16),j==0,j+1 if j<13 else None,mid,earlyA((j+3)%4) if j<=10 else {},late)
    DT+=[I('s_waitcnt lgkmcnt(0)')]+gbr+flat(dmaW(21))+swA
    T3=FR3+16
    DT+=[I('s_mov_b32 s28, 0x%x'%f2u(-math.log2(math.e))), I('s_mov_b32 s29, s28')]
    for nf in range(2):
        y=Y+16*nf
        for i in range(8): DT+=[I('v_pk_mul_f32 %s, %s, s[28:29]'%(p(T3+2*i),p(y+2*i)))]
        for i in range(16): DT+=[I('v_exp_f32 v%d, v%d'%(T3+i,T3+i))]
        for i in range(8): DT+=[I('v_pk_add_f32 %s, %s, 1.0 op_sel_hi:[1,0]'%(p(T3+2*i),p(T3+2*i)))]
        for i in range(16): DT+=[I('v_rcp_f32 v%d, v%d'%(T3+i,T3+i))]
        for i in range(8): DT+=[I('v_pk_mul_f32 %s, %s, %s'%(p(y+2*i),p(y+2*i),p(T3+2*i)))]
        for i in range(8): DT+=[I('v_cvt_pk_bf16_f32 v%d, v%d, v%d'%(Y+8*nf+i,y+2*i,y+2*i+1))]
    for q in range(4):
        DT+=[I('v_permlane16_swap_b32 v%d, v%d'%(XR+4*q,XR+4*q+2)), I('v_permlane16_swap_b32 v%d, v%d'%(XR+4*q+1,XR+4*q+3))]
    DT+=[I('s_lshl_b32 s26, s42, 13'), I('s_add_u32 s26, s26, %d'%CB), I('v_add_u32 v13, s26, v%d'%vL16)]
    DT+=[I('s_waitcnt vmcnt(0)')]+gbr*(JK-14)+st(3)
    for k in range(4): DT+=flat(ldA(k))
    DT+=rd3(18,0)+[I('s_waitcnt vmcnt(24)')]
    for k in range(4):
        DT+=tile3(18+k,k,(S0,S1),k==0,19+k if k<3 else None,([I('s_waitcnt vmcnt(%d)'%(16-8*k))] if k<3 else []))
    DT+=gbr+[I('ds_read_b128 %s, v13 offset:%d'%(vr(AR+4*q,4),1024*q)) for q in range(8)]
    for nf in range(2):
        y=(S0,S1)[nf]; T4=AR+32+32*nf
        DT+=unpack8(Y+8*nf,T4)+unpack8(Y+8*nf+4,T4+8)+unpack8(XR+8*nf,T4+16)+unpack8(XR+8*nf+4,T4+24)
    for nf in range(2):
        y=(S0,S1)[nf]; T4=AR+32+32*nf
        for i in range(8): DT+=[I('v_pk_add_f32 %s, %s, %s'%(p(y+2*i),p(y+2*i),p(AR+16*nf+2*i)))]
        for i in range(8): DT+=[I('v_pk_fma_f32 %s, %s, %s, %s'%(p(y+2*i),p(y+2*i),p(T4+2*i),p(T4+16+2*i)))]
        for i in range(8): DT+=[I('v_cvt_pk_bf16_f32 v%d, v%d, v%d'%(y+i,y+2*i,y+2*i+1))]
        for h in range(2):
            DT+=[I('v_permlane16_swap_b32 v%d, v%d'%(y+4*h,y+4*h+2)), I('v_permlane16_swap_b32 v%d, v%d'%(y+4*h+1,y+4*h+3))]
        for h in range(2):
            DT+=[I('buffer_store_dwordx4 %s, v%d, s[52:55], s%d offen offset:%d'%(vr(y+4*h,4),vX,32+nf,64*h))]
    k0=len(D)-8
    D=D[:k0]+auto_lgkm(D[k0:]+DT,pre=[])
    ID=['L_g_idle:', I('v_lshlrev_b32 v12, 7, v0'), I('s_sub_u32 s26, s2, 224'), I('s_lshl_b32 s26, s26, 2'), I('s_add_u32 s26, s26, s42'), I('s_lshl_b32 s26, s26, 13')]
    ID+=srd(8,66,67,0,0x200000)+srd(20,68,69,0,0x380000)
    for k in range(2): ID+=[I('s_add_u32 s27, s26, %d'%(k*0x100000)), I('buffer_load_dword v13, v12, s[8:11], s27 offen')]
    for k in range(4): ID+=[I('s_add_u32 s27, s26, %d'%(k*0x100000)), I('buffer_load_dword v13, v12, s[20:23], s27 offen')]
    ID+=[I('s_waitcnt vmcnt(0)')]
    for t in range(8): ID+=gbr+flat(dmaW(t))
    ID+=bars(NA+32+CW+1-8,'g_idl')+[I('s_branch L_gC')]
    fin=['L_k2_fin:']
    if STAMP:
        fin+=[I('s_waitcnt vmcnt(0)')]+st(7)+[I('s_cmp_lg_u32 s2, %d'%opt.get('stamp_wg',0)), I('s_cbranch_scc1 L_k2_nost'), I('s_cmp_lg_u32 s42, %d'%opt.get('stamp_w',3)), I('s_cbranch_scc1 L_k2_nost'),
              I('s_load_dwordx2 s[6:7], s[0:1], %d'%KA_DBG), I('s_waitcnt lgkmcnt(0)')]+srd(48,6,7,0,256)+[
              I('s_lshr_b32 s26, s25, 2'), I('s_lshl_b32 s26, s26, 5'), I('v_mov_b32 v1, s26')]
        for k in range(1,8 if not TRC else 0): fin+=[I('s_sub_u32 s26, s%d, s76'%(76+2*k)), I('v_mov_b32 v2, s26'), I('buffer_store_dword v2, v1, s[48:51], 0 offen offset:%d'%(4*k))]
        if TRC: fin+=[I('s_cmp_lt_u32 s25, 4'), I('s_cbranch_scc1 L_k2_nost'), I('s_waitcnt vmcnt(0)'), I('v_lshlrev_b32 v1, 2, v0'), I('buffer_store_dword v9, v1, s[48:51], 0 offen')]
        fin+=['L_k2_nost:']
    if opt.get('wgst'):
        fin+=[I('s_cmp_lg_u32 s25, %d'%opt.get('wgw',0)), I('s_cbranch_scc1 L_k2_nowg')]+srd(48,4,5,ST_OFF+2*65536,65536)+[I('s_lshl_b32 s26, s2, 4'), I('v_mov_b32 v1, s26')]
        fin+=[I('v_mov_b32 v%d, s%d'%(4+i,76+2*k)) for i,k in enumerate(opt['wgst'])]+[I('s_nop 1'), I('buffer_store_dwordx4 v[4:7], v1, s[48:51], 0 offen'), 'L_k2_nowg:']
    if opt.get('rt'): fin+=[I('s_cmp_lg_u32 s25, 4'), I('s_cbranch_scc1 L_k2_end')]
    fin+=rt_end(opt,opt.get('k2_idx',1),'k2',sreg=96)+['L_k2_end:', I('s_endpgm')]
    code=H+A+st(1)+aloop+st(2)+AT+S+C+W+head+gloop+pen+Ep+D+fin+ID+FB
    code,_=fix_hazards(code)
    tr,_=fix_hazards(H+A+body+body+AT); check_waits(tr,'k2a')
    tr,_=fix_hazards(FB); check_waits(tr,'k2fb')
    tr,_=fix_hazards(H+S+C+W+head+gb+gb+pen+Ep+D); check_waits(tr,'k2g')
    return L+code, kernel_desc(name,256,256,102), '; @launch %sgrid=(256,1,1) block=(512,1,1) lds=163840'%('' if name.startswith('recurrent') else 'kernel=%s '%name)
```

```python
import sys
from build import *
from k1d import gen_k1d
from k2g import gen_k2g
opt=json.loads(sys.argv[2]) if len(sys.argv)>2 else {}
opt.setdefault('k2_idx',0)
name=opt.get('name','recurrent_scan__softmax_full_mha__mixer_gmlp__prompt_kernel')
o1=dict(opt); o1['fused']=1; o1['stamp']=0
o2=dict(opt); o2['fused']=gen_k1d(name=name,opt=o1)
assemble([gen_k2g(name=name,opt=o2)], sys.argv[1])
```

```python
from common import *
def m16(d,a,b,c=None): return I('v_mfma_f32_16x16x32_bf16 %s, %s, %s, %s'%(vr(d,4),vr(a,4),vr(b,4),vr(d,4) if c is None else c))
Q=16; KB=32; VB=48; SA=64; SB=80; PA=96; PB=104; OA=112; OB=128; LA=144; LB=148; ONES=152; vIDX=156
vK,vV0,vV1,vD=4,5,6,7
vL16=11
KV=131072
FR=32; G=96; ACC=160
vOA=224; vOB=228; vA=230; vB=238; vBIAS=242
REG=[0,32768,65536,98304]
AR=32; FR3=160; Y=192; XR=224; S0=128; S1=144
vW=16; vA3=20; vB3=22; vX=28
WSL=lambda t: (t%8)*16384
CB=KV
def gen_k2h(name='mid_kernel', opt={}):
    FU=opt.get('fused'); TST=opt.get('tst')
    RP=opt.get('rp',8); RO=opt.get('ro',8); RH=opt.get('rh',4)
    L=FU if FU else kernel_header(name)
    STAMP=opt.get('stamp')
    def st(k): return [I('%s s[%d:%d]'%('s_memrealtime' if opt.get('real') else 's_memtime',76+2*k,77+2*k)), I('s_waitcnt lgkmcnt(0)')] if STAMP else []
    bar=[I('s_barrier')]
    TRC=opt.get('trace')
    gbr=bar+([I('%s s[94:95]'%('s_memrealtime' if opt.get('real') else 's_memtime')), I('s_mov_b32 s92, m0'), I('s_mov_b32 m0, s93'), I('s_waitcnt lgkmcnt(0)'), I('s_sub_u32 s94, s94, s76'),
              I('v_writelane_b32 v9, s94, m0'), I('s_mov_b32 m0, s92'), I('s_add_u32 s93, s93, 1')] if TRC else [])
    NA=opt.get('na',6)
    H=[I('s_mov_b32 s74, s83')] if FU else [I('s_cmp_ge_u32 s2, 256'), I('s_cbranch_scc1 L_k2_end')]+rt_begin(opt,sreg=96)
    H+=[I('s_load_dwordx2 s[4:5], s[0:1], %d'%KA_WS),
        I('s_load_dwordx4 s[60:63], s[0:1], %d'%KA_WSP),
        I('s_load_dwordx2 s[66:67], s[0:1], %d'%KA_WO), I('s_load_dwordx4 s[68:71], s[0:1], %d'%KA_WOUT),
        I('s_load_dwordx2 s[72:73], s[0:1], %d'%KA_X),
        ]+([] if FU else [I('v_lshrrev_b32 v1, 6, v0'), I('v_and_b32 v0, 63, v0'), I('s_nop 0'), I('v_readfirstlane_b32 s25, v1')])+[
        I('s_bfe_u32 s27, s2, 0x20003'), I('s_lshr_b32 s34, s2, 5'),
        I('s_and_b32 s42, s25, 3'), I('v_lshlrev_b32 v%d, 4, v0'%vL16),
        I('s_and_b32 s64, s2, 3'), I('s_lshl_b32 s64, s64, 2'), I('s_add_u32 s64, s64, s27'),
        I('s_cmp_ge_u32 s25, 4'), I('s_cbranch_scc1 L_gemm')]
    NC=opt.get('nc',11); CW=opt.get('cw',3); CQ=opt.get('cq',5); CK=opt.get('ck',8)
    NX=opt.get('nx',1); DE=opt.get('de',3)
    NBAR=NA+32+NC+15+NX
    assert NBAR>=60
    b3addr=[I('v_lshrrev_b32 v13, 5, v0'), I('v_and_b32 v12, 31, v0'), I('v_lshlrev_b32 v12, 3, v12'), I('v_lshl_add_u32 v%d, v13, 10, v12'%vB3),
        I('v_add_u32 v%d, 65536, v%d'%(vB3+1,vB3))]
    b3addr+=[I('v_mov_b32 v%d, v%d'%(vA3,vL16)), I('v_add_u32 v%d, 4096, v%d'%(vA3+1,vL16)),
        I('s_lshl_b32 s43, s64, 2'), I('s_add_u32 s43, s43, s42')]
    def ldA(st_):
        Gr=[[I('buffer_load_dwordx4 %s, v%d, s[8:11], s24 offen offset:%d'%(vr(AR+32*st_+4*i,4),vA3+i//4,(i%4)*1024))] for i in range(8)]
        Gr[-1]+=[I('s_add_u32 s24, s24, 8192')]
        return Gr
    def dmaW(t):
        Gr=[[I('buffer_load_dwordx4 v%d, s[12:15], s58 offen offset:%d lds'%(vW+i,i*1024))] for i in range(4)]
        off=I('s_mov_b32 s58, %d'%((t-14)*128*2048)) if t>=14 else I('s_add_u32 s58, s%d, %d'%(56 if t<7 else 57,t*128*2048))
        return [[I('s_add_u32 m0, s41, %d'%WSL(t)), off]]+Gr
    def rd3(t,j):
        f=FR3+16*(j&1)
        if isinstance(t,tuple): return [I('ds_read_b64_tr_b16 %s, v%d offset:%d'%(vr(f+4*n+2*u,2),t[0],j*4096+u*2048+n*256)) for n in range(4) for u in range(2)]
        a=WSL(t)
        return [I('ds_read_b64_tr_b16 %s, v%d offset:%d'%(vr(f+4*n+2*u,2),vB3+(a>>16),(a&0xffff)+j*4096+u*2048+n*256)) for n in range(4) for u in range(2)]
    def tile3(t, aset, acc, c0, nxt, mid, early={}, late=[]):
        spine=[m16(acc[h]+4*n,FR3+16*(j&1)+4*n,AR+32*aset+8*j+4*h,'0' if (c0 and j==0) else None) for j in range(4) for n in range(4) for h in range(2)]
        fill={}
        def add(g,x): fill.setdefault(g,[]).extend(x)
        add(23,mid)
        for j in range(4):
            R = rd3(t,j+1) if j<3 else (rd3(nxt,0) if nxt is not None else [])
            for k,r in enumerate(R): add(8*j+k,[r])
        for g,x in early.items(): add(g,x)
        for k,g in enumerate(late): add(24+(k*8)//len(late),g)
        return interleave(spine,fill)
    flat=lambda Gr:[x for g in Gr for x in g]
    def pub1(lab,wave,off,n):
        return [I('s_cmp_lg_u32 s25, %d'%wave), I('s_cbranch_scc1 %s'%lab), I('s_mov_b64 exec, %d'%((1<<n)-1)), I('v_mov_b32 v12, 1'), I('v_lshlrev_b32 v15, 7, v0'),
                I('buffer_atomic_add v12, v15, s[48:51], %s offen sc1'%off), I('s_mov_b64 exec, -1'), lab+':']
    def ask1(lab,wave,off):
        return [I('s_cmp_lg_u32 s25, %d'%wave), I('s_cbranch_scc1 %s'%lab), I('s_mov_b64 exec, 1'), I('v_mov_b32 v12, 0'),
                I('buffer_load_dword v15, v12, s[48:51], %s offen sc1'%off), I('s_mov_b64 exec, -1'), lab+':']
    def chk1(lab,wave,off,n,landed=False):
        return [I('s_cmp_lg_u32 s25, %d'%wave), I('s_cbranch_scc1 %s'%lab), I('s_mov_b64 exec, 1'), I('s_mov_b32 s27, 0x40000')]+([I('s_branch %s_k'%lab)] if landed else [])+[
                lab+'_l:', I('s_waitcnt vmcnt(0)'), lab+'_k:', I('v_readfirstlane_b32 s26, v15'), I('s_sub_u32 s27, s27, 1'), I('s_cmp_ge_u32 s26, %d'%n), I('s_cbranch_scc1 %s_g'%lab),
                I('s_sleep %d'%opt.get('slp',1)), I('buffer_load_dword v15, v12, s[48:51], %s offen sc1'%off), I('s_cmp_lg_u32 s27, 0'), I('s_cbranch_scc1 %s_l'%lab),
                lab+'_g:', I('s_mov_b64 exec, -1'), lab+':']
    A=[I('s_and_b32 s26, s2, 7'), I('s_lshl_b32 s33, s26, 2'), I('s_add_u32 s33, s33, s27'),
       I('s_lshl_b32 s30, s34, 14'), I('s_lshl_b32 s27, s42, 12'), I('s_add_u32 s30, s30, s27'),
       I('s_and_b32 s26, s42, 1'), I('s_lshl_b32 s40, s26, 10'), I('s_lshl_b32 s41, s42, 10'), I('s_add_u32 s41, s41, %d'%KV),
       I('v_bfe_u32 v12, v0, 4, 1'), I('v_lshlrev_b32 v12, 7, v12'),
       I('s_cmp_ge_u32 s42, 2'), I('s_cselect_b32 s26, -1, 0'), I('v_and_b32 v12, s26, v12'), I('v_xor_b32 v%d, v%d, v12'%(vD,vL16)),
       I('s_lshl_b32 s26, s33, 17'), I('s_add_u32 s27, s26, 0x%x'%P1_OFF),
       I('s_lshr_b32 s35, s42, 1'), I('s_add_u32 s35, s35, 1'), I('s_lshl_b32 s35, s35, 22'), I('s_add_u32 s35, s35, s27'),
       I('s_mov_b32 m0, s41'), I('s_waitcnt lgkmcnt(0)')]+st(0)
    A+=srd(36,4,5,'s27',131072)+srd(16,4,5,'s35',131072)
    def kvd(sl): return [I('s_add_u32 m0, s41, %d'%(sl*4096)), I('buffer_load_dwordx4 v%d, s[16:19], s40 offen lds'%vD), I('s_add_u32 s40, s40, 2048')]
    AL=kvd(0)[1:]
    for i in range(4): AL+=[I('buffer_load_dwordx4 %s, v%d, s[36:39], s30 offen offset:%d'%(vr(Q+4*i,4),vL16,1024*i))]
    KF=opt.get('kvfirst',2)
    for sl in range(1,KF): AL+=kvd(sl)
    if not FU: A+=AL
    A+=[I('s_setprio %d'%opt.get('pa',1))]+srd(52,4,5,O_OFF,O_SIZE)
    A+=[I('s_lshl_b32 s26, s34, 3'), I('s_lshl_b32 s27, s42, 1'), I('s_add_u32 s26, s26, s27'),
        I('s_lshl_b32 s26, s26, 5'), I('s_add_u32 s26, s26, s33'), I('s_lshl_b32 s46, s26, 11'),
        I('v_add_u32 v%d, %d, v%d'%(vK,KV,vL16)),
        I('v_bfe_u32 v14, v0, 1, 1'), I('v_and_b32 v13, 1, v0'), I('v_lshrrev_b32 v15, 2, v0'), I('v_lshlrev_b32 v12, 3, v14'), I('v_xor_b32 v15, v15, v12'),
        I('v_lshlrev_b32 v15, 4, v15'), I('v_lshl_add_u32 v15, v13, 3, v15'), I('v_lshl_add_u32 v15, v14, 8, v15'),
        I('v_add_u32 v%d, %d, v15'%(vV0,KV+2048)),
        I('v_lshrrev_b32 v12, 5, v0'), I('v_cmp_eq_u32 vcc, v14, v12'),
        I('v_mul_u32_u24 v13, 0xaaaa, v13'), I('v_add_u32 v%d, 0x4444, v13'%vIDX),
        I('v_mov_b32 v13, 0x3f803f80'), I('v_cndmask_b32 v%d, 0, v13, vcc'%ONES)]
    for i in range(1,4): A+=[I('v_mov_b32 v%d, v%d'%(ONES+i,ONES))]
    for r in list(range(OA,OA+40))+list(range(PB,PB+8))+list(range(VB+8,VB+16)): A+=[I('v_mov_b32 v%d, 0'%r)]
    def wait_lines(lab,nl,tgt,first=True):
        msk=(1<<nl)-1
        ld=[I('buffer_load_dword v15, v12, s[48:51], 0 offen sc1')]
        return [I('s_mov_b64 exec, %d'%msk), I('s_mov_b32 s47, 0x40000')]+(ld if first else [])+[lab+'_l:', I('s_waitcnt vmcnt(0)'), I('v_cmp_le_u32 vcc, %d, v15'%tgt), I('s_sub_u32 s47, s47, 1'),
                I('s_nop 0'), I('s_cmp_eq_u32 vcc_lo, %d'%msk), I('s_cbranch_scc1 %s_g'%lab), I('s_sleep %d'%opt.get('slp1',1))]+ld+[I('s_cmp_lg_u32 s47, 0'), I('s_cbranch_scc1 %s_l'%lab),
                lab+'_g:', I('s_mov_b64 exec, -1')]
    if FU:
        A+=srd(48,4,5,FLAG_OFF,65536)+[I('s_bfe_u32 s26, s2, 0x20001'), I('s_lshl_b32 s26, s26, 3'), I('s_and_b32 s27, s34, %d'%(RP-1)), I('s_add_u32 s26, s26, s27'), I('s_lshl_b32 s26, s26, 7'),
            I('v_lshlrev_b32 v12, 12, v0'), I('v_add_u32 v12, s26, v12'), I('v_mov_b32 v13, 1'), I('v_lshlrev_b32 v14, 7, v0'), I('s_waitcnt vmcnt(0)')]+(st(3) if TST else [])+bar
        A+=[I('s_cmp_lg_u32 s25, 0'), I('s_cbranch_scc1 L_t_a'), I('s_mov_b64 exec, %d'%((1<<RP)-1)), I('buffer_atomic_add v13, v14, s[48:51], s74 offen sc1')]+wait_lines('L_t_w',3,8)+['L_t_a:']+bar+(st(4) if TST else [])+AL
    def rdK(i,base): return [I('ds_read_b128 %s, v%d offset:%d'%(vr(KB+8*(i&1)+4*f,4),vK,base+1024*f)) for f in range(2)]
    def rdV(i,base,v0=vV0,hs=1024): return [I('ds_read_b64_tr_b16 %s, v%d offset:%d'%(vr(VB+8*(i&1)+4*f+2*u,2),v0,base+512*f+hs*u)) for f in range(2) for u in range(2)]
    qk=lambda S_,k,q: [m16(S_+8*x+4*f,k+4*f,q+4*x,'0') for x in range(2) for f in range(2)]
    pv=lambda O_,v,P_: [m16(O_+8*x+4*f,v+4*f,P_+4*x) for x in range(2) for f in range(2)]
    smf=lambda L_,P_: [I('v_smfmac_f32_16x16x64_bf16 %s, %s, %s, v%d'%(vr(L_,4),vr(ONES,4),vr(P_,8),vIDX))]
    A+=[I('s_mov_b32 s45, 7'), I('s_waitcnt vmcnt(%d)'%(KF-1))]+bar+rdK(0,0)+flat([kvd(sl) for sl in range(KF,7)])+[I('s_waitcnt lgkmcnt(0)')]+qk(SA,KB,Q)+[I('s_nop 7')]
    def phase(S_,P_, mf, extra):
        ex=[I('v_exp_f32 v%d, v%d'%(S_+i,S_+i)) for i in range(16)]
        cv=[I('v_cvt_pk_bf16_f32 v%d, v%d, v%d'%(P_+i,S_+2*i,S_+2*i+1)) for i in range(8)]
        pat=opt.get('att_pat',[(2,0),(2,1),(2,1),(2,1),(2,1),(2,1),(2,1),(2,1),(0,1)])
        mf=[mf[k] for k in opt.get('att_ord',range(9))]
        out=[]; e=0;c=0
        for k,(ne,nc) in enumerate(pat):
            out.append(mf[k]); out+=extra.get(k,[])
            out+=ex[e:e+ne]; e+=ne
            out+=cv[c:c+nc]; c+=nc
        assert e==16 and c==8
        return out
    AB=opt.get('att_bar',4); AD=opt.get('att_dma',2)
    def blocks(last):
        body=[]
        for i in range(8):
            kb=KB+8*(i&1); kn=KB+8*((i+1)&1); vb=VB+8*(i&1); vp=VB+8*((i+1)&1)
            rv=rdV(i,4096*i); rk=rdK(i+1,4096*((i+1)&7)); d=kvd((i+7)&7); sy=[I('s_waitcnt vmcnt(5)')]+bar
            qn=qk(SA,kn,Q)
            if last:
                if i>0: d=[]
                if 56+i>=NBAR: sy=[]
                else: sy=[I('s_waitcnt vmcnt(%d)'%(0 if 56+i==NBAR-1 else max(0,min(5,6-i))))]+bar
                if i==1: sy+=[I('v_mov_b32 v12, 0'), I('ds_write_b32 v%d, v12'%vK)]
                if i==7: rk=[]; qn=[I('s_nop 0')]*4
            ex={}
            for k in range(4): ex.setdefault((k*AB)//4,[]).append(rv[k])
            ex[AB]=sy+rk[:1]+d[:1]; ex[AB+1]=rk[1:]
            body+=phase(SA,PA,qk(SB,kb,Q+8)+pv(OB,vp,PB)+smf(LB,PB),ex)+phase(SB,PB,qn+pv(OA,vb,PA)+smf(LA,PA),{AD:d[1:]})
        return body
    body=auto_lgkm(blocks(False))
    lastb=auto_lgkm(blocks(True),pre=body)
    if opt.get('hk_nexp'): body=[x.replace('v_exp_f32','v_mov_b32') for x in body]
    if opt.get('hk_nval'): body=[x for x in body if 'v_exp' not in x and 'v_cvt' not in x]
    fix_hazards(body+body,auto=False,tag='att_loop')
    aloop=['L_att_loop:']+body+[I('s_sub_u32 s45, s45, 1'), I('s_cmp_lg_u32 s45, 0'), I('s_cbranch_scc1 L_att_loop')]+lastb
    AT=pv(OB,VB+8,PB)+smf(LB,PB)+[I('v_mov_b32 v160, 0x1f800000'), I('v_mov_b32 v161, 0x5f800000')]
    FB=[]
    p=lambda b: vr(b,2)
    for X,(O_,L_,Q_) in enumerate(((OA,LA,Q),(OB,LB,Q+8))):
        AT+=[I('v_pk_mul_f32 v[162:163], %s, 0 op_sel_hi:[1,0]'%p(O_))]
        for i in range(1,8): AT+=[I('v_pk_fma_f32 v[162:163], %s, 0, v[162:163] op_sel_hi:[1,0,1]'%p(O_+2*i))]
        AT+=[I('v_add_f32 v%d, v%d, v%d'%(L_,L_,L_+1)), I('v_add_f32 v%d, v%d, v%d'%(L_+2,L_+2,L_+3)),
             I('v_add_f32 v162, v162, v163'), I('v_add_f32 v163, v162, v%d'%(L_+2)), I('v_add_f32 v162, v162, v%d'%L_),
             I('v_cmp_nge_f32 vcc, v162, v160'), I('v_cmp_nle_f32 s[56:57], v162, v161'), I('v_cmp_nge_f32 s[26:27], v163, v160'), I('v_cmp_nle_f32 s[58:59], v163, v161'),
             I('s_or_b64 s[56:57], s[56:57], vcc'), I('s_or_b64 s[26:27], s[26:27], s[58:59]'), I('s_or_b64 s[56:57], s[56:57], s[26:27]'),
             I('s_cbranch_scc1 L_att_fb%d'%X), 'L_att_fb_ret%d:'%X, I('v_rcp_f32 v162, v%d'%L_), I('v_rcp_f32 v164, v%d'%(L_+2)), I('s_nop 0')]
        for i in range(8): AT+=[I('v_pk_mul_f32 %s, %s, %s op_sel_hi:[1,0]'%(p(O_+2*i),p(O_+2*i),p(162+2*(i//4))))]
        for i in range(8): AT+=[I('v_cvt_pk_bf16_f32 v%d, v%d, v%d'%(O_+i,O_+2*i,O_+2*i+1))]
        if X: AT+=[I('s_add_u32 s46, s46, 65536')]
        for h in range(2): AT+=[I('buffer_store_dwordx4 %s, v%d, s[52:55], s46 offen offset:%d sc0 sc1'%(vr(O_+4*h,4),vL16,1024*h))]
        FS=SA
        F=['L_att_fb%d:'%X, I('s_waitcnt vmcnt(0)'),
           I('s_lshl_b32 s26, s33, 17'), I('s_add_u32 s27, s26, 0x%x'%(P1_OFF+32*131072))]+srd(16,4,5,'s27',131072)
        F+=[I('s_add_u32 s27, s26, 0x%x'%(P1_OFF+64*131072))]+srd(20,4,5,'s27',131072)
        F+=[I('v_bfe_u32 v12, v0, 4, 1'), I('v_lshlrev_b32 v12, 7, v12'), I('v_xor_b32 v8, v%d, v12'%vL16), I('v_add_u32 v9, 1024, v8'),
            I('s_lshl_b32 s26, s42, 10'), I('s_add_u32 s26, s26, 2048'), I('v_add_u32 v2, s26, v%d'%vV0)]
        F+=[I('v_mov_b32 v%d, 0'%(O_+i)) for i in range(16)]
        F+=[I('v_mov_b32 v%d, 0'%L_), I('v_mov_b32 v%d, 0'%(L_+2)), I('v_mov_b32 v164, 0xff800000'), I('v_mov_b32 v165, 0xff800000'), I('s_mov_b32 s59, 0'), 'L_att_fbl%d:'%X,
            I('buffer_load_dwordx4 %s, v%d, s[16:19], s59 offen'%(vr(KB,4),vL16)),
            I('buffer_load_dwordx4 %s, v%d, s[16:19], s59 offen offset:1024'%(vr(KB+4,4),vL16)),
            I('s_add_u32 m0, s41, 4096'), I('s_nop 0'), I('buffer_load_dwordx4 v8, s[20:23], s59 offen lds'),
            I('s_add_u32 m0, s41, 8192'), I('s_nop 0'), I('buffer_load_dwordx4 v9, s[20:23], s59 offen lds'),
            I('s_waitcnt vmcnt(0)')]
        F+=rdV(0,0,2,4096)+qk(FS,KB,Q_)
        for x in range(2):
            s8=FS+8*x; mo=164+x; lx=L_+2*x
            F+=[I('v_max3_f32 v13, v%d, v%d, v%d'%(s8,s8+1,mo))]+[I('v_max3_f32 v13, v%d, v%d, v13'%(s8+2*i,s8+2*i+1)) for i in range(1,4)]
            for sw in (16,32): F+=[I('v_mov_b32 v14, v13'), I('v_permlane%d_swap_b32 v13, v14'%sw), I('v_max_f32 v13, v13, v14')]
            F+=[I('v_sub_f32 v14, v%d, v13'%mo), I('v_exp_f32 v14, v14'), I('v_mov_b32 v%d, v13'%mo)]
            F+=[I('v_sub_f32 v%d, v%d, v13'%(s8+i,s8+i)) for i in range(8)]+[I('v_exp_f32 v%d, v%d'%(s8+i,s8+i)) for i in range(8)]
            F+=[I('v_mul_f32 v%d, v%d, v14'%(lx,lx))]
            for i in range(8): F+=[I('v_add_f32 v%d, v%d, v%d'%(lx,lx,s8+i)), I('v_mul_f32 v%d, v%d, v14'%(O_+8*x+i,O_+8*x+i))]
        for i in range(8): F+=[I('v_cvt_pk_bf16_f32 v%d, v%d, v%d'%(PA+i,FS+2*i,FS+2*i+1))]
        F+=[I('s_waitcnt lgkmcnt(0)')]+pv(O_,VB,PA)+[
            I('s_add_u32 s59, s59, 2048'), I('s_cmp_lg_u32 s59, 131072'), I('s_nop 7'), I('s_nop 7'), I('s_cbranch_scc1 L_att_fbl%d'%X)]
        for lx in (L_,L_+2):
            for sw in (16,32): F+=[I('v_mov_b32 v14, v%d'%lx), I('v_permlane%d_swap_b32 v%d, v14'%(sw,lx)), I('v_add_f32 v%d, v%d, v14'%(lx,lx))]
        F+=[I('s_branch L_att_fb_ret%d'%X)]
        FB+=F
    AT+=([] if TST else st(3))+[I('s_setprio %d'%opt.get('pa2',0))]+srd(48,4,5,FLAG_OFF,65536)
    AT+=[I('s_lshl_b32 s30, s34, 10'), I('s_add_u32 s30, s30, %d'%(256*128)), I('s_and_b32 s26, s2, 7'), I('s_lshl_b32 s26, s26, 2'), I('s_add_u32 s30, s30, s26'),
         I('v_mov_b32 v12, 1'), I('v_lshlrev_b32 v15, 7, v0')]+bar*min(max(0,NBAR-64),opt.get('jp',1))
    AT+=[I('s_mov_b64 exec, 1'), I('s_waitcnt vmcnt(0)'), I('ds_add_rtn_u32 v13, v%d, v12'%vK), I('s_waitcnt lgkmcnt(0)'), I('v_readfirstlane_b32 s26, v13'),
         I('s_mov_b64 exec, %d'%((1<<RO)-1)), I('s_cmp_lg_u32 s26, 3'), I('s_cbranch_scc1 L_a_np'), I('buffer_atomic_add v12, v15, s[48:51], s30 offen sc1'), 'L_a_np:', I('s_mov_b64 exec, -1')]
    AT+=st(6)+[I('s_branch L_k2_fin')]
    Z=G+32
    S=['L_gemm:',
       I('s_bfe_u32 s65, s2, 0x10002'), I('s_mul_i32 s65, s65, 7'), I('s_add_u32 s65, s65, s34'),
       I('s_mov_b32 s93, 0')]
    ZL=[]
    S+=[I('s_lshl_b32 s26, s65, 2'), I('s_and_b32 s27, s42, 1'), I('s_lshl_b32 s27, s27, 1'), I('s_add_u32 s26, s26, s27'),
        I('s_lshl_b32 s30, s64, 2'), I('s_lshr_b32 s27, s42, 1'), I('s_lshl_b32 s27, s27, 1'), I('s_add_u32 s30, s30, s27'),
        I('s_lshl_b32 s31, s26, 6'), I('s_add_u32 s31, s31, s30'), I('s_lshl_b32 s31, s31, 11'),
        I('s_mul_i32 s32, s30, 56'), I('s_add_u32 s32, s32, s26'), I('s_lshl_b32 s32, s32, 11')]
    ZL+=srd(36,4,5,P1_OFF+96*131072,56*131072)
    for nf in range(2):
        for q in range(4): ZL+=[I('buffer_load_dwordx4 %s, v%d, s[36:39], s31 offen offset:%d'%(vr(Z+16*nf+4*q,4),vL16,1024*q))]
        if nf==0: ZL+=[I('s_add_u32 s31, s31, 131072')]
    ZL+=srd(36,62,63,0,4096)
    ZL+=[I('v_and_b32 v12, 15, v0'), I('v_lshlrev_b32 v12, 1, v12'), I('s_lshl_b32 s26, s30, 6')]
    ZL+=[I('v_mov_b32 v%d, 0'%(vBIAS+2*t)) for t in range(4)]
    ZL+=[I('buffer_load_short_d16_hi v%d, v12, s[36:39], s26 offen offset:%d'%(vBIAS+2*t,32*t)) for t in range(4)]
    SR=[I('s_lshl_b32 s26, s64, 19')]+srd(16,60,61,'s26',128*4096)
    SR+=[I('s_lshl_b32 s26, s65, 19'), I('s_add_u32 s26, s26, 0x%x'%Z2N_OFF)]+srd(20,4,5,'s26',128*4096)
    S+=[I('v_lshrrev_b32 v12, 3, v0'), I('v_lshrrev_b32 v13, 4, v0'), I('v_and_b32 v14, 7, v0'),
        I('s_lshl_b32 s26, s42, 17'), I('v_lshlrev_b32 v12, 12, v12'), I('v_add_u32 v12, s26, v12'),
        I('v_xor_b32 v14, v14, v13'), I('v_xor_b32 v15, 4, v14'),
        I('v_lshl_add_u32 v14, v14, 4, v12'), I('v_lshl_add_u32 v15, v15, 4, v12')]
    for i in range(4): S+=[I('v_add_u32 v%d, %d, v%d'%(vOA+i, i*8*4096-i*1024, 14+(i&1)))]
    S+=[I('v_and_b32 v13, 1, v13'), I('v_lshlrev_b32 v13, 6, v13'), I('v_xor_b32 v13, v%d, v13'%vL16), I('v_add_u32 v%d, s26, v13'%vOB)]
    S+=[I('s_lshl_b32 s41, s42, 12'), I('s_mov_b32 s40, 0'), I('s_mov_b32 s44, 0'), I('s_waitcnt lgkmcnt(0)')]+st(0)
    def dmaA(slot):
        Gr=[[I('buffer_load_dwordx4 v%d, s[16:19], s40 offen offset:%d lds'%(vOA+i,1024*i))] for i in range(4)]
        Gr[-1]+=[I('s_add_u32 m0, s41, %d'%(REG[slot]+16384)), I('s_add_u32 s40, s40, 128')]
        return Gr
    def dmaB(slot):
        Gr=[[I('buffer_load_dwordx4 v%d, s[20:23], s44 offen offset:%d lds'%(vOB,1024*i))] for i in range(4)]
        Gr[-1]+=[I('s_add_u32 s44, s44, 4096')]
        return Gr
    m0A=lambda slot: [I('s_add_u32 m0, s41, %d'%REG[slot]), I('s_nop 0')]
    S+=SR+[I('s_cmp_ge_u32 s2, 224'), I('s_cbranch_scc1 L_g_nd')]
    GD=1 if FU else opt.get('gd',0)
    D01=m0A(0)+flat(dmaA(0))+flat(dmaB(0))+m0A(1)+flat(dmaA(1))+flat(dmaB(1))
    if GD==0: S+=D01
    S+=['L_g_nd:']+srd(48,4,5,FLAG_OFF,65536)+srd(52,4,5,H_OFF,H_SIZE)
    S+=[I('v_and_b32 v12, 15, v0'), I('v_lshrrev_b32 v13, 4, v0'), I('v_bfe_u32 v14, v0, 1, 3'),
        I('s_lshr_b32 s26, s42, 1'), I('s_lshl_b32 s26, s26, 13'),
        I('v_lshlrev_b32 v12, 7, v12'), I('v_add_u32 v12, s26, v12'),
        I('v_xor_b32 v15, v13, v14'), I('v_lshl_add_u32 v%d, v15, 4, v12'%vA), I('v_xor_b32 v%d, 64, v%d'%(vA+1,vA))]
    S+=[I('v_add_u32 v%d, 65536, v%d'%(vA+2+j,vA+j)) for j in range(2)]
    S+=[I('v_bfe_u32 v12, v0, 4, 1'), I('v_and_b32 v13, 1, v0'), I('v_bfe_u32 v14, v0, 1, 1'), I('v_bfe_u32 v15, v0, 2, 2'),
        I('v_lshl_add_u32 v15, v12, 3, v15'), I('v_lshl_add_u32 v15, v14, 2, v15'),
        I('v_lshlrev_b32 v15, 4, v15'), I('v_lshl_add_u32 v15, v13, 3, v15'),
        I('v_lshl_add_u32 v15, v14, 8, v15'), I('v_lshrrev_b32 v12, 5, v0'), I('v_lshl_add_u32 v15, v12, 10, v15'),
        I('s_and_b32 s26, s42, 1'), I('s_lshl_b32 s26, s26, 13'), I('s_add_u32 s26, s26, 16384'),
        I('v_add_u32 v%d, s26, v15'%vB), I('v_xor_b32 v%d, 64, v%d'%(vB+1,vB))]
    S+=[I('v_add_u32 v%d, 65536, v%d'%(vB+2+u,vB+u)) for u in range(2)]
    S+=[
        I('s_bfe_u32 s26, s2, 0x10002'), I('s_lshl_b32 s26, s26, 3'), I('s_add_u32 s59, s26, s34'), I('s_lshl_b32 s59, s59, 7'),
        I('v_bfe_u32 v10, v0, 3, 1'), I('v_bfe_u32 v12, v0, 1, 2'), I('v_lshl_add_u32 v10, v10, 4, v12'), I('s_lshl_b32 s26, s42, 5'), I('v_add_u32 v10, s26, v10'), I('v_lshlrev_b32 v10, 11, v10'),
        I('v_lshrrev_b32 v13, 4, v0'), I('v_lshl_add_u32 v10, v13, 5, v10'), I('v_and_b32 v12, 1, v0'), I('v_lshl_add_u32 v%d, v12, 4, v10'%vW)]
    for i in range(1,4): S+=[I('v_add_u32 v%d, %d, v%d'%(vW+i,i*(4*2048-1024),vW))]
    S+=[I('v_and_b32 v10, 15, v0'), I('v_lshlrev_b32 v10, 11, v10'), I('v_lshrrev_b32 v12, 5, v0'), I('v_lshl_add_u32 v10, v12, 4, v10'),
        I('v_bfe_u32 v12, v0, 4, 1'), I('v_lshl_add_u32 v%d, v12, 5, v10'%vX)]+b3addr
    S+=[I('s_bfe_u32 s75, s2, 0x10002'), I('s_mul_i32 s56, s75, %d'%(7*128*2048)), I('s_sub_u32 s57, 0, s56')]
    wsrd=[I('s_sub_u32 s26, 0x380000, s59')]+srd(12,68,69,'s59','s26')
    S+=wsrd+[I('s_setprio %d'%opt.get('pg',0))]
    if FU: S+=[I('s_mul_i32 s26, s65, 11'), I('s_lshr_b32 s26, s26, 5'), I('s_add_u32 s26, s26, s65'), I('s_cmp_eq_u32 s65, 13'), I('s_addc_u32 s26, s26, 12'),
               I('v_add_u32 v12, s26, v0'), I('s_lshr_b32 s26, s64, 1'), I('s_and_b32 s26, s26, %d'%(RP-1)), I('v_lshl_add_u32 v12, v12, 3, s26'), I('v_lshlrev_b32 v12, 7, v12'), I('s_waitcnt vmcnt(0)')]+bar+bar
    S+=bar
    C=[]
    W=[I('s_cmp_ge_u32 s2, 224'), I('s_cbranch_scc1 L_g_idle')]
    CZ=opt.get('cz',1) if FU else 0
    if FU:
        w7=lambda lab,X: [I('s_cmp_lg_u32 s25, 7'), I('s_cbranch_scc1 %s'%lab)]+X+[lab+':']
        W+=w7('L_t_z0',[I('s_mov_b64 exec, 3'), I('buffer_load_dword v15, v12, s[48:51], 0 offen sc1'), I('s_mov_b64 exec, -1')])+gbr*(CZ-1)+w7('L_t_z1',wait_lines('L_t_z',2,8,False))+gbr
    if GD: W+=D01
    G2=opt.get('g2',1)
    W+=gbr*G2+m0A(2)+flat(dmaA(2))+flat(dmaB(2))+m0A(3)+flat(dmaA(3))
    W+=gbr*(NA-1-G2-CZ)+[I('s_waitcnt vmcnt(20)')]+st(1)+gbr
    UP=[]
    for q in range(8): UP+=unpack8(Z+4*q,G+8*q)
    ZT=opt.get('zt',1)
    def reads(slot,j):
        so=REG[slot]&0xffff; hi=REG[slot]>>16; f=FR+32*j
        Ra=[I('ds_read_b128 %s, v%d offset:%d'%(vr(f+4*t,4),vA+2*hi+j,so+t*2048)) for t in range(4)]
        Rb=[I('ds_read_b64_tr_b16 %s, v%d offset:%d'%(vr(f+16+4*n+2*u,2),vB+2*hi+u,so+(n>>1)*4096+j*2048+(n&1)*512)) for n in range(4) for u in range(2)]
        return Rb[:2]+Ra+Rb[2:]
    gbar=opt.get('g2_bar',15)
    rp1=opt.get('g2_rp1',list(range(12))); rp2=opt.get('g2_rp2',list(range(gbar+1,gbar+13)))
    dgA=opt.get('g2_dgA',[17,21,25,29]); dgB=opt.get('g2_dgB',[1,5,9,13])
    def tile(kt):
        slot=kt%4; c0=(kt==0); nxt=kt<31
        spine=[m16(ACC+32*(n>>1)+8*t+4*(n&1), FR+32*j+16+4*n, FR+32*j+4*t, '0' if (c0 and j==0) else None) for j in range(2) for n in range(4) for t in range(4)]
        fill={}
        def add(g,x): fill.setdefault(g,[]).extend(x)
        for pp,r in zip(rp1,reads(slot,1)): add(pp,[r])
        if kt+3<=31:
            for pp,g in zip(dgB,dmaB((kt+3)%4)): add(pp,g)
        else:
            Gw=dmaW(2*(kt-29)+1); add(-1,Gw[0])
            for pp,g in zip(dgB,Gw[1:]): add(pp,g)
        w={31:63,ZT+1:28,ZT+2:28}.get(kt,16)
        add(gbar,[I('s_waitcnt vmcnt(%d) lgkmcnt(0)'%w)]+gbr)
        if kt==ZT:
            zl=[[x] for x in ZL]
            for k,g in enumerate(zl): add(gbar+1+(k*16)//len(zl),g)
        if kt in (28,29):
            u=UP[32*(kt-28):32*(kt-27)]
            for k in range(32): add(k,u[k:k+1])
        if nxt:
            for pp,r in zip(rp2,reads((slot+1)%4,0)): add(pp,[r])
        if kt+4<=31:
            add(gbar,[I('s_add_u32 m0, s41, %d'%REG[slot])])
            for pp,g in zip(dgA,dmaA(slot)): add(pp,g)
        else:
            Gw=dmaW(2*(kt-28)); add(gbar,Gw[0])
            for pp,g in zip(dgA,Gw[1:]): add(pp,g)
        return interleave(spine,fill)
    W+=reads(0,0)+[I('s_mov_b32 s47, 6'), I('s_waitcnt lgkmcnt(0)')]+st(4)
    head=[]
    for t in range(4): head+=tile(t)
    head=auto_lgkm(head,pre=[])
    gb=[]
    for t in range(4,8): gb+=tile(t)
    gb=auto_lgkm(gb)
    if opt.get('hk_nda'): gb=[x for x in gb if not ('s[16:19]' in x and ' lds' in x)]
    if opt.get('hk_ndb'): gb=[x for x in gb if not ('s[20:23]' in x and ' lds' in x)]
    if opt.get('hk_nrd'): gb=[x for x in gb if 'ds_read' not in x]
    fix_hazards(gb+gb,auto=False,tag='g2loop')
    pen=[]
    for t in range(28,32): pen+=tile(t)
    pen=auto_lgkm(pen,pre=gb)
    gloop=['L_g2_loop:']+gb+[I('s_sub_u32 s47, s47, 1'), I('s_cmp_lg_u32 s47, 0'), I('s_cbranch_scc1 L_g2_loop')]
    Ep=[]
    for nf in range(2):
        for m in range(2):
            a=ACC+16*(2*nf+m); g=G+16*(2*nf+m)
            for i in range(8): Ep+=[I('v_pk_add_f32 %s, %s, %s op_sel_hi:[1,0]'%(p(a+2*i),p(a+2*i),p(vBIAS+4*m+2*(i//4))))]
            for i in range(8): Ep+=[I('v_pk_mul_f32 %s, %s, %s'%(p(a+2*i),p(a+2*i),p(g+2*i)))]
            for i in range(8): Ep+=[I('v_cvt_pk_bf16_f32 v%d, v%d, v%d'%(a+i,a+2*i,a+2*i+1))]
            Ep+=[I('s_add_u32 s26, s32, %d'%(m*56*2048+nf*2048))]
            for h in range(2): Ep+=[I('buffer_store_dwordx4 %s, v%d, s[52:55], s26 offen offset:%d sc0 sc1'%(vr(a+4*h,4),vL16,1024*h))]
        if nf==0: Ep+=gbr
    def bars(n,tag):
        if n<=2: return gbr*n
        return [I('s_mov_b32 s47, %d'%n), 'L_%s:'%tag]+gbr+[I('s_sub_u32 s47, s47, 1'), I('s_cmp_lg_u32 s47, 0'), I('s_cbranch_scc1 L_%s'%tag)]
    Ep+=flat(dmaW(7))+st(6)+gbr*(CW-1)+[I('s_waitcnt vmcnt(4)')]+gbr
    Ep+=[I('s_lshl_b32 s30, s64, 1'), I('s_add_u32 s30, s30, s75'), I('s_lshl_b32 s30, s30, 8'), I('s_add_u32 s30, s30, %d'%(320*128))]+pub1('L_c_pb',7,'s30',2)
    D=['L_gC:', I('s_lshl_b32 s30, s64, 1'), I('s_add_u32 s30, s30, s75'), I('s_lshl_b32 s30, s30, 1'), I('s_and_b32 s26, s34, 1'), I('s_add_u32 s30, s30, s26'), I('s_lshl_b32 s30, s30, 7'),
       I('s_add_u32 s30, s30, %d'%(320*128)), I('s_xor_b32 s35, s30, 256'),
       I('s_lshr_b32 s31, s64, 1'), I('s_lshl_b32 s31, s31, 3'), I('s_and_b32 s26, s34, %d'%(RO-1)), I('s_add_u32 s31, s31, s26'), I('s_lshl_b32 s31, s31, 7'), I('s_add_u32 s31, s31, %d'%(256*128))]+srd(52,72,73,0,0x400000)
    D+=[I('s_lshl_b32 s32, s43, 16'), I('s_add_u32 s32, s32, s59'), I('s_add_u32 s33, s32, 32768')]
    D+=[I('buffer_load_dwordx4 %s, v%d, s[52:55], s%d offen offset:%d'%(vr(XR+4*q,4),vX,32+q//2,64*(q&1))) for q in range(4)]
    D+=[I('s_mul_i32 s26, s43, %d'%(56*2048)), I('s_add_u32 s26, s26, 0x%x'%H_OFF)]+srd(8,4,5,'s26',56*2048)+[I('s_mul_i32 s24, s75, %d'%(7*8192))]
    D+=[I('s_lshl_b32 s26, s43, 16'), I('s_add_u32 s26, s26, 0x%x'%O_OFF)]+srd(16,4,5,'s26',65536)
    D+=[I('s_sub_u32 s26, 0x200000, s59')]+srd(20,66,67,'s59','s26')+srd(52,70,71,0,0x400000)
    if CQ==CW: D+=ask1('L_c_ak',7,'s30')
    for k in range(CW+1,CK+1):
        if k==CK: D+=chk1('L_c_ck',7,'s30',7)
        D+=gbr
        if k==CQ: D+=ask1('L_c_ak',7,'s30')
    nb=NC-2-CK
    for k in range(3):
        D+=flat(ldA(k))
        if k<2 and nb>0: D+=gbr; nb-=1
    D+=gbr*nb+[I('s_waitcnt vmcnt(16)')]+gbr+st(5)+rd3(0,0)
    DT=[]
    swW=[I('s_mov_b64 s[12:13], s[20:21]'), I('s_mov_b32 s14, s22')]
    swA=[I('s_mov_b64 s[8:9], s[16:17]'), I('s_mov_b32 s10, s18')]
    def earlyA(st_): return {3*k:g for k,g in enumerate(ldA(st_))}
    for j in range(14):
        w={0:16,1:16,2:20,11:16,12:8,13:63}.get(j,24)
        mid=[I('s_waitcnt vmcnt(%d)'%w)]+(chk1('L_d_ck',7,'s35',7,True) if j==3 else [])+gbr
        if j==1: mid+=ask1('L_d_ak',7,'s35')
        if j==3: mid+=[I('s_xor_b32 s24, s75, 1'), I('s_mul_i32 s24, s24, %d'%(7*8192))]
        late=[]
        if j>=1:
            Gw=dmaW(j+7); mid=mid+(swW if j==7 else [])+Gw[0]; late=Gw[1:]
        DT+=tile3(j,j%4,(Y,Y+16),j==0,j+1 if j<13 else None,mid,earlyA((j+3)%4) if j<=10 else {},late)
    poll=[I('s_mov_b64 exec, 0xff'), I('buffer_load_dword v15, v14, s[48:51], s31 offen sc1'), I('s_mov_b64 exec, -1')]
    DT+=[I('s_waitcnt lgkmcnt(0)')]+gbr+flat(dmaW(21))+swA+[I('v_lshlrev_b32 v14, 2, v0'), I('s_mov_b32 s44, 0'), I('s_mov_b32 s45, 0')]+poll
    T3=FR3+16
    DT+=[I('s_mov_b32 s28, 0x%x'%f2u(-math.log2(math.e))), I('s_mov_b32 s29, s28')]
    for nf in range(2):
        y=Y+16*nf
        for i in range(8): DT+=[I('v_pk_mul_f32 %s, %s, s[28:29]'%(p(T3+2*i),p(y+2*i)))]
        for i in range(16): DT+=[I('v_exp_f32 v%d, v%d'%(T3+i,T3+i))]
        for i in range(8): DT+=[I('v_pk_add_f32 %s, %s, 1.0 op_sel_hi:[1,0]'%(p(T3+2*i),p(T3+2*i)))]
        for i in range(16): DT+=[I('v_rcp_f32 v%d, v%d'%(T3+i,T3+i))]
        for i in range(8): DT+=[I('v_pk_mul_f32 %s, %s, %s'%(p(y+2*i),p(y+2*i),p(T3+2*i)))]
    for q in range(4):
        DT+=[I('v_permlane16_swap_b32 v%d, v%d'%(XR+4*q,XR+4*q+2)), I('v_permlane16_swap_b32 v%d, v%d'%(XR+4*q+1,XR+4*q+3))]
    for i in range(15,-1,-1): DT+=[I('v_and_b32 v%d, 0xffff0000, v%d'%(XR+2*i+1,XR+i)), I('v_lshlrev_b32 v%d, 16, v%d'%(XR+2*i,XR+i))]
    DT+=gbr*(NX-1)+[I('s_waitcnt vmcnt(0)')]+gbr+st(3)
    assert DE in (2,3)
    def issue(k):
        lab='L_e%d'%k
        X=[I('s_andn2_b32 s26, s44, s45'), I('s_cbranch_scc1 %s_h'%lab), I('s_waitcnt vmcnt(%d)'%(8 if k else 0)), I('s_mov_b32 s47, 0x40000'),
           lab+'_l:', I('v_cmp_le_u32 vcc, 4, v15'), I('s_sub_u32 s47, s47, 1'), I('s_cselect_b32 s26, 0xff, 0'), I('s_or_b32 s26, s26, vcc_lo'), I('s_and_b32 s44, s26, 0xff'), I('s_andn2_b32 s26, s44, s45'),
           I('s_cbranch_scc1 %s_h'%lab), I('s_sleep %d'%opt.get('slp2',2))]+poll+[I('s_waitcnt vmcnt(0)'), I('s_branch %s_l'%lab),
           lab+'_h:', I('s_ff1_i32_b32 s46, s26'), I('s_bitset1_b32 s45, s46'), I('s_lshl_b32 s24, s46, 13'), I('s_add_u32 s26, s46, 6'), I('s_and_b32 s26, s26, 7'), I('s_lshl_b32 s%d, s26, 14'%(36+k%4))]
        return X+(poll if k<7 else [])+flat(ldA(k%3))
    def after(k): return sum(8+(1 if x<7 else 0) for x in range(k+1,min(8,k+DE)))
    vE=lambda k: 24+(k&1)
    for k in range(DE): DT+=issue(k)
    DT+=[I('v_add_u32 v%d, s36, v%d'%(vE(0),vB3))]+rd3((vE(0),),0)
    for k in range(8):
        DT+=[I('s_waitcnt vmcnt(%d)'%after(k))]
        DT+=tile3((vE(k),),k%3,(S0,S1),k==0,(vE(k+1),) if k<7 else None,[],{0:[I('v_add_u32 v%d, s%d, v%d'%(vE(k+1),36+(k+1)%4,vB3))]} if k<7 else {})
        if k+DE<8: DT+=issue(k+DE)
    for nf in range(2):
        y=(S0,S1)[nf]
        for i in range(8): DT+=[I('v_pk_fma_f32 %s, %s, %s, %s'%(p(y+2*i),p(y+2*i),p(Y+16*nf+2*i),p(XR+16*nf+2*i)))]
        for i in range(8): DT+=[I('v_cvt_pk_bf16_f32 v%d, v%d, v%d'%(y+i,y+2*i,y+2*i+1))]
        for h in range(2):
            DT+=[I('v_permlane16_swap_b32 v%d, v%d'%(y+4*h,y+4*h+2)), I('v_permlane16_swap_b32 v%d, v%d'%(y+4*h+1,y+4*h+3))]
        for h in range(2):
            DT+=[I('buffer_store_dwordx4 %s, v%d, s[52:55], s%d offen offset:%d %s'%(vr(y+4*h,4),vX,32+nf,64*h,opt.get('out_mod','')))]
    k0=len(D)-8
    D=D[:k0]+auto_lgkm(D[k0:]+DT,pre=[])
    ID=['L_g_idle:', I('v_lshlrev_b32 v12, 7, v0'), I('s_sub_u32 s26, s2, 224'), I('s_lshl_b32 s26, s26, 2'), I('s_add_u32 s26, s26, s42'), I('s_lshl_b32 s26, s26, 13')]
    ID+=srd(8,66,67,0,0x200000)+srd(20,68,69,0,0x380000)
    for k in range(2): ID+=[I('s_add_u32 s27, s26, %d'%(k*0x100000)), I('buffer_load_dword v13, v12, s[8:11], s27 offen')]
    for k in range(4): ID+=[I('s_add_u32 s27, s26, %d'%(k*0x100000)), I('buffer_load_dword v13, v12, s[20:23], s27 offen')]
    ID+=[I('s_waitcnt vmcnt(0)')]
    for t in range(8): ID+=gbr+flat(dmaW(t))
    ID+=bars(NA+32+CW+1-8,'g_idl')+[I('s_branch L_gC')]
    fin=['L_k2_fin:']
    if STAMP:
        fin+=[I('s_waitcnt vmcnt(0)')]+st(7)+[I('s_cmp_lg_u32 s2, %d'%opt.get('stamp_wg',0)), I('s_cbranch_scc1 L_k2_nost'), I('s_cmp_lg_u32 s42, %d'%opt.get('stamp_w',3)), I('s_cbranch_scc1 L_k2_nost'),
              I('s_load_dwordx2 s[6:7], s[0:1], %d'%KA_DBG), I('s_waitcnt lgkmcnt(0)')]+srd(48,6,7,0,256)+[
              I('s_lshr_b32 s26, s25, 2'), I('s_lshl_b32 s26, s26, 5'), I('v_mov_b32 v1, s26')]
        for k in range(1,8 if not TRC else 0): fin+=[I('s_sub_u32 s26, s%d, s76'%(76+2*k)), I('v_mov_b32 v2, s26'), I('buffer_store_dword v2, v1, s[48:51], 0 offen offset:%d'%(4*k))]
        if TRC: fin+=[I('s_cmp_lt_u32 s25, 4'), I('s_cbranch_scc1 L_k2_nost'), I('s_waitcnt vmcnt(0)'), I('v_lshlrev_b32 v1, 2, v0'), I('buffer_store_dword v9, v1, s[48:51], 0 offen')]
        fin+=['L_k2_nost:']
    if opt.get('wgst'):
        fin+=[I('s_cmp_lg_u32 s25, %d'%opt.get('wgw',0)), I('s_cbranch_scc1 L_k2_nowg')]+srd(48,4,5,ST_OFF+2*65536,65536)+[I('s_lshl_b32 s26, s2, 4'), I('v_mov_b32 v1, s26')]
        fin+=[I('v_mov_b32 v%d, s%d'%(4+i,76+2*k)) for i,k in enumerate(opt['wgst'])]+[I('s_nop 1'), I('buffer_store_dwordx4 v[4:7], v1, s[48:51], 0 offen'), 'L_k2_nowg:']
    if opt.get('rt'): fin+=[I('s_cmp_lg_u32 s25, 4'), I('s_cbranch_scc1 L_k2_end')]
    fin+=rt_end(opt,opt.get('k2_idx',1),'k2',sreg=96)+['L_k2_end:', I('s_endpgm')]
    code=H+A+st(1)+aloop+st(2)+AT+S+C+W+head+gloop+pen+Ep+D+fin+ID+FB
    code,_=fix_hazards(code)
    tr,_=fix_hazards(H+A+body+body+lastb+AT); check_waits(tr,'k2a')
    tr,_=fix_hazards(FB); check_waits(tr,'k2fb')
    tr,_=fix_hazards(H+S+C+W+head+gb+gb+pen+Ep+D); check_waits(tr,'k2g')
    return L+code, kernel_desc(name,256,256,102), '; @launch %sgrid=(256,1,1) block=(512,1,1) lds=163840'%('' if name.startswith('recurrent') else 'kernel=%s '%name)
```

```python
import sys
from build import *
from k1d import gen_k1d
from k2h import gen_k2h
opt=json.loads(sys.argv[2]) if len(sys.argv)>2 else {}
opt.setdefault('k2_idx',0)
name=opt.get('name','recurrent_scan__softmax_full_mha__mixer_gmlp__prompt_kernel')
o1=dict(opt); o1['fused']=1; o1['stamp']=0
o2=dict(opt); o2['fused']=gen_k1d(name=name,opt=o1)
assemble([gen_k2h(name=name,opt=o2)], sys.argv[1])
```

```python
from common import *
A_LDS=65536
CS=0
STAT_OFF=0
PST_OFF=0x100000
ZC_OFF=FLAG_OFF+8192
QSCALE = f2u(32**-0.5*math.log2(math.e))
vP=1; vQ=5; vOB=1; vOA=5; vA=9; vB=11; vIDX=15; ST=16
AB=32; BF=64; SEL=96; CD=100; ACC=128
def m16(d,a,b,c=None): return I('v_mfma_f32_16x16x32_bf16 %s, %s, %s, %s'%(vr(d,4),vr(a,4),vr(b,4),vr(d,4) if c is None else c))
p=lambda b: vr(b,2)
flat=lambda G:[x for g in G for x in g]
acc=lambda a,t: ACC+16*a+4*t
X0=104; CSB=112; ARR=1024

def gen_variant(NB, strideB, tag, isz, opt):
    NQ=NB; NFR=2*NB; NM=4*NFR
    RZ=opt.get('rz',4); FU=opt.get('fused'); DZ=FU and opt.get('dz',0); STM=opt.get('st_mod','sc0 sc1' if FU else '')
    SB=[I('v_bfe_u32 v24, v0, 3, 1'), I('v_bfe_u32 v25, v0, 1, 2'), I('v_lshl_add_u32 v24, v24, 3, v25'),
        I('s_lshr_b32 s26, s25, 2'), I('s_lshl_b32 s26, s26, 5'), I('s_and_b32 s27, s25, 1'), I('s_lshl_b32 s27, s27, 4'), I('s_add_u32 s26, s26, s27'),
        I('s_and_b32 s27, s25, 2'), I('s_lshl_b32 s27, s27, 1'), I('s_add_u32 s26, s26, s27'),
        I('v_add_u32 v24, s26, v24'), I('s_mov_b32 s27, %d'%strideB), I('v_mul_u32_u24 v24, s27, v24'),
        I('v_lshrrev_b32 v25, 4, v0'), I('v_and_b32 v26, 1, v0'), I('v_lshl_add_u32 v24, v25, 5, v24'), I('v_lshl_add_u32 v24, v26, 4, v24')]
    if opt.get('bhack'):
        SB+=[I('v_lshrrev_b32 v24, 3, v0'), I('v_add_u32 v24, s26, v24'), I('v_mul_u32_u24 v24, s27, v24'), I('v_and_b32 v25, 7, v0'), I('v_lshl_add_u32 v24, v25, 4, v24')]
    for q in range(NQ):
        k=q*128-q*1024
        if not isz: SB+=[I('v_add_u32 v%d, %d, v24'%(vOB+q,k&0xffffffff))]
        else:
            lo,hi=[(3584 if (2*q+b)<NB else -NB*64)+k for b in range(2)]
            if lo==hi: SB+=[I('v_add_u32 v%d, %d, v24'%(vOB+q,lo&0xffffffff))]
            else: SB+=[I('v_mov_b32 v25, %d'%(lo&0xffffffff)), I('v_mov_b32 v26, %d'%(hi&0xffffffff)), I('v_cmp_gt_u32 vcc, 32, v0'),
                       I('v_cndmask_b32 v25, v26, v25, vcc'), I('v_add_u32 v%d, v25, v24'%(vOB+q))]
    SB+=[I('v_mov_b32 v%d, 0'%(vOB+q)) for q in range(NQ,4)]
    SB+=[I('s_and_b32 s26, s25, 3'), I('s_mul_i32 s28, s26, %d'%(NQ*1024)), I('s_lshr_b32 s26, s25, 2'), I('s_lshl_b32 s26, s26, 14'), I('s_add_u32 s28, s28, s26')]
    S=[]
    S+=[I('v_and_b32 v24, 15, v0'), I('v_lshrrev_b32 v25, 4, v0'), I('v_bfe_u32 v26, v0, 1, 3'),
        I('s_and_b32 s26, s25, 3'), I('s_lshl_b32 s26, s26, 13'), I('s_add_u32 s26, s26, %d'%A_LDS),
        I('v_lshlrev_b32 v24, 7, v24'), I('v_add_u32 v24, s26, v24'),
        I('v_xor_b32 v27, v25, v26'), I('v_lshl_add_u32 v%d, v27, 4, v24'%vA), I('v_xor_b32 v%d, 64, v%d'%(vA+1,vA))]
    S+=[I('v_lshrrev_b32 v24, 5, v0'), I('v_mul_u32_u24 v24, %d, v24'%(NQ*1024)), I('v_and_b32 v25, 31, v0'), I('v_lshl_add_u32 v24, v25, 3, v24'),
        I('s_lshr_b32 s26, s25, 2'), I('s_mul_i32 s35, s26, %d'%NB),
        I('s_and_b32 s46, s25, 3')]
    if NB<4: S+=[I('s_cmp_ge_u32 s46, %d'%NB), I('s_cselect_b32 s27, %d, 0'%NB), I('s_sub_u32 s46, s46, s27')]
    def phys(i): return [I('s_add_u32 s26, s46, %d'%i), I('s_cmp_ge_u32 s26, %d'%NB), I('s_cselect_b32 s27, %d, 0'%NB), I('s_sub_u32 s26, s26, s27')]
    for i in range(NB):
        S+=phys(i)+[I('s_add_u32 s26, s26, s35'), I('s_lshl_b32 s26, s26, 9'), I('v_add_u32 v%d, s26, v24'%(vB+i))]
    S+=[I('v_bfe_u32 v24, v0, 1, 1'), I('v_lshrrev_b32 v25, 5, v0'), I('v_cmp_eq_u32 vcc, v24, v25'), I('v_mov_b32 v24, 0x3f803f80'),
        I('v_cndmask_b32 v%d, 0, v24, vcc'%SEL)]+[I('v_mov_b32 v%d, v%d'%(SEL+i,SEL)) for i in range(1,4)]
    S+=[I('v_and_b32 v24, 1, v0'), I('v_mul_u32_u24 v24, 0xaaaa, v24'), I('v_add_u32 v%d, 0x4444, v24'%vIDX)]+[I('v_mov_b32 v%d, 0'%(CD+i)) for i in range(4)]
    uid=[0]
    def guard(h,X):
        uid[0]+=1; lab='L_k1_g%d_%s'%(uid[0],tag)
        return [I('s_cmp_lt_u32 s25, 4'), I('s_cbranch_scc%d %s'%(h,lab))]+X+[lab+':']
    def dma(q, only=None):
        srdn,so,inc,mp,lim,wr,vo=((8,20,74,28,76,77,vP),(12,21,75,29,78,79,vQ))[q]
        G=[]
        for i in range(4):
            ld=[I('buffer_load_dwordx4 v%d, s[%d:%d], s%d offen offset:%d lds'%(vo+i,srdn,srdn+3,so,i*1024))]
            if i>=opt.get('ndma',4): ld=[I('s_nop 0')]
            if only is None: G.append(ld if i<NQ else guard(1-q,ld))
            elif only==1-q or i<NQ: G.append(guard(only,ld))
            else: G.append([])
        adv=[I('s_add_u32 s%d, s%d, s%d'%(so,so,inc)), I('s_add_u32 s%d, s%d, 32768'%(mp,mp)), I('s_cmp_ge_u32 s%d, s%d'%(mp,lim)), I('s_cselect_b32 s26, s%d, 0'%wr), I('s_sub_u32 s%d, s%d, s26'%(mp,mp))]
        G[-1]=G[-1]+(adv if only is None else guard(only,adv))
        return [[I('s_mov_b32 m0, s%d'%mp)]]+G
    def rdA(j): return [I('ds_read_b128 %s, v%d offset:%d'%(vr(AB+16*j+4*t,4),vA+j,t*2048)) for t in range(4)]
    advA=lambda j: [I('v_add_u32 v%d, s59, v%d'%(vA+j,vA+j))]
    nxtA=[I('s_add_u32 s58, s58, 1'), I('s_cmp_eq_u32 s58, 3'), I('s_cselect_b32 s58, 0, s58'), I('s_cmp_eq_u32 s58, 2'), I('s_cselect_b32 s59, s80, s81')]
    def rdB(a):
        R=[[I('ds_read_b64_tr_b16 %s, v%d offset:%d'%(vr(BF+4*a+2*u,2),vB+a//2,2*u*NQ*1024+(a&1)*256))] for u in range(2)]
        if a&1: R[1]+=[I('v_add_u16 v%d, 0x4000, v%d'%(vB+a//2,vB+a//2))]
        return R
    SMF=I('v_smfmac_f32_16x16x64_bf16 %s, %s, %s, v%d'%(vr(CD,4),vr(SEL,4),vr(BF,8),vIDX))
    GB=opt.get('k1gb',3); D0=opt.get('k1d0',2); DS=opt.get('k1ds',(NM-GB-D0-1)//4+(1 if NM>16 else 0))
    VW='vmcnt(%d) '%(4+NQ)
    def rdBx(a,dst): return [[I('ds_read_b64_tr_b16 %s, v%d offset:%d'%(vr(dst+2*u,2),vB+a//2,2*u*NQ*1024+(a&1)*256))] for u in range(2)]
    def step(j, G, has_next=True, c0=False, extra=None, vw=VW, dense=False, pre_last=False):
        spine=[m16(acc(a,t),BF+4*a,AB+16*j+4*t,'0' if c0 else None) for a in range(NFR) for t in (range(4) if not (opt.get('snk1') and a&1) else range(3,-1,-1))]
        fill={}
        def add(g,x): fill.setdefault(g,[]).extend(x)
        if has_next:
            nb=opt.get('nobar',0)
            add(GB,([I('s_waitcnt %slgkmcnt(0)'%vw)] if nb<2 else [])+([I('s_barrier')] if not nb or dense or not G else []))
            ra=[[x] for x in rdA(1-j)]; ra[-1]+=advA(1-j)+(nxtA if j==0 else [])
            avail={GB:rdB(0)+ra}
            for a in range(1,NFR): avail.setdefault(max(GB,4*a+3),[]).extend(rdB(a))
            if pre_last: avail.setdefault(12,[]).extend(rdBx(0,X0)+rdBx(1,X0+4))
            queue=[]
            for g2 in range(GB,NM):
                queue+=avail.get(g2,[])
                n=1 if g2<NM-1 else len(queue)
                add(g2,flat(queue[:n])); queue=queue[n:]
            if not opt.get('nosmf'): add(NM-3,[SMF])
            if pre_last: add(NM-1,[SMF.replace(vr(BF,8),vr(X0,8))])
        if G:
            if dense:
                for g,x in G: add(g,x)
            else:
                add(GB,G[0])
                for k,g in enumerate(G[1:]): add(min(GB+D0+k*DS,NM-1),g)
        if extra:
            for g,x in extra.items(): add(g,x)
        return interleave(spine,fill)
    P=SB+[I('s_mov_b32 m0, s28'), I('s_nop 0')]+[I('buffer_load_dwordx4 v%d, s[68:71], 0 offen offset:%d lds'%(vOB+i,i*1024)) for i in range(NQ)]
    P+=[I('s_add_u32 s28, s28, 32768'), I('s_lshl_b32 s29, s25, 12'), I('s_add_u32 s29, s29, %d'%(A_LDS+32768)),
        I('s_mov_b32 s20, %d'%(64*strideB)), I('s_mov_b32 s21, 128'), I('s_mov_b32 s74, %d'%(0 if opt.get('fixB') else 64*strideB)), I('s_mov_b32 s75, %d'%(0 if opt.get('fixA') else 128)),
        I('s_mov_b32 s76, 65536'), I('s_mov_b32 s77, 65536'), I('s_mov_b32 s78, 163840'), I('s_mov_b32 s79, 98304'),
        I('s_mov_b32 s58, 0'), I('s_mov_b32 s59, 32768'), I('s_mov_b32 s80, 0xffff0000'), I('s_mov_b32 s81, 32768'),
        I('s_cmp_lt_u32 s25, 4')]
    for k in range(3): P+=[I('s_cselect_b32 s%d, s%d, s%d'%(8+k,68+k,64+k)), I('s_cselect_b32 s%d, s%d, s%d'%(12+k,64+k,68+k))]
    P+=[I('s_mov_b32 s11, 0x20000'), I('s_mov_b32 s15, 0x20000'), I('s_cbranch_scc1 L_k1_ns_%s'%tag)]
    for x,y in ((20,21),(74,75),(28,29),(76,78),(77,79)): P+=[I('s_mov_b32 s26, s%d'%x), I('s_mov_b32 s%d, s%d'%(x,y)), I('s_mov_b32 s%d, s26'%y)]
    P+=[I('v_swap_b32 v%d, v%d'%(vP+i,vQ+i)) for i in range(4)]+['L_k1_ns_%s:'%tag]+S
    X=ACC+16
    nd=4+NQ
    P+=[I('s_waitcnt vmcnt(%d)'%nd)]
    for k in range(2): P+=unpack8(ACC+4*k,X+8*k)
    R=ACC
    P+=[I('v_pk_add_f32 %s, %s, %s'%(p(R+2*i),p(X+2*i),p(X+8+2*i))) for i in range(4)]
    P+=[I('v_pk_add_f32 %s, %s, %s'%(p(R),p(R),p(R+2))), I('v_pk_add_f32 %s, %s, %s'%(p(R+4),p(R+4),p(R+6))), I('v_pk_add_f32 %s, %s, %s'%(p(R),p(R),p(R+4))),
        I('v_add_f32 v%d, v%d, v%d'%(R,R,R+1))]+wave_sum(R,R+1)+[I('v_mul_f32 v%d, 0xba800000, v%d'%(ST,R))]
    P+=[I('v_pk_add_f32 %s, %s, %s op_sel_hi:[1,0]'%(p(X+2*i),p(X+2*i),p(ST))) for i in range(8)]
    P+=[I('v_pk_mul_f32 %s, %s, %s'%(p(R+2*i),p(X+2*i),p(X+2*i))) for i in range(4)]
    P+=[I('v_pk_fma_f32 %s, %s, %s, %s'%(p(R+2*i),p(X+8+2*i),p(X+8+2*i),p(R+2*i))) for i in range(4)]
    P+=[I('v_pk_add_f32 %s, %s, %s'%(p(R),p(R),p(R+2))), I('v_pk_add_f32 %s, %s, %s'%(p(R+4),p(R+4),p(R+6))), I('v_pk_add_f32 %s, %s, %s'%(p(R),p(R),p(R+4))),
        I('v_add_f32 v%d, v%d, v%d'%(R,R,R+1))]+wave_sum(R,R+1)
    P+=[I('v_mov_b32 v%d, 0x3727c5ac'%(R+1)), I('v_fmac_f32 v%d, 0x3a800000, v%d'%(R+1,R)), I('v_rsq_f32 v%d, v%d'%(ST+1,R+1)), I('s_nop 0'),
        I('buffer_store_dwordx2 %s, v30, s[40:43], 0 offen sc0 sc1'%p(ST)), I('buffer_store_dword v31, v29, s[52:55], 0 offen sc0 sc1')]
    if isz:
        P+=[I('s_mul_i32 s26, s23, %d'%(20*2048)), I('s_and_b32 s27, s25, 3'), I('s_lshl_b32 s27, s27, 9'), I('s_add_u32 s38, s26, s27'), I('s_add_u32 s38, s38, 0x%x'%PST_OFF),
            I('s_lshl_b32 s26, s33, 11'), I('s_add_u32 s39, s26, s38'), I('s_cmp_lt_u32 s25, 4'), I('s_cselect_b32 s26, 0, 0x7fff0000'),
            I('v_lshl_add_u32 v24, v0, 3, s26'), I('v_mov_b32 v26, -1'), I('v_mov_b32 v27, -1'), I('buffer_store_dwordx2 v[26:27], v24, s[16:19], s39 offen sc0 sc1')]
    if FU:
        P+=[I('s_load_dwordx4 s[60:63], s[0:1], %d'%KA_WSP), I('s_load_dwordx2 s[66:67], s[0:1], %d'%KA_WO), I('s_load_dwordx4 s[68:71], s[0:1], %d'%KA_WOUT), I('s_load_dwordx2 s[72:73], s[0:1], %d'%KA_X),
            I('s_mov_b32 s91, %d'%(NB if isz else 0))]
    P+=[I('s_waitcnt vmcnt(%d) lgkmcnt(0)'%(3 if isz else 2)), I('s_barrier')]
    k0=len(P)
    P+=flat(rdB(0))+rdA(0)+advA(0)
    for a in range(1,NFR): P+=flat(rdB(a))
    P+=[I('s_mov_b32 s22, 12'), SMF]
    t0=step(0,dma(0),extra={1:[I('s_cmp_eq_u32 s22, s56'), I('s_cbranch_scc1 L_k1_poll_%s'%tag), 'L_k1_pret_%s:'%tag]})
    t1=step(1,dma(1))
    pub=[I('s_cmp_lg_u32 s25, 0'), I('s_cbranch_scc1 L_k1_np_%s'%tag), I('v_mov_b32 v28, 1'), I('v_mov_b32 v29, 0'), I('s_mov_b64 exec, 1'),
         I('buffer_atomic_add v28, v29, s[48:51], s47 offen sc1'), I('s_mov_b64 exec, -1'), I('v_lshlrev_b32 v27, 5, v0'), 'L_k1_np_%s:'%tag]
    seq=dma(1,only=0)+dma(0)+dma(1)
    n0=len(seq); seq+=dma(0)
    pos=[(-1+(k*(NM))//len(seq)) if k<n0 else max(GB,-1+(k*NM)//len(seq)) for k in range(len(seq))]
    f0=step(0,list(zip(pos,seq)),c0=True,vw='',dense=True)
    f1=step(1,dma(1),extra={GB+1:pub})
    first=P[:k0]+auto_lgkm(P[k0:]+f0+f1,pre=[])
    body=auto_lgkm(t0+t1)
    if 1:
        ask=[I('s_mov_b64 exec, 0xff'), I('buffer_load_dword v28, v27, s[48:51], 0 offen sc1'), I('s_mov_b64 exec, -1')]
        look=[I('v_cmp_le_u32 vcc, 32, v28'), I('s_nop 1'), I('s_and_b32 s26, vcc_lo, 0xff'), I('s_cmp_eq_u32 s26, 0xff')]
    PO=['L_k1_poll_%s:'%tag, I('s_sub_u32 s56, s56, 2'), I('s_add_u32 s57, s57, 1'), I('s_cmp_eq_u32 s57, 2'), I('s_cbranch_scc1 L_k1_chk_%s'%tag)]+ask+[I('s_branch L_k1_pret_%s'%tag),
        'L_k1_chk_%s:'%tag, I('s_mov_b32 s27, 0x40000'), 'L_k1_chl_%s:'%tag]+look+[I('s_cbranch_scc1 L_k1_pret_%s'%tag),
        I('s_sleep 2')]+ask+[I('s_waitcnt vmcnt(0)'), I('s_sub_u32 s27, s27, 1'), I('s_cmp_lg_u32 s27, 0'), I('s_cbranch_scc1 L_k1_chl_%s'%tag), I('s_branch L_k1_pret_%s'%tag)]
    g=GB+1
    ex29={0:[I('v_bfe_u32 v1, v0, 3, 1'), I('v_and_b32 v24, 7, v0'), I('s_lshl_b32 s26, s23, 12')],
          1:[I('v_lshlrev_b32 v1, 7, v1'), I('s_and_b32 s27, s25, 3'), I('s_lshl_b32 s27, s27, 10')],
          2:[I('v_lshl_add_u32 v1, v24, 3, v1'), I('s_add_u32 s26, s26, s27')],
          g+1:[I('buffer_load_dwordx2 %s, v1, s[40:43], s26 offen sc1'%p(ST))],
          g+3:[I('buffer_load_dwordx2 %s, v1, s[40:43], s26 offen offset:256 sc1'%p(ST+2))],
          g+5:[I('buffer_load_dwordx2 %s, v1, s[40:43], s26 offen offset:512 sc1'%p(ST+4))],
          g+7:[I('buffer_load_dwordx2 %s, v1, s[40:43], s26 offen offset:768 sc1'%p(ST+6))]}
    ex28={0:[I('v_and_b32 v2, 31, v0'), I('s_add_u32 s26, s35, s46'), I('s_lshl_b32 s26, s26, 7'), I('s_add_u32 s26, s26, %d'%CS)],
          1:[I('v_lshl_add_u32 v2, v2, 2, s26'), I('v_lshrrev_b32 v3, 4, v0')],
          2:[I('v_lshlrev_b32 v3, 4, v3'), I('v_bfe_u32 v5, v0, 4, 1')],
          GB+7:[I('v_cmp_eq_u32 vcc, 0, v5'), I('v_lshlrev_b32 v4, 4, v0')],
          GB+8:[I('v_mov_b32 v6, %d'%ARR), I('v_mov_b32 v7, 0')]}
    e0=step(0,dma(0))+step(1,dma(1,only=1))+step(0,None,extra=ex28)+step(1,None,extra=ex29,vw='vmcnt(0) ',pre_last=True)
    csr=lambda a: CSB+4*(a&1)+(0 if isz else 8*((a>>1)&1))
    def rdc(i): return phys(i)+[I('s_add_u32 s26, s26, s35'), I('s_lshl_b32 s26, s26, 7'), I('s_add_u32 s26, s26, %d'%CS), I('v_add_u32 v5, s26, v3')]+[
        I('ds_read_b128 %s, v5 offset:%d'%(vr(csr(2*i+f),4),64*f)) for f in range(2)]
    def last2(prep, epi):
        spine=[m16(acc(2*i+f,t),(BF+8*i if j==0 else (X0 if i==0 else BF+8*(i-1)))+4*f,AB+16*j+4*t) for i in range(NB) for j in range(2) for f in range(2) for t in range(4)]
        fill={}
        def add(g,x): fill.setdefault(g,[]).extend(x)
        for k,r in enumerate(rdA(1)): add(k,[r])
        add(4,[I('v_add_f32 v%d, v%d, v%d'%(CD,CD,CD+1)), I('v_add_f32 v%d, v%d, v%d'%(CD+2,CD+2,CD+3))])
        add(5,[I('v_cndmask_b32 v%d, v%d, v%d, vcc'%(CD,CD+2,CD)), I('ds_write_b32 v2, v%d'%CD), I('ds_write_b32 v6, v7')])
        add(7,[I('s_waitcnt lgkmcnt(0)'), I('s_barrier')]+rdc(0))
        for i in range(1,NB):
            for k,r in enumerate(rdBx(2*i,BF+8*(i-1))+rdBx(2*i+1,BF+8*(i-1)+4)): add(16*(i-1)+8+k,r)
        add(11,[I('s_waitcnt vmcnt(0)')])
        for k,x in enumerate(prep): add(12+(k*4)//len(prep),[x])
        for i in range(NB-1):
            E=epi(i)
            for k,x in enumerate(E): add(16*(i+1)+(k*16)//len(E),[x])
        return interleave(spine,fill)+epi(NB-1)
    Lp='L_k1_loop_%s'%tag
    loop=[Lp+':']+body+[I('s_sub_u32 s22, s22, 1'), I('s_cmp_lg_u32 s22, 0'), I('s_cbranch_scc1 %s'%Lp)]
    PK=opt.get('bmpk',0)
    def center(a,pk):
        if pk: return [I('v_pk_fma_f32 %s, %s, %s, %s op_sel_hi:[1,0,1]'%(p(acc(a,t)+2*i),p(csr(a)+2*i),p(ST+2*t),p(acc(a,t)+2*i))) for t in range(4) for i in range(2)]
        return [I('v_fmac_f32 v%d, v%d, v%d'%(acc(a,t)+i,csr(a)+i,ST+2*t)) for t in range(4) for i in range(4)]
    def scale(a,pk):
        if pk: return [I('v_pk_mul_f32 %s, %s, %s op_sel_hi:[1,0]'%(p(acc(a,t)+2*i),p(acc(a,t)+2*i),p(24+2*t))) for t in range(4) for i in range(2)]
        return [I('v_mul_f32 v%d, v%d, v%d'%(acc(a,t)+i,acc(a,t)+i,24+2*t)) for t in range(4) for i in range(4)]
    def put(i,sw=False):
        E=phys(i)+[I('s_lshl_b32 s26, s26, 17'), I('s_add_u32 s%d, s26, s31'%(88+i if sw and DZ else 27))]
        for t in range(4):
            a=acc(2*i,t); b=acc(2*i+1,t)
            E+=[I('v_cvt_pk_bf16_f32 v%d, v%d, v%d'%(a,a,a+1)), I('v_cvt_pk_bf16_f32 v%d, v%d, v%d'%(a+1,a+2,a+3)),
                I('v_cvt_pk_bf16_f32 v%d, v%d, v%d'%(a+2,b,b+1)), I('v_cvt_pk_bf16_f32 v%d, v%d, v%d'%(a+3,b+2,b+3))]
            if sw: E+=[I('v_permlane%d_swap_b32 v%d, v%d'%(w,a+k,a+2+k)) for w in (16,32) for k in range(2)]
            if not (sw and DZ): E+=[I('buffer_store_dwordx4 %s, v4, s[16:19], s27 offen offset:%d %s'%(vr(a,4),t*1024,opt.get('z1_mod',STM) if sw else STM))]
        return E
    E2=[]
    if not isz:
        def epi(i):
            pk=PK or i==NB-1
            return (rdc(i+1) if i<NB-1 else [])+center(2*i,pk)+scale(2*i,pk)+center(2*i+1,pk)+scale(2*i+1,pk)+put(i)
        E=last2([I('v_mul_f32 v%d, s34, v%d'%(24+2*t,ST+2*t+1)) for t in range(4)],epi)
    else:
        T=240; K1=120; K2=124; RR=24; SS=224; QQ=232
        def gel(a,z2):
            xs=[(acc(a,0)+2*k,T+2*k,k//2) for k in range(8)]
            G=[I('v_pk_mul_f32 %s, %s, %s'%(p(w),p(x),p(x))) for x,w,t in xs]
            G+=[I('v_fma_f32 v%d, v%d, v%d, v%d'%(w+k,w+k,K2+t,K1+t)) for x,w,t in xs for k in range(2)]
            G+=[I('v_pk_mul_f32 %s, %s, %s'%(p(w),p(w),p(x))) for x,w,t in xs]
            G+=[I('v_exp_f32 v%d, v%d'%(w+k,w+k)) for x,w,t in xs for k in range(2)]
            if z2: G+=[I('v_pk_add_f32 %s, %s, 1.0 op_sel_hi:[1,0]'%(p(w),p(w))) for x,w,t in xs]
            else: G+=[I('v_fma_f32 v%d, v%d, v%d, v%d'%(w+k,w+k,RR+t,RR+t)) for x,w,t in xs for k in range(2)]
            G+=[I('v_rcp_f32 v%d, v%d'%(w+k,w+k)) for x,w,t in xs for k in range(2)]
            G+=[I('v_pk_mul_f32 %s, %s, %s'%(p(x),p(x),p(w))) for x,w,t in xs]
            return G
        def prep(z2):
            X=[I('v_mul_f32 v%d, 0x%x, v%d'%(K1+t,f2u(GC1),ST+2*t+1)) for t in range(4)]+[I('v_mul_f32 v%d, v%d, v%d'%(K2+t,ST+2*t+1,ST+2*t+1)) for t in range(4)]
            X+=[I('%s v%d, v%d'%('v_mov_b32' if z2 else 'v_rcp_f32',RR+t,ST+2*t+1)) for t in range(4)]
            X+=[I('v_mul_f32 v%d, v%d, v%d'%(K2+t,K2+t,K1+t)) for t in range(4)]+[I('v_mul_f32 v%d, 0x%x, v%d'%(K2+t,f2u(0.044715),K2+t)) for t in range(4)]
            return X
        def sums(a):
            Z=[]
            for t in range(4):
                x=acc(a,t)
                if a==0: Z+=[I('v_pk_add_f32 %s, %s, %s'%(p(SS+2*t),p(x),p(x+2))), I('v_pk_mul_f32 %s, %s, %s'%(p(QQ+2*t),p(x),p(x)))]
                else: Z+=[I('v_pk_add_f32 %s, %s, %s'%(p(SS+2*t),p(SS+2*t),p(x))), I('v_pk_fma_f32 %s, %s, %s, %s'%(p(QQ+2*t),p(x),p(x),p(QQ+2*t))),
                          I('v_pk_add_f32 %s, %s, %s'%(p(SS+2*t),p(SS+2*t),p(x+2)))]
                Z+=[I('v_pk_fma_f32 %s, %s, %s, %s'%(p(QQ+2*t),p(x+2),p(x+2),p(QQ+2*t)))]
            return Z
        ce=lambda i: center(2*i,1)+center(2*i+1,1)+(rdc(i+1) if i<NB-1 else [])
        E=[I('s_cmp_lt_u32 s25, 4'), I('s_cbranch_scc1 L_k1_z2_%s'%tag)]+last2(prep(0),lambda i: ce(i)+gel(2*i,0)+gel(2*i+1,0)+put(i,True))
        Z=[I('s_setprio %d'%opt.get('z2p',2))]+last2(prep(1),lambda i: ce(i)+gel(2*i,1)+sums(2*i)+gel(2*i+1,1)+sums(2*i+1))
        T=64
        for b in (SS,QQ): Z+=[I('v_add_f32 v%d, v%d, v%d'%(b+2*t,b+2*t,b+2*t+1)) for t in range(4)]
        for b in (SS,QQ,QQ): Z+=[I('v_mul_f32 v%d, v%d, v%d'%(b+2*t,b+2*t,RR+t)) for t in range(4)]
        for b in (SS,QQ): Z+=[I('v_permlane16_swap_b32 v%d, v%d'%(b,b+2)), I('v_permlane16_swap_b32 v%d, v%d'%(b+4,b+6))]
        for b in (SS,QQ): Z+=[I('v_add_f32 v%d, v%d, v%d'%(b,b,b+2)), I('v_add_f32 v%d, v%d, v%d'%(b+4,b+4,b+6))]
        for b in (SS,QQ): Z+=[I('v_permlane32_swap_b32 v%d, v%d'%(b,b+4))]
        Z+=[I('v_add_f32 v28, v%d, v%d'%(SS,SS+4)), I('v_add_f32 v29, v%d, v%d'%(QQ,QQ+4)), I('v_lshlrev_b32 v5, 3, v0'), I('v_min_f32 v29, 0x7f800000, v29'),
            I('buffer_store_dwordx2 v[28:29], v5, s[16:19], s39 offen sc0 sc1'), I('s_setprio 0'), I('s_mov_b32 s27, 0x4000'), I('s_sleep %d'%opt.get('zs0',8)),
            'L_k1_zp_%s:'%tag, I('s_mov_b32 s26, s38')]
        for k in range(20):
            Z+=[I('buffer_load_dwordx2 %s, v5, s[16:19], s26 offen offset:%d sc1'%(p(T+2*k),(k&1)*2048))]
            if k&1: Z+=[I('s_add_u32 s26, s26, 4096')]
        Z+=[I('s_waitcnt vmcnt(10)')]+[I('v_pk_add_f32 %s, %s, %s'%(p(T+2*k),p(T+2*k),p(T+2*k+10))) for k in range(5)]
        Z+=[I('s_waitcnt vmcnt(0)')]+[I('v_pk_add_f32 %s, %s, %s'%(p(T+20+2*k),p(T+20+2*k),p(T+30+2*k))) for k in range(5)]
        Z+=[I('v_pk_add_f32 %s, %s, %s'%(p(T+2*k),p(T+2*k),p(T+20+2*k))) for k in range(5)]
        Z+=[I('v_pk_add_f32 %s, %s, %s'%(p(T),p(T),p(T+2))), I('v_pk_add_f32 %s, %s, %s'%(p(T+4),p(T+4),p(T+6))),
            I('v_pk_add_f32 %s, %s, %s'%(p(T),p(T),p(T+8))), I('v_pk_add_f32 %s, %s, %s'%(p(T),p(T),p(T+4))),
            I('s_sub_u32 s27, s27, 1'), I('v_cmp_u_f32 vcc, v%d, v%d'%(T+1,T+1)), I('s_cbranch_scc1 L_k1_zg_%s'%tag), I('s_cbranch_vccz L_k1_zg_%s'%tag),
            I('s_sleep %d'%opt.get('zs1',2)), I('s_branch L_k1_zp_%s'%tag),
            'L_k1_zg_%s:'%tag, I('s_setprio %d'%opt.get('z2p',2)),
            I('v_mul_f32 v28, 0x%x, v%d'%(f2u(1/1792),T)), I('v_mul_f32 v29, 0x%x, v%d'%(f2u(1/1792),T+1)),
            I('v_fma_f32 v29, -v28, v28, v29'), I('v_max_f32 v29, 0, v29'), I('v_add_f32 v29, 0x3727c5ac, v29'), I('v_rsq_f32 v%d, v29'%ST),
            I('s_nop 0'), I('v_mul_f32 v%d, -v28, v%d'%(ST+1,ST))]
        Z+=[I('v_mov_b32 v%d, v%d'%(ST+4+i,ST+i)) for i in range(2)]+[I('v_permlane32_swap_b32 v%d, v%d'%(ST+i,ST+4+i)) for i in range(2)]
        Z+=[I('v_mov_b32 v%d, v%d'%(ST+2+i+4*k,ST+i+4*k)) for k in range(2) for i in range(2)]
        Z+=[I('v_permlane16_swap_b32 v%d, v%d'%(ST+i+4*k,ST+2+i+4*k)) for k in range(2) for i in range(2)]
        Z+=[I('v_mov_b32 v%d, v%d'%(6+2*t,ST+2*t+1)) for t in range(4)]+[I('v_mul_f32 v%d, v%d, v%d'%(ST+2*t,ST+2*t,RR+t)) for t in range(4)]
        for i in range(NB):
            for a in (2*i,2*i+1):
                for t in range(4):
                    for k in range(2): Z+=[I('v_pk_fma_f32 %s, %s, %s, %s op_sel_hi:[1,0,0]'%(p(acc(a,t)+2*k),p(acc(a,t)+2*k),p(ST+2*t),p(6+2*t)))]
            Z+=put(i)
        E2=['L_k1_z2_%s:'%tag]+auto_lgkm(Z,pre=auto_lgkm(e0,pre=body))
    tail=auto_lgkm(e0+E,pre=body)
    def stamp(k):
        if not opt.get('stamp'): return []
        return [I('%s s[%d:%d]'%('s_memrealtime' if opt.get('real') else 's_memtime',84+2*k,85+2*k)), I('s_waitcnt lgkmcnt(0)')]
    if opt.get('stamp'):
        k=[i for i,x in enumerate(tail) if 'v_mfma' in x][-1]
        tail=stamp(2)+tail[:k+1]+stamp(3)+tail[k+1:]
        k=[i for i,x in enumerate(first) if 'v_mfma' in x][0]
        first=first[:k]+stamp(1)+first[k:]
        if E2:
            k=[i for i,x in enumerate(E2) if 'buffer_store_dwordx2' in x][0]
            k2=[i for i,x in enumerate(E2) if x.startswith('L_k1_zg')][0]
            k3=[i for i,x in enumerate(E2) if 'v_mfma' in x][-1]
            E2=E2[:k3+1]+stamp(3)+E2[k3+1:k]+stamp(4)+E2[k:k2+1]+stamp(5)+E2[k2+1:]
    br=[I('s_branch L_k1_done')]
    code = first+loop+tail+br+(E2+br if E2 else [])+PO
    trs=[first+body+body+tail]
    if E2:
        k=[i for i,x in enumerate(tail) if 'L_k1_z2_' in x][0]
        trs.append(first+body+body+tail[:k+1]+E2)
    return code, trs, body

def gen_k1e(name='gemm1_kernel', opt={}):
    L=kernel_header(name); FU=opt.get('fused')
    B=[I('s_cmp_ge_u32 s2, 256'), I('s_cbranch_scc1 %s'%('L_k2_end' if FU else 'L_k1_end'))]
    if opt.get('stamp'): B+=[I('%s s[84:85]'%('s_memrealtime' if opt.get('real') else 's_memtime'))]
    B+=rt_begin(opt,sreg=96 if FU else 90)
    B+=[I('s_load_dwordx2 s[38:39], s[0:1], %d'%KA_X), I('s_load_dwordx2 s[6:7], s[0:1], %d'%KA_WQKV), I('s_load_dwordx2 s[36:37], s[0:1], %d'%KA_WIN),
        I('s_load_dwordx4 s[44:47], s[0:1], %d'%KA_DBG),
        I('v_lshrrev_b32 v1, 6, v0'), I('v_and_b32 v0, 63, v0'), I('s_nop 0'), I('v_readfirstlane_b32 s25, v1'),
        I('s_and_b32 s23, s2, 1'), I('s_lshl_b32 s23, s23, 2'), I('s_bfe_u32 s24, s2, 0x20003'), I('s_add_u32 s23, s23, s24'),
        I('s_bfe_u32 s32, s2, 0x20001'), I('s_lshr_b32 s30, s2, 5'), I('s_lshl_b32 s24, s32, 3'), I('s_add_u32 s24, s24, s30'),
        I('s_lshl_b32 s26, s24, 14'), I('s_lshl_b32 s27, s25, 11'), I('s_add_u32 s21, s26, s27'),
        I('v_lshlrev_b32 v24, 4, v0'),
        I('v_lshrrev_b32 v25, 3, v0'), I('v_lshrrev_b32 v26, 4, v0'), I('v_and_b32 v27, 7, v0'),
        I('s_lshl_b32 s26, s25, 16'),
        I('v_lshlrev_b32 v25, 11, v25'), I('v_add_u32 v25, s26, v25'),
        I('v_xor_b32 v27, v27, v26'), I('v_xor_b32 v26, 4, v27'),
        I('v_lshl_add_u32 v27, v27, 4, v25'), I('v_lshl_add_u32 v26, v26, 4, v25')]
    for i in range(4): B+=[I('v_add_u32 v%d, %d, v%d'%(vOA+i, i*8*2048-i*1024, (27,26)[i&1]))]
    B+=[I('s_lshl_b32 s28, s25, 12'), I('s_lshl_b32 s26, s23, 19'), I('s_add_u32 m0, s28, %d'%A_LDS),
        I('s_waitcnt lgkmcnt(0)')]
    B+=srd(64,38,39,'s26',256*2048)
    CWL=['L_cw0:', I('s_getpc_b64 s[16:17]'), I('s_mov_b32 s18, L_cw1-L_cw0'), I('s_mov_b32 s19, 0x20000'), I('s_lshr_b32 s27, s2, 3'), I('s_lshl_b32 s27, s27, 3'), I('s_add_u32 s27, s27, s25'), I('s_lshl_b32 s27, s27, 9'),
            I('v_lshlrev_b32 v22, 6, v0'), I('v_cmp_gt_u32 vcc, 8, v0'), I('v_add_u32 v22, s27, v22'), I('v_mov_b32 v23, 0x7fff0000'), I('v_cndmask_b32 v22, v23, v22, vcc'), I('buffer_load_dword v21, v22, s[16:19], 0 offen')]
    if opt.get('cw_')==1: B+=CWL
    for k in range(2): B+=[I('buffer_load_dwordx4 %s, v24, s[64:67], s21 offen offset:%d'%(vr(ACC+4*k,4),1024*k))]
    for i in range(4): B+=[I('buffer_load_dwordx4 v%d, s[64:67], 0 offen offset:%d lds'%(vOA+i,i*1024))]
    B+=[I('s_mov_b32 s4, s46'), I('s_mov_b32 s5, s47')]
    B+=srd(16,4,5,0,O_OFF)+srd(40,4,5,STAT_OFF,256*128)+srd(48,44,45,0,256)+srd(52,4,5,FLAG_OFF,65536)
    B+=[I('s_lshl_b32 s26, s23, 5'), I('s_add_u32 s26, s26, s24'), I('s_lshl_b32 s26, s26, 7'), I('s_lshl_b32 s27, s25, 3'), I('s_add_u32 s26, s26, s27'),
        I('v_mov_b32 v22, s26'), I('v_cmp_eq_u32 vcc, 0, v0'), I('v_mov_b32 v29, 0x7fff0000'), I('v_cndmask_b32 v30, v29, v22, vcc'),
        ]
    B+=[I('s_lshl_b32 s26, s2, 8'), I('s_cmp_lg_u32 s25, 0'), I('s_cselect_b32 s26, 0x7fff0000, s26'),
        I('v_and_b32 v22, 7, v0'), I('v_lshl_add_u32 v22, v22, 2, s26'), I('v_lshrrev_b32 v23, 3, v0'), I('v_lshl_add_u32 v22, v23, 7, v22'), I('v_cmp_gt_u32 vcc, 16, v0')]
    B+=[I('v_cndmask_b32 v29, v29, v22, vcc'), I('v_mov_b32 v31, 0'),
        I('s_lshl_b32 s47, s23, 5'), I('s_and_b32 s56, s24, 3'), I('s_add_u32 s56, s56, 5'),
        I('s_cmp_lg_u32 s25, 0'), I('s_cselect_b32 s56, 100, s56'), I('s_mov_b32 s57, 0'),
        I('s_lshl_b32 s31, s23, 14'), I('s_and_b32 s26, s25, 3'), I('s_lshl_b32 s26, s26, 12'), I('s_add_u32 s31, s31, s26'),
        I('s_cmp_ge_u32 s30, 3'), I('s_cbranch_scc1 L_k1_z')]
    V=[I('s_mul_i32 s33, s32, 3'), I('s_add_u32 s33, s33, s30'), I('s_lshl_b32 s26, s33, 9'), I('s_sub_u32 s27, 0x600000, s26')]
    V+=srd(68,6,7,'s26','s27')
    V+=[I('s_lshl_b32 s26, s33, 1'), I('s_lshr_b32 s27, s25, 2'), I('s_add_u32 s26, s26, s27'), I('s_lshl_b32 s26, s26, 19'), I('s_add_u32 s31, s31, s26'), I('s_add_u32 s31, s31, 0x%x'%P1_OFF),
        I('s_cmp_lt_u32 s33, 4'), I('s_cselect_b32 s34, 0x%x, 1.0'%QSCALE), I('s_lshl_b32 s83, s33, 10')]
    c1,tr1,b1=gen_variant(4,6144,'q',False,opt)
    def zhead():
        return [I('s_lshl_b32 s26, s34, 6'), I('s_sub_u32 s27, 0x700000, s26')]+srd(68,36,37,'s26','s27')+[
            I('s_lshl_b32 s26, s34, 17'), I('s_add_u32 s31, s31, s26'), I('s_cmp_lt_u32 s25, 4'), I('s_cselect_b32 s26, 0x%x, s82'%Z2N_OFF), I('s_add_u32 s31, s31, s26'),
            I('s_lshl_b32 s83, s33, 10'), I('s_add_u32 s83, s83, %d'%(12*1024))]
    W=['L_k1_z:', I('s_mov_b32 s82, 0x%x'%(P1_OFF+96*131072)), I('s_cmp_eq_u32 s30, 7'), I('s_cbranch_scc1 L_k1_z4'),
       I('s_lshl_b32 s33, s32, 2'), I('s_add_u32 s33, s33, s30'), I('s_sub_u32 s33, s33, 3'), I('s_mul_i32 s34, s33, 3')]+zhead()
    c2,tr2,b2=gen_variant(3,7168,'z6',True,opt)
    W4=['L_k1_z4:', I('s_add_u32 s33, s32, 16'), I('s_lshl_b32 s34, s32, 1'), I('s_add_u32 s34, s34, 48')]+zhead()
    c3,tr3,b3=gen_variant(2,7168,'z4',True,opt)
    FZ=['L_k1_done:', I('s_or_b32 s26, s2, s25'), I('s_cbranch_scc1 L_k1_nz')]+srd(12,4,5,FLAG_OFF,8192)+[I('v_lshlrev_b32 v1, 7, v0')]+[I('v_mov_b32 v%d, 0'%r) for r in range(8,12)]+[
        I('buffer_store_dwordx4 v[8:11], v1, s[12:15], 0 offen'), I('buffer_store_dwordx4 v[8:11], v1, s[12:15], 0 offen offset:16'), 'L_k1_nz:']
    Zs=[]
    if opt.get('stamp'):
        Zs=[I('s_waitcnt vmcnt(0)'), I('%s s[96:97]'%('s_memrealtime' if opt.get('real') else 's_memtime')), I('s_waitcnt lgkmcnt(0)'),
            I('s_cmp_lg_u32 s2, %d'%opt.get('stamp_wg',0)), I('s_cbranch_scc1 L_k1_nost'), I('s_lshl_b32 s26, s25, 5'), I('s_and_b32 s26, s26, 0x9f'), I('s_bitcmp1_b32 s25, 0'), I('s_cbranch_scc1 L_k1_nost'),
            I('s_bitcmp1_b32 s25, 1'), I('s_cbranch_scc1 L_k1_nost'), I('s_lshr_b32 s26, s26, 2'), I('s_add_u32 s26, s26, 4'), I('v_mov_b32 v1, s26')]
        for k in range(1,7):
            Zs+=[I('s_sub_u32 s26, s%d, s84'%(84+2*k)), I('v_mov_b32 v2, s26'), I('buffer_store_dword v2, v1, s[48:51], 0 offen offset:%d'%(4*(k-1)))]
        Zs+=['L_k1_nost:']
    if opt.get('rt'): Zs+=[I('s_waitcnt vmcnt(0)'), I('s_barrier'), I('s_cmp_lg_u32 s25, 0'), I('s_cbranch_scc1 L_k1_end')]
    Zs+=rt_end(opt,opt.get('k1_idx',0),'k1')
    code,_=fix_hazards(B+V+c1+W+c2+W4+c3+(['L_k1_done:'] if FU else ['L_k1_done:']+Zs+['L_k1_end:', I('s_endpgm')]))
    for pre,trs,b,tg in ((V,tr1,b1,'q'),(W,tr2,b2,'z6'),(W4,tr3,b3,'z4')):
        for tr in trs:
            t,_=fix_hazards(B+pre+tr); check_waits(t,'k1'+tg)
        fix_hazards(b+b,auto=False,tag='k1loop'+tg)
    lds=163840
    if FU: return L+code
    return L+code, kernel_desc(name,256,256,102), '; @launch kernel=%s grid=(256,1,1) block=(512,1,1) lds=%d'%(name,lds)
```

```python
from common import *
def m16(d,a,b,c=None): return I('v_mfma_f32_16x16x32_bf16 %s, %s, %s, %s'%(vr(d,4),vr(a,4),vr(b,4),vr(d,4) if c is None else c))
Q=16; KB=32; VB=48; SA=64; SB=80; PA=96; PB=104; OA=112; OB=128; LA=144; LB=148; ONES=152; vIDX=156
vK,vV0,vV1,vD=4,5,6,7
vL16=11
KV=131072
FR=32; G=96; ACC=160
vOA=224; vOB=228; vA=230; vB=238; vBIAS=242
REG=[0,32768,65536,98304]
AR=32; FR3=160; Y=192; XR=224; S0=128; S1=144
vW=16; vA3=20; vB3=22; vX=28
WSL=lambda t: (t%8)*16384
CB=KV
def gen_k2h(name='mid_kernel', opt={}):
    FU=opt.get('fused'); TST=opt.get('tst')
    RP=opt.get('rp',8); RO=opt.get('ro',8); RH=opt.get('rh',4)
    L=FU if FU else kernel_header(name)
    STAMP=opt.get('stamp')
    def st(k): return [I('%s s[%d:%d]'%('s_memrealtime' if opt.get('real') else 's_memtime',76+2*k,77+2*k)), I('s_waitcnt lgkmcnt(0)')] if STAMP else []
    bar=[I('s_barrier')]
    TRC=opt.get('trace')
    gbr=bar+([I('%s s[94:95]'%('s_memrealtime' if opt.get('real') else 's_memtime')), I('s_mov_b32 s92, m0'), I('s_mov_b32 m0, s93'), I('s_waitcnt lgkmcnt(0)'), I('s_sub_u32 s94, s94, s76'),
              I('v_writelane_b32 v9, s94, m0'), I('s_mov_b32 m0, s92'), I('s_add_u32 s93, s93, 1')] if TRC else [])
    NA=opt.get('na',7)
    H=[I('s_mov_b32 s74, s83')] if FU else [I('s_cmp_ge_u32 s2, 256'), I('s_cbranch_scc1 L_k2_end')]+rt_begin(opt,sreg=96)
    DZ=FU and opt.get('dz',0)
    H+=([] if (FU and not opt.get('oldk1')) else [I('s_load_dwordx2 s[4:5], s[0:1], %d'%KA_WS),
        I('s_load_dwordx4 s[60:63], s[0:1], %d'%KA_WSP),
        I('s_load_dwordx2 s[66:67], s[0:1], %d'%KA_WO), I('s_load_dwordx4 s[68:71], s[0:1], %d'%KA_WOUT),
        I('s_load_dwordx2 s[72:73], s[0:1], %d'%KA_X),
        ])+([] if FU else [I('v_lshrrev_b32 v1, 6, v0'), I('v_and_b32 v0, 63, v0'), I('s_nop 0'), I('v_readfirstlane_b32 s25, v1')])+[
        I('s_bfe_u32 s27, s2, 0x20003'), I('s_lshr_b32 s34, s2, 5'),
        I('s_and_b32 s42, s25, 3'), I('v_lshlrev_b32 v%d, 4, v0'%vL16),
        I('s_and_b32 s64, s2, 3'), I('s_lshl_b32 s64, s64, 2'), I('s_add_u32 s64, s64, s27'),
        I('s_cmp_ge_u32 s25, 4'), I('s_cbranch_scc1 L_gemm')]
    NC=opt.get('nc',11); CW=opt.get('cw',3); CQ=opt.get('cq',5); CK=opt.get('ck',8)
    NX=opt.get('nx',1); DE=opt.get('de',3)
    NBAR=NA+32+NC+15+NX
    assert NBAR>=60
    b3addr=[I('v_lshrrev_b32 v13, 5, v0'), I('v_and_b32 v12, 31, v0'), I('v_lshlrev_b32 v12, 3, v12'), I('v_lshl_add_u32 v%d, v13, 10, v12'%vB3),
        I('v_add_u32 v%d, 65536, v%d'%(vB3+1,vB3))]
    b3addr+=[I('v_mov_b32 v%d, v%d'%(vA3,vL16)), I('v_add_u32 v%d, 4096, v%d'%(vA3+1,vL16)),
        I('s_lshl_b32 s43, s64, 2'), I('s_add_u32 s43, s43, s42')]
    def ldA(st_):
        Gr=[[I('buffer_load_dwordx4 %s, v%d, s[8:11], s24 offen offset:%d'%(vr(AR+32*st_+4*i,4),vA3+i//4,(i%4)*1024))] for i in range(8)]
        Gr[-1]+=[I('s_add_u32 s24, s24, 8192')]
        return Gr
    def dmaW(t):
        Gr=[[I('buffer_load_dwordx4 v%d, s[12:15], s58 offen offset:%d lds'%(vW+i,i*1024))] for i in range(4)]
        off=I('s_mov_b32 s58, %d'%((t-14)*128*2048)) if t>=14 else I('s_add_u32 s58, s%d, %d'%(56 if t<7 else 57,t*128*2048))
        return [[I('s_add_u32 m0, s41, %d'%WSL(t)), off]]+Gr
    def rd3(t,j):
        f=FR3+16*(j&1)
        if isinstance(t,tuple): return [I('ds_read_b64_tr_b16 %s, v%d offset:%d'%(vr(f+4*n+2*u,2),t[0],j*4096+u*2048+n*256)) for n in range(4) for u in range(2)]
        a=WSL(t)
        return [I('ds_read_b64_tr_b16 %s, v%d offset:%d'%(vr(f+4*n+2*u,2),vB3+(a>>16),(a&0xffff)+j*4096+u*2048+n*256)) for n in range(4) for u in range(2)]
    def tile3(t, aset, acc, c0, nxt, mid, early={}, late=[]):
        spine=[m16(acc[h]+4*n,FR3+16*(j&1)+4*n,AR+32*aset+8*j+4*h,'0' if (c0 and j==0) else None) for j in range(4) for n in range(4) for h in ((0,1) if not (opt.get('snk3') and n&1) else (1,0))]
        fill={}
        def add(g,x): fill.setdefault(g,[]).extend(x)
        add(23,mid)
        for j in range(4):
            R = rd3(t,j+1) if j<3 else (rd3(nxt,0) if nxt is not None else [])
            for k,r in enumerate(R): add(8*j+k,[r])
        for g,x in early.items(): add(g,x)
        for k,g in enumerate(late): add(24+(k*8)//len(late),g)
        return interleave(spine,fill)
    flat=lambda Gr:[x for g in Gr for x in g]
    def pub1(lab,wave,off,n):
        return [I('s_cmp_lg_u32 s25, %d'%wave), I('s_cbranch_scc1 %s'%lab), I('s_mov_b64 exec, %d'%((1<<n)-1)), I('v_mov_b32 v12, 1'), I('v_lshlrev_b32 v15, 7, v0'),
                I('buffer_atomic_add v12, v15, s[48:51], %s offen sc1'%off), I('s_mov_b64 exec, -1'), lab+':']
    def ask1(lab,wave,off):
        return [I('s_cmp_lg_u32 s25, %d'%wave), I('s_cbranch_scc1 %s'%lab), I('s_mov_b64 exec, 1'), I('v_mov_b32 v12, 0'),
                I('buffer_load_dword v15, v12, s[48:51], %s offen sc1'%off), I('s_mov_b64 exec, -1'), lab+':']
    def chk1(lab,wave,off,n,landed=False):
        return [I('s_cmp_lg_u32 s25, %d'%wave), I('s_cbranch_scc1 %s'%lab), I('s_mov_b64 exec, 1'), I('s_mov_b32 s27, 0x40000')]+([I('s_branch %s_k'%lab)] if landed else [])+[
                lab+'_l:', I('s_waitcnt vmcnt(0)'), lab+'_k:', I('v_readfirstlane_b32 s26, v15'), I('s_sub_u32 s27, s27, 1'), I('s_cmp_ge_u32 s26, %d'%n), I('s_cbranch_scc1 %s_g'%lab),
                I('s_sleep %d'%opt.get('slp',1)), I('buffer_load_dword v15, v12, s[48:51], %s offen sc1'%off), I('s_cmp_lg_u32 s27, 0'), I('s_cbranch_scc1 %s_l'%lab),
                lab+'_g:', I('s_mov_b64 exec, -1'), lab+':']
    A=[I('s_and_b32 s26, s2, 7'), I('s_lshl_b32 s33, s26, 2'), I('s_add_u32 s33, s33, s27'),
       I('s_lshl_b32 s30, s34, 14'), I('s_lshl_b32 s27, s42, 12'), I('s_add_u32 s30, s30, s27'),
       I('s_and_b32 s26, s42, 1'), I('s_lshl_b32 s40, s26, 10'), I('s_lshl_b32 s41, s42, 10'), I('s_add_u32 s41, s41, %d'%KV),
       I('v_bfe_u32 v12, v0, 4, 1'), I('v_lshlrev_b32 v12, 7, v12'),
       I('s_cmp_ge_u32 s42, 2'), I('s_cselect_b32 s26, -1, 0'), I('v_and_b32 v12, s26, v12'), I('v_xor_b32 v%d, v%d, v12'%(vD,vL16)),
       I('s_lshl_b32 s26, s33, 17'), I('s_add_u32 s27, s26, 0x%x'%P1_OFF),
       I('s_lshr_b32 s35, s42, 1'), I('s_add_u32 s35, s35, 1'), I('s_lshl_b32 s35, s35, 22'), I('s_add_u32 s35, s35, s27'),
       I('s_mov_b32 m0, s41'), I('s_waitcnt lgkmcnt(0)')]+st(0)
    A+=srd(36,4,5,'s27',131072)+srd(16,4,5,'s35',131072)
    def kvd(sl): return [I('s_add_u32 m0, s41, %d'%(sl*4096)), I('buffer_load_dwordx4 v%d, s[16:19], s40 offen lds'%vD), I('s_add_u32 s40, s40, 2048')]
    AL=kvd(0)[1:]
    for i in range(4): AL+=[I('buffer_load_dwordx4 %s, v%d, s[36:39], s30 offen offset:%d'%(vr(Q+4*i,4),vL16,1024*i))]
    KF=opt.get('kvfirst',2)
    for sl in range(1,KF): AL+=kvd(sl)
    if not FU: A+=AL
    A+=[I('s_setprio %d'%opt.get('pa',1))]+srd(52,4,5,O_OFF,O_SIZE)
    A+=[I('s_lshl_b32 s26, s34, 3'), I('s_lshl_b32 s27, s42, 1'), I('s_add_u32 s26, s26, s27'),
        I('s_lshl_b32 s26, s26, 5'), I('s_add_u32 s26, s26, s33'), I('s_lshl_b32 s46, s26, 11'),
        I('v_add_u32 v%d, %d, v%d'%(vK,KV,vL16)),
        I('v_bfe_u32 v14, v0, 1, 1'), I('v_and_b32 v13, 1, v0'), I('v_lshrrev_b32 v15, 2, v0'), I('v_lshlrev_b32 v12, 3, v14'), I('v_xor_b32 v15, v15, v12'),
        I('v_lshlrev_b32 v15, 4, v15'), I('v_lshl_add_u32 v15, v13, 3, v15'), I('v_lshl_add_u32 v15, v14, 8, v15'),
        I('v_add_u32 v%d, %d, v15'%(vV0,KV+2048)),
        I('v_lshrrev_b32 v12, 5, v0'), I('v_cmp_eq_u32 vcc, v14, v12'),
        I('v_mul_u32_u24 v13, 0xaaaa, v13'), I('v_add_u32 v%d, 0x4444, v13'%vIDX),
        I('v_mov_b32 v13, 0x3f803f80'), I('v_cndmask_b32 v%d, 0, v13, vcc'%ONES)]
    for i in range(1,4): A+=[I('v_mov_b32 v%d, v%d'%(ONES+i,ONES))]
    for r in list(range(OA,OA+40))+list(range(PB,PB+8))+list(range(VB+8,VB+16)): A+=[I('v_mov_b32 v%d, 0'%r)]
    def wait_lines(lab,nl,tgt,first=True,va=12,off=0,landed=False):
        msk=(1<<nl)-1
        ld=[I('buffer_load_dword v15, v%d, s[48:51], 0 offen offset:%d sc1'%(va,off))]
        return [I('s_mov_b64 exec, %d'%msk), I('s_mov_b32 s47, 0x40000')]+(ld if first else [])+([I('s_branch %s_k'%lab)] if landed else [])+[lab+'_l:', I('s_waitcnt vmcnt(0)'), lab+'_k:', I('v_cmp_le_u32 vcc, %d, v15'%tgt), I('s_sub_u32 s47, s47, 1'),
                I('s_nop 0'), I('s_cmp_eq_u32 vcc_lo, %d'%msk), I('s_cbranch_scc1 %s_g'%lab), I('s_sleep %d'%opt.get('slp1',1))]+ld+[I('s_cmp_lg_u32 s47, 0'), I('s_cbranch_scc1 %s_l'%lab),
                lab+'_g:', I('s_mov_b64 exec, -1')]
    def arrive(lab):
        return [I('v_mov_b32 v13, 1'), I('v_lshlrev_b32 v14, 7, v0'), I('v_mov_b32 v9, 1024'), I('s_mov_b64 exec, 1'), I('s_waitcnt vmcnt(0)'), I('ds_add_rtn_u32 v9, v9, v13'), I('s_waitcnt lgkmcnt(0)'),
                I('v_readfirstlane_b32 s26, v9'), I('s_mov_b64 exec, %d'%((1<<RP)-1)), I('s_cmp_lg_u32 s26, 7'), I('s_cbranch_scc1 %s'%lab), I('buffer_atomic_add v13, v14, s[48:51], s74 offen sc1'), lab+':', I('s_mov_b64 exec, -1')]
    if FU:
        A+=srd(48,4,5,FLAG_OFF,65536)+[I('s_bfe_u32 s26, s2, 0x20001'), I('s_lshl_b32 s26, s26, 3'), I('s_and_b32 s27, s34, %d'%(RP-1)), I('s_add_u32 s26, s26, s27'), I('s_lshl_b32 s26, s26, 7'),
            I('v_lshlrev_b32 v12, 12, v0'), I('v_add_u32 v12, s26, v12'),]
        if opt.get('arr',0):
            A+=[I('s_cmp_lg_u32 s25, 0'), I('s_cbranch_scc1 L_t_b'), I('s_mov_b64 exec, 7'), I('buffer_load_dword v15, v12, s[48:51], 0 offen sc1'), I('s_mov_b64 exec, -1'), 'L_t_b:']+arrive('L_t_pa')
            A+=(st(3) if TST else [])+[I('s_cmp_lg_u32 s25, 0'), I('s_cbranch_scc1 L_t_a')]+wait_lines('L_t_w',3,8,False)+['L_t_a:']
        else:
            A+=[I('v_mov_b32 v13, 1'), I('v_lshlrev_b32 v14, 7, v0'), I('s_waitcnt vmcnt(0)')]+(st(3) if TST else [])+bar
            A+=[I('s_cmp_lg_u32 s25, 0'), I('s_cbranch_scc1 L_t_a'), I('s_mov_b64 exec, %d'%((1<<RP)-1)), I('buffer_atomic_add v13, v14, s[48:51], s74 offen sc1')]+wait_lines('L_t_w',3,8)+['L_t_a:']
        A+=bar+(st(4) if TST else [])+AL
    def rdK(i,base): return [I('ds_read_b128 %s, v%d offset:%d'%(vr(KB+8*(i&1)+4*f,4),vK,base+1024*f)) for f in range(2)]
    def rdV(i,base,v0=vV0,hs=1024): return [I('ds_read_b64_tr_b16 %s, v%d offset:%d'%(vr(VB+8*(i&1)+4*f+2*u,2),v0,base+512*f+hs*u)) for f in range(2) for u in range(2)]
    xf=((0,0),(0,1),(1,1),(1,0)) if opt.get('snka') else ((0,0),(0,1),(1,0),(1,1))
    qk=lambda S_,k,q: [m16(S_+8*x+4*f,k+4*f,q+4*x,'0') for x,f in xf]
    pv=lambda O_,v,P_: [m16(O_+8*x+4*f,v+4*f,P_+4*x) for x,f in xf]
    smf=lambda L_,P_: [I('v_smfmac_f32_16x16x64_bf16 %s, %s, %s, v%d'%(vr(L_,4),vr(ONES,4),vr(P_,8),vIDX))]
    A+=[I('s_mov_b32 s45, 7'), I('s_waitcnt vmcnt(%d)'%(KF-1))]+bar+rdK(0,0)+flat([kvd(sl) for sl in range(KF,7)])+[I('s_waitcnt lgkmcnt(0)')]+qk(SA,KB,Q)+[I('s_nop 7')]
    def phase(S_,P_, mf, extra):
        ex=[I('v_exp_f32 v%d, v%d'%(S_+i,S_+i)) for i in range(16)]
        cv=[I('v_cvt_pk_bf16_f32 v%d, v%d, v%d'%(P_+i,S_+2*i,S_+2*i+1)) for i in range(8)]
        pat=opt.get('att_pat',[(2,0),(2,1),(2,1),(2,1),(2,1),(2,1),(2,1),(2,1),(0,1)])
        mf=[mf[k] for k in opt.get('att_ord',range(9))]
        out=[]; e=0;c=0
        for k,(ne,nc) in enumerate(pat):
            out.append(mf[k]); out+=extra.get(k,[])
            out+=ex[e:e+ne]; e+=ne
            out+=cv[c:c+nc]; c+=nc
        assert e==16 and c==8
        return out
    AB=opt.get('att_bar',4); AD=opt.get('att_dma',2)
    def blocks(last):
        body=[]
        for i in range(8):
            kb=KB+8*(i&1); kn=KB+8*((i+1)&1); vb=VB+8*(i&1); vp=VB+8*((i+1)&1)
            rv=rdV(i,4096*i); rk=rdK(i+1,4096*((i+1)&7)); d=kvd((i+7)&7); sy=[I('s_waitcnt vmcnt(5)')]+bar
            qn=qk(SA,kn,Q)
            if last:
                if i>0: d=[]
                if 56+i>=NBAR: sy=[]
                else: sy=[I('s_waitcnt vmcnt(%d)'%(0 if 56+i==NBAR-1 else max(0,min(5,6-i))))]+bar
                if i==1: sy+=[I('v_mov_b32 v12, 0'), I('ds_write_b32 v%d, v12'%vK)]
                if i==7: rk=[]; qn=[I('s_nop 0')]*4
            ex={}
            for k in range(4): ex.setdefault((k*AB)//4,[]).append(rv[k])
            ex[AB]=sy+rk[:1]+d[:1]; ex[AB+1]=rk[1:]
            body+=phase(SA,PA,qk(SB,kb,Q+8)+pv(OB,vp,PB)+smf(LB,PB),ex)+phase(SB,PB,qn+pv(OA,vb,PA)+smf(LA,PA),{AD:d[1:]})
        return body
    body=auto_lgkm(blocks(False))
    lastb=auto_lgkm(blocks(True),pre=body)
    if opt.get('hk_nexp'): body=[x.replace('v_exp_f32','v_mov_b32') for x in body]
    if opt.get('hk_nval'): body=[x for x in body if 'v_exp' not in x and 'v_cvt' not in x]
    fix_hazards(body+body,auto=False,tag='att_loop')
    aloop=['L_att_loop:']+body+[I('s_sub_u32 s45, s45, 1'), I('s_cmp_lg_u32 s45, 0'), I('s_cbranch_scc1 L_att_loop')]+lastb
    AT=pv(OB,VB+8,PB)+smf(LB,PB)+[I('v_mov_b32 v160, 0x1f800000'), I('v_mov_b32 v161, 0x5f800000')]
    FB=[]
    p=lambda b: vr(b,2)
    for X,(O_,L_,Q_) in enumerate(((OA,LA,Q),(OB,LB,Q+8))):
        AT+=[I('v_pk_mul_f32 v[162:163], %s, 0 op_sel_hi:[1,0]'%p(O_))]
        for i in range(1,8): AT+=[I('v_pk_fma_f32 v[162:163], %s, 0, v[162:163] op_sel_hi:[1,0,1]'%p(O_+2*i))]
        AT+=[I('v_add_f32 v%d, v%d, v%d'%(L_,L_,L_+1)), I('v_add_f32 v%d, v%d, v%d'%(L_+2,L_+2,L_+3)),
             I('v_add_f32 v162, v162, v163'), I('v_add_f32 v163, v162, v%d'%(L_+2)), I('v_add_f32 v162, v162, v%d'%L_),
             I('v_cmp_nge_f32 vcc, v162, v160'), I('v_cmp_nle_f32 s[56:57], v162, v161'), I('v_cmp_nge_f32 s[26:27], v163, v160'), I('v_cmp_nle_f32 s[58:59], v163, v161'),
             I('s_or_b64 s[56:57], s[56:57], vcc'), I('s_or_b64 s[26:27], s[26:27], s[58:59]'), I('s_or_b64 s[56:57], s[56:57], s[26:27]'),
             I('s_cbranch_scc1 L_att_fb%d'%X), 'L_att_fb_ret%d:'%X, I('v_rcp_f32 v162, v%d'%L_), I('v_rcp_f32 v164, v%d'%(L_+2)), I('s_nop 0')]
        for i in range(8): AT+=[I('v_pk_mul_f32 %s, %s, %s op_sel_hi:[1,0]'%(p(O_+2*i),p(O_+2*i),p(162+2*(i//4))))]
        for i in range(8): AT+=[I('v_cvt_pk_bf16_f32 v%d, v%d, v%d'%(O_+i,O_+2*i,O_+2*i+1))]
        if X: AT+=[I('s_add_u32 s46, s46, 65536')]
        for h in range(2): AT+=[I('buffer_store_dwordx4 %s, v%d, s[52:55], s46 offen offset:%d sc0 sc1'%(vr(O_+4*h,4),vL16,1024*h))]
        FS=SA
        F=['L_att_fb%d:'%X, I('s_waitcnt vmcnt(0)'),
           I('s_lshl_b32 s26, s33, 17'), I('s_add_u32 s27, s26, 0x%x'%(P1_OFF+32*131072))]+srd(16,4,5,'s27',131072)
        F+=[I('s_add_u32 s27, s26, 0x%x'%(P1_OFF+64*131072))]+srd(20,4,5,'s27',131072)
        F+=[I('v_bfe_u32 v12, v0, 4, 1'), I('v_lshlrev_b32 v12, 7, v12'), I('v_xor_b32 v8, v%d, v12'%vL16), I('v_add_u32 v9, 1024, v8'),
            I('s_lshl_b32 s26, s42, 10'), I('s_add_u32 s26, s26, 2048'), I('v_add_u32 v2, s26, v%d'%vV0)]
        F+=[I('v_mov_b32 v%d, 0'%(O_+i)) for i in range(16)]
        F+=[I('v_mov_b32 v%d, 0'%L_), I('v_mov_b32 v%d, 0'%(L_+2)), I('v_mov_b32 v164, 0xff800000'), I('v_mov_b32 v165, 0xff800000'), I('s_mov_b32 s59, 0'), 'L_att_fbl%d:'%X,
            I('buffer_load_dwordx4 %s, v%d, s[16:19], s59 offen'%(vr(KB,4),vL16)),
            I('buffer_load_dwordx4 %s, v%d, s[16:19], s59 offen offset:1024'%(vr(KB+4,4),vL16)),
            I('s_add_u32 m0, s41, 4096'), I('s_nop 0'), I('buffer_load_dwordx4 v8, s[20:23], s59 offen lds'),
            I('s_add_u32 m0, s41, 8192'), I('s_nop 0'), I('buffer_load_dwordx4 v9, s[20:23], s59 offen lds'),
            I('s_waitcnt vmcnt(0)')]
        F+=rdV(0,0,2,4096)+qk(FS,KB,Q_)
        for x in range(2):
            s8=FS+8*x; mo=164+x; lx=L_+2*x
            F+=[I('v_max3_f32 v13, v%d, v%d, v%d'%(s8,s8+1,mo))]+[I('v_max3_f32 v13, v%d, v%d, v13'%(s8+2*i,s8+2*i+1)) for i in range(1,4)]
            for sw in (16,32): F+=[I('v_mov_b32 v14, v13'), I('v_permlane%d_swap_b32 v13, v14'%sw), I('v_max_f32 v13, v13, v14')]
            F+=[I('v_sub_f32 v14, v%d, v13'%mo), I('v_exp_f32 v14, v14'), I('v_mov_b32 v%d, v13'%mo)]
            F+=[I('v_sub_f32 v%d, v%d, v13'%(s8+i,s8+i)) for i in range(8)]+[I('v_exp_f32 v%d, v%d'%(s8+i,s8+i)) for i in range(8)]
            F+=[I('v_mul_f32 v%d, v%d, v14'%(lx,lx))]
            for i in range(8): F+=[I('v_add_f32 v%d, v%d, v%d'%(lx,lx,s8+i)), I('v_mul_f32 v%d, v%d, v14'%(O_+8*x+i,O_+8*x+i))]
        for i in range(8): F+=[I('v_cvt_pk_bf16_f32 v%d, v%d, v%d'%(PA+i,FS+2*i,FS+2*i+1))]
        F+=[I('s_waitcnt lgkmcnt(0)')]+pv(O_,VB,PA)+[
            I('s_add_u32 s59, s59, 2048'), I('s_cmp_lg_u32 s59, 131072'), I('s_nop 7'), I('s_nop 7'), I('s_cbranch_scc1 L_att_fbl%d'%X)]
        for lx in (L_,L_+2):
            for sw in (16,32): F+=[I('v_mov_b32 v14, v%d'%lx), I('v_permlane%d_swap_b32 v%d, v14'%(sw,lx)), I('v_add_f32 v%d, v%d, v14'%(lx,lx))]
        F+=[I('s_branch L_att_fb_ret%d'%X)]
        FB+=F
    AT+=([] if TST else st(3))+[I('s_setprio %d'%opt.get('pa2',0))]+srd(48,4,5,FLAG_OFF,65536)
    AT+=[I('s_lshl_b32 s30, s34, 10'), I('s_add_u32 s30, s30, %d'%(256*128)), I('s_and_b32 s26, s2, 7'), I('s_lshl_b32 s26, s26, 2'), I('s_add_u32 s30, s30, s26'),
         I('v_mov_b32 v12, 1'), I('v_lshlrev_b32 v15, 7, v0')]+bar*min(max(0,NBAR-64),opt.get('jp',1))
    AT+=[I('s_mov_b64 exec, 1'), I('s_waitcnt vmcnt(0)'), I('ds_add_rtn_u32 v13, v%d, v12'%vK), I('s_waitcnt lgkmcnt(0)'), I('v_readfirstlane_b32 s26, v13'),
         I('s_mov_b64 exec, %d'%((1<<RO)-1)), I('s_cmp_lg_u32 s26, 3'), I('s_cbranch_scc1 L_a_np'), I('buffer_atomic_add v12, v15, s[48:51], s30 offen sc1'), 'L_a_np:', I('s_mov_b64 exec, -1')]
    AT+=st(6)+[I('s_branch L_k2_fin')]
    Z=G+32
    S=['L_gemm:',
       I('s_bfe_u32 s65, s2, 0x10002'), I('s_mul_i32 s65, s65, 7'), I('s_add_u32 s65, s65, s34'),
       I('s_mov_b32 s93, 0')]
    ZL=[]
    S+=[I('s_lshl_b32 s26, s65, 2'), I('s_and_b32 s27, s42, 1'), I('s_lshl_b32 s27, s27, 1'), I('s_add_u32 s26, s26, s27'),
        I('s_lshl_b32 s30, s64, 2'), I('s_lshr_b32 s27, s42, 1'), I('s_lshl_b32 s27, s27, 1'), I('s_add_u32 s30, s30, s27'),
        I('s_lshl_b32 s31, s26, 6'), I('s_add_u32 s31, s31, s30'), I('s_lshl_b32 s31, s31, 11'),
        I('s_mul_i32 s32, s30, 56'), I('s_add_u32 s32, s32, s26'), I('s_lshl_b32 s32, s32, 11')]
    ZL+=srd(36,4,5,P1_OFF+96*131072,56*131072)
    for nf in range(2):
        for q in range(4): ZL+=[I('buffer_load_dwordx4 %s, v%d, s[36:39], s31 offen offset:%d'%(vr(Z+16*nf+4*q,4),vL16,1024*q))]
        if nf==0: ZL+=[I('s_add_u32 s31, s31, 131072')]
    ZL+=srd(36,62,63,0,4096)
    ZL+=[I('v_and_b32 v12, 15, v0'), I('v_lshlrev_b32 v12, 1, v12'), I('s_lshl_b32 s26, s30, 6')]
    ZL+=[I('v_mov_b32 v%d, 0'%(vBIAS+2*t)) for t in range(4)]
    ZL+=[I('buffer_load_short_d16_hi v%d, v12, s[36:39], s26 offen offset:%d'%(vBIAS+2*t,32*t)) for t in range(4)]
    SR=[I('s_lshl_b32 s26, s64, 19')]+srd(16,60,61,'s26',128*4096)
    SR+=[I('s_lshl_b32 s26, s65, 19'), I('s_add_u32 s26, s26, 0x%x'%Z2N_OFF)]+srd(20,4,5,'s26',128*4096)
    S+=[I('v_lshrrev_b32 v12, 3, v0'), I('v_lshrrev_b32 v13, 4, v0'), I('v_and_b32 v14, 7, v0'),
        I('s_lshl_b32 s26, s42, 17'), I('v_lshlrev_b32 v12, 12, v12'), I('v_add_u32 v12, s26, v12'),
        I('v_xor_b32 v14, v14, v13'), I('v_xor_b32 v15, 4, v14'),
        I('v_lshl_add_u32 v14, v14, 4, v12'), I('v_lshl_add_u32 v15, v15, 4, v12')]
    for i in range(4): S+=[I('v_add_u32 v%d, %d, v%d'%(vOA+i, i*8*4096-i*1024, 14+(i&1)))]
    S+=[I('v_and_b32 v13, 1, v13'), I('v_lshlrev_b32 v13, 6, v13'), I('v_xor_b32 v13, v%d, v13'%vL16), I('v_add_u32 v%d, s26, v13'%vOB)]
    S+=[I('s_lshl_b32 s41, s42, 12'), I('s_mov_b32 s40, 0'), I('s_mov_b32 s44, 0'), I('s_waitcnt lgkmcnt(0)')]+st(0)
    def dmaA(slot):
        Gr=[[I('buffer_load_dwordx4 v%d, s[16:19], s40 offen offset:%d lds'%(vOA+i,1024*i))] for i in range(4)]
        Gr[-1]+=[I('s_add_u32 m0, s41, %d'%(REG[slot]+16384)), I('s_add_u32 s40, s40, 128')]
        return Gr
    def dmaB(slot):
        Gr=[[I('buffer_load_dwordx4 v%d, s[20:23], s44 offen offset:%d lds'%(vOB,1024*i))] for i in range(4)]
        Gr[-1]+=[I('s_add_u32 s44, s44, 4096')]
        return Gr
    m0A=lambda slot: [I('s_add_u32 m0, s41, %d'%REG[slot]), I('s_nop 0')]
    S+=SR+[I('s_cmp_ge_u32 s2, 224'), I('s_cbranch_scc1 L_g_nd')]
    GD=1 if FU else opt.get('gd',0)
    D01=m0A(0)+flat(dmaA(0))+flat(dmaB(0))+m0A(1)+flat(dmaA(1))+flat(dmaB(1))
    if GD==0: S+=D01
    S+=['L_g_nd:']+srd(48,4,5,FLAG_OFF,65536)+srd(52,4,5,H_OFF,H_SIZE)
    S+=[I('v_and_b32 v12, 15, v0'), I('v_lshrrev_b32 v13, 4, v0'), I('v_bfe_u32 v14, v0, 1, 3'),
        I('s_lshr_b32 s26, s42, 1'), I('s_lshl_b32 s26, s26, 13'),
        I('v_lshlrev_b32 v12, 7, v12'), I('v_add_u32 v12, s26, v12'),
        I('v_xor_b32 v15, v13, v14'), I('v_lshl_add_u32 v%d, v15, 4, v12'%vA), I('v_xor_b32 v%d, 64, v%d'%(vA+1,vA))]
    S+=[I('v_add_u32 v%d, 65536, v%d'%(vA+2+j,vA+j)) for j in range(2)]
    S+=[I('v_bfe_u32 v12, v0, 4, 1'), I('v_and_b32 v13, 1, v0'), I('v_bfe_u32 v14, v0, 1, 1'), I('v_bfe_u32 v15, v0, 2, 2'),
        I('v_lshl_add_u32 v15, v12, 3, v15'), I('v_lshl_add_u32 v15, v14, 2, v15'),
        I('v_lshlrev_b32 v15, 4, v15'), I('v_lshl_add_u32 v15, v13, 3, v15'),
        I('v_lshl_add_u32 v15, v14, 8, v15'), I('v_lshrrev_b32 v12, 5, v0'), I('v_lshl_add_u32 v15, v12, 10, v15'),
        I('s_and_b32 s26, s42, 1'), I('s_lshl_b32 s26, s26, 13'), I('s_add_u32 s26, s26, 16384'),
        I('v_add_u32 v%d, s26, v15'%vB), I('v_xor_b32 v%d, 64, v%d'%(vB+1,vB))]
    S+=[I('v_add_u32 v%d, 65536, v%d'%(vB+2+u,vB+u)) for u in range(2)]
    S+=[
        I('s_bfe_u32 s26, s2, 0x10002'), I('s_lshl_b32 s26, s26, 3'), I('s_add_u32 s59, s26, s34'), I('s_lshl_b32 s59, s59, 7'),
        I('v_bfe_u32 v10, v0, 3, 1'), I('v_bfe_u32 v12, v0, 1, 2'), I('v_lshl_add_u32 v10, v10, 4, v12'), I('s_lshl_b32 s26, s42, 5'), I('v_add_u32 v10, s26, v10'), I('v_lshlrev_b32 v10, 11, v10'),
        I('v_lshrrev_b32 v13, 4, v0'), I('v_lshl_add_u32 v10, v13, 5, v10'), I('v_and_b32 v12, 1, v0'), I('v_lshl_add_u32 v%d, v12, 4, v10'%vW)]
    for i in range(1,4): S+=[I('v_add_u32 v%d, %d, v%d'%(vW+i,i*(4*2048-1024),vW))]
    S+=[I('v_and_b32 v10, 15, v0'), I('v_lshlrev_b32 v10, 11, v10'), I('v_lshrrev_b32 v12, 5, v0'), I('v_lshl_add_u32 v10, v12, 4, v10'),
        I('v_bfe_u32 v12, v0, 4, 1'), I('v_lshl_add_u32 v%d, v12, 5, v10'%vX)]+b3addr
    S+=[I('s_bfe_u32 s75, s2, 0x10002'), I('s_mul_i32 s56, s75, %d'%(7*128*2048)), I('s_sub_u32 s57, 0, s56')]
    wsrd=[I('s_sub_u32 s26, 0x380000, s59')]+srd(12,68,69,'s59','s26')
    S+=wsrd+[I('s_setprio %d'%opt.get('pg',0))]
    if FU: S+=[I('s_mul_i32 s26, s65, 11'), I('s_lshr_b32 s26, s26, 5'), I('s_add_u32 s26, s26, s65'), I('s_cmp_eq_u32 s65, 13'), I('s_addc_u32 s26, s26, 12'),
               I('v_add_u32 v10, s26, v0'), I('s_lshr_b32 s26, s64, 1'), I('s_and_b32 s26, s26, %d'%(RP-1)), I('v_lshl_add_u32 v10, v10, 3, s26'), I('v_lshlrev_b32 v10, 7, v10')]+(arrive('L_t_pg') if opt.get('arr',0) else [I('s_waitcnt vmcnt(0)')]+bar)+bar
    S+=bar
    C=[]
    W=[I('s_cmp_ge_u32 s2, 224'), I('s_cbranch_scc1 L_g_idle')]
    CZ=opt.get('cz',1) if FU else 0
    if FU:
        w7=lambda lab,X: [I('s_cmp_lg_u32 s25, 7'), I('s_cbranch_scc1 %s'%lab)]+X+[lab+':']
        W+=w7('L_t_z0',[I('s_mov_b64 exec, 3'), I('buffer_load_dword v15, v10, s[48:51], 0 offen sc1'), I('s_mov_b64 exec, -1')])+gbr*(CZ-1)+w7('L_t_z1',wait_lines('L_t_z',2,8,False,10))+gbr
    if GD: W+=D01
    G2=opt.get('g2',1)
    W+=gbr*G2+m0A(2)+flat(dmaA(2))+flat(dmaB(2))+m0A(3)+flat(dmaA(3))
    def zst(i): return [I('s_cmp_gt_u32 s91, %d'%i), I('s_cselect_b32 s26, 0, 0x7fff0000'), I('s_cselect_b32 s27, s%d, 0'%(88+i)), I('v_add_u32 v14, s26, v%d'%vL16)]+[
        I('buffer_store_dwordx4 %s, v14, s[36:39], s27 offen offset:%d sc0 sc1'%(vr(128+32*i+4*t,4),1024*t)) for t in range(4)]
    zpub=lambda lab: [I('s_cmp_eq_u32 s91, 0'), I('s_cbranch_scc1 %s'%lab), I('s_add_u32 s26, s74, 4')]+pub1(lab,7,'s26',RP)
    NZ=12 if DZ==1 else 0
    nb=NA-1-G2-CZ
    if DZ==2:
        W+=srd(36,4,5,0,O_OFF)+[I('v_mov_b32 v%d, v%d'%(96+16*b+i,160+32*b+i)) for b in range(2) for i in range(16)]
        for i in range(3): W+=[I('s_cmp_gt_u32 s91, %d'%i), I('s_cselect_b32 s26, 0, 0x7fff0000'), I('s_cselect_b32 s%d, s%d, 0'%(88+i,88+i)), I('v_add_u32 v%d, s26, v%d'%(4+i,vL16))]
    zs2=lambda kt: [I('buffer_store_dwordx4 %s, v%d, s[36:39], s%d offen offset:%d sc0 sc1'%(vr((128,96,112)[i]+4*kt,4),4+i,88+i,1024*kt)) for i in range(3)]
    if DZ==1:
        W+=srd(36,4,5,0,O_OFF)
        for i in range(3):
            if nb>0: W+=gbr; nb-=1
            W+=zst(i)
    W+=gbr*nb+[I('s_waitcnt vmcnt(%d)'%(20+NZ))]+st(1)+gbr
    UP=[]
    for q in range(8): UP+=unpack8(Z+4*q,G+8*q)
    PEN0=20 if DZ else opt.get('pen0',28)
    ZT=22 if DZ else opt.get('zt',1)
    def reads(slot,j):
        so=REG[slot]&0xffff; hi=REG[slot]>>16; f=FR+32*j
        Ra=[I('ds_read_b128 %s, v%d offset:%d'%(vr(f+4*t,4),vA+2*hi+j,so+t*2048)) for t in range(4)]
        Rb=[I('ds_read_b64_tr_b16 %s, v%d offset:%d'%(vr(f+16+4*n+2*u,2),vB+2*hi+u,so+(n>>1)*4096+j*2048+(n&1)*512)) for n in range(4) for u in range(2)]
        return Rb[:2]+Ra+Rb[2:]
    gbar=opt.get('g2_bar',15)
    rp1=opt.get('g2_rp1',list(range(12))); rp2=opt.get('g2_rp2',list(range(gbar+1,gbar+13)))
    dgA=opt.get('g2_dgA',[17,21,25,29]); dgB=opt.get('g2_dgB',[1,5,9,13])
    def tile(kt):
        slot=kt%4; c0=(kt==0); nxt=kt<31
        spine=[m16(ACC+32*(n>>1)+8*t+4*(n&1), FR+32*j+16+4*n, FR+32*j+4*t, '0' if (c0 and j==0) else None) for j in range(2) for n in range(4) for t in (range(4) if not (opt.get('snk2') and n&1) else range(3,-1,-1))]
        fill={}
        def add(g,x): fill.setdefault(g,[]).extend(x)
        for pp,r in zip(rp1,reads(slot,1)): add(pp,[r])
        if kt+3<=31:
            for pp,g in zip(dgB,dmaB((kt+3)%4)): add(pp,g)
        else:
            Gw=dmaW(2*(kt-29)+1); add(-1,Gw[0])
            for pp,g in zip(dgB,Gw[1:]): add(pp,g)
        w={31:63,ZT+1:28,ZT+2:28}.get(kt,16)+(NZ if kt<2 else 0)+({1:3,2:6,3:6}.get(kt,0) if DZ==2 else 0)
        if DZ==2 and kt<4:
            for pp,x in zip(opt.get('dz_pos',[19,23,27]),zs2(kt)): add(pp,[x])
        add(gbar,[I('s_waitcnt vmcnt(%d) lgkmcnt(0)'%w)]+(w7('L_z1_c',wait_lines('L_z1_w',2,8,False,10,4,True)) if DZ and kt==ZT else [])+gbr)
        if DZ==1 and kt==2: add(gbar,zpub('L_z1_p'))
        if DZ==2 and kt==6: add(gbar,[I('s_cmp_lg_u32 s46, 4'), I('s_cbranch_scc1 L_z1_p')]+zpub('L_z1_p'))
        if DZ and kt==ZT-2: add(gbar,w7('L_z1_a',[I('s_mov_b64 exec, 3'), I('buffer_load_dword v15, v10, s[48:51], 0 offen offset:4 sc1'), I('s_mov_b64 exec, -1')]))
        if kt==ZT:
            zl=[[x] for x in ZL]
            for k,g in enumerate(zl): add(gbar+1+(k*16)//len(zl),g)
        if kt in (28,29):
            u=UP[32*(kt-28):32*(kt-27)]
            for k in range(32): add(k,u[k:k+1])
        if nxt:
            for pp,r in zip(rp2,reads((slot+1)%4,0)): add(pp,[r])
        if kt+4<=31:
            add(gbar,[I('s_add_u32 m0, s41, %d'%REG[slot])])
            for pp,g in zip(dgA,dmaA(slot)): add(pp,g)
        else:
            Gw=dmaW(2*(kt-28)); add(gbar,Gw[0])
            for pp,g in zip(dgA,Gw[1:]): add(pp,g)
        return interleave(spine,fill)
    W+=reads(0,0)+[I('s_mov_b32 s46, %d'%((PEN0-4)//4)), I('s_waitcnt lgkmcnt(0)')]+st(4)
    head=[]
    for t in range(4): head+=tile(t)
    head=auto_lgkm(head,pre=[])
    gb=[]
    for t in range(4,8): gb+=tile(t)
    gb=auto_lgkm(gb)
    if opt.get('hk_nda'): gb=[x for x in gb if not ('s[16:19]' in x and ' lds' in x)]
    if opt.get('hk_ndb'): gb=[x for x in gb if not ('s[20:23]' in x and ' lds' in x)]
    if opt.get('hk_nrd'): gb=[x for x in gb if 'ds_read' not in x]
    fix_hazards(gb+gb,auto=False,tag='g2loop')
    pen=[]
    for t in range(PEN0,32): pen+=tile(t)
    pen=auto_lgkm(pen,pre=gb)
    gloop=['L_g2_loop:']+gb+[I('s_sub_u32 s46, s46, 1'), I('s_cmp_lg_u32 s46, 0'), I('s_cbranch_scc1 L_g2_loop')]
    Ep=[]
    for nf in range(2):
        for m in range(2):
            a=ACC+16*(2*nf+m); g=G+16*(2*nf+m)
            for i in range(8): Ep+=[I('v_pk_add_f32 %s, %s, %s op_sel_hi:[1,0]'%(p(a+2*i),p(a+2*i),p(vBIAS+4*m+2*(i//4))))]
            for i in range(8): Ep+=[I('v_pk_mul_f32 %s, %s, %s'%(p(a+2*i),p(a+2*i),p(g+2*i)))]
            for i in range(8): Ep+=[I('v_cvt_pk_bf16_f32 v%d, v%d, v%d'%(a+i,a+2*i,a+2*i+1))]
            Ep+=[I('s_add_u32 s26, s32, %d'%(m*56*2048+nf*2048))]
            for h in range(2): Ep+=[I('buffer_store_dwordx4 %s, v%d, s[52:55], s26 offen offset:%d sc0 sc1'%(vr(a+4*h,4),vL16,1024*h))]
        if nf==0: Ep+=gbr
    def bars(n,tag):
        if n<=2: return gbr*n
        return [I('s_mov_b32 s47, %d'%n), 'L_%s:'%tag]+gbr+[I('s_sub_u32 s47, s47, 1'), I('s_cmp_lg_u32 s47, 0'), I('s_cbranch_scc1 L_%s'%tag)]
    Ep+=flat(dmaW(7))+st(6)+gbr*(CW-1)+[I('s_waitcnt vmcnt(4)')]+gbr
    Ep+=[I('s_lshl_b32 s30, s64, 1'), I('s_add_u32 s30, s30, s75'), I('s_lshl_b32 s30, s30, 8'), I('s_add_u32 s30, s30, %d'%(320*128))]+pub1('L_c_pb',7,'s30',2)
    D=['L_gC:', I('s_lshl_b32 s30, s64, 1'), I('s_add_u32 s30, s30, s75'), I('s_lshl_b32 s30, s30, 1'), I('s_and_b32 s26, s34, 1'), I('s_add_u32 s30, s30, s26'), I('s_lshl_b32 s30, s30, 7'),
       I('s_add_u32 s30, s30, %d'%(320*128)), I('s_xor_b32 s35, s30, 256'),
       I('s_lshr_b32 s31, s64, 1'), I('s_lshl_b32 s31, s31, 3'), I('s_and_b32 s26, s34, %d'%(RO-1)), I('s_add_u32 s31, s31, s26'), I('s_lshl_b32 s31, s31, 7'), I('s_add_u32 s31, s31, %d'%(256*128))]+srd(52,72,73,0,0x400000)
    D+=[I('s_lshl_b32 s32, s43, 16'), I('s_add_u32 s32, s32, s59'), I('s_add_u32 s33, s32, 32768')]
    D+=[I('buffer_load_dwordx4 %s, v%d, s[52:55], s%d offen offset:%d'%(vr(XR+4*q,4),vX,32+q//2,64*(q&1))) for q in range(4)]
    D+=[I('s_mul_i32 s26, s43, %d'%(56*2048)), I('s_add_u32 s26, s26, 0x%x'%H_OFF)]+srd(8,4,5,'s26',56*2048)+[I('s_mul_i32 s24, s75, %d'%(7*8192))]
    D+=[I('s_lshl_b32 s26, s43, 16'), I('s_add_u32 s26, s26, 0x%x'%O_OFF)]+srd(16,4,5,'s26',65536)
    D+=[I('s_sub_u32 s26, 0x200000, s59')]+srd(20,66,67,'s59','s26')+srd(52,70,71,0,0x400000)
    if CQ==CW: D+=ask1('L_c_ak',7,'s30')
    for k in range(CW+1,CK+1):
        if k==CK: D+=chk1('L_c_ck',7,'s30',7)
        D+=gbr
        if k==CQ: D+=ask1('L_c_ak',7,'s30')
    nb=NC-2-CK
    for k in range(3):
        D+=flat(ldA(k))
        if k<2 and nb>0: D+=gbr; nb-=1
    D+=gbr*nb+[I('s_waitcnt vmcnt(16)')]+gbr+st(5)+rd3(0,0)
    DT=[]
    swW=[I('s_mov_b64 s[12:13], s[20:21]'), I('s_mov_b32 s14, s22')]
    swA=[I('s_mov_b64 s[8:9], s[16:17]'), I('s_mov_b32 s10, s18')]
    def earlyA(st_): return {3*k:g for k,g in enumerate(ldA(st_))}
    for j in range(14):
        w={0:16,1:16,2:20,11:16,12:8,13:63}.get(j,24)
        mid=[I('s_waitcnt vmcnt(%d)'%w)]+(chk1('L_d_ck',7,'s35',7,True) if j==3 else [])+gbr
        if j==1: mid+=ask1('L_d_ak',7,'s35')
        if j==3: mid+=[I('s_xor_b32 s24, s75, 1'), I('s_mul_i32 s24, s24, %d'%(7*8192))]
        late=[]
        if j>=1:
            Gw=dmaW(j+7); mid=mid+(swW if j==7 else [])+Gw[0]; late=Gw[1:]
        DT+=tile3(j,j%4,(Y,Y+16),j==0,j+1 if j<13 else None,mid,earlyA((j+3)%4) if j<=10 else {},late)
    poll=[I('s_mov_b64 exec, 0xff'), I('buffer_load_dword v15, v14, s[48:51], s31 offen sc1'), I('s_mov_b64 exec, -1')]
    DT+=[I('s_waitcnt lgkmcnt(0)')]+gbr+flat(dmaW(21))+swA+[I('v_lshlrev_b32 v14, 2, v0'), I('s_mov_b32 s44, 0'), I('s_mov_b32 s45, 0')]+poll
    T3=FR3+16
    DT+=[I('s_mov_b32 s28, 0x%x'%f2u(-math.log2(math.e))), I('s_mov_b32 s29, s28')]
    for nf in range(2):
        y=Y+16*nf
        for i in range(8): DT+=[I('v_pk_mul_f32 %s, %s, s[28:29]'%(p(T3+2*i),p(y+2*i)))]
        for i in range(16): DT+=[I('v_exp_f32 v%d, v%d'%(T3+i,T3+i))]
        for i in range(8): DT+=[I('v_pk_add_f32 %s, %s, 1.0 op_sel_hi:[1,0]'%(p(T3+2*i),p(T3+2*i)))]
        for i in range(16): DT+=[I('v_rcp_f32 v%d, v%d'%(T3+i,T3+i))]
        for i in range(8): DT+=[I('v_pk_mul_f32 %s, %s, %s'%(p(y+2*i),p(y+2*i),p(T3+2*i)))]
    for q in range(4):
        DT+=[I('v_permlane16_swap_b32 v%d, v%d'%(XR+4*q,XR+4*q+2)), I('v_permlane16_swap_b32 v%d, v%d'%(XR+4*q+1,XR+4*q+3))]
    for i in range(15,-1,-1): DT+=[I('v_and_b32 v%d, 0xffff0000, v%d'%(XR+2*i+1,XR+i)), I('v_lshlrev_b32 v%d, 16, v%d'%(XR+2*i,XR+i))]
    DT+=gbr*(NX-1)+[I('s_waitcnt vmcnt(0)')]+gbr+st(3)
    assert DE in (2,3)
    def issue(k):
        lab='L_e%d'%k
        X=[I('s_andn2_b32 s26, s44, s45'), I('s_cbranch_scc1 %s_h'%lab), I('s_waitcnt vmcnt(%d)'%(8 if k else 0)), I('s_mov_b32 s47, 0x40000'),
           lab+'_l:', I('v_cmp_le_u32 vcc, 4, v15'), I('s_sub_u32 s47, s47, 1'), I('s_cselect_b32 s26, 0xff, 0'), I('s_or_b32 s26, s26, vcc_lo'), I('s_and_b32 s44, s26, 0xff'), I('s_andn2_b32 s26, s44, s45'),
           I('s_cbranch_scc1 %s_h'%lab), I('s_sleep %d'%opt.get('slp2',2))]+poll+[I('s_waitcnt vmcnt(0)'), I('s_branch %s_l'%lab),
           lab+'_h:', I('s_ff1_i32_b32 s46, s26'), I('s_bitset1_b32 s45, s46'), I('s_lshl_b32 s24, s46, 13'), I('s_add_u32 s26, s46, 6'), I('s_and_b32 s26, s26, 7'), I('s_lshl_b32 s%d, s26, 14'%(36+k%4))]
        return X+(poll if k<7 else [])+flat(ldA(k%3))
    def after(k): return sum(8+(1 if x<7 else 0) for x in range(k+1,min(8,k+DE)))
    vE=lambda k: 24+(k&1)
    for k in range(DE): DT+=issue(k)
    DT+=[I('v_add_u32 v%d, s36, v%d'%(vE(0),vB3))]+rd3((vE(0),),0)
    for k in range(8):
        DT+=[I('s_waitcnt vmcnt(%d)'%after(k))]
        DT+=tile3((vE(k),),k%3,(S0,S1),k==0,(vE(k+1),) if k<7 else None,[],{0:[I('v_add_u32 v%d, s%d, v%d'%(vE(k+1),36+(k+1)%4,vB3))]} if k<7 else {})
        if k+DE<8: DT+=issue(k+DE)
    for nf in range(2):
        y=(S0,S1)[nf]
        for i in range(8): DT+=[I('v_pk_fma_f32 %s, %s, %s, %s'%(p(y+2*i),p(y+2*i),p(Y+16*nf+2*i),p(XR+16*nf+2*i)))]
        for i in range(8): DT+=[I('v_cvt_pk_bf16_f32 v%d, v%d, v%d'%(y+i,y+2*i,y+2*i+1))]
        for h in range(2):
            DT+=[I('v_permlane16_swap_b32 v%d, v%d'%(y+4*h,y+4*h+2)), I('v_permlane16_swap_b32 v%d, v%d'%(y+4*h+1,y+4*h+3))]
        for h in range(2):
            DT+=[I('buffer_store_dwordx4 %s, v%d, s[52:55], s%d offen offset:%d %s'%(vr(y+4*h,4),vX,32+nf,64*h,opt.get('out_mod','')))]
    k0=len(D)-8
    D=D[:k0]+auto_lgkm(D[k0:]+DT,pre=[])
    ID=['L_g_idle:', I('v_lshlrev_b32 v12, 7, v0'), I('s_sub_u32 s26, s2, 224'), I('s_lshl_b32 s26, s26, 2'), I('s_add_u32 s26, s26, s42'), I('s_lshl_b32 s26, s26, 13')]
    ID+=srd(8,66,67,0,0x200000)+srd(20,68,69,0,0x380000)
    for k in range(2): ID+=[I('s_add_u32 s27, s26, %d'%(k*0x100000)), I('buffer_load_dword v13, v12, s[8:11], s27 offen')]
    for k in range(4): ID+=[I('s_add_u32 s27, s26, %d'%(k*0x100000)), I('buffer_load_dword v13, v12, s[20:23], s27 offen')]
    if DZ: ID+=gbr*3+srd(36,4,5,0,O_OFF)+zst(0)+zst(1)
    ID+=[I('s_waitcnt vmcnt(0)')]
    for t in range(8): ID+=gbr+(zpub('L_z1_q') if DZ and t==0 else [])+flat(dmaW(t))
    ID+=bars(NA+32+CW+1-8-(3 if DZ else 0),'g_idl')+[I('s_branch L_gC')]
    fin=['L_k2_fin:']
    if STAMP:
        fin+=[I('s_waitcnt vmcnt(0)')]+st(7)+[I('s_cmp_lg_u32 s2, %d'%opt.get('stamp_wg',0)), I('s_cbranch_scc1 L_k2_nost'), I('s_cmp_lg_u32 s42, %d'%opt.get('stamp_w',3)), I('s_cbranch_scc1 L_k2_nost'),
              I('s_load_dwordx2 s[6:7], s[0:1], %d'%KA_DBG), I('s_waitcnt lgkmcnt(0)')]+srd(48,6,7,0,256)+[
              I('s_lshr_b32 s26, s25, 2'), I('s_lshl_b32 s26, s26, 5'), I('v_mov_b32 v1, s26')]
        for k in range(1,8 if not TRC else 0): fin+=[I('s_sub_u32 s26, s%d, s76'%(76+2*k)), I('v_mov_b32 v2, s26'), I('buffer_store_dword v2, v1, s[48:51], 0 offen offset:%d'%(4*k))]
        if TRC: fin+=[I('s_cmp_lt_u32 s25, 4'), I('s_cbranch_scc1 L_k2_nost'), I('s_waitcnt vmcnt(0)'), I('v_lshlrev_b32 v1, 2, v0'), I('buffer_store_dword v9, v1, s[48:51], 0 offen')]
        fin+=['L_k2_nost:']
    if opt.get('wgst'):
        fin+=[I('s_cmp_lg_u32 s25, %d'%opt.get('wgw',0)), I('s_cbranch_scc1 L_k2_nowg')]+srd(48,4,5,ST_OFF+2*65536,65536)+[I('s_lshl_b32 s26, s2, 4'), I('v_mov_b32 v1, s26')]
        fin+=[I('v_mov_b32 v%d, s%d'%(4+i,76+2*k)) for i,k in enumerate(opt['wgst'])]+[I('s_nop 1'), I('buffer_store_dwordx4 v[4:7], v1, s[48:51], 0 offen'), 'L_k2_nowg:']
    if opt.get('rt'): fin+=[I('s_cmp_lg_u32 s25, 4'), I('s_cbranch_scc1 L_k2_end')]
    fin+=rt_end(opt,opt.get('k2_idx',1),'k2',sreg=96)+['L_k2_end:', I('s_endpgm')]
    code=H+A+st(1)+aloop+st(2)+AT+S+C+W+head+gloop+pen+Ep+D+fin+ID+FB
    code,_=fix_hazards(code)
    tr,_=fix_hazards(H+A+body+body+lastb+AT); check_waits(tr,'k2a')
    tr,_=fix_hazards(FB); check_waits(tr,'k2fb')
    tr,_=fix_hazards(H+S+C+W+head+gb+gb+pen+Ep+D); check_waits(tr,'k2g')
    return L+code, kernel_desc(name,256,256,102), '; @launch %sgrid=(256,1,1) block=(512,1,1) lds=163840'%('' if name.startswith('recurrent') else 'kernel=%s '%name)
```

```python
import sys
from build import *
from k1e import gen_k1e
from k2h import gen_k2h
opt=json.loads(sys.argv[2]) if len(sys.argv)>2 else {}
opt.setdefault('k2_idx',0)
name=opt.get('name','recurrent_scan__softmax_full_mha__mixer_gmlp__prompt_kernel')
o1=dict(opt); o1['fused']=1; o1['stamp']=0
o2=dict(opt); o2['fused']=gen_k1e(name=name,opt=o1)
assemble([gen_k2h(name=name,opt=o2)], sys.argv[1])
```

```python
from common import *
def m16(d,a,b,c=None): return I('v_mfma_f32_16x16x32_bf16 %s, %s, %s, %s'%(vr(d,4),vr(a,4),vr(b,4),vr(d,4) if c is None else c))
Q=16; KB=32; VB=48; SA=64; SB=80; PA=96; PB=104; OA=112; OB=128; LA=144; LB=148; ONES=152; vIDX=156
vK,vV0,vV1,vD=4,5,6,7
vL16=11
KV=131072
FR=32; G=96; ACC=160
vOA=224; vOB=228; vA=230; vB=238; vBIAS=242
REG=[0,32768,65536,98304]
AR=32; FR3=160; Y=192; XR=224; S0=128; S1=144
vW=16; vA3=20; vB3=22; vX=28
WSL=lambda t: (t%8)*16384
CB=KV
def gen_k2h(name='mid_kernel', opt={}):
    FU=opt.get('fused'); TST=opt.get('tst'); RAW=opt.get('raw',0)
    SAb=(64,96); SBb=(80,176); LBr=192 if RAW else LB
    RP=opt.get('rp',8); RO=opt.get('ro',8); RH=opt.get('rh',4)
    L=FU if FU else kernel_header(name)
    STAMP=opt.get('stamp')
    def st(k): return [I('%s s[%d:%d]'%('s_memrealtime' if opt.get('real') else 's_memtime',76+2*k,77+2*k)), I('s_waitcnt lgkmcnt(0)')] if STAMP else []
    bar=[I('s_barrier')]
    TRC=opt.get('trace')
    gbr=bar+([I('%s s[94:95]'%('s_memrealtime' if opt.get('real') else 's_memtime')), I('s_mov_b32 s92, m0'), I('s_mov_b32 m0, s93'), I('s_waitcnt lgkmcnt(0)'), I('s_sub_u32 s94, s94, s76'),
              I('v_writelane_b32 v9, s94, m0'), I('s_mov_b32 m0, s92'), I('s_add_u32 s93, s93, 1')] if TRC else [])
    NA=opt.get('na',7)
    H=[I('s_mov_b32 s74, s83')] if FU else [I('s_cmp_ge_u32 s2, 256'), I('s_cbranch_scc1 L_k2_end')]+rt_begin(opt,sreg=96)
    DZ=FU and opt.get('dz',0)
    H+=([] if (FU and not opt.get('oldk1')) else [I('s_load_dwordx2 s[4:5], s[0:1], %d'%KA_WS),
        I('s_load_dwordx4 s[60:63], s[0:1], %d'%KA_WSP),
        I('s_load_dwordx2 s[66:67], s[0:1], %d'%KA_WO), I('s_load_dwordx4 s[68:71], s[0:1], %d'%KA_WOUT),
        I('s_load_dwordx2 s[72:73], s[0:1], %d'%KA_X),
        ])+([] if FU else [I('v_lshrrev_b32 v1, 6, v0'), I('v_and_b32 v0, 63, v0'), I('s_nop 0'), I('v_readfirstlane_b32 s25, v1')])+[
        I('s_bfe_u32 s27, s2, 0x20003'), I('s_lshr_b32 s34, s2, 5'),
        I('s_and_b32 s42, s25, 3'), I('v_lshlrev_b32 v%d, 4, v0'%vL16),
        I('s_and_b32 s64, s2, 3'), I('s_lshl_b32 s64, s64, 2'), I('s_add_u32 s64, s64, s27'),
        I('s_cmp_ge_u32 s25, 4'), I('s_cbranch_scc1 L_gemm')]
    NC=opt.get('nc',11); CW=opt.get('cw',3); CQ=opt.get('cq',5); CK=opt.get('ck',8)
    NX=opt.get('nx',1); DE=opt.get('de',3)
    NBAR=NA+32+NC+15+NX
    assert NBAR>=60
    b3addr=[I('v_lshrrev_b32 v13, 5, v0'), I('v_and_b32 v12, 31, v0'), I('v_lshlrev_b32 v12, 3, v12'), I('v_lshl_add_u32 v%d, v13, 10, v12'%vB3),
        I('v_add_u32 v%d, 65536, v%d'%(vB3+1,vB3))]
    b3addr+=[I('v_mov_b32 v%d, v%d'%(vA3,vL16)), I('v_add_u32 v%d, 4096, v%d'%(vA3+1,vL16)),
        I('s_lshl_b32 s43, s64, 2'), I('s_add_u32 s43, s43, s42')]
    def ldA(st_):
        Gr=[[I('buffer_load_dwordx4 %s, v%d, s[8:11], s24 offen offset:%d'%(vr(AR+32*st_+4*i,4),vA3+i//4,(i%4)*1024))] for i in range(8)]
        Gr[-1]+=[I('s_add_u32 s24, s24, 8192')]
        return Gr
    def dmaW(t):
        Gr=[[I('buffer_load_dwordx4 v%d, s[12:15], s58 offen offset:%d lds'%(vW+i,i*1024))] for i in range(4)]
        off=I('s_mov_b32 s58, %d'%((t-14)*128*2048)) if t>=14 else I('s_add_u32 s58, s%d, %d'%(56 if t<7 else 57,t*128*2048))
        return [[I('s_add_u32 m0, s41, %d'%WSL(t)), off]]+Gr
    def rd3(t,j):
        f=FR3+16*(j&1)
        if isinstance(t,tuple): return [I('ds_read_b64_tr_b16 %s, v%d offset:%d'%(vr(f+4*n+2*u,2),t[0],j*4096+u*2048+n*256)) for n in range(4) for u in range(2)]
        a=WSL(t)
        return [I('ds_read_b64_tr_b16 %s, v%d offset:%d'%(vr(f+4*n+2*u,2),vB3+(a>>16),(a&0xffff)+j*4096+u*2048+n*256)) for n in range(4) for u in range(2)]
    def tile3(t, aset, acc, c0, nxt, mid, early={}, late=[]):
        spine=[m16(acc[h]+4*n,FR3+16*(j&1)+4*n,AR+32*aset+8*j+4*h,'0' if (c0 and j==0) else None) for j in range(4) for n in range(4) for h in ((0,1) if not (opt.get('snk3') and n&1) else (1,0))]
        fill={}
        def add(g,x): fill.setdefault(g,[]).extend(x)
        add(23,mid)
        for j in range(4):
            R = rd3(t,j+1) if j<3 else (rd3(nxt,0) if nxt is not None else [])
            for k,r in enumerate(R): add(8*j+k,[r])
        for g,x in early.items(): add(g,x)
        for k,g in enumerate(late): add(24+(k*8)//len(late),g)
        return interleave(spine,fill)
    flat=lambda Gr:[x for g in Gr for x in g]
    def pub1(lab,wave,off,n):
        return [I('s_cmp_lg_u32 s25, %d'%wave), I('s_cbranch_scc1 %s'%lab), I('s_mov_b64 exec, %d'%((1<<n)-1)), I('v_mov_b32 v12, 1'), I('v_lshlrev_b32 v15, 7, v0'),
                I('buffer_atomic_add v12, v15, s[48:51], %s offen sc1'%off), I('s_mov_b64 exec, -1'), lab+':']
    def ask1(lab,wave,off):
        return [I('s_cmp_lg_u32 s25, %d'%wave), I('s_cbranch_scc1 %s'%lab), I('s_mov_b64 exec, 1'), I('v_mov_b32 v12, 0'),
                I('buffer_load_dword v15, v12, s[48:51], %s offen sc1'%off), I('s_mov_b64 exec, -1'), lab+':']
    def chk1(lab,wave,off,n,landed=False):
        return [I('s_cmp_lg_u32 s25, %d'%wave), I('s_cbranch_scc1 %s'%lab), I('s_mov_b64 exec, 1'), I('s_mov_b32 s27, 0x40000')]+([I('s_branch %s_k'%lab)] if landed else [])+[
                lab+'_l:', I('s_waitcnt vmcnt(0)'), lab+'_k:', I('v_readfirstlane_b32 s26, v15'), I('s_sub_u32 s27, s27, 1'), I('s_cmp_ge_u32 s26, %d'%n), I('s_cbranch_scc1 %s_g'%lab),
                I('s_sleep %d'%opt.get('slp',1)), I('buffer_load_dword v15, v12, s[48:51], %s offen sc1'%off), I('s_cmp_lg_u32 s27, 0'), I('s_cbranch_scc1 %s_l'%lab),
                lab+'_g:', I('s_mov_b64 exec, -1'), lab+':']
    A=[I('s_and_b32 s26, s2, 7'), I('s_lshl_b32 s33, s26, 2'), I('s_add_u32 s33, s33, s27'),
       I('s_lshl_b32 s30, s34, 14'), I('s_lshl_b32 s27, s42, 12'), I('s_add_u32 s30, s30, s27'),
       I('s_and_b32 s26, s42, 1'), I('s_lshl_b32 s40, s26, 10'), I('s_lshl_b32 s41, s42, 10'), I('s_add_u32 s41, s41, %d'%KV),
       I('v_bfe_u32 v12, v0, 4, 1'), I('v_lshlrev_b32 v12, %d, v12'%(6 if RAW else 7)),
       I('s_cmp_ge_u32 s42, 2'), I('s_cselect_b32 s26, -1, 0'), I('v_and_b32 v12, s26, v12'), I('v_xor_b32 v%d, v%d, v12'%(vD,vL16)),
       I('s_lshl_b32 s26, s33, 17'), I('s_add_u32 s27, s26, 0x%x'%P1_OFF),
       I('s_lshr_b32 s35, s42, 1'), I('s_add_u32 s35, s35, 1'), I('s_lshl_b32 s35, s35, 22'), I('s_add_u32 s35, s35, s27'),
       I('s_mov_b32 m0, s41'), I('s_waitcnt lgkmcnt(0)')]+st(0)
    A+=srd(36,4,5,'s27',131072)+srd(16,4,5,'s35',131072)
    def kvd(sl): return [I('s_add_u32 m0, s41, %d'%(sl*4096)), I('buffer_load_dwordx4 v%d, s[16:19], s40 offen lds'%vD), I('s_add_u32 s40, s40, 2048')]
    AL=kvd(0)[1:]
    for i in range(4): AL+=[I('buffer_load_dwordx4 %s, v%d, s[36:39], s30 offen offset:%d'%(vr(Q+4*i,4),vL16,1024*i))]
    KF=opt.get('kvfirst',2)
    for sl in range(1,KF): AL+=kvd(sl)
    if not FU: A+=AL
    A+=[I('s_setprio %d'%opt.get('pa',1))]+srd(52,4,5,O_OFF,O_SIZE)
    A+=[I('s_lshl_b32 s26, s34, 3'), I('s_lshl_b32 s27, s42, 1'), I('s_add_u32 s26, s26, s27'),
        I('s_lshl_b32 s26, s26, 5'), I('s_add_u32 s26, s26, s33'), I('s_lshl_b32 s46, s26, 11'),
        I('v_add_u32 v%d, %d, v%d'%(vK,KV,vL16))]
    vold=lambda d,c: [I('v_bfe_u32 v14, v0, 1, 1'), I('v_and_b32 v13, 1, v0'), I('v_lshrrev_b32 v15, 2, v0'), I('v_lshlrev_b32 v12, 3, v14'), I('v_xor_b32 v15, v15, v12'),
        I('v_lshlrev_b32 v15, 4, v15'), I('v_lshl_add_u32 v15, v13, 3, v15'), I('v_lshl_add_u32 v15, v14, 8, v15'),
        I('v_add_u32 v%d, %s, v15'%(d,c))]
    if not RAW:
        A+=vold(vV0,KV+2048)+[I('v_lshrrev_b32 v12, 5, v0'), I('v_cmp_eq_u32 vcc, v14, v12'),
            I('v_mul_u32_u24 v13, 0xaaaa, v13'), I('v_add_u32 v%d, 0x4444, v13'%vIDX),
            I('v_mov_b32 v13, 0x3f803f80'), I('v_cndmask_b32 v%d, 0, v13, vcc'%ONES)]
        for i in range(1,4): A+=[I('v_mov_b32 v%d, v%d'%(ONES+i,ONES))]
        for r in list(range(OA,OA+40))+list(range(PB,PB+8))+list(range(VB+8,VB+16)): A+=[I('v_mov_b32 v%d, 0'%r)]
    else:
        A+=[I('v_bfe_u32 v14, v0, 1, 1'), I('v_and_b32 v13, 1, v0'), I('v_bfe_u32 v15, v0, 2, 2'), I('v_bfe_u32 v12, v0, 4, 1'), I('v_lshl_add_u32 v15, v12, 3, v15'),
            I('v_lshl_add_u32 v15, v14, 2, v15'), I('v_lshlrev_b32 v15, 4, v15'), I('v_lshl_add_u32 v15, v13, 3, v15'), I('v_lshl_add_u32 v15, v14, 8, v15'),
            I('v_lshrrev_b32 v12, 5, v0'), I('v_lshl_add_u32 v15, v12, 10, v15'), I('v_add_u32 v%d, %d, v15'%(vV0,KV+2048)), I('v_xor_b32 v%d, 64, v%d'%(vV1,vV0)),
            I('v_mov_b32 v%d, 0xdddd'%vIDX)]+[I('v_mov_b32 v%d, 0x3f803f80'%(ONES+i)) for i in range(4)]
        for r in list(range(OA,OA+40))+list(range(LBr,LBr+8))+list(range(SBb[1],SBb[1]+16))+list(range(VB+8,VB+16)): A+=[I('v_mov_b32 v%d, 0'%r)]
    def wait_lines(lab,nl,tgt,first=True,va=12,off=0,landed=False):
        msk=(1<<nl)-1
        ld=[I('buffer_load_dword v15, v%d, s[48:51], 0 offen offset:%d sc1'%(va,off))]
        return [I('s_mov_b64 exec, %d'%msk), I('s_mov_b32 s47, 0x40000')]+(ld if first else [])+([I('s_branch %s_k'%lab)] if landed else [])+[lab+'_l:', I('s_waitcnt vmcnt(0)'), lab+'_k:', I('v_cmp_le_u32 vcc, %d, v15'%tgt), I('s_sub_u32 s47, s47, 1'),
                I('s_nop 0'), I('s_cmp_eq_u32 vcc_lo, %d'%msk), I('s_cbranch_scc1 %s_g'%lab), I('s_sleep %d'%opt.get('slp1',1))]+ld+[I('s_cmp_lg_u32 s47, 0'), I('s_cbranch_scc1 %s_l'%lab),
                lab+'_g:', I('s_mov_b64 exec, -1')]
    def arrive(lab):
        return [I('v_mov_b32 v13, 1'), I('v_lshlrev_b32 v14, 7, v0'), I('v_mov_b32 v9, 1024'), I('s_mov_b64 exec, 1'), I('s_waitcnt vmcnt(0)'), I('ds_add_rtn_u32 v9, v9, v13'), I('s_waitcnt lgkmcnt(0)'),
                I('v_readfirstlane_b32 s26, v9'), I('s_mov_b64 exec, %d'%((1<<RP)-1)), I('s_cmp_lg_u32 s26, 7'), I('s_cbranch_scc1 %s'%lab), I('buffer_atomic_add v13, v14, s[48:51], s74 offen sc1'), lab+':', I('s_mov_b64 exec, -1')]
    if FU:
        A+=srd(48,4,5,FLAG_OFF,65536)+[I('s_bfe_u32 s26, s2, 0x20001'), I('s_lshl_b32 s26, s26, 3'), I('s_and_b32 s27, s34, %d'%(RP-1)), I('s_add_u32 s26, s26, s27'), I('s_lshl_b32 s26, s26, 7'),
            I('v_lshlrev_b32 v12, 12, v0'), I('v_add_u32 v12, s26, v12'),]
        if opt.get('arr',0):
            A+=[I('s_cmp_lg_u32 s25, 0'), I('s_cbranch_scc1 L_t_b'), I('s_mov_b64 exec, 7'), I('buffer_load_dword v15, v12, s[48:51], 0 offen sc1'), I('s_mov_b64 exec, -1'), 'L_t_b:']+arrive('L_t_pa')
            A+=(st(3) if TST else [])+[I('s_cmp_lg_u32 s25, 0'), I('s_cbranch_scc1 L_t_a')]+wait_lines('L_t_w',3,8,False)+['L_t_a:']
        else:
            A+=[I('v_mov_b32 v13, 1'), I('v_lshlrev_b32 v14, 7, v0'), I('s_waitcnt vmcnt(0)')]+(st(3) if TST else [])+bar
            A+=[I('s_cmp_lg_u32 s25, 0'), I('s_cbranch_scc1 L_t_a'), I('s_mov_b64 exec, %d'%((1<<RP)-1)), I('buffer_atomic_add v13, v14, s[48:51], s74 offen sc1')]+wait_lines('L_t_w',3,8)+['L_t_a:']
        A+=bar+(st(4) if TST else [])+AL
    def rdK(i,base): return [I('ds_read_b128 %s, v%d offset:%d'%(vr(KB+8*(i&1)+4*f,4),vK,base+1024*f)) for f in range(2)]
    def rdV(i,base,v0=vV0,hs=1024): return [I('ds_read_b64_tr_b16 %s, v%d offset:%d'%(vr(VB+8*(i&1)+4*f+2*u,2),v0,base+512*f+hs*u)) for f in range(2) for u in range(2)]
    def rdVr(i,base): return [I('ds_read_b64_tr_b16 %s, v%d offset:%d'%(vr(VB+8*(i&1)+4*f+2*u,2),vV0+u,base+512*f)) for f in range(2) for u in range(2)]
    sm=lambda d,a,b: I('v_smfmac_f32_16x16x64_bf16 %s, %s, %s, v%d'%(vr(d,4),vr(a,4),vr(b,8),vIDX))
    def pvr(O_,L_,v,S_):
        X=[[sm(O_+8*x+4*f,v+4*f,S_+8*x) for f in range(2)]+([sm(L_+4*x,ONES,S_+8*x)] if not opt.get('hk_nl') else []) for x in range(2)]
        return X[0]+X[1]
    xf=((0,0),(0,1),(1,1),(1,0)) if opt.get('snka') else ((0,0),(0,1),(1,0),(1,1))
    qk=lambda S_,k,q: [m16(S_+8*x+4*f,k+4*f,q+4*x,'0') for x,f in xf]
    pv=lambda O_,v,P_: [m16(O_+8*x+4*f,v+4*f,P_+4*x) for x,f in xf]
    smf=lambda L_,P_: [I('v_smfmac_f32_16x16x64_bf16 %s, %s, %s, v%d'%(vr(L_,4),vr(ONES,4),vr(P_,8),vIDX))]
    A+=[I('s_mov_b32 s45, 7'), I('s_waitcnt vmcnt(%d)'%(KF-1))]+bar+rdK(0,0)+flat([kvd(sl) for sl in range(KF,7)])+[I('s_waitcnt lgkmcnt(0)')]+qk(SA,KB,Q)+[I('s_nop 7')]
    def phase(S_,P_, mf, extra):
        ex=[I('v_exp_f32 v%d, v%d'%(S_+i,S_+i)) for i in range(16)]
        cv=[I('v_cvt_pk_bf16_f32 v%d, v%d, v%d'%(P_+i,S_+2*i,S_+2*i+1)) for i in range(8)]
        pat=opt.get('att_pat',[(2,0),(2,1),(2,1),(2,1),(2,1),(2,1),(2,1),(2,1),(0,1)])
        mf=[mf[k] for k in opt.get('att_ord',range(9))]
        out=[]; e=0;c=0
        for k,(ne,nc) in enumerate(pat):
            out.append(mf[k]); out+=extra.get(k,[])
            out+=ex[e:e+ne]; e+=ne
            out+=cv[c:c+nc]; c+=nc
        assert e==16 and c==8
        return out
    def phaser(S_, mf, extra):
        ex=[I('v_exp_f32 v%d, v%d'%(S_+i,S_+i)) for i in range(16)]
        pat=opt.get('raw_pat',[2,2,2,1,2,1,2,1,2,1])[:len(mf)]
        pat[-1]+=16-sum(pat)
        out=[]; e=0
        for k,ne in enumerate(pat):
            out.append(mf[k]); out+=extra.get(k,[])
            out+=ex[e:e+ne]; e+=ne
        return out
    AB=opt.get('att_bar',4); AD=opt.get('att_dma',2)
    def blocks(last):
        body=[]
        for i in range(8):
            kb=KB+8*(i&1); kn=KB+8*((i+1)&1); vb=VB+8*(i&1); vp=VB+8*((i+1)&1)
            rv=(rdVr if RAW else rdV)(i,4096*i); rk=rdK(i+1,4096*((i+1)&7)); d=kvd((i+7)&7); sy=[I('s_waitcnt vmcnt(5)')]+bar
            qn=qk(SAb[(i+1)&1] if RAW else SA,kn,Q)
            if last:
                if i>0: d=[]
                if 56+i>=NBAR: sy=[]
                else: sy=[I('s_waitcnt vmcnt(%d)'%(0 if 56+i==NBAR-1 else max(0,min(5,6-i))))]+bar
                if i==1: sy+=[I('v_mov_b32 v12, 0'), I('ds_write_b32 v%d, v12'%vK)]
                if i==7: rk=[]; qn=[I('s_nop 0')]*4
            ex={}
            for k in range(4): ex.setdefault((k*AB)//4,[]).append(rv[k])
            ex[AB]=sy+rk[:1]+d[:1]; ex[AB+1]=rk[1:]
            if RAW:
                body+=phaser(SAb[i&1],qk(SBb[i&1],kb,Q+8)+pvr(OB,LBr,vp,SBb[(i+1)&1]),ex)+phaser(SBb[i&1],qn+pvr(OA,LA,vb,SAb[i&1]),{AD:d[1:]})
                continue
            body+=phase(SA,PA,qk(SB,kb,Q+8)+pv(OB,vp,PB)+smf(LB,PB),ex)+phase(SB,PB,qn+pv(OA,vb,PA)+smf(LA,PA),{AD:d[1:]})
        return body
    body=auto_lgkm(blocks(False))
    lastb=auto_lgkm(blocks(True),pre=body)
    if opt.get('hk_nexp'): body=[x.replace('v_exp_f32','v_mov_b32') for x in body]
    if opt.get('hk_nval'): body=[x for x in body if 'v_exp' not in x and 'v_cvt' not in x]
    fix_hazards(body+body,auto=False,tag='att_loop')
    aloop=['L_att_loop:']+body+[I('s_sub_u32 s45, s45, 1'), I('s_cmp_lg_u32 s45, 0'), I('s_cbranch_scc1 L_att_loop')]+lastb
    AT=(pvr(OB,LBr,VB+8,SBb[1]) if RAW else pv(OB,VB+8,PB)+smf(LB,PB))+[I('v_mov_b32 v160, 0x1f800000'), I('v_mov_b32 v161, 0x5f800000')]
    FB=[]
    p=lambda b: vr(b,2)
    for X,(O_,L_,Q_) in enumerate(((OA,LA,Q),(OB,LBr,Q+8))):
        AT+=[I('v_pk_mul_f32 v[162:163], %s, 0 op_sel_hi:[1,0]'%p(O_))]
        for i in range(1,8): AT+=[I('v_pk_fma_f32 v[162:163], %s, 0, v[162:163] op_sel_hi:[1,0,1]'%p(O_+2*i))]
        AT+=([I('v_mov_b32 v%d, v%d'%(L_+2,L_+4))] if RAW else [I('v_add_f32 v%d, v%d, v%d'%(L_,L_,L_+1)), I('v_add_f32 v%d, v%d, v%d'%(L_+2,L_+2,L_+3))])+[
             I('v_add_f32 v162, v162, v163'), I('v_add_f32 v163, v162, v%d'%(L_+2)), I('v_add_f32 v162, v162, v%d'%L_),
             I('v_cmp_nge_f32 vcc, v162, v160'), I('v_cmp_nle_f32 s[56:57], v162, v161'), I('v_cmp_nge_f32 s[26:27], v163, v160'), I('v_cmp_nle_f32 s[58:59], v163, v161'),
             I('s_or_b64 s[56:57], s[56:57], vcc'), I('s_or_b64 s[26:27], s[26:27], s[58:59]'), I('s_or_b64 s[56:57], s[56:57], s[26:27]'),
             I('s_cbranch_scc1 L_att_fb%d'%X), 'L_att_fb_ret%d:'%X, I('v_rcp_f32 v162, v%d'%L_), I('v_rcp_f32 v164, v%d'%(L_+2)), I('s_nop 0')]
        for i in range(8): AT+=[I('v_pk_mul_f32 %s, %s, %s op_sel_hi:[1,0]'%(p(O_+2*i),p(O_+2*i),p(162+2*(i//4))))]
        for i in range(8): AT+=[I('v_cvt_pk_bf16_f32 v%d, v%d, v%d'%(O_+i,O_+2*i,O_+2*i+1))]
        if X: AT+=[I('s_add_u32 s46, s46, 65536')]
        for h in range(2): AT+=[I('buffer_store_dwordx4 %s, v%d, s[52:55], s46 offen offset:%d sc0 sc1'%(vr(O_+4*h,4),vL16,1024*h))]
        FS=SA
        F=['L_att_fb%d:'%X, I('s_waitcnt vmcnt(0)'),
           I('s_lshl_b32 s26, s33, 17'), I('s_add_u32 s27, s26, 0x%x'%(P1_OFF+32*131072))]+srd(16,4,5,'s27',131072)
        F+=[I('s_add_u32 s27, s26, 0x%x'%(P1_OFF+64*131072))]+srd(20,4,5,'s27',131072)
        F+=[I('v_bfe_u32 v12, v0, 4, 1'), I('v_lshlrev_b32 v12, 7, v12'), I('v_xor_b32 v8, v%d, v12'%vL16), I('v_add_u32 v9, 1024, v8'),
            I('s_lshl_b32 s26, s42, 10'), I('s_add_u32 s26, s26, %d'%(KV+4096))]+vold(2,'s26')
        F+=[I('v_mov_b32 v%d, 0'%(O_+i)) for i in range(16)]
        F+=[I('v_mov_b32 v%d, 0'%L_), I('v_mov_b32 v%d, 0'%(L_+2)), I('v_mov_b32 v164, 0xff800000'), I('v_mov_b32 v165, 0xff800000'), I('s_mov_b32 s59, 0'), 'L_att_fbl%d:'%X,
            I('buffer_load_dwordx4 %s, v%d, s[16:19], s59 offen'%(vr(KB,4),vL16)),
            I('buffer_load_dwordx4 %s, v%d, s[16:19], s59 offen offset:1024'%(vr(KB+4,4),vL16)),
            I('s_add_u32 m0, s41, 4096'), I('s_nop 0'), I('buffer_load_dwordx4 v8, s[20:23], s59 offen lds'),
            I('s_add_u32 m0, s41, 8192'), I('s_nop 0'), I('buffer_load_dwordx4 v9, s[20:23], s59 offen lds'),
            I('s_waitcnt vmcnt(0)')]
        F+=rdV(0,0,2,4096)+qk(FS,KB,Q_)
        for x in range(2):
            s8=FS+8*x; mo=164+x; lx=L_+2*x
            F+=[I('v_max3_f32 v13, v%d, v%d, v%d'%(s8,s8+1,mo))]+[I('v_max3_f32 v13, v%d, v%d, v13'%(s8+2*i,s8+2*i+1)) for i in range(1,4)]
            for sw in (16,32): F+=[I('v_mov_b32 v14, v13'), I('v_permlane%d_swap_b32 v13, v14'%sw), I('v_max_f32 v13, v13, v14')]
            F+=[I('v_sub_f32 v14, v%d, v13'%mo), I('v_exp_f32 v14, v14'), I('v_mov_b32 v%d, v13'%mo)]
            F+=[I('v_sub_f32 v%d, v%d, v13'%(s8+i,s8+i)) for i in range(8)]+[I('v_exp_f32 v%d, v%d'%(s8+i,s8+i)) for i in range(8)]
            F+=[I('v_mul_f32 v%d, v%d, v14'%(lx,lx))]
            for i in range(8): F+=[I('v_add_f32 v%d, v%d, v%d'%(lx,lx,s8+i)), I('v_mul_f32 v%d, v%d, v14'%(O_+8*x+i,O_+8*x+i))]
        for i in range(8): F+=[I('v_cvt_pk_bf16_f32 v%d, v%d, v%d'%(PA+i,FS+2*i,FS+2*i+1))]
        F+=[I('s_waitcnt lgkmcnt(0)')]+pv(O_,VB,PA)+[
            I('s_add_u32 s59, s59, 2048'), I('s_cmp_lg_u32 s59, 131072'), I('s_nop 7'), I('s_nop 7'), I('s_cbranch_scc1 L_att_fbl%d'%X)]
        for lx in (L_,L_+2):
            for sw in (16,32): F+=[I('v_mov_b32 v14, v%d'%lx), I('v_permlane%d_swap_b32 v%d, v14'%(sw,lx)), I('v_add_f32 v%d, v%d, v14'%(lx,lx))]
        F+=[I('s_branch L_att_fb_ret%d'%X)]
        FB+=F
    AT+=([] if TST else st(3))+[I('s_setprio %d'%opt.get('pa2',0))]+srd(48,4,5,FLAG_OFF,65536)
    AT+=[I('s_lshl_b32 s30, s34, 10'), I('s_add_u32 s30, s30, %d'%(256*128)), I('s_and_b32 s26, s2, 7'), I('s_lshl_b32 s26, s26, 2'), I('s_add_u32 s30, s30, s26'),
         I('v_mov_b32 v12, 1'), I('v_lshlrev_b32 v15, 7, v0')]+bar*min(max(0,NBAR-64),opt.get('jp',1))
    AT+=[I('s_mov_b64 exec, 1'), I('s_waitcnt vmcnt(0)'), I('ds_add_rtn_u32 v13, v%d, v12'%vK), I('s_waitcnt lgkmcnt(0)'), I('v_readfirstlane_b32 s26, v13'),
         I('s_mov_b64 exec, %d'%((1<<RO)-1)), I('s_cmp_lg_u32 s26, 3'), I('s_cbranch_scc1 L_a_np'), I('buffer_atomic_add v12, v15, s[48:51], s30 offen sc1'), 'L_a_np:', I('s_mov_b64 exec, -1')]
    AT+=st(6)+[I('s_branch L_k2_fin')]
    Z=G+32
    S=['L_gemm:',
       I('s_bfe_u32 s65, s2, 0x10002'), I('s_mul_i32 s65, s65, 7'), I('s_add_u32 s65, s65, s34'),
       I('s_mov_b32 s93, 0')]
    ZL=[]
    S+=[I('s_lshl_b32 s26, s65, 2'), I('s_and_b32 s27, s42, 1'), I('s_lshl_b32 s27, s27, 1'), I('s_add_u32 s26, s26, s27'),
        I('s_lshl_b32 s30, s64, 2'), I('s_lshr_b32 s27, s42, 1'), I('s_lshl_b32 s27, s27, 1'), I('s_add_u32 s30, s30, s27'),
        I('s_lshl_b32 s31, s26, 6'), I('s_add_u32 s31, s31, s30'), I('s_lshl_b32 s31, s31, 11'),
        I('s_mul_i32 s32, s30, 56'), I('s_add_u32 s32, s32, s26'), I('s_lshl_b32 s32, s32, 11')]
    ZL+=srd(36,4,5,P1_OFF+96*131072,56*131072)
    for nf in range(2):
        for q in range(4): ZL+=[I('buffer_load_dwordx4 %s, v%d, s[36:39], s31 offen offset:%d'%(vr(Z+16*nf+4*q,4),vL16,1024*q))]
        if nf==0: ZL+=[I('s_add_u32 s31, s31, 131072')]
    ZL+=srd(36,62,63,0,4096)
    ZL+=[I('v_and_b32 v12, 15, v0'), I('v_lshlrev_b32 v12, 1, v12'), I('s_lshl_b32 s26, s30, 6')]
    ZL+=[I('v_mov_b32 v%d, 0'%(vBIAS+2*t)) for t in range(4)]
    ZL+=[I('buffer_load_short_d16_hi v%d, v12, s[36:39], s26 offen offset:%d'%(vBIAS+2*t,32*t)) for t in range(4)]
    SR=[I('s_lshl_b32 s26, s64, 19')]+srd(16,60,61,'s26',128*4096)
    SR+=[I('s_lshl_b32 s26, s65, 19'), I('s_add_u32 s26, s26, 0x%x'%Z2N_OFF)]+srd(20,4,5,'s26',128*4096)
    S+=[I('v_lshrrev_b32 v12, 3, v0'), I('v_lshrrev_b32 v13, 4, v0'), I('v_and_b32 v14, 7, v0'),
        I('s_lshl_b32 s26, s42, 17'), I('v_lshlrev_b32 v12, 12, v12'), I('v_add_u32 v12, s26, v12'),
        I('v_xor_b32 v14, v14, v13'), I('v_xor_b32 v15, 4, v14'),
        I('v_lshl_add_u32 v14, v14, 4, v12'), I('v_lshl_add_u32 v15, v15, 4, v12')]
    for i in range(4): S+=[I('v_add_u32 v%d, %d, v%d'%(vOA+i, i*8*4096-i*1024, 14+(i&1)))]
    S+=[I('v_and_b32 v13, 1, v13'), I('v_lshlrev_b32 v13, 6, v13'), I('v_xor_b32 v13, v%d, v13'%vL16), I('v_add_u32 v%d, s26, v13'%vOB)]
    S+=[I('s_lshl_b32 s41, s42, 12'), I('s_mov_b32 s40, 0'), I('s_mov_b32 s44, 0'), I('s_waitcnt lgkmcnt(0)')]+st(0)
    def dmaA(slot):
        Gr=[[I('buffer_load_dwordx4 v%d, s[16:19], s40 offen offset:%d lds'%(vOA+i,1024*i))] for i in range(4)]
        Gr[-1]+=[I('s_add_u32 m0, s41, %d'%(REG[slot]+16384)), I('s_add_u32 s40, s40, 128')]
        return Gr
    def dmaB(slot):
        Gr=[[I('buffer_load_dwordx4 v%d, s[20:23], s44 offen offset:%d lds'%(vOB,1024*i))] for i in range(4)]
        Gr[-1]+=[I('s_add_u32 s44, s44, 4096')]
        return Gr
    m0A=lambda slot: [I('s_add_u32 m0, s41, %d'%REG[slot]), I('s_nop 0')]
    S+=SR+[I('s_cmp_ge_u32 s2, 224'), I('s_cbranch_scc1 L_g_nd')]
    GD=1 if FU else opt.get('gd',0)
    D01=m0A(0)+flat(dmaA(0))+flat(dmaB(0))+m0A(1)+flat(dmaA(1))+flat(dmaB(1))
    if GD==0: S+=D01
    S+=['L_g_nd:']+srd(48,4,5,FLAG_OFF,65536)+srd(52,4,5,H_OFF,H_SIZE)
    S+=[I('v_and_b32 v12, 15, v0'), I('v_lshrrev_b32 v13, 4, v0'), I('v_bfe_u32 v14, v0, 1, 3'),
        I('s_lshr_b32 s26, s42, 1'), I('s_lshl_b32 s26, s26, 13'),
        I('v_lshlrev_b32 v12, 7, v12'), I('v_add_u32 v12, s26, v12'),
        I('v_xor_b32 v15, v13, v14'), I('v_lshl_add_u32 v%d, v15, 4, v12'%vA), I('v_xor_b32 v%d, 64, v%d'%(vA+1,vA))]
    S+=[I('v_add_u32 v%d, 65536, v%d'%(vA+2+j,vA+j)) for j in range(2)]
    S+=[I('v_bfe_u32 v12, v0, 4, 1'), I('v_and_b32 v13, 1, v0'), I('v_bfe_u32 v14, v0, 1, 1'), I('v_bfe_u32 v15, v0, 2, 2'),
        I('v_lshl_add_u32 v15, v12, 3, v15'), I('v_lshl_add_u32 v15, v14, 2, v15'),
        I('v_lshlrev_b32 v15, 4, v15'), I('v_lshl_add_u32 v15, v13, 3, v15'),
        I('v_lshl_add_u32 v15, v14, 8, v15'), I('v_lshrrev_b32 v12, 5, v0'), I('v_lshl_add_u32 v15, v12, 10, v15'),
        I('s_and_b32 s26, s42, 1'), I('s_lshl_b32 s26, s26, 13'), I('s_add_u32 s26, s26, 16384'),
        I('v_add_u32 v%d, s26, v15'%vB), I('v_xor_b32 v%d, 64, v%d'%(vB+1,vB))]
    S+=[I('v_add_u32 v%d, 65536, v%d'%(vB+2+u,vB+u)) for u in range(2)]
    S+=[
        I('s_bfe_u32 s26, s2, 0x10002'), I('s_lshl_b32 s26, s26, 3'), I('s_add_u32 s59, s26, s34'), I('s_lshl_b32 s59, s59, 7'),
        I('v_bfe_u32 v10, v0, 3, 1'), I('v_bfe_u32 v12, v0, 1, 2'), I('v_lshl_add_u32 v10, v10, 4, v12'), I('s_lshl_b32 s26, s42, 5'), I('v_add_u32 v10, s26, v10'), I('v_lshlrev_b32 v10, 11, v10'),
        I('v_lshrrev_b32 v13, 4, v0'), I('v_lshl_add_u32 v10, v13, 5, v10'), I('v_and_b32 v12, 1, v0'), I('v_lshl_add_u32 v%d, v12, 4, v10'%vW)]
    for i in range(1,4): S+=[I('v_add_u32 v%d, %d, v%d'%(vW+i,i*(4*2048-1024),vW))]
    S+=[I('v_and_b32 v10, 15, v0'), I('v_lshlrev_b32 v10, 11, v10'), I('v_lshrrev_b32 v12, 5, v0'), I('v_lshl_add_u32 v10, v12, 4, v10'),
        I('v_bfe_u32 v12, v0, 4, 1'), I('v_lshl_add_u32 v%d, v12, 5, v10'%vX)]+b3addr
    S+=[I('s_bfe_u32 s75, s2, 0x10002'), I('s_mul_i32 s56, s75, %d'%(7*128*2048)), I('s_sub_u32 s57, 0, s56')]
    wsrd=[I('s_sub_u32 s26, 0x380000, s59')]+srd(12,68,69,'s59','s26')
    S+=wsrd+[I('s_setprio %d'%opt.get('pg',0))]
    if FU: S+=[I('s_mul_i32 s26, s65, 11'), I('s_lshr_b32 s26, s26, 5'), I('s_add_u32 s26, s26, s65'), I('s_cmp_eq_u32 s65, 13'), I('s_addc_u32 s26, s26, 12'),
               I('v_add_u32 v10, s26, v0'), I('s_lshr_b32 s26, s64, 1'), I('s_and_b32 s26, s26, %d'%(RP-1)), I('v_lshl_add_u32 v10, v10, 3, s26'), I('v_lshlrev_b32 v10, 7, v10')]+(arrive('L_t_pg') if opt.get('arr',0) else [I('s_waitcnt vmcnt(0)')]+bar)+bar
    S+=bar
    C=[]
    W=[I('s_cmp_ge_u32 s2, 224'), I('s_cbranch_scc1 L_g_idle')]
    CZ=opt.get('cz',1) if FU else 0
    if FU:
        w7=lambda lab,X: [I('s_cmp_lg_u32 s25, 7'), I('s_cbranch_scc1 %s'%lab)]+X+[lab+':']
        W+=w7('L_t_z0',[I('s_mov_b64 exec, 3'), I('buffer_load_dword v15, v10, s[48:51], 0 offen sc1'), I('s_mov_b64 exec, -1')])+gbr*(CZ-1)+w7('L_t_z1',wait_lines('L_t_z',2,8,False,10))+gbr
    if GD: W+=D01
    G2=opt.get('g2',1)
    W+=gbr*G2+m0A(2)+flat(dmaA(2))+flat(dmaB(2))+m0A(3)+flat(dmaA(3))
    def zst(i): return [I('s_cmp_gt_u32 s91, %d'%i), I('s_cselect_b32 s26, 0, 0x7fff0000'), I('s_cselect_b32 s27, s%d, 0'%(88+i)), I('v_add_u32 v14, s26, v%d'%vL16)]+[
        I('buffer_store_dwordx4 %s, v14, s[36:39], s27 offen offset:%d sc0 sc1'%(vr(128+32*i+4*t,4),1024*t)) for t in range(4)]
    zpub=lambda lab: [I('s_cmp_eq_u32 s91, 0'), I('s_cbranch_scc1 %s'%lab), I('s_add_u32 s26, s74, 4')]+pub1(lab,7,'s26',RP)
    NZ=12 if DZ==1 else 0
    nb=NA-1-G2-CZ
    if DZ==2:
        W+=srd(36,4,5,0,O_OFF)+[I('v_mov_b32 v%d, v%d'%(96+16*b+i,160+32*b+i)) for b in range(2) for i in range(16)]
        for i in range(3): W+=[I('s_cmp_gt_u32 s91, %d'%i), I('s_cselect_b32 s26, 0, 0x7fff0000'), I('s_cselect_b32 s%d, s%d, 0'%(88+i,88+i)), I('v_add_u32 v%d, s26, v%d'%(4+i,vL16))]
    zs2=lambda kt: [I('buffer_store_dwordx4 %s, v%d, s[36:39], s%d offen offset:%d sc0 sc1'%(vr((128,96,112)[i]+4*kt,4),4+i,88+i,1024*kt)) for i in range(3)]
    if DZ==1:
        W+=srd(36,4,5,0,O_OFF)
        for i in range(3):
            if nb>0: W+=gbr; nb-=1
            W+=zst(i)
    W+=gbr*nb+[I('s_waitcnt vmcnt(%d)'%(20+NZ))]+st(1)+gbr
    UP=[]
    for q in range(8): UP+=unpack8(Z+4*q,G+8*q)
    PEN0=20 if DZ else opt.get('pen0',28)
    ZT=22 if DZ else opt.get('zt',1)
    def reads(slot,j):
        so=REG[slot]&0xffff; hi=REG[slot]>>16; f=FR+32*j
        Ra=[I('ds_read_b128 %s, v%d offset:%d'%(vr(f+4*t,4),vA+2*hi+j,so+t*2048)) for t in range(4)]
        Rb=[I('ds_read_b64_tr_b16 %s, v%d offset:%d'%(vr(f+16+4*n+2*u,2),vB+2*hi+u,so+(n>>1)*4096+j*2048+(n&1)*512)) for n in range(4) for u in range(2)]
        return Rb[:2]+Ra+Rb[2:]
    gbar=opt.get('g2_bar',15)
    rp1=opt.get('g2_rp1',list(range(12))); rp2=opt.get('g2_rp2',list(range(gbar+1,gbar+13)))
    dgA=opt.get('g2_dgA',[17,21,25,29]); dgB=opt.get('g2_dgB',[1,5,9,13])
    def tile(kt):
        slot=kt%4; c0=(kt==0); nxt=kt<31
        spine=[m16(ACC+32*(n>>1)+8*t+4*(n&1), FR+32*j+16+4*n, FR+32*j+4*t, '0' if (c0 and j==0) else None) for j in range(2) for n in range(4) for t in (range(4) if not (opt.get('snk2') and n&1) else range(3,-1,-1))]
        fill={}
        def add(g,x): fill.setdefault(g,[]).extend(x)
        for pp,r in zip(rp1,reads(slot,1)): add(pp,[r])
        if kt+3<=31:
            for pp,g in zip(dgB,dmaB((kt+3)%4)): add(pp,g)
        else:
            Gw=dmaW(2*(kt-29)+1); add(-1,Gw[0])
            for pp,g in zip(dgB,Gw[1:]): add(pp,g)
        w={31:63,ZT+1:28,ZT+2:28}.get(kt,16)+(NZ if kt<2 else 0)+({1:3,2:6,3:6}.get(kt,0) if DZ==2 else 0)
        if DZ==2 and kt<4:
            for pp,x in zip(opt.get('dz_pos',[19,23,27]),zs2(kt)): add(pp,[x])
        add(gbar,[I('s_waitcnt vmcnt(%d) lgkmcnt(0)'%w)]+(w7('L_z1_c',wait_lines('L_z1_w',2,8,False,10,4,True)) if DZ and kt==ZT else [])+gbr)
        if DZ==1 and kt==2: add(gbar,zpub('L_z1_p'))
        if DZ==2 and kt==6: add(gbar,[I('s_cmp_lg_u32 s46, 4'), I('s_cbranch_scc1 L_z1_p')]+zpub('L_z1_p'))
        if DZ and kt==ZT-2: add(gbar,w7('L_z1_a',[I('s_mov_b64 exec, 3'), I('buffer_load_dword v15, v10, s[48:51], 0 offen offset:4 sc1'), I('s_mov_b64 exec, -1')]))
        if kt==ZT:
            zl=[[x] for x in ZL]
            for k,g in enumerate(zl): add(gbar+1+(k*16)//len(zl),g)
        if kt in (28,29):
            u=UP[32*(kt-28):32*(kt-27)]
            for k in range(32): add(k,u[k:k+1])
        if nxt:
            for pp,r in zip(rp2,reads((slot+1)%4,0)): add(pp,[r])
        if kt+4<=31:
            add(gbar,[I('s_add_u32 m0, s41, %d'%REG[slot])])
            for pp,g in zip(dgA,dmaA(slot)): add(pp,g)
        else:
            Gw=dmaW(2*(kt-28)); add(gbar,Gw[0])
            for pp,g in zip(dgA,Gw[1:]): add(pp,g)
        return interleave(spine,fill)
    W+=reads(0,0)+[I('s_mov_b32 s46, %d'%((PEN0-4)//4)), I('s_waitcnt lgkmcnt(0)')]+st(4)
    head=[]
    for t in range(4): head+=tile(t)
    head=auto_lgkm(head,pre=[])
    gb=[]
    for t in range(4,8): gb+=tile(t)
    gb=auto_lgkm(gb)
    if opt.get('hk_nda'): gb=[x for x in gb if not ('s[16:19]' in x and ' lds' in x)]
    if opt.get('hk_ndb'): gb=[x for x in gb if not ('s[20:23]' in x and ' lds' in x)]
    if opt.get('hk_nrd'): gb=[x for x in gb if 'ds_read' not in x]
    fix_hazards(gb+gb,auto=False,tag='g2loop')
    pen=[]
    for t in range(PEN0,32): pen+=tile(t)
    pen=auto_lgkm(pen,pre=gb)
    gloop=['L_g2_loop:']+gb+[I('s_sub_u32 s46, s46, 1'), I('s_cmp_lg_u32 s46, 0'), I('s_cbranch_scc1 L_g2_loop')]
    Ep=[]
    for nf in range(2):
        for m in range(2):
            a=ACC+16*(2*nf+m); g=G+16*(2*nf+m)
            for i in range(8): Ep+=[I('v_pk_add_f32 %s, %s, %s op_sel_hi:[1,0]'%(p(a+2*i),p(a+2*i),p(vBIAS+4*m+2*(i//4))))]
            for i in range(8): Ep+=[I('v_pk_mul_f32 %s, %s, %s'%(p(a+2*i),p(a+2*i),p(g+2*i)))]
            for i in range(8): Ep+=[I('v_cvt_pk_bf16_f32 v%d, v%d, v%d'%(a+i,a+2*i,a+2*i+1))]
            Ep+=[I('s_add_u32 s26, s32, %d'%(m*56*2048+nf*2048))]
            for h in range(2): Ep+=[I('buffer_store_dwordx4 %s, v%d, s[52:55], s26 offen offset:%d sc0 sc1'%(vr(a+4*h,4),vL16,1024*h))]
        if nf==0: Ep+=gbr
    def bars(n,tag):
        if n<=2: return gbr*n
        return [I('s_mov_b32 s47, %d'%n), 'L_%s:'%tag]+gbr+[I('s_sub_u32 s47, s47, 1'), I('s_cmp_lg_u32 s47, 0'), I('s_cbranch_scc1 L_%s'%tag)]
    Ep+=flat(dmaW(7))+st(6)+gbr*(CW-1)+[I('s_waitcnt vmcnt(4)')]+gbr
    Ep+=[I('s_lshl_b32 s30, s64, 1'), I('s_add_u32 s30, s30, s75'), I('s_lshl_b32 s30, s30, 8'), I('s_add_u32 s30, s30, %d'%(320*128))]+pub1('L_c_pb',7,'s30',2)
    D=['L_gC:', I('s_lshl_b32 s30, s64, 1'), I('s_add_u32 s30, s30, s75'), I('s_lshl_b32 s30, s30, 1'), I('s_and_b32 s26, s34, 1'), I('s_add_u32 s30, s30, s26'), I('s_lshl_b32 s30, s30, 7'),
       I('s_add_u32 s30, s30, %d'%(320*128)), I('s_xor_b32 s35, s30, 256'),
       I('s_lshr_b32 s31, s64, 1'), I('s_lshl_b32 s31, s31, 3'), I('s_and_b32 s26, s34, %d'%(RO-1)), I('s_add_u32 s31, s31, s26'), I('s_lshl_b32 s31, s31, 7'), I('s_add_u32 s31, s31, %d'%(256*128))]+srd(52,72,73,0,0x400000)
    D+=[I('s_lshl_b32 s32, s43, 16'), I('s_add_u32 s32, s32, s59'), I('s_add_u32 s33, s32, 32768')]
    D+=[I('buffer_load_dwordx4 %s, v%d, s[52:55], s%d offen offset:%d'%(vr(XR+4*q,4),vX,32+q//2,64*(q&1))) for q in range(4)]
    D+=[I('s_mul_i32 s26, s43, %d'%(56*2048)), I('s_add_u32 s26, s26, 0x%x'%H_OFF)]+srd(8,4,5,'s26',56*2048)+[I('s_mul_i32 s24, s75, %d'%(7*8192))]
    D+=[I('s_lshl_b32 s26, s43, 16'), I('s_add_u32 s26, s26, 0x%x'%O_OFF)]+srd(16,4,5,'s26',65536)
    D+=[I('s_sub_u32 s26, 0x200000, s59')]+srd(20,66,67,'s59','s26')+srd(52,70,71,0,0x400000)
    if CQ==CW: D+=ask1('L_c_ak',7,'s30')
    for k in range(CW+1,CK+1):
        if k==CK: D+=chk1('L_c_ck',7,'s30',7)
        D+=gbr
        if k==CQ: D+=ask1('L_c_ak',7,'s30')
    nb=NC-2-CK
    for k in range(3):
        D+=flat(ldA(k))
        if k<2 and nb>0: D+=gbr; nb-=1
    D+=gbr*nb+[I('s_waitcnt vmcnt(16)')]+gbr+st(5)+rd3(0,0)
    DT=[]
    swW=[I('s_mov_b64 s[12:13], s[20:21]'), I('s_mov_b32 s14, s22')]
    swA=[I('s_mov_b64 s[8:9], s[16:17]'), I('s_mov_b32 s10, s18')]
    def earlyA(st_): return {3*k:g for k,g in enumerate(ldA(st_))}
    for j in range(14):
        w={0:16,1:16,2:20,11:16,12:8,13:63}.get(j,24)
        mid=[I('s_waitcnt vmcnt(%d)'%w)]+(chk1('L_d_ck',7,'s35',7,True) if j==3 else [])+gbr
        if j==1: mid+=ask1('L_d_ak',7,'s35')
        if j==3: mid+=[I('s_xor_b32 s24, s75, 1'), I('s_mul_i32 s24, s24, %d'%(7*8192))]
        late=[]
        if j>=1:
            Gw=dmaW(j+7); mid=mid+(swW if j==7 else [])+Gw[0]; late=Gw[1:]
        DT+=tile3(j,j%4,(Y,Y+16),j==0,j+1 if j<13 else None,mid,earlyA((j+3)%4) if j<=10 else {},late)
    poll=[I('s_mov_b64 exec, 0xff'), I('buffer_load_dword v15, v14, s[48:51], s31 offen sc1'), I('s_mov_b64 exec, -1')]
    DT+=[I('s_waitcnt lgkmcnt(0)')]+gbr+flat(dmaW(21))+swA+[I('v_lshlrev_b32 v14, 2, v0'), I('s_mov_b32 s44, 0'), I('s_mov_b32 s45, 0')]+poll
    T3=FR3+16
    DT+=[I('s_mov_b32 s28, 0x%x'%f2u(-math.log2(math.e))), I('s_mov_b32 s29, s28')]
    for nf in range(2):
        y=Y+16*nf
        for i in range(8): DT+=[I('v_pk_mul_f32 %s, %s, s[28:29]'%(p(T3+2*i),p(y+2*i)))]
        for i in range(16): DT+=[I('v_exp_f32 v%d, v%d'%(T3+i,T3+i))]
        for i in range(8): DT+=[I('v_pk_add_f32 %s, %s, 1.0 op_sel_hi:[1,0]'%(p(T3+2*i),p(T3+2*i)))]
        for i in range(16): DT+=[I('v_rcp_f32 v%d, v%d'%(T3+i,T3+i))]
        for i in range(8): DT+=[I('v_pk_mul_f32 %s, %s, %s'%(p(y+2*i),p(y+2*i),p(T3+2*i)))]
    for q in range(4):
        DT+=[I('v_permlane16_swap_b32 v%d, v%d'%(XR+4*q,XR+4*q+2)), I('v_permlane16_swap_b32 v%d, v%d'%(XR+4*q+1,XR+4*q+3))]
    for i in range(15,-1,-1): DT+=[I('v_and_b32 v%d, 0xffff0000, v%d'%(XR+2*i+1,XR+i)), I('v_lshlrev_b32 v%d, 16, v%d'%(XR+2*i,XR+i))]
    DT+=gbr*(NX-1)+[I('s_waitcnt vmcnt(0)')]+gbr+st(3)
    assert DE in (2,3)
    def issue(k):
        lab='L_e%d'%k
        X=[I('s_andn2_b32 s26, s44, s45'), I('s_cbranch_scc1 %s_h'%lab), I('s_waitcnt vmcnt(%d)'%(8 if k else 0)), I('s_mov_b32 s47, 0x40000'),
           lab+'_l:', I('v_cmp_le_u32 vcc, 4, v15'), I('s_sub_u32 s47, s47, 1'), I('s_cselect_b32 s26, 0xff, 0'), I('s_or_b32 s26, s26, vcc_lo'), I('s_and_b32 s44, s26, 0xff'), I('s_andn2_b32 s26, s44, s45'),
           I('s_cbranch_scc1 %s_h'%lab), I('s_sleep %d'%opt.get('slp2',2))]+poll+[I('s_waitcnt vmcnt(0)'), I('s_branch %s_l'%lab),
           lab+'_h:', I('s_ff1_i32_b32 s46, s26'), I('s_bitset1_b32 s45, s46'), I('s_lshl_b32 s24, s46, 13'), I('s_add_u32 s26, s46, 6'), I('s_and_b32 s26, s26, 7'), I('s_lshl_b32 s%d, s26, 14'%(36+k%4))]
        return X+(poll if k<7 else [])+flat(ldA(k%3))
    def after(k): return sum(8+(1 if x<7 else 0) for x in range(k+1,min(8,k+DE)))
    vE=lambda k: 24+(k&1)
    for k in range(DE): DT+=issue(k)
    DT+=[I('v_add_u32 v%d, s36, v%d'%(vE(0),vB3))]+rd3((vE(0),),0)
    for k in range(8):
        DT+=[I('s_waitcnt vmcnt(%d)'%after(k))]
        DT+=tile3((vE(k),),k%3,(S0,S1),k==0,(vE(k+1),) if k<7 else None,[],{0:[I('v_add_u32 v%d, s%d, v%d'%(vE(k+1),36+(k+1)%4,vB3))]} if k<7 else {})
        if k+DE<8: DT+=issue(k+DE)
    for nf in range(2):
        y=(S0,S1)[nf]
        for i in range(8): DT+=[I('v_pk_fma_f32 %s, %s, %s, %s'%(p(y+2*i),p(y+2*i),p(Y+16*nf+2*i),p(XR+16*nf+2*i)))]
        for i in range(8): DT+=[I('v_cvt_pk_bf16_f32 v%d, v%d, v%d'%(y+i,y+2*i,y+2*i+1))]
        for h in range(2):
            DT+=[I('v_permlane16_swap_b32 v%d, v%d'%(y+4*h,y+4*h+2)), I('v_permlane16_swap_b32 v%d, v%d'%(y+4*h+1,y+4*h+3))]
        for h in range(2):
            DT+=[I('buffer_store_dwordx4 %s, v%d, s[52:55], s%d offen offset:%d %s'%(vr(y+4*h,4),vX,32+nf,64*h,opt.get('out_mod','')))]
    k0=len(D)-8
    D=D[:k0]+auto_lgkm(D[k0:]+DT,pre=[])
    ID=['L_g_idle:', I('v_lshlrev_b32 v12, 7, v0'), I('s_sub_u32 s26, s2, 224'), I('s_lshl_b32 s26, s26, 2'), I('s_add_u32 s26, s26, s42'), I('s_lshl_b32 s26, s26, 13')]
    ID+=srd(8,66,67,0,0x200000)+srd(20,68,69,0,0x380000)
    for k in range(2): ID+=[I('s_add_u32 s27, s26, %d'%(k*0x100000)), I('buffer_load_dword v13, v12, s[8:11], s27 offen')]
    for k in range(4): ID+=[I('s_add_u32 s27, s26, %d'%(k*0x100000)), I('buffer_load_dword v13, v12, s[20:23], s27 offen')]
    if DZ: ID+=gbr*3+srd(36,4,5,0,O_OFF)+zst(0)+zst(1)
    ID+=[I('s_waitcnt vmcnt(0)')]
    for t in range(8): ID+=gbr+(zpub('L_z1_q') if DZ and t==0 else [])+flat(dmaW(t))
    ID+=bars(NA+32+CW+1-8-(3 if DZ else 0),'g_idl')+[I('s_branch L_gC')]
    fin=['L_k2_fin:']
    if STAMP:
        fin+=[I('s_waitcnt vmcnt(0)')]+st(7)+[I('s_cmp_lg_u32 s2, %d'%opt.get('stamp_wg',0)), I('s_cbranch_scc1 L_k2_nost'), I('s_cmp_lg_u32 s42, %d'%opt.get('stamp_w',3)), I('s_cbranch_scc1 L_k2_nost'),
              I('s_load_dwordx2 s[6:7], s[0:1], %d'%KA_DBG), I('s_waitcnt lgkmcnt(0)')]+srd(48,6,7,0,256)+[
              I('s_lshr_b32 s26, s25, 2'), I('s_lshl_b32 s26, s26, 5'), I('v_mov_b32 v1, s26')]
        for k in range(1,8 if not TRC else 0): fin+=[I('s_sub_u32 s26, s%d, s76'%(76+2*k)), I('v_mov_b32 v2, s26'), I('buffer_store_dword v2, v1, s[48:51], 0 offen offset:%d'%(4*k))]
        if TRC: fin+=[I('s_cmp_lt_u32 s25, 4'), I('s_cbranch_scc1 L_k2_nost'), I('s_waitcnt vmcnt(0)'), I('v_lshlrev_b32 v1, 2, v0'), I('buffer_store_dword v9, v1, s[48:51], 0 offen')]
        fin+=['L_k2_nost:']
    if opt.get('wgst'):
        fin+=[I('s_cmp_lg_u32 s25, %d'%opt.get('wgw',0)), I('s_cbranch_scc1 L_k2_nowg')]+srd(48,4,5,ST_OFF+2*65536,65536)+[I('s_lshl_b32 s26, s2, 4'), I('v_mov_b32 v1, s26')]
        fin+=[I('v_mov_b32 v%d, s%d'%(4+i,76+2*k)) for i,k in enumerate(opt['wgst'])]+[I('s_nop 1'), I('buffer_store_dwordx4 v[4:7], v1, s[48:51], 0 offen'), 'L_k2_nowg:']
    if opt.get('rt'): fin+=[I('s_cmp_lg_u32 s25, 4'), I('s_cbranch_scc1 L_k2_end')]
    fin+=rt_end(opt,opt.get('k2_idx',1),'k2',sreg=96)+['L_k2_end:', I('s_endpgm')]
    code=H+A+st(1)+aloop+st(2)+AT+S+C+W+head+gloop+pen+Ep+D+fin+ID+FB+['L_cw1:']
    code,_=fix_hazards(code)
    tr,_=fix_hazards(H+A+body+body+lastb+AT); check_waits(tr,'k2a')
    tr,_=fix_hazards(FB); check_waits(tr,'k2fb')
    tr,_=fix_hazards(H+S+C+W+head+gb+gb+pen+Ep+D); check_waits(tr,'k2g')
    return L+code, kernel_desc(name,256,256,102), '; @launch %sgrid=(256,1,1) block=(512,1,1) lds=163840'%('' if name.startswith('recurrent') else 'kernel=%s '%name)
```

```python
from common import *
B_RING=98304; CS=131072+12288
ARR=131072+7*4096
STAT_OFF=0; PST_OFF=0x100000
QSCALE=f2u(32**-0.5*math.log2(math.e))
vOB=1; vOA=5; vA=9; vB=11; vIDX=15; ST=16
AB=32; BF=64; SEL=96; CD=100; ACC=128; X0=104; CSB=112
NQ=3; OOB=0x7fff0000
RP=4
def m16(d,a,b,c=None): return I('v_mfma_f32_16x16x32_bf16 %s, %s, %s, %s'%(vr(d,4),vr(a,4),vr(b,4),vr(d,4) if c is None else c))
p=lambda b: vr(b,2)
flat=lambda G:[x for g in G for x in g]
acc=lambda a,t: ACC+16*a+4*t
tag=lambda L,t: [x+' ; @t:'+t if is_instr(x) and x.strip().startswith('buffer_') else x for x in L]
cond=lambda L: [x+' ; @c' if is_instr(x) and x.strip().startswith('buffer_') else x for x in L]
def wvm(tags,lg=False): return I('s_waitcnt vmcnt(?)%s ; @w:%s'%(' lgkmcnt(0)' if lg else '',tags))
def resolve_vm(L):
    out=list(L)
    for i,x in enumerate(out):
        if '@w:' not in x: continue
        tags=set(x.split('@w:')[1].split()[0].split(',')); n=0; best=None; seen=set()
        for y in reversed(out[:i]):
            if not (is_instr(y) and y.strip().startswith('buffer_')): continue
            t=y.split('@t:')[1].split()[0] if '@t:' in y else None
            if t in tags and t not in seen:
                seen.add(t)
                if best is None: best=n
                if seen==tags: break
            if '@c' not in y: n+=1
        assert seen==tags,(x,seen)
        out[i]=x.replace('vmcnt(?)','vmcnt(%d)'%min(best,63)).split(' ; @w')[0]
    return [x.split(' ; @')[0] if not x.startswith(';') else x for x in out]
def unpk(L):
    out=[]
    for x in L:
        m=re.match(r'\s*v_pk_(add|mul|fma)_f32 (.*)',x)
        if not m: out.append(x); continue
        c=Ins(x); ns=len(c.ops)-1
        mm=re.search(r'op_sel_hi:\[([01,]*)\]',c.mods); hi=[int(q) for q in mm.group(1).split(',')] if mm else [1]*ns
        assert 'op_sel:' not in c.mods and 'neg' not in c.mods
        def half(o,k):
            r=regs_of(o)
            return '%s%d'%r[k] if r else o
        for k in range(2):
            d=half(c.ops[0],k); sr_=[half(c.ops[1+i],k*hi[i]) for i in range(ns)]
            if m.group(1)=='fma':
                if sr_[2]==d and sr_[1][0]=='v': out.append(I('v_fmac_f32 %s, %s, %s'%(d,sr_[0],sr_[1])))
                elif sr_[2]==d and sr_[0][0]=='v': out.append(I('v_fmac_f32 %s, %s, %s'%(d,sr_[1],sr_[0])))
                else: out.append(I('v_fma_f32 %s, %s, %s, %s'%(d,sr_[0],sr_[1],sr_[2])))
            else:
                if sr_[1][0]!='v': sr_=sr_[::-1]
                out.append(I('v_%s_f32 %s, %s, %s'%(m.group(1),d,sr_[0],sr_[1])))
            if k==0: assert d not in [half(c.ops[1+i],hi[i]) for i in range(ns)],x
    return out
def sprinkle(L,pos,X):
    idx=sorted(int(q*len(L)) if isinstance(q,float) else q for q in pos)
    out=[]; k=0
    for i,x in enumerate(L):
        while k<len(idx) and idx[k]<=i: out+=X; k+=1
        out.append(x)
    out+=X*(len(idx)-k)
    return out

def prologue(opt):
    B=[I('s_cmp_ge_u32 s2, 256'), I('s_cbranch_scc1 L_end')]+rt_begin(opt,sreg=96)
    B+=[I('s_load_dwordx2 s[72:73], s[0:1], %d'%KA_X), I('s_load_dwordx2 s[6:7], s[0:1], %d'%KA_WQKV), I('s_load_dwordx2 s[36:37], s[0:1], %d'%KA_WIN),
        I('s_load_dwordx4 s[44:47], s[0:1], %d'%KA_DBG), I('s_load_dwordx4 s[60:63], s[0:1], %d'%KA_WSP), I('s_load_dwordx2 s[66:67], s[0:1], %d'%KA_WO),
        I('s_load_dwordx4 s[68:71], s[0:1], %d'%KA_WOUT),
        I('v_lshrrev_b32 v1, 6, v0'), I('v_and_b32 v0, 63, v0'), I('s_nop 0'), I('v_readfirstlane_b32 s25, v1'),
        I('s_and_b32 s23, s2, 1'), I('s_lshl_b32 s23, s23, 2'), I('s_bfe_u32 s24, s2, 0x20003'), I('s_add_u32 s23, s23, s24'),
        I('s_bfe_u32 s32, s2, 0x20001'), I('s_lshr_b32 s30, s2, 5'), I('s_lshl_b32 s24, s32, 3'), I('s_add_u32 s24, s24, s30'),
        I('s_lshl_b32 s26, s24, 14'), I('s_lshl_b32 s27, s25, 11'), I('s_add_u32 s21, s26, s27'),
        I('v_lshlrev_b32 v24, 4, v0'),
        I('v_lshrrev_b32 v25, 3, v0'), I('v_lshrrev_b32 v26, 4, v0'), I('v_and_b32 v27, 7, v0'), I('s_lshl_b32 s26, s25, 16'),
        I('v_lshlrev_b32 v25, 11, v25'), I('v_add_u32 v25, s26, v25'), I('v_xor_b32 v27, v27, v26'), I('v_xor_b32 v26, 4, v27'),
        I('v_lshl_add_u32 v27, v27, 4, v25'), I('v_lshl_add_u32 v26, v26, 4, v25')]
    for i in range(4): B+=[I('v_add_u32 v%d, %d, v%d'%(vOA+i, i*8*2048-i*1024, (27,26)[i&1]))]
    B+=[I('s_cmp_ge_u32 s30, 3'), I('s_cselect_b32 s58, 1, 0'), I('s_cselect_b32 s26, 3, 0'), I('s_cselect_b32 s27, 14, 24'), I('s_cselect_b32 s34, 0, 16'),
        I('s_cselect_b32 s89, %d, s58'%1024), I('s_cselect_b32 s88, %d, s58'%3584),
        I('s_sub_u32 s33, s30, s26'), I('s_mul_i32 s35, s33, 3'), I('s_sub_u32 s35, s35, 1'), I('s_max_i32 s35, s35, 0'),
        I('s_mul_i32 s27, s27, s32'), I('s_add_u32 s34, s34, s27'), I('s_add_u32 s34, s34, s35'),
        I('s_mul_i32 s22, s32, 24'), I('s_lshl_b32 s26, s30, 1'), I('s_add_u32 s22, s22, s26'), I('s_add_u32 s89, s89, 6144'),
        I('v_bfe_u32 v28, v0, 3, 1'), I('v_bfe_u32 v25, v0, 1, 2'), I('v_lshl_add_u32 v28, v28, 3, v25'),
        I('s_lshr_b32 s26, s25, 2'), I('s_lshl_b32 s26, s26, 5'), I('s_and_b32 s27, s25, 1'), I('s_lshl_b32 s27, s27, 4'), I('s_add_u32 s26, s26, s27'),
        I('s_and_b32 s27, s25, 2'), I('s_lshl_b32 s27, s27, 1'), I('s_add_u32 s26, s26, s27'), I('v_add_u32 v28, s26, v28'),
        I('v_lshrrev_b32 v25, 4, v0'), I('v_and_b32 v26, 1, v0'), I('v_lshlrev_b32 v25, 5, v25'), I('v_lshl_add_u32 v25, v26, 4, v25'),
        I('s_lshl_b32 s26, s22, 6'), I('s_movk_i32 s27, 6144'), I('v_add_u32 v26, s26, v25'), I('v_mad_u32_u24 v%d, v28, s27, v26'%vOB),
        I('s_lshl_b32 s26, s34, 6'), I('s_add_u32 s26, s26, s88'), I('s_sub_u32 s26, s26, 1024'), I('v_add_u32 v26, s26, v25'), I('v_mad_u32_u24 v%d, v28, s89, v26'%(vOB+1)),
        I('s_cmp_lg_u32 s33, 0'), I('s_cselect_b32 s26, 32, 0'), I('v_cmp_gt_u32 vcc, s26, v0'), I('v_add_u32 v25, %d, v%d'%((128-1024)&0xffffffff,vOB+1)), I('v_mov_b32 v26, 0x%x'%OOB),
        I('v_cndmask_b32 v%d, v26, v25, vcc'%(vOB+2)),
        I('s_and_b32 s42, s25, 3'), I('s_mul_i32 s28, s42, %d'%(NQ*1024)), I('s_add_u32 s28, s28, %d'%B_RING), I('s_lshr_b32 s26, s25, 2'), I('s_lshl_b32 s26, s26, 14'), I('s_add_u32 s40, s28, s26'),
        I('s_lshl_b32 s29, s25, 12'), I('s_lshl_b32 s26, s23, 19'), I('s_add_u32 m0, s29, 65536'), I('s_cmp_lg_u32 s58, 0'),
        I('s_waitcnt lgkmcnt(0)')]
    B+=[I('s_cselect_b32 s84, s36, s6'), I('s_cselect_b32 s85, s37, s7')]+srd(12,72,73,'s26',256*2048)
    if opt.get('cw_'):
        B+=['L_cw0:', I('s_getpc_b64 s[16:17]'), I('s_mov_b32 s18, L_cw1-L_cw0'), I('s_mov_b32 s19, 0x20000'), I('s_lshr_b32 s27, s2, 3'), I('s_lshl_b32 s27, s27, 3'), I('s_add_u32 s27, s27, s25'), I('s_lshl_b32 s27, s27, 9'),
            I('v_lshlrev_b32 v22, 6, v0'), I('v_cmp_gt_u32 vcc, 8, v0'), I('v_add_u32 v22, s27, v22'), I('v_mov_b32 v23, 0x%x'%OOB), I('v_cndmask_b32 v22, v23, v22, vcc'), I('buffer_load_dword v14, v22, s[16:19], 0 offen')]
    for k in range(2): B+=[I('buffer_load_dwordx4 %s, v24, s[12:15], s21 offen offset:%d'%(vr(ACC+4*k,4),1024*k))]
    for i in range(4): B+=[I('buffer_load_dwordx4 v%d, s[12:15], 0 offen offset:%d lds'%(vOA+i,i*1024))]
    B+=[I('s_mov_b32 m0, s40'), I('s_lshl_b32 s86, s89, 10'), I('s_mov_b32 s87, 0x20000')]+srd(8,6,7,0,0x600000)
    B+=[I('buffer_load_dwordx4 v%d, s[%d:%d], 0 offen offset:%d lds'%(vOB+i,(8,84,84)[i],(11,87,87)[i],i*1024)) for i in range(NQ)]
    B+=[I('s_mov_b32 s4, s46'), I('s_mov_b32 s5, s47')]
    B+=srd(16,4,5,0,O_OFF)+srd(92,4,5,STAT_OFF,256*128)+srd(52,44,45,0,256)+srd(48,4,5,FLAG_OFF,65536)
    B+=[I('s_lshl_b32 s26, s23, 5'), I('s_add_u32 s26, s26, s24'), I('s_lshl_b32 s26, s26, 7'), I('s_lshl_b32 s27, s25, 3'), I('s_add_u32 s26, s26, s27'),
        I('v_mov_b32 v22, s26'), I('v_cmp_eq_u32 vcc, 0, v0'), I('v_mov_b32 v29, 0x%x'%OOB), I('v_cndmask_b32 v30, v29, v22, vcc'),
        I('s_lshl_b32 s26, s2, 8'), I('s_cmp_lg_u32 s25, 0'), I('s_cselect_b32 s26, 0x%x, s26'%OOB),
        I('v_and_b32 v22, 7, v0'), I('v_lshl_add_u32 v22, v22, 2, s26'), I('v_lshrrev_b32 v23, 3, v0'), I('v_lshl_add_u32 v22, v23, 7, v22'), I('v_cmp_gt_u32 vcc, 16, v0'),
        I('v_cndmask_b32 v29, v29, v22, vcc'), I('v_mov_b32 v31, 0'), I('s_lshl_b32 s47, s23, 5'),
        I('s_lshl_b32 s89, s89, 6'), I('s_mov_b32 s88, s89'), I('s_mov_b32 s20, %d'%(64*6144)), I('s_mov_b32 s21, 128'),
        I('s_mov_b32 s57, 32768'), I('s_mov_b32 s59, 0xffff0000'), I('s_mov_b32 s40, 2'),
        I('s_lshl_b32 s26, s24, 1'), I('s_lshr_b32 s27, s25, 2'), I('s_add_u32 s26, s26, s27'), I('s_lshl_b32 s74, s26, %d'%(7+RP.bit_length()-1)),
        I('s_lshl_b32 s31, s23, 14'), I('s_lshl_b32 s26, s42, 12'), I('s_add_u32 s31, s31, s26'),
        I('s_lshl_b32 s64, s23, 1'), I('s_bfe_u32 s26, s2, 0x10001'), I('s_add_u32 s64, s64, s26'),
        I('s_cmp_ge_u32 s25, 4'), I('s_cbranch_scc1 L_k1_g'),
        I('s_cmp_lg_u32 s58, 0'), I('s_cbranch_scc1 L_k1_z'), I('s_cmp_lg_u32 s33, 0'), I('s_cbranch_scc1 L_k1_q3'), I('s_branch L_k1_q2'),
        'L_k1_z:', I('s_cmp_lg_u32 s33, 0'), I('s_cbranch_scc1 L_k1_z3'), I('s_branch L_k1_z2')]
    return B

def stream(kind, NB, opt, setup=[], hooks={}):
    tg=kind+str(NB); h=1 if kind=='g' else 0; isz=kind=='z'
    NFR=2*NB; NM=4*NFR; STM=opt.get('st_mod','sc0 sc1')
    S=['L_k1_%s:'%(tg if kind!='g' else 'g')]
    if kind=='g': S+=[I('s_mov_b32 s34, s22')]
    S+=[I('s_lshl_b32 s26, s34, 17'), I('s_add_u32 s31, s31, s26'), I('s_add_u32 s31, s31, 0x%x'%(Z2N_OFF if isz else P1_OFF)), I('s_mov_b32 s35, %d'%(0 if h else 2))]
    if not isz: S+=[I('s_cmp_lt_u32 s34, 32'), I('s_cselect_b32 s56, 0x%x, 1.0'%QSCALE)]
    S+=[I('v_and_b32 v24, 15, v0'), I('v_lshrrev_b32 v25, 4, v0'), I('v_bfe_u32 v26, v0, 1, 3'), I('s_lshl_b32 s26, s42, 13'), I('s_add_u32 s26, s26, 65536'),
        I('v_lshlrev_b32 v24, 7, v24'), I('v_add_u32 v24, s26, v24'),
        I('v_xor_b32 v27, v25, v26'), I('v_lshl_add_u32 v%d, v27, 4, v24'%vA), I('v_xor_b32 v%d, 64, v%d'%(vA+1,vA))]
    S+=[I('v_lshrrev_b32 v24, 5, v0'), I('v_mul_u32_u24 v24, %d, v24'%(NQ*1024)), I('v_and_b32 v25, 31, v0'), I('v_lshl_add_u32 v24, v25, 3, v24'),
        I('s_cmp_ge_u32 s42, %d'%NB), I('s_cselect_b32 s27, %d, 0'%NB), I('s_sub_u32 s46, s42, s27')]
    def phys(i): return [I('s_add_u32 s26, s46, %d'%i), I('s_cmp_ge_u32 s26, %d'%NB), I('s_cselect_b32 s27, %d, 0'%NB), I('s_sub_u32 s26, s26, s27')]
    for i in range(NB):
        S+=phys(i)+[I('s_lshl_b32 s26, s26, 9'), I('s_add_u32 s26, s26, %d'%(B_RING+(0 if h else 1024))), I('v_add_u32 v%d, s26, v24'%(vB+i))]
    S+=[I('v_bfe_u32 v24, v0, 1, 1'), I('v_lshrrev_b32 v25, 5, v0'), I('v_cmp_eq_u32 vcc, v24, v25'), I('v_mov_b32 v24, 0x3f803f80'),
        I('v_cndmask_b32 v%d, 0, v24, vcc'%SEL)]+[I('v_mov_b32 v%d, v%d'%(SEL+i,SEL)) for i in range(1,4)]
    S+=[I('v_and_b32 v24, 1, v0'), I('v_mul_u32_u24 v24, 0xaaaa, v24'), I('v_add_u32 v%d, 0x4444, v24'%vIDX)]+[I('v_mov_b32 v%d, 0'%(CD+i)) for i in range(4)]
    S+=setup
    def dmaW(s):
        G=[[I('buffer_load_dwordx4 v%d, s[%d:%d], s%d offen offset:%d lds'%(vOB+i,(8,84,84)[i],(11,87,87)[i],(20,88,88)[i],i*1024))] for i in range(NQ)]
        G[-1]+=[I('s_add_u32 s20, s20, %d'%(64*6144)), I('s_add_u32 s88, s88, s89')]
        return [[I('s_add_u32 m0, s28, %d'%((s%4)*16384))]]+G
    def dmaX():
        G=[[I('buffer_load_dwordx4 v%d, s[12:15], s21 offen offset:%d lds'%(vOA+i,i*1024))] for i in range(4)]
        G[-1]+=[I('s_add_u32 s21, s21, 128'), I('s_add_u32 s29, s29, 32768'), I('s_cmp_ge_u32 s29, 98304'), I('s_cselect_b32 s26, 98304, 0'), I('s_sub_u32 s29, s29, s26')]
        return [[I('s_mov_b32 m0, s29')]]+G
    def dma(s):
        if (s&1)==h: return dmaW(s+4) if s+4<=31 else None
        return dmaX() if s<=26 else None
    def rdA(j): return [I('ds_read_b128 %s, v%d offset:%d'%(vr(AB+16*j+4*t,4),vA+j,t*2048)) for t in range(4)]
    advA=lambda j: [I('v_add_u32 v%d, s59, v%d'%(vA+j,vA+j))]
    nxtA=[I('s_add_u32 s40, s40, 1'), I('s_cmp_eq_u32 s40, 3'), I('s_cselect_b32 s40, 0, s40'), I('s_cmp_eq_u32 s40, 2'), I('s_cselect_b32 s59, 0xffff0000, s57')]
    def rdB(a,s,dst=None): return [[I('ds_read_b64_tr_b16 %s, v%d offset:%d'%(vr((BF+4*a if dst is None else dst)+2*u,2),vB+a//2,(s%4)*16384+2*u*NQ*1024+(a&1)*256))] for u in range(2)]
    SMF=I('v_smfmac_f32_16x16x64_bf16 %s, %s, %s, v%d'%(vr(CD,4),vr(SEL,4),vr(BF,8),vIDX))
    GB=opt.get('gb'+kind,opt.get('k1gb',3)); D0=opt.get('k1d0',2); DS=opt.get('ds'+str(NB),(NM-GB-D0-1)//4+(1 if NM>16 else 0))
    VW=I('s_waitcnt vmcnt(%d) lgkmcnt(0)'%(4+NQ))
    def step(s, G, c0=False, extra=None, vw=[VW], dense=False, pre_last=False):
        j=s&1
        spine=[m16(acc(a,t),BF+4*a,AB+16*j+4*t,'0' if c0 else None) for a in range(NFR) for t in range(4)]
        fill={}
        def add(g,x): fill.setdefault(g,[]).extend(x)
        add(GB,vw+[I('s_barrier')])
        ra=[[x] for x in rdA(1-j)]; ra[-1]+=advA(1-j)+(nxtA if j==0 else [])
        avail={GB:rdB(0,s+1)+ra}
        for a in range(1,NFR): avail.setdefault(max(GB,4*a+3),[]).extend(rdB(a,s+1))
        if pre_last: avail.setdefault(12,[]).extend(rdB(0,31,X0)+rdB(1,31,X0+4))
        queue=[]
        for g2 in range(GB,NM):
            queue+=avail.get(g2,[])
            n=1 if g2<NM-1 else len(queue)
            add(g2,flat(queue[:n])); queue=queue[n:]
        add(NM-3,[SMF])
        if pre_last: add(NM-1,[SMF.replace(vr(BF,8),vr(X0,8))])
        if G:
            if dense:
                for g,x in G: add(g,x)
            else:
                add(GB,G[0])
                for k,g in enumerate(G[1:]): add(min(GB+D0+k*DS,NM-1),g)
        if extra:
            for g,x in extra.items(): add(g,x)
        return interleave(spine,fill)
    X=ACC+16; R=ACC
    P=S+[I('s_waitcnt vmcnt(%d)'%(4+NQ))]
    for k in range(2): P+=unpack8(ACC+4*k,X+8*k)
    P+=[I('v_pk_add_f32 %s, %s, %s'%(p(R+2*i),p(X+2*i),p(X+8+2*i))) for i in range(4)]
    P+=[I('v_pk_add_f32 %s, %s, %s'%(p(R),p(R),p(R+2))), I('v_pk_add_f32 %s, %s, %s'%(p(R+4),p(R+4),p(R+6))), I('v_pk_add_f32 %s, %s, %s'%(p(R),p(R),p(R+4))),
        I('v_add_f32 v%d, v%d, v%d'%(R,R,R+1))]+wave_sum(R,R+1)+[I('v_mul_f32 v%d, 0xba800000, v%d'%(ST,R))]
    P+=[I('v_pk_add_f32 %s, %s, %s op_sel_hi:[1,0]'%(p(X+2*i),p(X+2*i),p(ST))) for i in range(8)]
    P+=[I('v_pk_mul_f32 %s, %s, %s'%(p(R+2*i),p(X+2*i),p(X+2*i))) for i in range(4)]
    P+=[I('v_pk_fma_f32 %s, %s, %s, %s'%(p(R+2*i),p(X+8+2*i),p(X+8+2*i),p(R+2*i))) for i in range(4)]
    P+=[I('v_pk_add_f32 %s, %s, %s'%(p(R),p(R),p(R+2))), I('v_pk_add_f32 %s, %s, %s'%(p(R+4),p(R+4),p(R+6))), I('v_pk_add_f32 %s, %s, %s'%(p(R),p(R),p(R+4))),
        I('v_add_f32 v%d, v%d, v%d'%(R,R,R+1))]+wave_sum(R,R+1)
    P+=[I('v_mov_b32 v%d, 0x3727c5ac'%(R+1)), I('v_fmac_f32 v%d, 0x3a800000, v%d'%(R+1,R)), I('v_rsq_f32 v%d, v%d'%(ST+1,R+1)), I('s_nop 0'),
        I('buffer_store_dwordx2 %s, v30, s[92:95], 0 offen sc0 sc1'%p(ST)), I('buffer_store_dword v31, v29, s[48:51], 0 offen sc0 sc1')]
    if isz:
        P+=[I('s_mul_i32 s26, s23, %d'%(20*2048)), I('s_lshl_b32 s27, s42, 9'), I('s_add_u32 s38, s26, s27'), I('s_add_u32 s38, s38, 0x%x'%PST_OFF),
            I('s_mul_i32 s26, s32, 5'), I('s_add_u32 s26, s26, s33'), I('s_lshl_b32 s26, s26, 11'), I('s_add_u32 s39, s26, s38'),
            I('v_lshlrev_b32 v24, 3, v0'), I('v_mov_b32 v26, -1'), I('v_mov_b32 v27, -1'), I('buffer_store_dwordx2 v[26:27], v24, s[16:19], s39 offen sc0 sc1')]
    P+=[I('s_waitcnt vmcnt(%d)'%(3 if isz else 2)), I('s_barrier')]
    k0=len(P)
    P+=flat(rdB(0,0))+rdA(0)+advA(0)
    for a in range(1,NFR): P+=flat(rdB(a,0))
    P+=[I('s_mov_b32 s22, 6'), SMF]+([I('s_setprio %d'%opt['k1p'+kind])] if opt.get('k1p'+kind) else [])
    w0=lambda lab,Z: [I('s_cmp_lg_u32 s25, 0'), I('s_cbranch_scc1 %s_%s'%(lab,tg))]+Z+['%s_%s:'%(lab,tg)]
    pub=[] if h else w0('L_k1_np',[I('v_mov_b32 v28, 1'), I('v_mov_b32 v29, 0'), I('s_mov_b64 exec, 1'),
         I('buffer_atomic_add v28, v29, s[52:55], s47 offen sc1'), I('s_mov_b64 exec, -1'), I('v_lshlrev_b32 v27, 5, v0')])
    seq=dmaX()+dmaW(2+h)+dmaX(); n0=len(seq)
    if not h: seq+=dmaW(4)
    pos=[(-1+(k*NM)//len(seq)) if k<n0 else max(GB,-1+(k*NM)//len(seq)) for k in range(len(seq))]
    f0=step(0,list(zip(pos,seq)),c0=True,vw=[I('s_waitcnt lgkmcnt(0)')],dense=True)
    f1=step(1,dma(1),extra={GB+1:pub})
    first=P[:k0]+auto_lgkm(P[k0:]+f0+f1,pre=[])
    body=auto_lgkm(flat([step(s,dma(s),extra=hooks.get('loop') if s==2 else None) for s in range(2,6)]))
    Lp='L_k1_loop_%s'%tg
    loop=[Lp+':']+body+[I('s_sub_u32 s22, s22, 1'), I('s_cmp_lg_u32 s22, 0'), I('s_cbranch_scc1 %s'%Lp)]
    ask=[I('s_mov_b64 exec, 0xff'), I('buffer_load_dword v28, v27, s[52:55], 0 offen sc1'), I('s_mov_b64 exec, -1')]
    chk=[] if h else w0('L_k1_ck',[I('s_mov_b32 s27, 0x40000'), 'L_k1_chl_%s:'%tg, I('v_cmp_le_u32 vcc, 32, v28'), I('s_nop 1'), I('s_and_b32 s26, vcc_lo, 0xff'), I('s_cmp_eq_u32 s26, 0xff'),
        I('s_cbranch_scc1 L_k1_ck_%s'%tg), I('s_sleep 2')]+cond(ask)+[I('s_waitcnt vmcnt(0)'), I('s_sub_u32 s27, s27, 1'), I('s_cmp_lg_u32 s27, 0'), I('s_cbranch_scc1 L_k1_chl_%s'%tg)])
    g=GB+1
    ex29={0:[I('v_bfe_u32 v1, v0, 3, 1'), I('v_and_b32 v24, 7, v0'), I('s_lshl_b32 s26, s23, 12')],
          1:[I('v_lshlrev_b32 v1, 7, v1'), I('s_lshl_b32 s27, s42, 10')],
          2:[I('v_lshl_add_u32 v1, v24, 3, v1'), I('s_add_u32 s43, s26, s27')]}
    for t in range(4): ex29[g+1+t]=tag([I('buffer_load_dwordx2 %s, v1, s[92:95], s43 offen offset:%d sc1'%(p(ST+2*t),256*t))],'st')
    ex28={0:[I('v_and_b32 v2, 31, v0'), I('s_add_u32 s26, s35, s46'), I('s_lshl_b32 s26, s26, 7'), I('s_add_u32 s26, s26, %d'%CS)],
          1:[I('v_lshl_add_u32 v2, v2, 2, s26'), I('v_lshrrev_b32 v3, 4, v0')],
          2:[I('v_lshlrev_b32 v3, 4, v3'), I('v_lshlrev_b32 v4, 4, v0')],
          6:[I('v_mov_b32 v6, %d'%(ARR+4*h)), I('v_mov_b32 v7, 0')], 7:[I('ds_write_b32 v6, v7')]}
    def merge(a,b):
        c={k:list(v) for k,v in a.items()}
        for k,v in (b or {}).items(): c.setdefault(k,[]).extend(v)
        return c
    tgd=lambda G: [tag(x,'k1') for x in G] if G else G
    e0=step(26,tgd(dma(26)),extra={0:[] if h else w0('L_k1_ak',cond(ask))})+step(27,tgd(dma(27)))+step(28,None,extra=merge(ex28,hooks.get(28)))
    e0+=step(29,None,extra=merge(ex29,hooks.get(29)),vw=[wvm('k1',True)]+chk,pre_last=True)
    csr=lambda a: CSB+4*(a&1)+(-8 if isz else 8)*((a>>1)&1)
    def rdc(i): return phys(i)+[I('s_lshl_b32 s26, s26, 7'), I('s_add_u32 s26, s26, %d'%(CS+(0 if h else 256))), I('v_add_u32 v5, s26, v3')]+[
        I('ds_read_b128 %s, v5 offset:%d'%(vr(csr(2*i+f),4),64*f)) for f in range(2)]
    def last2(prep, epi, span=16):
        spine=[m16(acc(2*i+f,t),(BF+8*i if j==0 else (X0 if i==0 else BF+8*(i-1)))+4*f,AB+16*j+4*t) for i in range(NB) for j in range(2) for f in range(2) for t in range(4)]
        fill={}
        def add(g,x): fill.setdefault(g,[]).extend(x)
        for k,r in enumerate(rdA(1)): add(k,[r])
        add(1,[I('v_bfe_u32 v5, v0, 4, 1')]); add(2,[I('v_cmp_eq_u32 vcc, 0, v5')])
        add(4,[I('v_add_f32 v%d, v%d, v%d'%(CD,CD,CD+1)), I('v_add_f32 v%d, v%d, v%d'%(CD+2,CD+2,CD+3))])
        add(5,[I('v_cndmask_b32 v%d, v%d, v%d, vcc'%(CD,CD+2,CD)), I('ds_write_b32 v2, v%d'%CD)])
        add(7,[I('s_waitcnt lgkmcnt(0)'), I('s_barrier'), '; @L2']+rdc(0))
        for i in range(1,NB):
            for k,r in enumerate(rdB(2*i,31,BF+8*(i-1))+rdB(2*i+1,31,BF+8*(i-1)+4)): add(16*(i-1)+8+k,r)
        add(11,[wvm('st')])
        for k,x in enumerate(prep): add(12+(k*4)//len(prep),[x])
        for g,x in hooks.get('l2',{}).items(): add(g,x)
        for i in range(NB-1):
            E=epi(i)
            for k,x in enumerate(E): add(16+span*i+(k*span)//len(E),[x])
        return interleave(spine,fill)+epi(NB-1)
    def center(a,pk):
        if pk: return [I('v_pk_fma_f32 %s, %s, %s, %s op_sel_hi:[1,0,1]'%(p(acc(a,t)+2*i),p(csr(a)+2*i),p(ST+2*t),p(acc(a,t)+2*i))) for t in range(4) for i in range(2)]
        return [I('v_fmac_f32 v%d, v%d, v%d'%(acc(a,t)+i,csr(a)+i,ST+2*t)) for t in range(4) for i in range(4)]
    def scale(a,pk):
        if pk: return [I('v_pk_mul_f32 %s, %s, %s op_sel_hi:[1,0]'%(p(acc(a,t)+2*i),p(acc(a,t)+2*i),p(24+2*t))) for t in range(4) for i in range(2)]
        return [I('v_mul_f32 v%d, v%d, v%d'%(acc(a,t)+i,acc(a,t)+i,24+2*t)) for t in range(4) for i in range(4)]
    def put(i):
        E=phys(i)+[I('s_lshl_b32 s26, s26, 17'), I('s_add_u32 s27, s26, s31')]
        for t in range(4):
            a=acc(2*i,t); b=acc(2*i+1,t)
            E+=[I('v_cvt_pk_bf16_f32 v%d, v%d, v%d'%(a,a,a+1)), I('v_cvt_pk_bf16_f32 v%d, v%d, v%d'%(a+1,a+2,a+3)),
                I('v_cvt_pk_bf16_f32 v%d, v%d, v%d'%(a+2,b,b+1)), I('v_cvt_pk_bf16_f32 v%d, v%d, v%d'%(a+3,b+2,b+3)),
                I('buffer_store_dwordx4 %s, v4, s[16:19], s27 offen offset:%d %s'%(vr(a,4),t*1024,STM))]
        return tag(E,'kst')
    aux={}
    if not isz:
        PK=opt.get('bmpk',0)
        NI=opt.get('ni'+tg,NB-1)
        def epi(i,pk):
            return (rdc(i+1) if i<NB-1 else [])+center(2*i,pk)+scale(2*i,pk)+center(2*i+1,pk)+scale(2*i+1,pk)+put(i)
        E=[I('s_setprio %d'%opt.get('gp' if h else 'qp',3 if h else 2))]+last2([I('v_mul_f32 v%d, s56, v%d'%(24+2*t,ST+2*t+1)) for t in range(4)],lambda i: epi(i,PK) if i<NI else [],16*(NB-1)//max(min(NI,NB-1),1))
        E+=flat([epi(i,1) for i in range(NI,NB)])+[I('s_setprio 0')]
    else:
        T=240; K1=88; K2=120; RR=24; SS=224; QQ=232
        def gel(a):
            xs=[(acc(a,0)+2*k,T+2*k,k//2) for k in range(8)]
            G=[I('v_pk_mul_f32 %s, %s, %s'%(p(w),p(x),p(x))) for x,w,t in xs]
            G+=[I('v_fma_f32 v%d, v%d, v%d, v%d'%(w+k,w+k,K2+2*t,K1+2*t)) for x,w,t in xs for k in range(2)]
            G+=[I('v_pk_mul_f32 %s, %s, %s'%(p(w),p(w),p(x))) for x,w,t in xs]
            G+=[I('v_exp_f32 v%d, v%d'%(w+k,w+k)) for x,w,t in xs for k in range(2)]
            G+=[I('v_pk_add_f32 %s, %s, 1.0 op_sel_hi:[1,0]'%(p(w),p(w))) for x,w,t in xs]
            G+=[I('v_rcp_f32 v%d, v%d'%(w+k,w+k)) for x,w,t in xs for k in range(2)]
            G+=[I('v_pk_mul_f32 %s, %s, %s'%(p(x),p(x),p(w))) for x,w,t in xs]
            return G
        prep=[I('v_mul_f32 v%d, 0x%x, v%d'%(K1+2*t,f2u(GC1),ST+2*t+1)) for t in range(4)]+[I('v_mul_f32 v%d, v%d, v%d'%(K2+2*t,ST+2*t+1,ST+2*t+1)) for t in range(4)]
        prep+=[I('v_mov_b32 v%d, v%d'%(RR+t,ST+2*t+1)) for t in range(4)]
        prep+=[I('v_mul_f32 v%d, v%d, v%d'%(K2+2*t,K2+2*t,K1+2*t)) for t in range(4)]+[I('v_mul_f32 v%d, 0x%x, v%d'%(K2+2*t,f2u(0.044715),K2+2*t)) for t in range(4)]
        def sums(a):
            Z=[]
            for t in range(4):
                x=acc(a,t)
                if a==0: Z+=[I('v_pk_add_f32 %s, %s, %s'%(p(SS+2*t),p(x),p(x+2))), I('v_pk_mul_f32 %s, %s, %s'%(p(QQ+2*t),p(x),p(x)))]
                else: Z+=[I('v_pk_add_f32 %s, %s, %s'%(p(SS+2*t),p(SS+2*t),p(x))), I('v_pk_fma_f32 %s, %s, %s, %s'%(p(QQ+2*t),p(x),p(x),p(QQ+2*t))),
                          I('v_pk_add_f32 %s, %s, %s'%(p(SS+2*t),p(SS+2*t),p(x+2)))]
                Z+=[I('v_pk_fma_f32 %s, %s, %s, %s'%(p(QQ+2*t),p(x+2),p(x+2),p(QQ+2*t)))]
            return Z
        ce=lambda i: center(2*i,1)+center(2*i+1,1)+(rdc(i+1) if i<NB-1 else [])
        def zepi(i):
            el=[(acc(a,t)+k,csr(a)+k,t,a,k) for a in (2*i,2*i+1) for k in range(4) for t in range(4)]
            w=lambda e: T+(e&15)
            def stage(s_,e):
                x,c,t,a,k=el[e]; first=(i==0 and a==0 and k<2)
                return {0:[I('v_fmac_f32 v%d, v%d, v%d'%(x,c,ST+2*t))], 1:[I('v_mul_f32 v%d, v%d, v%d'%(w(e),x,x))], 2:[I('v_fma_f32 v%d, v%d, v%d, v%d'%(w(e),w(e),K2+2*t,K1+2*t))],
                        3:[I('v_mul_f32 v%d, v%d, v%d'%(w(e),w(e),x))], 4:[I('v_exp_f32 v%d, v%d'%(w(e),w(e)))], 5:[I('v_add_f32 v%d, 1.0, v%d'%(w(e),w(e)))],
                        6:[I('v_rcp_f32 v%d, v%d'%(w(e),w(e)))], 7:[I('v_mul_f32 v%d, v%d, v%d'%(x,x,w(e)))],
                        8:[I('v_mov_b32 v%d, v%d'%(SS+2*t+(k&1),x)) if first else I('v_add_f32 v%d, v%d, v%d'%(SS+2*t+(k&1),SS+2*t+(k&1),x))],
                        9:[I('v_mul_f32 v%d, v%d, v%d'%(QQ+2*t+(k&1),x,x)) if first else I('v_fmac_f32 v%d, v%d, v%d'%(QQ+2*t+(k&1),x,x))]}[s_]
            order=opt.get('zord',[(0,0),(1,1),(4,4),(2,2),(3,3),(5,6),(6,7),(7,9),(8,10),(9,10)])
            out=[]
            for slot in range(32+max(d for _,d in order)):
                for s_,d in order:
                    if 0<=slot-d<32: out+=stage(s_,slot-d)
                if slot==0 and i<NB-1: out+=rdc(i+1)
            return out
        def zepk(blks):
            el=[(acc(a,t)+2*k,csr(a)+2*k,t,a,k) for i in blks for a in (2*i,2*i+1) for k in range(2) for t in range(4)]
            w=lambda e: T+2*(e&7)
            def stage(s_,e):
                x,c,t,a,k=el[e]; first=(a==0 and k==0); W=p(w(e)); X_=p(x)
                return {0:I('v_pk_fma_f32 %s, %s, %s, %s op_sel_hi:[1,0,1]'%(X_,p(c),p(ST+2*t),X_)), 1:I('v_pk_mul_f32 %s, %s, %s'%(W,X_,X_)),
                        2:I('v_pk_fma_f32 %s, %s, %s, %s op_sel_hi:[1,0,0]'%(W,W,p(K2+2*t),p(K1+2*t))), 3:I('v_pk_mul_f32 %s, %s, %s'%(W,W,X_)),
                        4:I('v_exp_f32 v%d, v%d'%(w(e),w(e))), 14:I('v_exp_f32 v%d, v%d'%(w(e)+1,w(e)+1)), 5:I('v_pk_add_f32 %s, %s, 1.0 op_sel_hi:[1,0]'%(W,W)),
                        6:I('v_rcp_f32 v%d, v%d'%(w(e),w(e))), 16:I('v_rcp_f32 v%d, v%d'%(w(e)+1,w(e)+1)), 7:I('v_pk_mul_f32 %s, %s, %s'%(X_,X_,W)),
                        8:I('v_pk_add_f32 %s, %s, 0 op_sel_hi:[1,0]'%(p(SS+2*t),X_)) if first else I('v_pk_add_f32 %s, %s, %s'%(p(SS+2*t),p(SS+2*t),X_)),
                        9:I('v_pk_mul_f32 %s, %s, %s'%(p(QQ+2*t),X_,X_)) if first else I('v_pk_fma_f32 %s, %s, %s, %s'%(p(QQ+2*t),X_,X_,p(QQ+2*t)))}[s_]
            order=[(4,4),(0,0),(1,1),(14,4),(2,2),(3,3),(6,6),(5,5),(7,7),(16,6),(8,8),(9,8)]
            out=[]; n=len(el)
            for slot in range(n+8):
                out+=[stage(s_,slot-d) for s_,d in order if 0<=slot-d<n]
                if slot%16==0 and slot<n and blks[slot//16]<NB-1: out+=rdc(blks[slot//16]+1)
            return out
        ZM=opt.get('zms',2)
        if ZM==2: E=[I('s_setprio %d'%opt.get('z2p',0))]+last2(prep,lambda i: zepi(0) if i==0 else [],16*(NB-1)-opt.get('zsh',0))+[I('s_setprio 2')]+zepk(list(range(1,NB)))
        elif ZM==3: E=[I('s_setprio %d'%opt.get('z2p',0))]+last2(prep,lambda i: [])+[I('s_setprio 2')]+zepk(list(range(NB)))
        else: E=[I('s_setprio %d'%opt.get('z2p',2))]+last2(prep,zepi if ZM else lambda i: (unpk if opt.get('zu',1) else list)(ce(i)+gel(2*i)+sums(2*i)+gel(2*i+1)+sums(2*i+1)))
        T=64
        for b in (SS,QQ): E+=[I('v_add_f32 v%d, v%d, v%d'%(b+2*t,b+2*t,b+2*t+1)) for t in range(4)]
        for b in (SS,QQ,QQ): E+=[I('v_mul_f32 v%d, v%d, v%d'%(b+2*t,b+2*t,RR+t)) for t in range(4)]
        for b in (SS,QQ): E+=[I('v_permlane16_swap_b32 v%d, v%d'%(b,b+2)), I('v_permlane16_swap_b32 v%d, v%d'%(b+4,b+6))]
        for b in (SS,QQ): E+=[I('v_add_f32 v%d, v%d, v%d'%(b,b,b+2)), I('v_add_f32 v%d, v%d, v%d'%(b+4,b+4,b+6))]
        for b in (SS,QQ): E+=[I('v_permlane32_swap_b32 v%d, v%d'%(b,b+4))]
        E+=[I('v_add_f32 v28, v%d, v%d'%(SS,SS+4)), I('v_add_f32 v29, v%d, v%d'%(QQ,QQ+4)), I('v_lshlrev_b32 v5, 3, v0'), I('v_min_f32 v29, 0x7f800000, v29'),
            I('buffer_store_dwordx2 v[28:29], v5, s[16:19], s39 offen sc0 sc1'), I('s_setprio 0')]
        F=[I('s_mov_b32 s26, s38')]
        for k in range(20):
            F+=[I('buffer_load_dwordx2 %s, v5, s[16:19], s26 offen offset:%d sc1'%(p(T+2*k),(k&1)*2048))]
            if k&1: F+=[I('s_add_u32 s26, s26, 4096')]
        F+=[I('s_waitcnt vmcnt(10)')]+[I('v_pk_add_f32 %s, %s, %s'%(p(T+2*k),p(T+2*k),p(T+2*k+10))) for k in range(5)]
        F+=[I('s_waitcnt vmcnt(0)')]+[I('v_pk_add_f32 %s, %s, %s'%(p(T+20+2*k),p(T+20+2*k),p(T+30+2*k))) for k in range(5)]
        F+=[I('v_pk_add_f32 %s, %s, %s'%(p(T+2*k),p(T+2*k),p(T+20+2*k))) for k in range(5)]
        F+=[I('v_pk_add_f32 %s, %s, %s'%(p(T),p(T),p(T+2))), I('v_pk_add_f32 %s, %s, %s'%(p(T+4),p(T+4),p(T+6))),
            I('v_pk_add_f32 %s, %s, %s'%(p(T),p(T),p(T+8))), I('v_pk_add_f32 %s, %s, %s'%(p(T),p(T),p(T+4))), I('s_nop 0'),
            I('v_cmp_u_f32 vcc, v%d, v%d'%(T+1,T+1))]
        SH=40
        N=[I('v_mul_f32 v28, 0x%x, v%d'%(f2u(1/1792),T)), I('v_mul_f32 v29, 0x%x, v%d'%(f2u(1/1792),T+1)),
            I('v_fma_f32 v29, -v28, v28, v29'), I('v_max_f32 v29, 0, v29'), I('v_add_f32 v29, 0x3727c5ac, v29'), I('v_rsq_f32 v%d, v29'%ST),
            I('s_nop 0'), I('v_mul_f32 v%d, -v28, v%d'%(ST+1,ST))]
        N+=[I('v_mov_b32 v%d, v%d'%(ST+4+i,ST+i)) for i in range(2)]+[I('v_permlane32_swap_b32 v%d, v%d'%(ST+i,ST+4+i)) for i in range(2)]
        N+=[I('v_mov_b32 v%d, v%d'%(ST+2+i+4*k,ST+i+4*k)) for k in range(2) for i in range(2)]
        N+=[I('v_permlane16_swap_b32 v%d, v%d'%(ST+i+4*k,ST+2+i+4*k)) for k in range(2) for i in range(2)]
        N+=[I('v_mov_b32 v%d, v%d'%(SH+2*t,ST+2*t+1)) for t in range(4)]+[I('v_mul_f32 v%d, v%d, v%d'%(ST+2*t,ST+2*t,RR+t)) for t in range(4)]
        for i in range(NB):
            for a in (2*i,2*i+1):
                for t in range(4):
                    for k in range(2): N+=[I('v_pk_fma_f32 %s, %s, %s, %s op_sel_hi:[1,0,0]'%(p(acc(a,t)+2*k),p(acc(a,t)+2*k),p(ST+2*t),p(SH+2*t)))]
            N+=put(i)
        if opt.get('nu',0): N=unpk(N); F=unpk(F)
        aux={'F':F,'N':N}
    tail=auto_lgkm(e0+E,pre=body)
    return first, body, loop, tail, aux

def gen_k1only(name, opt):
    L=kernel_header(name); B=prologue(opt); C=[]
    for kind,NB in (('g',2),('q',3),('q',2),('z',3),('z',2)):
        first,body,loop,tail,aux=stream(kind,NB,opt); tg=kind+str(NB)
        if aux:
            tail=tail+[I('s_mov_b32 s27, 0x4000'), I('s_sleep %d'%opt.get('zs0',8)), 'L_zp_%s:'%tg]+aux['F']+[I('s_sub_u32 s27, s27, 1'), I('s_cbranch_scc1 L_zg_%s'%tg), I('s_cbranch_vccz L_zg_%s'%tg),
                I('s_sleep 2'), I('s_branch L_zp_%s'%tg), 'L_zg_%s:'%tg]+aux['N']
        tail=resolve_vm(tail)
        C+=first+loop+tail+[I('s_branch L_done')]
        t,_=fix_hazards(B+first+body+body+tail); check_waits(t,'k1'+tg)
        fix_hazards(body+body,auto=False,tag='k1loop'+tg)
    Zs=['L_done:']
    if opt.get('rt'): Zs+=[I('s_waitcnt vmcnt(0)'), I('s_barrier'), I('s_cmp_lg_u32 s25, 0'), I('s_cbranch_scc1 L_end')]
    Zs+=rt_end(opt,0,'k1',sreg=96)
    code,_=fix_hazards(B+C+Zs+['L_end:', I('s_endpgm')])
    return L+code, kernel_desc(name,256,256,102), '; @launch kernel=%s grid=(256,1,1) block=(512,1,1) lds=163840'%name
if __name__=='__main__':
    from build import *
    opt=json.loads(sys.argv[2]) if len(sys.argv)>2 else {}
    assemble([gen_k1only('x_kernel',opt)], sys.argv[1])
```

```python
from common import *
import k4a
from k4a import m16, flat, tag, cond, wvm, resolve_vm, sprinkle, unpk, OOB, RP
Q=240; KB=32; VB=48; SA=64; SB=80; PA=96; PB=104; OA=112; OB=128; LA=144; LB=148; ONES=152; vIDX=156
vK,vV0,vD=4,5,7
vL16=11
KV=131072
FR=32; G=96; ACC=160
vOA=224; vOB=228; vA=230; vB=238; vBIAS=242
zOA=192; zOB=196; zB=200; zIDX=202; zSEL=204; CD0=234; CD1=250
CSZ=12; NM_=(2,4,6,8); RS_=(28,30,254,10); vF=29
REG=[0,32768,65536,98304]
AR=32; FR3=160; Y=192; XR=224; S0=128; S1=144
vW=16; vA3=20; vB3=22; vX=28
WSL=lambda t: (t%8)*16384
def gen(name, opt={}):
    TST=opt.get('tst'); RO=opt.get('ro',8)
    L=kernel_header(name)
    STAMP=opt.get('stamp')
    def st(k): return [I('%s s[%d:%d]'%('s_memrealtime' if opt.get('real') else 's_memtime',76+2*k,77+2*k)), I('s_waitcnt lgkmcnt(0)')] if STAMP else []
    bar=[I('s_barrier')]; gbr=bar
    NC=opt.get('nc',11); CW=opt.get('cw',3); CQ=opt.get('cq',5); CK=opt.get('ck',8)
    NX=opt.get('nx',1); DE=opt.get('de',3)
    XB=opt.get('xb',{'q3':5,'q2':8,'z3':3,'z2':7}); DA=opt.get('da',{'q3':6,'q2':9,'z3':4,'z2':8}); XS=opt.get('xs',{'z3':3,'z2':7})
    PG=opt.get('pg_',1); PQ=opt.get('pq',{'q3':2,'q2':2}); ZQ=opt.get('zq',11); ZK=opt.get('zk',12); NZX=opt.get('nzx',1)
    GZE=opt.get('gze',1)
    FBR=opt.get('fbr',{}); XA=opt.get('xa',{})
    EX=opt.get('ex',{})
    NBAR=min(48+NZX+NC+15+NX-DA[c]+min(EX.get(c,0),EX.get('z3i',0) if c=='z3' else 99) for c in DA)
    assert NBAR>=65 or len(set(DA.values()))==1 and NBAR>=60
    assert PG+2<=min(XB[c]-FBR.get(c,0)*0 for c in XB if c=='q2' or (c=='q3' and GZE<2) or not GZE) and all(PQ[c]+1<=DA[c] and PQ[c]<=XB[c] for c in PQ) and min(XB.values())>=1
    assert max(XB['z3']+XA.get('z3',0),XB['z2']+XA.get('z2',0))<=ZK and ZQ<ZK and ZK<=15+NZX and all(XB[c]<=DA[c] for c in XB) and all(1<=XS[c]<=XB[c] for c in XS)
    p=lambda b: vr(b,2)
    b3addr=[I('v_lshrrev_b32 v13, 5, v0'), I('v_and_b32 v12, 31, v0'), I('v_lshlrev_b32 v12, 3, v12'), I('v_lshl_add_u32 v%d, v13, 10, v12'%vB3),
        I('v_add_u32 v%d, 65536, v%d'%(vB3+1,vB3))]
    b3addr+=[I('v_mov_b32 v%d, v%d'%(vA3,vL16)), I('v_add_u32 v%d, 4096, v%d'%(vA3+1,vL16)),
        I('s_lshl_b32 s43, s64, 2'), I('s_add_u32 s43, s43, s42')]
    def ldA(st_):
        Gr=[[I('buffer_load_dwordx4 %s, v%d, s[8:11], s24 offen offset:%d'%(vr(AR+32*st_+4*i,4),vA3+i//4,(i%4)*1024))] for i in range(8)]
        Gr[-1]+=[I('s_add_u32 s24, s24, 8192')]
        return Gr
    def dmaW(t):
        Gr=[[I('buffer_load_dwordx4 v%d, s[12:15], s58 offen offset:%d lds'%(vW+i,i*1024))] for i in range(4)]
        off=I('s_mov_b32 s58, %d'%((t-14)*128*2048)) if t>=14 else I('s_add_u32 s58, s%d, %d'%(56 if t<7 else 57,t*128*2048))
        return [[I('s_add_u32 m0, s41, %d'%WSL(t)), off]]+Gr
    def rd3(t,j):
        f=FR3+16*(j&1)
        if isinstance(t,tuple): return [I('ds_read_b64_tr_b16 %s, v%d offset:%d'%(vr(f+4*n+2*u,2),t[0],j*4096+u*2048+n*256)) for n in range(4) for u in range(2)]
        a=WSL(t)
        return [I('ds_read_b64_tr_b16 %s, v%d offset:%d'%(vr(f+4*n+2*u,2),vB3+(a>>16),(a&0xffff)+j*4096+u*2048+n*256)) for n in range(4) for u in range(2)]
    def tile3(t, aset, acc, c0, nxt, mid, early={}, late=[]):
        spine=[m16(acc[h]+4*n,FR3+16*(j&1)+4*n,AR+32*aset+8*j+4*h,'0' if (c0 and j==0) else None) for j in range(4) for n in range(4) for h in (0,1)]
        fill={}
        def add(g,x): fill.setdefault(g,[]).extend(x)
        add(23,mid)
        for j in range(4):
            R = rd3(t,j+1) if j<3 else (rd3(nxt,0) if nxt is not None else [])
            for k,r in enumerate(R): add(8*j+k,[r])
        for g,x in early.items(): add(g,x)
        for k,g in enumerate(late): add(24+(k*8)//len(late),g)
        return interleave(spine,fill)
    def pub1(lab,wave,off,n):
        return cond([I('s_cmp_lg_u32 s25, %d'%wave), I('s_cbranch_scc1 %s'%lab), I('s_mov_b64 exec, %d'%((1<<n)-1)), I('v_mov_b32 v14, 1'), I('v_lshlrev_b32 v15, 7, v0'),
                I('buffer_atomic_add v14, v15, s[48:51], %s offen sc1'%off), I('s_mov_b64 exec, -1'), lab+':'])
    def ask1(lab,wave,off):
        return [I('s_cmp_lg_u32 s25, %d'%wave), I('s_cbranch_scc1 %s'%lab), I('s_mov_b64 exec, 1'), I('v_mov_b32 v12, 0'),
                I('buffer_load_dword v15, v12, s[48:51], %s offen sc1'%off), I('s_mov_b64 exec, -1'), lab+':']
    def chk1(lab,wave,off,n,landed=False):
        return [I('s_cmp_lg_u32 s25, %d'%wave), I('s_cbranch_scc1 %s'%lab), I('s_mov_b64 exec, 1'), I('s_mov_b32 s27, 0x40000')]+([I('s_branch %s_k'%lab)] if landed else [])+[
                lab+'_l:', I('s_waitcnt vmcnt(0)'), lab+'_k:', I('v_readfirstlane_b32 s26, v15'), I('s_sub_u32 s27, s27, 1'), I('s_cmp_ge_u32 s26, %d'%n), I('s_cbranch_scc1 %s_g'%lab),
                I('s_sleep %d'%opt.get('slp',1)), I('buffer_load_dword v15, v12, s[48:51], %s offen sc1'%off), I('s_cmp_lg_u32 s27, 0'), I('s_cbranch_scc1 %s_l'%lab),
                lab+'_g:', I('s_mov_b64 exec, -1'), lab+':']
    def wait_lines(lab,nl,tgt,va,pre=None,vd=15):
        msk=(1<<nl)-1
        ld=cond([I('buffer_load_dword v%d, v%d, s[48:51], 0 offen sc1'%(vd,va))])
        return [I('s_mov_b64 exec, %d'%msk), I('s_mov_b32 s47, 0x40000')]+(ld if pre is None else pre+[I('s_branch %s_k'%lab)])+[lab+'_l:', I('s_waitcnt vmcnt(0)'), lab+'_k:', I('v_cmp_le_u32 s[26:27], %d, v%d'%(tgt,vd)), I('s_sub_u32 s47, s47, 1'),
                I('s_nop 0'), I('s_cmp_eq_u32 s26, %d'%msk), I('s_cbranch_scc1 %s_g'%lab), I('s_sleep %d'%opt.get('slp1',1))]+ld+[I('s_cmp_lg_u32 s47, 0'), I('s_cbranch_scc1 %s_l'%lab),
                lab+'_g:', I('s_mov_b64 exec, -1')]
    LRP=RP.bit_length()-1
    def arrive(lab,h,pre):
        return cond([I('v_mov_b32 v13, %d'%(KV+7*4096+4*h)), I('v_mov_b32 v14, 1'), I('v_lshlrev_b32 v15, 7, v0'), I('s_mov_b64 exec, 1')]+pre+[I('ds_add_rtn_u32 v13, v13, v14'), I('s_waitcnt lgkmcnt(0)'),
                I('v_readfirstlane_b32 s26, v13'), I('s_mov_b64 exec, %d'%((1<<RP)-1)), I('s_cmp_lg_u32 s26, 3'), I('s_cbranch_scc1 %s'%lab), I('buffer_atomic_add v14, v15, s[48:51], s74 offen sc1'), lab+':', I('s_mov_b64 exec, -1')])
    A1=[I('s_bfe_u32 s27, s2, 0x20003'), I('s_lshr_b32 s34, s2, 5'), I('v_lshlrev_b32 v%d, 4, v0'%vL16),
       I('s_and_b32 s26, s2, 7'), I('s_lshl_b32 s33, s26, 2'), I('s_add_u32 s33, s33, s27'),
       I('s_lshl_b32 s30, s34, 14'), I('s_lshl_b32 s27, s42, 12'), I('s_add_u32 s30, s30, s27'),
       I('s_and_b32 s26, s42, 1'), I('s_lshl_b32 s40, s26, 10'), I('s_lshl_b32 s41, s42, 10'), I('s_add_u32 s41, s41, %d'%KV),
       I('v_bfe_u32 v12, v0, 4, 1'), I('v_lshlrev_b32 v12, 7, v12'),
       I('s_cmp_ge_u32 s42, 2'), I('s_cselect_b32 s26, -1, 0'), I('v_and_b32 v12, s26, v12'), I('v_xor_b32 v%d, v%d, v12'%(vD,vL16)),
       I('s_lshl_b32 s26, s33, 17'), I('s_add_u32 s27, s26, 0x%x'%P1_OFF),
       I('s_lshr_b32 s35, s42, 1'), I('s_add_u32 s35, s35, 1'), I('s_lshl_b32 s35, s35, 22'), I('s_add_u32 s35, s35, s27')]
    A1+=srd(12,4,5,'s27',131072)+srd(8,4,5,'s35',131072)
    A1+=[I('v_lshl_add_u32 v12, v0, 5, s33'), I('v_mul_u32_u24 v13, 43, v12'), I('v_lshrrev_b32 v13, 10, v13'), I('v_mul_u32_u24 v14, 24, v13'), I('v_sub_u32 v12, v12, v14'),
         I('v_or_b32 v14, 1, v12'), I('v_cmp_gt_u32 vcc, 16, v12'), I('v_subrev_u32 v12, 15, v12'), I('v_mul_u32_u24 v12, 11, v12'), I('v_lshrrev_b32 v12, 5, v12'), I('v_lshlrev_b32 v12, 1, v12'),
         I('v_cndmask_b32 v12, v12, v14, vcc'), I('v_lshl_add_u32 v12, v13, 4, v12'), I('s_and_b32 s26, s34, %d'%(RP-1)), I('v_lshl_add_u32 v12, v12, %d, s26'%LRP), I('v_lshlrev_b32 v12, 7, v12')]
    def kvd(sl): return [I('s_add_u32 m0, s41, %d'%(sl*4096)), I('buffer_load_dwordx4 v%d, s[8:11], s40 offen lds'%vD), I('s_add_u32 s40, s40, 2048')]
    AL=[kvd(0)[0], I('s_nop 0')]+kvd(0)[1:]
    for i in range(4): AL+=[I('buffer_load_dwordx4 %s, v%d, s[12:15], s30 offen offset:%d'%(vr(Q+4*i,4),vL16,1024*i))]
    for sl in range(1,7): AL+=kvd(sl)
    dummy=lambda n: [I('v_mov_b32 v14, 0x%x'%OOB)]+[I('buffer_store_dwordx4 v[128:131], v14, s[16:19], 0 offen')]*n
    A2=[I('s_setprio %d'%opt.get('pa',1))]+srd(52,4,5,O_OFF,O_SIZE)
    A2+=[I('s_lshl_b32 s26, s34, 3'), I('s_lshl_b32 s27, s42, 1'), I('s_add_u32 s26, s26, s27'),
        I('s_lshl_b32 s26, s26, 5'), I('s_add_u32 s26, s26, s33'), I('s_lshl_b32 s46, s26, 11'),
        I('v_add_u32 v%d, %d, v%d'%(vK,KV,vL16)),
        I('v_bfe_u32 v14, v0, 1, 1'), I('v_and_b32 v13, 1, v0'), I('v_lshrrev_b32 v15, 2, v0'), I('v_lshlrev_b32 v12, 3, v14'), I('v_xor_b32 v15, v15, v12'),
        I('v_lshlrev_b32 v15, 4, v15'), I('v_lshl_add_u32 v15, v13, 3, v15'), I('v_lshl_add_u32 v15, v14, 8, v15'),
        I('v_add_u32 v%d, %d, v15'%(vV0,KV+2048)),
        I('v_lshrrev_b32 v12, 5, v0'), I('v_cmp_eq_u32 vcc, v14, v12'),
        I('v_mul_u32_u24 v13, 0xaaaa, v13'), I('v_add_u32 v%d, 0x4444, v13'%vIDX),
        I('v_mov_b32 v13, 0x3f803f80'), I('v_cndmask_b32 v%d, 0, v13, vcc'%ONES)]
    for i in range(1,4): A2+=[I('v_mov_b32 v%d, v%d'%(ONES+i,ONES))]
    NA2=min(min(DA[c]-XB[c]-XA.get(c,0) for c in XB),opt.get('na2',1))
    B=k4a.prologue(opt); CA=[]; trA=[]; PA_=[]
    for kind,NB in (('q',3),('q',2),('z',3),('z',2)):
        first,body1,loop1,tail,aux=k4a.stream(kind,NB,opt); tg=kind+str(NB)
        k=tail.index('; @L2')+1
        pos=opt.get('bp_'+tg,{'q3':[],'q2':[],'z3':[],'z2':[]}[tg])
        T=tail[:k]+sprinkle(tail[k:],pos,bar)+(st(3) if TST else [])+A1; nb=len(pos)
        fl=lambda vd: [I('s_mov_b64 exec, 7'), I('buffer_load_dword v%d, v12, s[48:51], 0 offen sc1'%vd), I('s_mov_b64 exec, -1')]
        FBk=FBR.get(tg,0); XAk=XA.get(tg,0)
        if kind=='q':
            assert nb<=PQ[tg]
            T+=bar*(PQ[tg]-nb)+arrive('L_t_p'+tg,0,[I('s_waitcnt vmcnt(0)')])+bar*(XB[tg]-PQ[tg]-FBk)
            if FBk: T+=fl(9)+bar*FBk
            pre=[I('s_waitcnt vmcnt(0)')] if FBk else None
        else:
            lab='L_t_z'+tg; F=aux['F']; kw=[i for i,x in enumerate(F) if 's_waitcnt' in x][0]
            ZFL=opt.get('zfl',1); NP=opt.get('nbp_'+tg,[])
            T+=bar*(XS[tg]-nb)+[I('s_mov_b32 s47, 0x4000')]
            if FBk: T+=F[:kw]+bar*FBk+[I('s_branch %s_w'%lab)]
            T+=[lab+'_l:']+([] if ZFL else fl(9))+F[:kw]+[lab+'_w:']+F[kw:]+[
                I('s_sub_u32 s47, s47, 1'), I('s_cbranch_scc1 %s_g'%lab), I('s_cbranch_vccz %s_g'%lab),
                I('s_sleep %d'%opt.get('zs1',2)), I('s_branch %s_l'%lab), lab+'_g:', '; @TR60']+(tag(fl(9),'qf') if ZFL else [])+sprinkle(aux['N'],NP,bar)+bar*(XB[tg]-XS[tg]-FBk-len(NP))
            assert XB[tg]-XS[tg]-FBk-len(NP)>=0 and (ZFL or not FBk)
            pre=[wvm('qf')] if ZFL else []
        T+=['; @TR61']+wait_lines('L_t_w'+tg,3,8,12,pre,9)+(st(4) if TST else [])+['; @TR62']+AL+bar*XAk
        if kind=='z': T+=arrive('L_t_p'+tg,0,[wvm('kst')])
        assert DA[tg]-XB[tg]-NA2-XAk>=0
        T+=bar*(DA[tg]-XB[tg]-NA2-XAk)+[I('s_branch L_att')]
        T=resolve_vm(T)
        CA+=first+loop1+T; PA_.append((first,loop1,T,tg)); trA.append((tg,first+body1+body1+T))
        fix_hazards(body1+body1,auto=False,tag='k1loop'+tg)
    def rdK(i,base): return [I('ds_read_b128 %s, v%d offset:%d'%(vr(KB+8*(i&1)+4*f,4),vK,base+1024*f)) for f in range(2)]
    def rdV(i,base,v0=vV0,hs=1024): return [I('ds_read_b64_tr_b16 %s, v%d offset:%d'%(vr(VB+8*(i&1)+4*f+2*u,2),v0,base+512*f+hs*u)) for f in range(2) for u in range(2)]
    xf=((0,0),(0,1),(1,0),(1,1))
    qk=lambda S_,k,q: [m16(S_+8*x+4*f,k+4*f,q+4*x,'0') for x,f in xf]
    pv=lambda O_,v,P_,c0=False: [m16(O_+8*x+4*f,v+4*f,P_+4*x,'0' if c0 else None) for x,f in xf]
    smf=lambda L_,P_: [I('v_smfmac_f32_16x16x64_bf16 %s, %s, %s, v%d'%(vr(L_,4),vr(ONES,4),vr(P_,8),vIDX))]
    A=['L_att:']+A2+bar*NA2+[I('s_mov_b32 s45, 6'), I('s_waitcnt vmcnt(6)')]+bar+rdK(0,0)+[I('s_waitcnt lgkmcnt(0)')]+qk(SA,KB,Q)+[I('s_nop 7')]
    def phase(S_,P_, mf, extra):
        ex=[I('v_exp_f32 v%d, v%d'%(S_+i,S_+i)) for i in range(16)]
        cv=[I('v_cvt_pk_bf16_f32 v%d, v%d, v%d'%(P_+i,S_+2*i,S_+2*i+1)) for i in range(8)]
        pat=opt.get('att_pat',[(2,0),(2,1),(2,1),(2,1),(2,1),(2,1),(2,1),(2,1),(0,1)])
        out=[]; e=0;c=0
        for k,(ne,nc) in enumerate(pat):
            out.append(mf[k]); out+=extra.get(k,[])
            out+=ex[e:e+ne]; e+=ne
            out+=cv[c:c+nc]; c+=nc
        assert e==16 and c==8
        return out
    AB=opt.get('att_bar',4); AD=opt.get('att_dma',2)
    def blocks(last,first=False):
        body=[]
        for i in range(8):
            kb=KB+8*(i&1); kn=KB+8*((i+1)&1); vb=VB+8*(i&1); vp=VB+8*((i+1)&1)
            rv=rdV(i,4096*i); rk=rdK(i+1,4096*((i+1)&7)); d=kvd((i+7)&7); sy=[I('s_waitcnt vmcnt(5)')]+bar
            qn=qk(SA,kn,Q)
            if last:
                if i>0: d=[]
                if 56+i>=NBAR: sy=[]
                else: sy=[I('s_waitcnt vmcnt(%d)'%(0 if 56+i==NBAR-1 else max(0,min(5,6-i))))]+bar
                if i==1: sy+=[I('v_mov_b32 v12, 0'), I('ds_write_b32 v%d, v12'%vK)]
                if i==7: rk=[]; qn=[I('s_nop 0')]*4
            ex={}
            for k in range(4): ex.setdefault((k*AB)//4,[]).append(rv[k])
            ex[AB]=sy+rk[:1]+d[:1]; ex[AB+1]=rk[1:]
            m1=pv(OB,vp,PB,first and i==1)+smf(LB,PB)
            if first and i==0: m1=[I('v_mov_b32 v%d, 0'%(LA+k)) for k in range(5)]; ex[6]=[I('v_mov_b32 v%d, 0'%(LA+k)) for k in range(5,8)]
            body+=phase(SA,PA,qk(SB,kb,Q+8)+m1,ex)+phase(SB,PB,qn+pv(OA,vb,PA,first and i==0)+smf(LA,PA),{AD:d[1:]})
        return body
    body=auto_lgkm(blocks(False))
    firstb=auto_lgkm(blocks(False,True),pre=body)
    lastb=auto_lgkm(blocks(True),pre=body)
    fix_hazards(body+body,auto=False,tag='att_loop')
    aloop=firstb+['L_att_loop:']+body+[I('s_sub_u32 s45, s45, 1'), I('s_cmp_lg_u32 s45, 0'), I('s_cbranch_scc1 L_att_loop')]+lastb
    AT=pv(OB,VB+8,PB)+smf(LB,PB)+[I('v_mov_b32 v160, 0x1f800000'), I('v_mov_b32 v161, 0x5f800000')]
    FB=[]
    for X,(O_,L_,Q_) in enumerate(((OA,LA,Q),(OB,LB,Q+8))):
        AT+=[I('v_pk_mul_f32 v[162:163], %s, 0 op_sel_hi:[1,0]'%p(O_))]
        for i in range(1,8): AT+=[I('v_pk_fma_f32 v[162:163], %s, 0, v[162:163] op_sel_hi:[1,0,1]'%p(O_+2*i))]
        AT+=[I('v_add_f32 v%d, v%d, v%d'%(L_,L_,L_+1)), I('v_add_f32 v%d, v%d, v%d'%(L_+2,L_+2,L_+3)),
             I('v_add_f32 v162, v162, v163'), I('v_add_f32 v163, v162, v%d'%(L_+2)), I('v_add_f32 v162, v162, v%d'%L_),
             I('v_cmp_nge_f32 vcc, v162, v160'), I('v_cmp_nle_f32 s[56:57], v162, v161'), I('v_cmp_nge_f32 s[26:27], v163, v160'), I('v_cmp_nle_f32 s[58:59], v163, v161'),
             I('s_or_b64 s[56:57], s[56:57], vcc'), I('s_or_b64 s[26:27], s[26:27], s[58:59]'), I('s_or_b64 s[56:57], s[56:57], s[26:27]'),
             I('s_cbranch_scc1 L_att_fb%d'%X), 'L_att_fb_ret%d:'%X, I('v_rcp_f32 v162, v%d'%L_), I('v_rcp_f32 v164, v%d'%(L_+2)), I('s_nop 0')]
        for i in range(8): AT+=[I('v_pk_mul_f32 %s, %s, %s op_sel_hi:[1,0]'%(p(O_+2*i),p(O_+2*i),p(162+2*(i//4))))]
        for i in range(8): AT+=[I('v_cvt_pk_bf16_f32 v%d, v%d, v%d'%(O_+i,O_+2*i,O_+2*i+1))]
        if X: AT+=[I('s_add_u32 s46, s46, 65536')]
        if X==1 and opt.get('jpm',0)>1: AT+=bar
        for h in range(2): AT+=[I('buffer_store_dwordx4 %s, v%d, s[52:55], s46 offen offset:%d sc0 sc1'%(vr(O_+4*h,4),vL16,1024*h))]
        if X==0 and opt.get('jpm',0): AT+=bar
        FS=SA
        F=['L_att_fb%d:'%X, I('s_waitcnt vmcnt(0)'),
           I('s_lshl_b32 s26, s33, 17'), I('s_add_u32 s27, s26, 0x%x'%(P1_OFF+32*131072))]+srd(16,4,5,'s27',131072)
        F+=[I('s_add_u32 s27, s26, 0x%x'%(P1_OFF+64*131072))]+srd(20,4,5,'s27',131072)
        F+=[I('v_bfe_u32 v12, v0, 4, 1'), I('v_lshlrev_b32 v12, 7, v12'), I('v_xor_b32 v8, v%d, v12'%vL16), I('v_add_u32 v9, 1024, v8'),
            I('s_lshl_b32 s26, s42, 10'), I('s_add_u32 s26, s26, 2048'), I('v_add_u32 v2, s26, v%d'%vV0)]
        F+=[I('v_mov_b32 v%d, 0'%(O_+i)) for i in range(16)]
        F+=[I('v_mov_b32 v%d, 0'%L_), I('v_mov_b32 v%d, 0'%(L_+2)), I('v_mov_b32 v164, 0xff800000'), I('v_mov_b32 v165, 0xff800000'), I('s_mov_b32 s59, 0'), 'L_att_fbl%d:'%X,
            I('buffer_load_dwordx4 %s, v%d, s[16:19], s59 offen'%(vr(KB,4),vL16)),
            I('buffer_load_dwordx4 %s, v%d, s[16:19], s59 offen offset:1024'%(vr(KB+4,4),vL16)),
            I('s_add_u32 m0, s41, 4096'), I('s_nop 0'), I('buffer_load_dwordx4 v8, s[20:23], s59 offen lds'),
            I('s_add_u32 m0, s41, 8192'), I('s_nop 0'), I('buffer_load_dwordx4 v9, s[20:23], s59 offen lds'),
            I('s_waitcnt vmcnt(0)')]
        F+=rdV(0,0,2,4096)+qk(FS,KB,Q_)
        for x in range(2):
            s8=FS+8*x; mo=164+x; lx=L_+2*x
            F+=[I('v_max3_f32 v13, v%d, v%d, v%d'%(s8,s8+1,mo))]+[I('v_max3_f32 v13, v%d, v%d, v13'%(s8+2*i,s8+2*i+1)) for i in range(1,4)]
            for sw in (16,32): F+=[I('v_mov_b32 v14, v13'), I('v_permlane%d_swap_b32 v13, v14'%sw), I('v_max_f32 v13, v13, v14')]
            F+=[I('v_sub_f32 v14, v%d, v13'%mo), I('v_exp_f32 v14, v14'), I('v_mov_b32 v%d, v13'%mo)]
            F+=[I('v_sub_f32 v%d, v%d, v13'%(s8+i,s8+i)) for i in range(8)]+[I('v_exp_f32 v%d, v%d'%(s8+i,s8+i)) for i in range(8)]
            F+=[I('v_mul_f32 v%d, v%d, v14'%(lx,lx))]
            for i in range(8): F+=[I('v_add_f32 v%d, v%d, v%d'%(lx,lx,s8+i)), I('v_mul_f32 v%d, v%d, v14'%(O_+8*x+i,O_+8*x+i))]
        for i in range(8): F+=[I('v_cvt_pk_bf16_f32 v%d, v%d, v%d'%(PA+i,FS+2*i,FS+2*i+1))]
        F+=[I('s_waitcnt lgkmcnt(0)')]+pv(O_,VB,PA)+[
            I('s_add_u32 s59, s59, 2048'), I('s_cmp_lg_u32 s59, 131072'), I('s_nop 7'), I('s_nop 7'), I('s_cbranch_scc1 L_att_fbl%d'%X)]
        for lx in (L_,L_+2):
            for sw in (16,32): F+=[I('v_mov_b32 v14, v%d'%lx), I('v_permlane%d_swap_b32 v%d, v14'%(sw,lx)), I('v_add_f32 v%d, v%d, v14'%(lx,lx))]
        F+=[I('s_branch L_att_fb_ret%d'%X)]
        FB+=F
    assert NBAR-64>=opt.get('jpm',0)+opt.get('jp',1)
    if opt.get('au',0): AT=unpk(AT)
    AT+=([] if TST else st(3))+[I('s_setprio %d'%opt.get('pa2',0))]
    AT+=[I('s_lshl_b32 s30, s34, 10'), I('s_add_u32 s30, s30, %d'%(256*128)), I('s_and_b32 s26, s2, 7'), I('s_lshl_b32 s26, s26, 2'), I('s_add_u32 s30, s30, s26'),
         I('v_mov_b32 v12, 1'), I('v_lshlrev_b32 v15, 7, v0')]+bar*min(max(0,NBAR-64),opt.get('jp',1))
    AT+=[I('s_mov_b64 exec, 1'), I('s_waitcnt vmcnt(0)'), I('ds_add_rtn_u32 v13, v%d, v12'%vK), I('s_waitcnt lgkmcnt(0)'), I('v_readfirstlane_b32 s26, v13'),
         I('s_mov_b64 exec, %d'%((1<<RO)-1)), I('s_cmp_lg_u32 s26, 3'), I('s_cbranch_scc1 L_a_np'), I('buffer_atomic_add v12, v15, s[48:51], s30 offen sc1'), 'L_a_np:', I('s_mov_b64 exec, -1')]
    AT+=st(6)+[I('s_branch L_fin')]
    S=[I('s_bfe_u32 s65, s2, 0x10002'), I('s_mul_i32 s65, s65, 7'), I('s_lshr_b32 s26, s2, 5'), I('s_add_u32 s65, s65, s26'),
       I('s_lshl_b32 s41, s42, 12'), I('s_lshl_b32 s26, s64, 18')]+srd(52,36,37,0,0x700000)+srd(36,72,73,'s26',128*2048)
    S+=[I('v_lshrrev_b32 v24, 3, v0'), I('v_lshrrev_b32 v25, 4, v0'), I('v_and_b32 v26, 7, v0'), I('s_lshl_b32 s26, s42, 5'), I('v_add_u32 v24, s26, v24'),
        I('v_xor_b32 v26, v26, v25'), I('v_xor_b32 v27, 4, v26'), I('v_lshlrev_b32 v26, 4, v26'), I('v_lshlrev_b32 v27, 4, v27')]
    for sh,base in ((12,vOA),(11,zOA)):
        for i in range(4): S+=[I('v_lshl_add_u32 v28, v24, %d, v%d'%(sh,26+(i&1))), I('v_add_u32 v%d, %d, v28'%(base+i, i*8*(1<<sh)-i*1024))]
    S+=[I('v_and_b32 v25, 1, v25'), I('v_lshlrev_b32 v25, 6, v25'), I('v_lshlrev_b32 v24, 4, v0'), I('v_xor_b32 v25, v24, v25'), I('s_lshl_b32 s26, s42, 17'), I('v_add_u32 v%d, s26, v25'%vOB)]
    S+=[I('v_and_b32 v24, 15, v0'), I('v_lshrrev_b32 v25, 4, v0'), I('v_bfe_u32 v26, v0, 1, 3'),
        I('s_lshr_b32 s26, s42, 1'), I('s_lshl_b32 s26, s26, 13'),
        I('v_lshlrev_b32 v24, 7, v24'), I('v_add_u32 v24, s26, v24'),
        I('v_xor_b32 v27, v25, v26'), I('v_lshl_add_u32 v%d, v27, 4, v24'%vA), I('v_xor_b32 v%d, 64, v%d'%(vA+1,vA))]
    S+=[I('v_add_u32 v%d, 65536, v%d'%(vA+2+j,vA+j)) for j in range(2)]
    S+=[I('v_bfe_u32 v24, v0, 4, 1'), I('v_and_b32 v25, 1, v0'), I('v_bfe_u32 v26, v0, 1, 1'), I('v_bfe_u32 v27, v0, 2, 2'),
        I('v_lshl_add_u32 v28, v24, 3, v27'), I('v_lshl_add_u32 v28, v26, 2, v28'),
        I('v_lshlrev_b32 v28, 4, v28'), I('v_lshl_add_u32 v28, v25, 3, v28'),
        I('v_lshl_add_u32 v28, v26, 8, v28'), I('v_lshrrev_b32 v23, 5, v0'), I('v_lshl_add_u32 v28, v23, 10, v28'),
        I('s_and_b32 s27, s42, 1'), I('s_lshl_b32 s26, s27, 13'), I('s_add_u32 s26, s26, 16384'),
        I('v_add_u32 v%d, s26, v28'%vB), I('v_xor_b32 v%d, 64, v%d'%(vB+1,vB))]
    S+=[I('v_add_u32 v%d, 65536, v%d'%(vB+2+u,vB+u)) for u in range(2)]
    S+=[I('v_lshlrev_b32 v28, 3, v24'), I('v_lshl_add_u32 v28, v27, 1, v28'), I('v_add_u32 v28, v25, v28'), I('v_lshlrev_b32 v28, 4, v28'), I('v_lshl_add_u32 v28, v26, 3, v28'),
        I('v_lshl_add_u32 v28, v23, 12, v28'), I('s_lshl_b32 s26, s27, 11'), I('s_add_u32 s26, s26, 16384'), I('v_add_u32 v%d, s26, v28'%zB), I('v_add_u32 v%d, 65536, v%d'%(zB+1,zB)),
        I('v_bfe_u32 v26, v0, 3, 1'), I('v_bfe_u32 v27, v0, 1, 2'), I('v_lshl_add_u32 v27, v26, 3, v27'), I('s_lshl_b32 s26, s42, 4'), I('v_add_u32 v27, s26, v27'),
        I('v_lshlrev_b32 v28, 6, v23'), I('v_lshl_add_u32 v28, v25, 5, v28'), I('v_lshl_add_u32 v28, v24, 4, v28'), I('s_lshl_b32 s26, s65, 8'), I('v_add_u32 v28, s26, v28'),
        I('s_movk_i32 s26, 7168'), I('v_mad_u32_u24 v%d, v27, s26, v28'%zOB)]
    S+=[I('v_add_u32 v%d, %d, v%d'%(zOB+i,((i&1)*4*7168+(i>>1)*128-1024*i)&0xffffffff,zOB)) for i in range(1,4)]
    S+=[I('v_mov_b32 v%d, v%d'%(zSEL+i,k4a.SEL)) for i in range(4)]+[I('v_mov_b32 v%d, v%d'%(zIDX,k4a.vIDX))]+[I('v_mov_b32 v%d, 0'%(c+i)) for c in (CD0,CD1) for i in range(4)]
    S+=[I('v_mov_b32 v%d, 0'%(vBIAS+2*t)) for t in range(4)]
    S+=[I('s_lshr_b32 s26, s2, 3'), I('s_lshl_b32 s26, s26, 2'), I('s_add_u32 s26, s26, s42'), I('s_mul_i32 s26, s26, %d'%(8*7168)), I('s_bfe_u32 s27, s2, 0x10002'), I('s_mul_i32 s27, s27, 1792'), I('s_add_u32 s26, s26, s27'),
        I('v_lshrrev_b32 v24, 4, v0'), I('v_mul_u32_u24 v24, 7168, v24'), I('v_and_b32 v25, 15, v0'), I('v_lshl_add_u32 v24, v25, 7, v24'), I('v_add_u32 v24, s26, v24'),
        I('v_cmp_gt_u32 vcc, 14, v25'), I('v_mov_b32 v25, 0x%x'%OOB), I('v_cndmask_b32 v229, v25, v24, vcc'), I('s_mov_b32 s43, %d'%(4*7168))]
    PF=opt.get('pf',2)
    hk={'loop':{1:[I('s_cmp_lg_u32 s22, %d'%PF), I('s_cbranch_scc1 L_g_pf'), I('buffer_load_dword v14, v229, s[52:55], 0 offen'), I('buffer_load_dword v14, v229, s[52:55], s43 offen'), 'L_g_pf:']}} if PF else {}
    def dmaA(T):
        z=T<16
        Gr=[[I('buffer_load_dwordx4 v%d, s[%d:%d], s%d offen offset:%d lds'%((zOA if z else vOA)+i,36 if z else 16,39 if z else 19,28 if z else 40,1024*i))] for i in range(4)]
        Gr[-1]+=[I('s_add_u32 s%d, s%d, 128'%((28,28) if z else (40,40)))]
        return [[I('s_add_u32 m0, s41, %d'%REG[T%4])]]+[tag(g,'A%d'%T) for g in Gr]
    def dmaB(T):
        z=T<16
        Gr=[[I('buffer_load_dwordx4 v%d, s[%d:%d], s%d offen offset:%d lds'%(zOB+i if z else vOB,52 if z else 20,55 if z else 23,29 if z else 44,1024*i))] for i in range(4)]
        Gr[-1]+=[I('s_add_u32 s29, s29, %d'%(64*7168)) if z else I('s_add_u32 s44, s44, 4096')]
        return [[I('s_add_u32 m0, s41, %d'%(REG[T%4]+16384))]]+[tag(g,'B%d'%T) for g in Gr]
    def spread(Gs,g0,g1):
        d={}
        for k,g in enumerate(Gs): d.setdefault(g0+(k*(g1-g0))//len(Gs),[]).extend(g)
        return d
    hk[28]=spread([[I('s_mov_b32 s28, 0'), I('s_mov_b32 s29, 0')]]+dmaA(0)+dmaB(0),3,16)
    hk[29]=spread(dmaA(1)+dmaB(1),9,16)
    hk['l2']=spread(dmaA(2)+dmaB(2)+dmaA(3),8,opt.get('l2e',24))
    gfirst,gbody,gloop1,gtail,_=k4a.stream('g',2,opt,S,hk)
    if opt.get('clk'): gloop1=st(1)+gloop1+st(3)
    fix_hazards(gbody+gbody,auto=False,tag='k1loopg')
    W=st(0)+['; @TR62', I('v_lshlrev_b32 v%d, 4, v0'%vL16)]
    early=I('s_cmp_lg_u32 s58, 0') if GZE==1 else I('s_cmp_ge_u32 s2, 32')
    if GZE: W+=[early, I('s_cbranch_scc0 L_t_g0')]+arrive('L_t_g0a',1,[wvm('kst')])+['L_t_g0:']
    W+=[I('s_cmp_ge_u32 s2, 224'), I('s_cbranch_scc1 L_g_idle'), wvm('A0,B0')]+gbr
    w7=lambda lab,X: [I('s_cmp_lg_u32 s25, 7'), I('s_cbranch_scc1 %s'%lab)]+X+[lab+':']
    S2=[I('s_lshr_b32 s34, s2, 5'),
        I('s_lshl_b32 s26, s65, 2'), I('s_and_b32 s27, s42, 1'), I('s_lshl_b32 s27, s27, 1'), I('s_add_u32 s26, s26, s27'),
        I('s_lshl_b32 s30, s64, 2'), I('s_lshr_b32 s27, s42, 1'), I('s_lshl_b32 s27, s27, 1'), I('s_add_u32 s30, s30, s27'),
        I('s_mul_i32 s32, s30, 56'), I('s_add_u32 s32, s32, s26'), I('s_lshl_b32 s32, s32, 11'),
        I('s_lshl_b32 s26, s64, 19')]+srd(16,60,61,'s26',128*4096)+[I('s_lshl_b32 s26, s65, 19'), I('s_add_u32 s26, s26, 0x%x'%Z2N_OFF)]+srd(20,4,5,'s26',128*4096)+[
        I('s_mov_b32 s40, 0'), I('s_mov_b32 s44, 0')]
    S2+=[I('s_lshl_b32 s26, s65, 2'), I('v_add_u32 v12, s26, v0'), I('v_mul_u32_u24 v13, 74, v12'), I('v_lshrrev_b32 v13, 10, v13'), I('v_mul_u32_u24 v14, 14, v13'), I('v_sub_u32 v12, v12, v14'),
         I('v_add_u32 v12, 10, v12'), I('v_mul_u32_u24 v12, 43, v12'), I('v_lshrrev_b32 v12, 7, v12'), I('v_lshl_add_u32 v12, v13, 3, v12'), I('s_and_b32 s26, s64, %d'%(RP-1)),
         I('v_lshl_add_u32 v12, v12, %d, s26'%(LRP+1)), I('v_lshlrev_b32 v%d, 7, v12'%vF)]
    ZL=srd(8,62,63,0,4096)+[I('v_and_b32 v12, 15, v0'), I('v_lshlrev_b32 v12, 1, v12'), I('s_lshl_b32 s26, s30, 6')]
    ZL+=[I('buffer_load_short_d16_hi v%d, v12, s[8:11], s26 offen offset:%d'%(vBIAS+2*t,32*t)) for t in range(4)]
    ZL+=[I('s_lshl_b32 s26, s30, 9')]
    for t in range(4): ZL+=[I('buffer_load_dword v%d, v1, s[92:95], s26 offen offset:%d sc1'%(NM_[t],256*t)), I('buffer_load_dword v%d, v1, s[92:95], s26 offen offset:%d sc1'%(RS_[t],256*t+4))]
    S3=srd(52,4,5,H_OFF,H_SIZE)+[
        I('s_bfe_u32 s26, s2, 0x10002'), I('s_lshl_b32 s26, s26, 3'), I('s_add_u32 s59, s26, s34'), I('s_lshl_b32 s59, s59, 7'),
        I('v_bfe_u32 v10, v0, 3, 1'), I('v_bfe_u32 v12, v0, 1, 2'), I('v_lshl_add_u32 v10, v10, 4, v12'), I('s_lshl_b32 s26, s42, 5'), I('v_add_u32 v10, s26, v10'), I('v_lshlrev_b32 v10, 11, v10'),
        I('v_lshrrev_b32 v13, 4, v0'), I('v_lshl_add_u32 v10, v13, 5, v10'), I('v_and_b32 v12, 1, v0'), I('v_lshl_add_u32 v%d, v12, 4, v10'%vW)]
    for i in range(1,4): S3+=[I('v_add_u32 v%d, %d, v%d'%(vW+i,i*(4*2048-1024),vW))]
    S3+=[I('v_and_b32 v10, 15, v0'), I('v_lshlrev_b32 v10, 11, v10'), I('v_lshrrev_b32 v12, 5, v0'), I('v_lshl_add_u32 v10, v12, 4, v10'),
        I('v_bfe_u32 v12, v0, 4, 1'), I('v_lshl_add_u32 v%d, v12, 5, v10'%vX)]+b3addr
    S3+=[I('s_bfe_u32 s75, s2, 0x10002'), I('s_mul_i32 s56, s75, %d'%(7*128*2048)), I('s_sub_u32 s57, 0, s56'), I('s_sub_u32 s26, 0x380000, s59')]+srd(12,68,69,'s59','s26')
    ZE=[I('v_bfe_u32 v1, v0, 4, 1'), I('v_cmp_eq_u32 vcc, 0, v1'), I('v_lshrrev_b32 v1, 4, v0'), I('v_lshlrev_b32 v1, 4, v1')]
    for c in (CD0,CD1): ZE+=[I('v_add_f32 v%d, v%d, v%d'%(c,c,c+1)), I('v_add_f32 v%d, v%d, v%d'%(c+2,c+2,c+3)), I('v_cndmask_b32 v%d, v%d, v%d, vcc'%(c,c+2,c))]
    ZE+=[I('ds_bpermute_b32 v%d, v1, v%d offset:%d'%(CSZ+4*n+i,(CD0,CD1)[n>>1],64*(n&1)+4*i)) for n in range(4) for i in range(4)]
    gi=lambda n,t: G+32*(n>>1)+8*t+4*(n&1)
    ZC=[]
    for n in range(4):
        for t in range(4):
            for i in range(2): ZC+=[I('v_pk_fma_f32 %s, %s, %s, %s op_sel_hi:[1,0,1]'%(p(gi(n,t)+2*i),p(CSZ+4*n+2*i),p(NM_[t]),p(gi(n,t)+2*i)))]
        for t in range(4):
            for i in range(2): ZC+=[I('v_pk_mul_f32 %s, %s, %s op_sel_hi:[1,0]'%(p(gi(n,t)+2*i),p(gi(n,t)+2*i),p(RS_[t])))]
    ZG=[I('v_mov_b32 v2, 0x%x'%f2u(GC1)), I('v_mov_b32 v3, v2'), I('s_mov_b32 s28, 0x%x'%f2u(GC2)), I('s_mov_b32 s29, s28')]
    if opt.get('gms',1):
        w=lambda e: 12+(e&15)
        def stage(s_,e):
            x=G+e
            return {1:I('v_mul_f32 v%d, v%d, v%d'%(w(e),x,x)), 2:I('v_fma_f32 v%d, v%d, s28, v2'%(w(e),w(e))), 3:I('v_mul_f32 v%d, v%d, v%d'%(w(e),w(e),x)), 4:I('v_exp_f32 v%d, v%d'%(w(e),w(e))),
                    5:I('v_add_f32 v%d, 1.0, v%d'%(w(e),w(e))), 6:I('v_rcp_f32 v%d, v%d'%(w(e),w(e))), 7:I('v_mul_f32 v%d, v%d, v%d'%(x,x,w(e)))}[s_]
        order=[(1,0),(4,3),(2,1),(3,2),(5,5),(6,6),(7,8)]
        for slot in range(64+8): ZG+=[stage(s_,slot-d) for s_,d in order if 0<=slot-d<64]
    else:
        for k in range(0,32,2): ZG+=gelu_block([G+2*k,G+2*k+2],4,2,28)
    if opt.get('gu',1): ZC=unpk(ZC); ZG=unpk(ZG)
    def reads(T,j):
        slot=T%4; so=REG[slot]&0xffff; hi=REG[slot]>>16; f=FR+32*j
        Ra=[I('ds_read_b128 %s, v%d offset:%d'%(vr(f+4*t,4),vA+2*hi+j,so+t*2048)) for t in range(4)]
        if T<16: Rb=[I('ds_read_b64_tr_b16 %s, v%d offset:%d'%(vr(f+16+4*n+2*u,2),zB+hi,so+j*8192+u*1024+n*256)) for n in range(4) for u in range(2)]
        else: Rb=[I('ds_read_b64_tr_b16 %s, v%d offset:%d'%(vr(f+16+4*n+2*u,2),vB+2*hi+u,so+(n>>1)*4096+j*2048+(n&1)*512)) for n in range(4) for u in range(2)]
        return Rb[:2]+Ra+Rb[2:]
    gbar=opt.get('g2_bar',15)
    rp1=opt.get('g2_rp1',list(range(12))); rp2=opt.get('g2_rp2',list(range(gbar+1,gbar+13)))
    dgA=opt.get('g2_dgA',[17,21,25,29]); dgB=opt.get('g2_dgB',[1,5,9,13])
    GT0=opt.get('gt0',18); GT1=opt.get('gt1',42)
    zsm=lambda j,h: I('v_smfmac_f32_16x16x64_bf16 %s, %s, %s, v%d'%(vr((CD0,CD1)[h],4),vr(zSEL,4),vr(FR+32*j+16+8*h,8),zIDX))
    def zbar(i):
        X=w7('L_t_z1',wait_lines('L_t_z',4,8,vF,[wvm('zq')],229)) if i==ZK else []
        X+=gbr
        if i==ZQ: X+=w7('L_t_z0',[I('s_mov_b64 exec, 15')]+cond(tag([I('buffer_load_dword v229, v%d, s[48:51], 0 offen sc1'%vF)],'zq'))+[I('s_mov_b64 exec, -1')])
        return X
    nz0=int(len(ZG)*opt.get('zgf',1.0)) if NZX else 0
    ZG0=ZG[:nz0]; ZG=ZG[nz0:]
    def tile(T):
        z=T<16; c0=T in (0,16); ac=G if z else ACC
        spine=[m16(ac+32*(n>>1)+8*t+4*(n&1), FR+32*j+16+4*n, FR+32*j+4*t, '0' if (c0 and j==0) else None) for j in range(2) for n in range(4) for t in range(4)]
        fill={}
        def add(g,x): fill.setdefault(g,[]).extend(x)
        for pp,r in zip(rp1,reads(T,1)): add(pp,[r])
        if z:
            for j in range(2):
                for h in range(2): add(16*j+8*h+6,[zsm(j,h)])
        if T+3<=47:
            if not (16<=T+3<=min(ZK+2,18)):
                Gb=dmaB(T+3); add(dgB[0]-1,Gb[0])
                for pp,g in zip(dgB,Gb[1:]): add(pp,g)
        else:
            Gw=dmaW(2*(T-45)+1); add(-1,Gw[0])
            for pp,g in zip(dgB,Gw[1:]): add(pp,g)
        mid=[]
        if T==PG: mid+=([early, I('s_cbranch_scc1 L_t_g1')] if GZE else [])+arrive('L_t_g1a',1,[wvm('kst')])+['L_t_g1:']
        if T<47 and not (T==15 and NZX): mid+=[wvm('A%d,B%d'%(T+1,T+1),True)]
        else: mid+=[I('s_waitcnt lgkmcnt(0)')]
        if T<16: mid+=zbar(T+1)
        else: mid+=gbr
        add(gbar,mid)
        if T<47 and not (T==15 and NZX):
            for pp,r in zip(rp2,reads(T+1,0)): add(pp,[r])
        late=[]
        if T+1==ZK and T<16:
            for T2 in range(16,min(ZK+3,19)): late+=dmaB(T2)
        if T+4<=47: late+=dmaA(T+4)
        else: late+=dmaW(2*(T-44))
        if len(late)==5:
            add(gbar,late[0])
            for pp,g in zip(dgA,late[1:]): add(pp,g)
        else:
            for g,x in spread(late,gbar+1,32).items(): add(g,x)
        ex=[]
        if T==0: ex=S2
        if T==2: ex=ZL
        if T==16 and not NZX: ex=[I('s_nop 0')]*4+ZE
        if T==17 and not NZX: ex=ZC
        if GT0<=T<GT1: ex=ZG[(len(ZG)*(T-GT0))//(GT1-GT0):(len(ZG)*(T+1-GT0))//(GT1-GT0)]
        if T in (GT1,GT1+1): ex=S3[:len(S3)//2] if T==GT1 else S3[len(S3)//2:]
        for k,x in enumerate(ex): add((k*32)//len(ex),[x])
        out=interleave(spine,fill)
        if T==15 and NZX:
            X=[I('s_nop 7')]+ZE+ZC+ZG0; Y_=[]; zp=opt.get('zxp',[(k+1.0)/NZX for k in range(NZX-1)])
            for k in range(NZX-1):
                a=int(len(X)*(zp[k-1] if k else 0)); b=int(len(X)*zp[k])
                Y_+=X[a:b]+zbar(17+k)
                if 17+k==ZK: Y_+=flat(dmaB(16)+dmaB(17)+dmaB(18))
            out+=st(4)+Y_+X[int(len(X)*zp[-1]) if NZX>1 else 0:]+[wvm('A16,B16')]+gbr+reads(16,0)+st(2)
        return out
    assert GT1<=42 and PG not in (0,2)
    W+=reads(0,0)+[I('s_setprio %d'%opt.get('pg',0))]+([] if opt.get('clk') else st(1))
    for T in range(48): W+=tile(T)+(st(4) if T==15 and not NZX else [])
    k=gtail.index('; @L2')
    GW=resolve_vm(gtail+auto_lgkm(W,pre=[]))
    Ep=[]
    for nf in range(2):
        for m in range(2):
            a=ACC+16*(2*nf+m); g=G+16*(2*nf+m)
            for i in range(8): Ep+=[I('v_pk_add_f32 %s, %s, %s op_sel_hi:[1,0]'%(p(a+2*i),p(a+2*i),p(vBIAS+4*m+2*(i//4))))]
            for i in range(8): Ep+=[I('v_pk_mul_f32 %s, %s, %s'%(p(a+2*i),p(a+2*i),p(g+2*i)))]
            for i in range(8): Ep+=[I('v_cvt_pk_bf16_f32 v%d, v%d, v%d'%(a+i,a+2*i,a+2*i+1))]
            Ep+=[I('s_add_u32 s26, s32, %d'%(m*56*2048+nf*2048))]
            for h in range(2): Ep+=[I('buffer_store_dwordx4 %s, v%d, s[52:55], s26 offen offset:%d sc0 sc1'%(vr(a+4*h,4),vL16,1024*h))]
        if nf==0: Ep+=gbr
    if opt.get('eu',0): Ep=unpk(Ep)
    def bars(n,tag_):
        if n<=2: return gbr*n
        return [I('s_mov_b32 s47, %d'%n), 'L_%s:'%tag_]+gbr+[I('s_sub_u32 s47, s47, 1'), I('s_cmp_lg_u32 s47, 0'), I('s_cbranch_scc1 L_%s'%tag_)]
    Ep+=flat(dmaW(7))+st(6)+gbr*(CW-1)+[I('s_waitcnt vmcnt(4)')]+gbr
    Ep+=[I('s_lshl_b32 s30, s64, 1'), I('s_add_u32 s30, s30, s75'), I('s_lshl_b32 s30, s30, 8'), I('s_add_u32 s30, s30, %d'%(320*128))]+resolve_vm(pub1('L_c_pb',7,'s30',2))
    D=['L_gC:', I('s_lshl_b32 s30, s64, 1'), I('s_add_u32 s30, s30, s75'), I('s_lshl_b32 s30, s30, 1'), I('s_and_b32 s26, s34, 1'), I('s_add_u32 s30, s30, s26'), I('s_lshl_b32 s30, s30, 7'),
       I('s_add_u32 s30, s30, %d'%(320*128)), I('s_xor_b32 s35, s30, 256'),
       I('s_lshr_b32 s31, s64, 1'), I('s_lshl_b32 s31, s31, 3'), I('s_and_b32 s26, s34, %d'%(RO-1)), I('s_add_u32 s31, s31, s26'), I('s_lshl_b32 s31, s31, 7'), I('s_add_u32 s31, s31, %d'%(256*128))]+srd(52,72,73,0,0x400000)
    D+=[I('s_lshl_b32 s32, s43, 16'), I('s_add_u32 s32, s32, s59'), I('s_add_u32 s33, s32, 32768')]
    D+=[I('buffer_load_dwordx4 %s, v%d, s[52:55], s%d offen offset:%d'%(vr(XR+4*q,4),vX,32+q//2,64*(q&1))) for q in range(4)]
    D+=[I('s_mul_i32 s26, s43, %d'%(56*2048)), I('s_add_u32 s26, s26, 0x%x'%H_OFF)]+srd(8,4,5,'s26',56*2048)+[I('s_mul_i32 s24, s75, %d'%(7*8192))]
    D+=[I('s_lshl_b32 s26, s43, 16'), I('s_add_u32 s26, s26, 0x%x'%O_OFF)]+srd(16,4,5,'s26',65536)
    D+=[I('s_sub_u32 s26, 0x200000, s59')]+srd(20,66,67,'s59','s26')+srd(52,70,71,0,0x400000)
    TW=opt.get('tw',0); TH=opt.get('th',0); JA=opt.get('ja',1); JK=opt.get('jk',3)
    if TW:
        D+=[I('v_lshlrev_b32 v30, 11, v0'), I('s_bfe_u32 s26, s2, 0x20003'), I('s_lshl_b32 s26, s26, 2'), I('s_add_u32 s26, s26, s42'), I('s_mul_i32 s27, s26, %d'%(48*2048)), I('s_add_u32 s27, s27, s57'),
            I('s_add_u32 s27, s27, %d'%(1024*2048)), I('s_lshl_b32 s26, s26, 17'), I('s_bfm_b64 exec, 48, 0'), I('buffer_load_dword v13, v30, s[12:15], s27 offen'), I('s_mov_b64 exec, -1'),
            I('buffer_load_dword v13, v30, s[20:23], s26 offen')]
    if EX:
        tb=[EX.get(c,0) for c in ('q2','q3','q3','z2','z3','z3','z3','z3i')]
        D+=[I('s_mov_b32 s26, 0x%x'%sum(tb[i]<<(8*i) for i in range(4))), I('s_mov_b32 s27, 0x%x'%sum(tb[4+i]<<(8*i) for i in range(4))), I('s_lshl_b32 s28, s34, 3'), I('s_lshr_b64 s[26:27], s[26:27], s28'),
            I('s_and_b32 s47, s26, 0xff'), I('s_cbranch_scc0 L_c_ex0'), 'L_c_ex:']+gbr+[I('s_sub_u32 s47, s47, 1'), I('s_cmp_lg_u32 s47, 0'), I('s_cbranch_scc1 L_c_ex'), 'L_c_ex0:']
    if CQ==CW: D+=ask1('L_c_ak',7,'s30')
    for k in range(CW+1,CK+1):
        if k==CK: D+=chk1('L_c_ck',7,'s30',7)
        D+=gbr
        if k==CQ: D+=ask1('L_c_ak',7,'s30')
    nb=NC-2-CK
    for k in range(3):
        D+=flat(ldA(k))
        if k<2 and nb>0: D+=gbr; nb-=1
    if TH:
        D+=[I('v_lshlrev_b32 v30, 7, v0'), I('s_lshl_b32 s26, s34, 12'), I('s_add_u32 s26, s26, s24'), I('s_bfm_b64 exec, 32, 0'), I('buffer_load_dword v13, v30, s[8:11], s26 offen'), I('s_mov_b64 exec, -1')]
    if JA<0: D+=ask1('L_d_ak',7,'s35')
    D+=gbr*nb+[I('s_waitcnt vmcnt(%d)'%(17 if TH else 16))]+gbr+st(5)+rd3(0,0)
    DT=[]
    swW=[I('s_mov_b64 s[12:13], s[20:21]'), I('s_mov_b32 s14, s22')]
    swA=[I('s_mov_b64 s[8:9], s[16:17]'), I('s_mov_b32 s10, s18')]
    def earlyA(st_): return {3*k:g for k,g in enumerate(ldA(st_))}
    for j in range(14):
        w={0:16,1:16,2:20,11:16,12:8,13:63}.get(j,24)
        mid=[I('s_waitcnt vmcnt(%d)'%w)]+(chk1('L_d_ck',7,'s35',7,JK-JA>=2) if j==JK else [])+gbr
        if j==JA: mid+=ask1('L_d_ak',7,'s35')
        if j==JK and TH: mid+=[I('s_xor_b32 s26, s75, 1'), I('s_lshl_b32 s26, s26, 3'), I('s_add_u32 s26, s26, s34'), I('s_mul_i32 s26, s26, 7168'), I('s_bfm_b64 exec, 56, 0'), I('buffer_load_dword v13, v30, s[8:11], s26 offen'), I('s_mov_b64 exec, -1')]
        if opt.get('oe',0) and j==13: early_={0:[I('v_lshlrev_b32 v14, 2, v0')], opt.get('oep',8):[I('s_mov_b64 exec, 0xff'), I('buffer_load_dword v15, v14, s[48:51], s31 offen sc1'), I('s_mov_b64 exec, -1')]}
        if j==3: mid+=[I('s_xor_b32 s24, s75, 1'), I('s_mul_i32 s24, s24, %d'%(7*8192))]
        late=[]
        if j>=1:
            Gw=dmaW(j+7); mid=mid+(swW if j==7 else [])+Gw[0]; late=Gw[1:]
        DT+=tile3(j,j%4,(Y,Y+16),j==0,j+1 if j<13 else None,mid,earlyA((j+3)%4) if j<=10 else (early_ if opt.get('oe',0) and j==13 else {}),late)
    poll=[I('s_mov_b64 exec, 0xff'), I('buffer_load_dword v15, v14, s[48:51], s31 offen sc1'), I('s_mov_b64 exec, -1')]
    OE=opt.get('oe',0)
    DT+=[I('s_waitcnt lgkmcnt(0)')]+gbr+flat(dmaW(21))+swA+[I('s_mov_b32 s44, 0'), I('s_mov_b32 s45, 0')]+([] if OE else [I('v_lshlrev_b32 v14, 2, v0')]+poll)
    DT0=DT; DT=[]
    T3=FR3+16
    DT+=[I('s_mov_b32 s28, 0x%x'%f2u(-math.log2(math.e))), I('s_mov_b32 s29, s28')]
    for nf in range(2):
        y=Y+16*nf
        for i in range(8): DT+=[I('v_pk_mul_f32 %s, %s, s[28:29]'%(p(T3+2*i),p(y+2*i)))]
        for i in range(16): DT+=[I('v_exp_f32 v%d, v%d'%(T3+i,T3+i))]
        for i in range(8): DT+=[I('v_pk_add_f32 %s, %s, 1.0 op_sel_hi:[1,0]'%(p(T3+2*i),p(T3+2*i)))]
        for i in range(16): DT+=[I('v_rcp_f32 v%d, v%d'%(T3+i,T3+i))]
        for i in range(8): DT+=[I('v_pk_mul_f32 %s, %s, %s'%(p(y+2*i),p(y+2*i),p(T3+2*i)))]
    if opt.get('su',0): DT=unpk(DT)
    for q in range(4):
        DT+=[I('v_permlane16_swap_b32 v%d, v%d'%(XR+4*q,XR+4*q+2)), I('v_permlane16_swap_b32 v%d, v%d'%(XR+4*q+1,XR+4*q+3))]
    for i in range(15,-1,-1): DT+=[I('v_and_b32 v%d, 0xffff0000, v%d'%(XR+2*i+1,XR+i)), I('v_lshlrev_b32 v%d, 16, v%d'%(XR+2*i,XR+i))]
    SIL=DT; DT=DT0
    assert DE in (2,3)
    def issue(k,try_=False):
        lab='L_e%d%s'%(k,'t' if try_ else '')
        ck=[I('v_cmp_le_u32 vcc, 4, v15'), I('s_sub_u32 s47, s47, 1'), I('s_cselect_b32 s26, 0xff, 0'), I('s_or_b32 s26, s26, vcc_lo'), I('s_and_b32 s44, s26, 0xff'), I('s_andn2_b32 s26, s44, s45')]
        if not try_:
            X=[I('s_andn2_b32 s26, s44, s45'), I('s_cbranch_scc1 %s_h'%lab), I('s_waitcnt vmcnt(%d)'%(8 if k else 0)), I('s_mov_b32 s47, 0x40000'),
               lab+'_l:']+ck+[I('s_cbranch_scc1 %s_h'%lab), I('s_sleep %d'%opt.get('slp2',2))]+poll+[I('s_waitcnt vmcnt(0)'), I('s_branch %s_l'%lab), lab+'_h:']
        elif k==0: X=[I('s_mov_b32 s43, 0'), I('s_mov_b32 s47, 1'), I('s_waitcnt vmcnt(8)')]+ck+[I('s_cbranch_scc1 %s_h'%lab)]+poll+[I('s_branch L_sil'), lab+'_h:']
        else: X=[I('s_mov_b32 s43, %d'%k), I('s_andn2_b32 s26, s44, s45'), I('s_cbranch_scc0 L_sil')]
        X+=[I('s_ff1_i32_b32 s46, s26'), I('s_bitset1_b32 s45, s46'), I('s_lshl_b32 s24, s46, 13'), I('s_add_u32 s26, s46, 6'), I('s_and_b32 s26, s26, 7'), I('s_lshl_b32 s%d, s26, 14'%(36+k%4))]
        return X+(poll if k<7 else [])+flat(ldA(k%3))
    def after(k): return sum(8+(1 if x<7 else 0) for x in range(k+1,min(8,k+DE)))
    vE=lambda k: 24+(k&1)
    if not OE:
        DT+=SIL+gbr*(NX-1)+[I('s_waitcnt vmcnt(0)')]+gbr+([] if opt.get('clk') else st(3))
        for k in range(DE): DT+=issue(k)
    else:
        assert NBAR-NX>=64+opt.get('jp',1)+opt.get('jpm',0)
        for k in range(DE): DT+=issue(k,True)
        DT+=[I('s_mov_b32 s43, %d'%DE), 'L_sil:']+SIL
        for k in range(DE): DT+=[I('s_cmp_gt_u32 s43, %d'%k), I('s_cbranch_scc1 L_e%ds'%k)]+issue(k)+['L_e%ds:'%k]
        DT+=gbr*(NX-1)+[I('s_waitcnt vmcnt(%d)'%after(0))]+gbr+([] if opt.get('clk') else st(3))
    DT+=[I('v_add_u32 v%d, s36, v%d'%(vE(0),vB3))]+rd3((vE(0),),0)
    for k in range(8):
        DT+=[I('s_waitcnt vmcnt(%d)'%after(k))]
        DT+=tile3((vE(k),),k%3,(S0,S1),k==0,(vE(k+1),) if k<7 else None,[],{0:[I('v_add_u32 v%d, s%d, v%d'%(vE(k+1),36+(k+1)%4,vB3))]} if k<7 else {})
        if k+DE<8: DT+=issue(k+DE)
    for nf in range(2):
        y=(S0,S1)[nf]
        for i in range(8): DT+=[I('v_pk_fma_f32 %s, %s, %s, %s'%(p(y+2*i),p(y+2*i),p(Y+16*nf+2*i),p(XR+16*nf+2*i)))]
        for i in range(8): DT+=[I('v_cvt_pk_bf16_f32 v%d, v%d, v%d'%(y+i,y+2*i,y+2*i+1))]
        for h in range(2):
            DT+=[I('v_permlane16_swap_b32 v%d, v%d'%(y+4*h,y+4*h+2)), I('v_permlane16_swap_b32 v%d, v%d'%(y+4*h+1,y+4*h+3))]
        for h in range(2):
            DT+=[I('buffer_store_dwordx4 %s, v%d, s[52:55], s%d offen offset:%d %s'%(vr(y+4*h,4),vX,32+nf,64*h,opt.get('out_mod','')))]
    k0=len(D)-8
    D=D[:k0]+auto_lgkm(D[k0:]+DT,pre=[])
    ID=['L_g_idle:', I('s_lshr_b32 s34, s2, 5')]+S3+([I('s_waitcnt vmcnt(0)')]+gbr*(PG+2) if GZE else gbr*(PG+1)+resolve_vm(arrive('L_t_pi',1,[I('s_waitcnt vmcnt(0)')]))+gbr)
    IDB=opt.get('idb',8); ID+=gbr*(IDB-(PG+2))
    ID+=[I('v_lshlrev_b32 v12, 7, v0'), I('s_sub_u32 s26, s2, 224'), I('s_lshl_b32 s26, s26, 2'), I('s_add_u32 s26, s26, s42'), I('s_lshl_b32 s26, s26, 13')]
    ID+=srd(8,66,67,0,0x200000)+srd(20,68,69,0,0x380000)
    for k in range(2): ID+=[I('s_add_u32 s27, s26, %d'%(k*0x100000)), I('buffer_load_dword v13, v12, s[8:11], s27 offen')]
    for k in range(4): ID+=[I('s_add_u32 s27, s26, %d'%(k*0x100000)), I('buffer_load_dword v13, v12, s[20:23], s27 offen')]
    for t in range(8): ID+=gbr+flat(dmaW(t))
    ID+=bars(1+48+NZX+CW+1-8-IDB,'g_idl')+[I('s_branch L_gC')]
    fin=['L_fin:']
    if STAMP:
        fin+=[I('s_waitcnt vmcnt(0)')]+st(7)
    if opt.get('wgst'):
        fin+=[I('s_cmp_lg_u32 s25, %d'%opt.get('wgw',0)), I('s_cbranch_scc1 L_nowg')]+srd(48,4,5,ST_OFF+2*65536,65536)+[I('s_lshl_b32 s26, s2, 4'), I('v_mov_b32 v1, s26')]
        fin+=[I('v_mov_b32 v%d, s%d'%(4+i,76+2*k)) for i,k in enumerate(opt['wgst'])]+[I('s_nop 1'), I('buffer_store_dwordx4 v[4:7], v1, s[48:51], 0 offen'), 'L_nowg:']
    if opt.get('rt'): fin+=[I('s_cmp_lg_u32 s25, 4'), I('s_cbranch_scc1 L_end')]
    fin+=rt_end(opt,0,'k2',sreg=96)+['L_end:', I('s_endpgm')]
    if opt.get('trc'):
        def trace(L,v,k0=0,kmax=64):
            out=[]; k=k0
            for x in L:
                if x.strip()=='s_barrier' and k+1<kmax:
                    out+=[I('s_memrealtime s[90:91]'), I('s_waitcnt lgkmcnt(0)'), I('v_writelane_b32 v%d, s90, %d'%(v,k)), x, I('s_memrealtime s[90:91]'), I('s_waitcnt lgkmcnt(0)'), I('v_writelane_b32 v%d, s90, %d'%(v,k+1))]; k+=2
                elif x.startswith('; @TR'): out+=[I('s_memrealtime s[90:91]'), I('s_waitcnt lgkmcnt(0)'), I('v_writelane_b32 v%d, s90, %s'%(v,x[5:]))]
                else: out.append(x)
            return out,k
        CA=[]
        if opt['trc']==3:
            def tr1(first,loop1,T,v):
                X,k=trace(first,255,2,60)
                lp=[loop1[0], I('s_memrealtime s[90:91]'), I('s_lshl_b32 s26, s22, 1'), I('s_sub_u32 m0, %d, s26'%(k+12)), I('s_waitcnt lgkmcnt(0)'), I('v_writelane_b32 v255, s90, m0'), I('s_add_u32 m0, m0, 1'), I('s_nop 0'), I('v_writelane_b32 v255, s90, m0')]+loop1[1:]
                j=T.index('; @L2'); Y,_=trace(T[:j],255,k+12,60)
                return [X[0], I('s_memrealtime s[90:91]'), I('s_waitcnt lgkmcnt(0)'), I('v_writelane_b32 v255, s90, 0'), I('v_writelane_b32 v255, s90, 1')]+X[1:],lp,Y+[I('v_mov_b32 v%d, v255'%v)]+T[j:]
            PA_=[tr1(first,loop1,T,6)+(tg,) for first,loop1,T,tg in PA_]
            gfirst,gloop1,GW=tr1(gfirst,gloop1,GW,31)
            tr0=trace; trace=lambda L,v,k0=0,kmax=64: tr0(L,v,k0,0)
        for first,loop1,T,tg in PA_:
            k=T.index('; @L2'); X,_=trace(T[k:],6); CA+=first+loop1+T[:k]+[I('s_memrealtime s[90:91]'), I('s_waitcnt lgkmcnt(0)'), I('v_writelane_b32 v6, s90, 63')]+X
        A,k=trace(A,6,40,60); k0=aloop.index('L_att_loop:'); X,_=trace(aloop[:k0],6,k,60); aloop=X+aloop[k0:]
        k=GW.index('; @L2'); X,_=trace(GW[k:],31,0,60 if opt['trc']==1 else 0); GW=GW[:k]+[I('s_memrealtime s[90:91]'), I('s_waitcnt lgkmcnt(0)'), I('v_writelane_b32 v31, s90, 63')]+X
        if opt['trc']==1: ID,_=trace(ID,31,0,30)
        elif opt['trc']==2:
            Ep,k=trace(Ep,31,0,60); D,_=trace(D,31,k,60)
        fin=['L_fin:', I('s_and_b32 s26, s25, 3'), I('s_cmp_lg_u32 s26, %d'%opt.get('trw',0)), I('s_cbranch_scc1 L_notr')]+srd(48,4,5,ST_OFF+0x100000,256*512)+[I('s_lshl_b32 s26, s2, 1'), I('s_lshr_b32 s27, s25, 2'), I('s_add_u32 s26, s26, s27'),
             I('s_lshl_b32 s26, s26, 8'), I('v_lshlrev_b32 v1, 2, v0'), I('s_cmp_ge_u32 s25, 4'), I('s_cbranch_scc1 L_trg'), I('v_mov_b32 v31, v6'), 'L_trg:', I('buffer_store_dword v31, v1, s[48:51], s26 offen'), 'L_notr:']+fin[1:]
    code=B+CA+A+st(1)+aloop+st(2)+AT+FB+gfirst+gloop1+GW+Ep+D+fin+ID+['L_cw1:']
    code,_=fix_hazards(code)
    for tg,tr in trA:
        t,_=fix_hazards(B+tr+A+firstb+body+body+lastb+AT); check_waits(t,'a'+tg)
    tr,_=fix_hazards(FB); check_waits(tr,'k2fb')
    tr,_=fix_hazards(B+gfirst+gbody+gbody+GW+Ep+D); check_waits(tr,'k2g')
    code=[x.strip() if opt.get('compact',1) else x for x in code if not x.startswith(';')]
    return L+code, kernel_desc(name,256,256,102), '; @launch %sgrid=(256,1,1) block=(512,1,1) lds=163840'%('' if name.startswith('recurrent') else 'kernel=%s '%name)
if __name__=='__main__':
    from build import *
    opt=json.loads(sys.argv[2]) if len(sys.argv)>2 else {}
    assemble([gen(opt.get('name','recurrent_scan__softmax_full_mha__mixer_gmlp__prompt_kernel'),opt)], sys.argv[1])
```

```python
from common import *
B_RING=98304; CS=131072+12288
ARR=131072+7*4096
STAT_OFF=0; PST_OFF=0x100000
QSCALE=f2u(32**-0.5*math.log2(math.e))
vOB=1; vOA=5; vA=9; vB=11; vIDX=15; ST=16
AB=32; BF=64; SEL=96; CD=100; ACC=128; X0=104; CSB=112
NQ=3; OOB=0x7fff0000
RP=4
def m16(d,a,b,c=None): return I('v_mfma_f32_16x16x32_bf16 %s, %s, %s, %s'%(vr(d,4),vr(a,4),vr(b,4),vr(d,4) if c is None else c))
p=lambda b: vr(b,2)
flat=lambda G:[x for g in G for x in g]
acc=lambda a,t: ACC+16*a+4*t
tag=lambda L,t: [x+' ; @t:'+t if is_instr(x) and x.strip().startswith('buffer_') else x for x in L]
cond=lambda L: [x+' ; @c' if is_instr(x) and x.strip().startswith('buffer_') else x for x in L]
def wvm(tags,lg=False): return I('s_waitcnt vmcnt(?)%s ; @w:%s'%(' lgkmcnt(0)' if lg else '',tags))
def resolve_vm(L):
    out=list(L)
    for i,x in enumerate(out):
        if '@w:' not in x: continue
        tags=set(x.split('@w:')[1].split()[0].split(',')); n=0; best=None; seen=set()
        for y in reversed(out[:i]):
            if not (is_instr(y) and y.strip().startswith('buffer_')): continue
            t=y.split('@t:')[1].split()[0] if '@t:' in y else None
            if t in tags and t not in seen:
                seen.add(t)
                if best is None: best=n
                if seen==tags: break
            if '@c' not in y: n+=1
        assert seen==tags,(x,seen)
        out[i]=x.replace('vmcnt(?)','vmcnt(%d)'%min(best,63)).split(' ; @w')[0]
    return [x.split(' ; @')[0] if not x.startswith(';') else x for x in out]
def unpk(L):
    out=[]
    for x in L:
        m=re.match(r'\s*v_pk_(add|mul|fma)_f32 (.*)',x)
        if not m: out.append(x); continue
        c=Ins(x); ns=len(c.ops)-1
        mm=re.search(r'op_sel_hi:\[([01,]*)\]',c.mods); hi=[int(q) for q in mm.group(1).split(',')] if mm else [1]*ns
        assert 'op_sel:' not in c.mods and 'neg' not in c.mods
        def half(o,k):
            r=regs_of(o)
            return '%s%d'%r[k] if r else o
        for k in range(2):
            d=half(c.ops[0],k); sr_=[half(c.ops[1+i],k*hi[i]) for i in range(ns)]
            if m.group(1)=='fma':
                if sr_[2]==d and sr_[1][0]=='v': out.append(I('v_fmac_f32 %s, %s, %s'%(d,sr_[0],sr_[1])))
                elif sr_[2]==d and sr_[0][0]=='v': out.append(I('v_fmac_f32 %s, %s, %s'%(d,sr_[1],sr_[0])))
                else: out.append(I('v_fma_f32 %s, %s, %s, %s'%(d,sr_[0],sr_[1],sr_[2])))
            else:
                if sr_[1][0]!='v': sr_=sr_[::-1]
                out.append(I('v_%s_f32 %s, %s, %s'%(m.group(1),d,sr_[0],sr_[1])))
            if k==0: assert d not in [half(c.ops[1+i],hi[i]) for i in range(ns)],x
    return out
def sprinkle(L,pos,X):
    idx=sorted(int(q*len(L)) if isinstance(q,float) else q for q in pos)
    out=[]; k=0
    for i,x in enumerate(L):
        while k<len(idx) and idx[k]<=i: out+=X; k+=1
        out.append(x)
    out+=X*(len(idx)-k)
    return out

SCC_R=('s_cselect','s_cbranch_scc','s_addc','s_subb')
SCC_N=('s_mov','s_movk','s_mul','s_nop','s_waitcnt','s_setprio','s_barrier','s_bitset','s_load','s_getpc','s_sleep','s_branch','s_bfm')
def free_at(L,i,regs=('s26','s27')):
    need={'scc','vcc'}|set(regs)
    for x in L[i:]:
        if not is_instr(x): return False
        op=x.split()[0]; c=Ins(x); rd=set('%s%s'%r if r[0]!='x' else r[1] for r in c.r); wr=set('%s%s'%r if r[0]!='x' else r[1] for r in c.w)
        if op.startswith(SCC_R): rd.add('scc')
        if op.startswith('s_') and not op.startswith(SCC_N) and not op.startswith(('s_cselect','s_cbranch')): wr.add('scc')
        if 'vcc' in x: (wr if op.startswith('v_cmp') else rd).add('vcc')
        if rd&need: return False
        need-=wr
        if not need: break
    return True
def chunks(L):
    out=[[]]
    for i,x in enumerate(L):
        if out[-1] and free_at(L,i): out.append([])
        out[-1].append(x)
    return out
def weave(L,G,lo,hi):
    out=[]; k=0
    for i,x in enumerate(L):
        while k<len(G) and i>=lo+(k*(hi-lo))//len(G) and (free_at(L,i) or i>=hi): out+=G[k]; k+=1
        out.append(x)
    return out+flat(G[k:])

def prologue(opt):
    B=[I('s_cmp_ge_u32 s2, 256'), I('s_cbranch_scc1 L_end')]+rt_begin(opt,sreg=96)
    B+=[I('s_load_dwordx2 s[72:73], s[0:1], %d'%KA_X), I('s_load_dwordx2 s[6:7], s[0:1], %d'%KA_WQKV), I('s_load_dwordx2 s[36:37], s[0:1], %d'%KA_WIN),
        I('s_load_dwordx4 s[44:47], s[0:1], %d'%KA_DBG), I('s_load_dwordx4 s[60:63], s[0:1], %d'%KA_WSP), I('s_load_dwordx2 s[66:67], s[0:1], %d'%KA_WO),
        I('s_load_dwordx4 s[68:71], s[0:1], %d'%KA_WOUT),
        I('v_lshrrev_b32 v1, 6, v0'), I('v_and_b32 v0, 63, v0'), I('s_nop 0'), I('v_readfirstlane_b32 s25, v1'),
        I('s_and_b32 s23, s2, 1'), I('s_lshl_b32 s23, s23, 2'), I('s_bfe_u32 s24, s2, 0x20003'), I('s_add_u32 s23, s23, s24'),
        I('s_bfe_u32 s32, s2, 0x20001'), I('s_lshr_b32 s30, s2, 5'), I('s_lshl_b32 s24, s32, 3'), I('s_add_u32 s24, s24, s30'),
        I('s_lshl_b32 s26, s24, 14'), I('s_lshl_b32 s27, s25, 11'), I('s_add_u32 s21, s26, s27'),
        I('v_lshlrev_b32 v24, 4, v0'),
        I('v_lshrrev_b32 v25, 3, v0'), I('v_lshrrev_b32 v26, 4, v0'), I('v_and_b32 v27, 7, v0'), I('s_lshl_b32 s26, s25, 16'),
        I('v_lshlrev_b32 v25, 11, v25'), I('v_add_u32 v25, s26, v25'), I('v_xor_b32 v27, v27, v26'), I('v_xor_b32 v26, 4, v27'),
        I('v_lshl_add_u32 v27, v27, 4, v25'), I('v_lshl_add_u32 v26, v26, 4, v25')]
    for i in range(4): B+=[I('v_add_u32 v%d, %d, v%d'%(vOA+i, i*8*2048-i*1024, (27,26)[i&1]))]
    B+=[I('s_cmp_ge_u32 s30, 3'), I('s_cselect_b32 s58, 1, 0'), I('s_cselect_b32 s26, 3, 0'), I('s_cselect_b32 s27, 14, 24'), I('s_cselect_b32 s34, 0, 16'),
        I('s_cselect_b32 s89, %d, s58'%1024), I('s_cselect_b32 s88, %d, s58'%3584),
        I('s_sub_u32 s33, s30, s26'), I('s_mul_i32 s35, s33, 3'), I('s_sub_u32 s35, s35, 1'), I('s_max_i32 s35, s35, 0'),
        I('s_mul_i32 s27, s27, s32'), I('s_add_u32 s34, s34, s27'), I('s_add_u32 s34, s34, s35'),
        I('s_mul_i32 s22, s32, 24'), I('s_lshl_b32 s26, s30, 1'), I('s_add_u32 s22, s22, s26'), I('s_add_u32 s89, s89, 6144'),
        I('v_bfe_u32 v28, v0, 3, 1'), I('v_bfe_u32 v25, v0, 1, 2'), I('v_lshl_add_u32 v28, v28, 3, v25'),
        I('s_lshr_b32 s26, s25, 2'), I('s_lshl_b32 s26, s26, 5'), I('s_and_b32 s27, s25, 1'), I('s_lshl_b32 s27, s27, 4'), I('s_add_u32 s26, s26, s27'),
        I('s_and_b32 s27, s25, 2'), I('s_lshl_b32 s27, s27, 1'), I('s_add_u32 s26, s26, s27'), I('v_add_u32 v28, s26, v28'),
        I('v_lshrrev_b32 v25, 4, v0'), I('v_and_b32 v26, 1, v0'), I('v_lshlrev_b32 v25, 5, v25'), I('v_lshl_add_u32 v25, v26, 4, v25'),
        I('s_lshl_b32 s26, s22, 6'), I('s_movk_i32 s27, 6144'), I('v_add_u32 v26, s26, v25'), I('v_mad_u32_u24 v%d, v28, s27, v26'%vOB),
        I('s_lshl_b32 s26, s34, 6'), I('s_add_u32 s26, s26, s88'), I('s_sub_u32 s26, s26, 1024'), I('v_add_u32 v26, s26, v25'), I('v_mad_u32_u24 v%d, v28, s89, v26'%(vOB+1)),
        I('s_cmp_lg_u32 s33, 0'), I('s_cselect_b32 s26, 32, 0'), I('v_cmp_gt_u32 vcc, s26, v0'), I('v_add_u32 v25, %d, v%d'%((128-1024)&0xffffffff,vOB+1)), I('v_mov_b32 v26, 0x%x'%OOB),
        I('v_cndmask_b32 v%d, v26, v25, vcc'%(vOB+2)),
        I('s_and_b32 s42, s25, 3'), I('s_mul_i32 s28, s42, %d'%(NQ*1024)), I('s_add_u32 s28, s28, %d'%B_RING), I('s_lshr_b32 s26, s25, 2'), I('s_lshl_b32 s26, s26, 14'), I('s_add_u32 s40, s28, s26'),
        I('s_lshl_b32 s29, s25, 12'), I('s_lshl_b32 s26, s23, 19'), I('s_add_u32 m0, s29, 65536'), I('s_cmp_lg_u32 s58, 0'),
        I('s_waitcnt lgkmcnt(0)')]
    B+=[I('s_cselect_b32 s84, s36, s6'), I('s_cselect_b32 s85, s37, s7')]+srd(12,72,73,'s26',256*2048)
    if opt.get('cw_'):
        B+=['L_cw0:', I('s_getpc_b64 s[16:17]'), I('s_mov_b32 s18, L_cw1-L_cw0'), I('s_mov_b32 s19, 0x20000'), I('s_lshr_b32 s27, s2, 3'), I('s_lshl_b32 s27, s27, 3'), I('s_add_u32 s27, s27, s25'), I('s_lshl_b32 s27, s27, 9'),
            I('v_lshlrev_b32 v22, 6, v0'), I('v_cmp_gt_u32 vcc, 8, v0'), I('v_add_u32 v22, s27, v22'), I('v_mov_b32 v23, 0x%x'%OOB), I('v_cndmask_b32 v22, v23, v22, vcc'), I('buffer_load_dword v14, v22, s[16:19], 0 offen')]
    for k in range(2): B+=[I('buffer_load_dwordx4 %s, v24, s[12:15], s21 offen offset:%d'%(vr(ACC+4*k,4),1024*k))]
    for i in range(4): B+=[I('buffer_load_dwordx4 v%d, s[12:15], 0 offen offset:%d lds'%(vOA+i,i*1024))]
    B+=[I('s_mov_b32 m0, s40'), I('s_lshl_b32 s86, s89, 10'), I('s_mov_b32 s87, 0x20000')]+srd(8,6,7,0,0x600000)
    B+=[I('buffer_load_dwordx4 v%d, s[%d:%d], 0 offen offset:%d lds'%(vOB+i,(8,84,84)[i],(11,87,87)[i],i*1024)) for i in range(NQ)]
    B+=[I('s_mov_b32 s4, s46'), I('s_mov_b32 s5, s47')]
    B+=srd(16,4,5,0,O_OFF)+srd(92,4,5,STAT_OFF,256*128)+srd(52,44,45,0,256)+srd(48,4,5,FLAG_OFF,65536)
    B+=[I('s_lshl_b32 s26, s23, 5'), I('s_add_u32 s26, s26, s24'), I('s_lshl_b32 s26, s26, 7'), I('s_lshl_b32 s27, s25, 3'), I('s_add_u32 s26, s26, s27'),
        I('v_mov_b32 v22, s26'), I('v_cmp_eq_u32 vcc, 0, v0'), I('v_mov_b32 v29, 0x%x'%OOB), I('v_cndmask_b32 v30, v29, v22, vcc'),
        I('s_lshl_b32 s26, s2, 8'), I('s_cmp_lg_u32 s25, 0'), I('s_cselect_b32 s26, 0x%x, s26'%OOB),
        I('v_and_b32 v22, 7, v0'), I('v_lshl_add_u32 v22, v22, 2, s26'), I('v_lshrrev_b32 v23, 3, v0'), I('v_lshl_add_u32 v22, v23, 7, v22'), I('v_cmp_gt_u32 vcc, 16, v0'),
        I('v_cndmask_b32 v29, v29, v22, vcc'), I('v_mov_b32 v31, 0'), I('s_lshl_b32 s47, s23, 5'),
        I('s_lshl_b32 s89, s89, 6'), I('s_mov_b32 s88, s89'), I('s_mov_b32 s20, %d'%(64*6144)), I('s_mov_b32 s21, 128'),
        I('s_mov_b32 s57, 32768'), I('s_mov_b32 s59, 0xffff0000'), I('s_mov_b32 s40, 2'),
        I('s_lshl_b32 s26, s24, 1'), I('s_lshr_b32 s27, s25, 2'), I('s_add_u32 s26, s26, s27'), I('s_lshl_b32 s74, s26, %d'%(7+RP.bit_length()-1)),
        I('s_lshl_b32 s31, s23, 14'), I('s_lshl_b32 s26, s42, 12'), I('s_add_u32 s31, s31, s26'),
        I('s_lshl_b32 s64, s23, 1'), I('s_bfe_u32 s26, s2, 0x10001'), I('s_add_u32 s64, s64, s26'),
        I('s_cmp_ge_u32 s25, 4'), I('s_cbranch_scc1 L_k1_g'),
        I('s_cmp_lg_u32 s58, 0'), I('s_cbranch_scc1 L_k1_z'), I('s_cmp_lg_u32 s33, 0'), I('s_cbranch_scc1 L_k1_q3'), I('s_branch L_k1_q2'),
        'L_k1_z:', I('s_cmp_lg_u32 s33, 0'), I('s_cbranch_scc1 L_k1_z3'), I('s_branch L_k1_z2')]
    return B

def stream(kind, NB, opt, setup=[], hooks={}):
    tg=kind+str(NB); h=1 if kind=='g' else 0; isz=kind=='z'
    NFR=2*NB; NM=4*NFR; STM=opt.get('st_mod','sc0 sc1')
    S=['L_k1_%s:'%(tg if kind!='g' else 'g')]
    if kind=='g': S+=[I('s_mov_b32 s34, s22')]
    S+=[I('s_lshl_b32 s26, s34, 17'), I('s_add_u32 s31, s31, s26'), I('s_add_u32 s31, s31, 0x%x'%(Z2N_OFF if isz else P1_OFF)), I('s_mov_b32 s35, %d'%(0 if h else 2))]
    if not isz: S+=[I('s_cmp_lt_u32 s34, 32'), I('s_cselect_b32 s56, 0x%x, 1.0'%QSCALE)]
    S+=[I('v_and_b32 v24, 15, v0'), I('v_lshrrev_b32 v25, 4, v0'), I('v_bfe_u32 v26, v0, 1, 3'), I('s_lshl_b32 s26, s42, 13'), I('s_add_u32 s26, s26, 65536'),
        I('v_lshlrev_b32 v24, 7, v24'), I('v_add_u32 v24, s26, v24'),
        I('v_xor_b32 v27, v25, v26'), I('v_lshl_add_u32 v%d, v27, 4, v24'%vA), I('v_xor_b32 v%d, 64, v%d'%(vA+1,vA))]
    S+=[I('v_lshrrev_b32 v24, 5, v0'), I('v_mul_u32_u24 v24, %d, v24'%(NQ*1024)), I('v_and_b32 v25, 31, v0'), I('v_lshl_add_u32 v24, v25, 3, v24'),
        I('s_cmp_ge_u32 s42, %d'%NB), I('s_cselect_b32 s27, %d, 0'%NB), I('s_sub_u32 s46, s42, s27')]
    def phys(i): return [I('s_add_u32 s26, s46, %d'%i), I('s_cmp_ge_u32 s26, %d'%NB), I('s_cselect_b32 s27, %d, 0'%NB), I('s_sub_u32 s26, s26, s27')]
    for i in range(NB):
        S+=phys(i)+[I('s_lshl_b32 s26, s26, 9'), I('s_add_u32 s26, s26, %d'%(B_RING+(0 if h else 1024))), I('v_add_u32 v%d, s26, v24'%(vB+i))]
    S+=[I('v_bfe_u32 v24, v0, 1, 1'), I('v_lshrrev_b32 v25, 5, v0'), I('v_cmp_eq_u32 vcc, v24, v25'), I('v_mov_b32 v24, 0x3f803f80'),
        I('v_cndmask_b32 v%d, 0, v24, vcc'%SEL)]+[I('v_mov_b32 v%d, v%d'%(SEL+i,SEL)) for i in range(1,4)]
    S+=[I('v_and_b32 v24, 1, v0'), I('v_mul_u32_u24 v24, 0xaaaa, v24'), I('v_add_u32 v%d, 0x4444, v24'%vIDX)]+[I('v_mov_b32 v%d, 0'%(CD+i)) for i in range(4)]
    SDEF=opt.get('sdef',0); EB=opt.get('eb',0)
    if not SDEF: S+=setup
    def dmaW(s):
        G=[[I('buffer_load_dwordx4 v%d, s[%d:%d], s%d offen offset:%d lds'%(vOB+i,(8,84,84)[i],(11,87,87)[i],(20,88,88)[i],i*1024))] for i in range(NQ)]
        G[-1]+=[I('s_add_u32 s20, s20, %d'%(64*6144)), I('s_add_u32 s88, s88, s89')]
        return [[I('s_add_u32 m0, s28, %d'%((s%4)*16384))]]+G
    def dmaX():
        G=[[I('buffer_load_dwordx4 v%d, s[12:15], s21 offen offset:%d lds'%(vOA+i,i*1024))] for i in range(4)]
        G[-1]+=[I('s_add_u32 s21, s21, 128'), I('s_add_u32 s29, s29, 32768'), I('s_cmp_ge_u32 s29, 98304'), I('s_cselect_b32 s26, 98304, 0'), I('s_sub_u32 s29, s29, s26')]
        return [[I('s_mov_b32 m0, s29')]]+G
    def dma(s):
        if (s&1)==h: return dmaW(s+4) if s+4<=31 else None
        return dmaX() if s<=26 else None
    def rdA(j): return [I('ds_read_b128 %s, v%d offset:%d'%(vr(AB+16*j+4*t,4),vA+j,t*2048)) for t in range(4)]
    advA=lambda j: [I('v_add_u32 v%d, s59, v%d'%(vA+j,vA+j))]
    nxtA=[I('s_add_u32 s40, s40, 1'), I('s_cmp_eq_u32 s40, 3'), I('s_cselect_b32 s40, 0, s40'), I('s_cmp_eq_u32 s40, 2'), I('s_cselect_b32 s59, 0xffff0000, s57')]
    def rdB(a,s,dst=None): return [[I('ds_read_b64_tr_b16 %s, v%d offset:%d'%(vr((BF+4*a if dst is None else dst)+2*u,2),vB+a//2,(s%4)*16384+2*u*NQ*1024+(a&1)*256))] for u in range(2)]
    SMF=I('v_smfmac_f32_16x16x64_bf16 %s, %s, %s, v%d'%(vr(CD,4),vr(SEL,4),vr(BF,8),vIDX))
    GB=opt.get('gb'+kind,opt.get('k1gb',3)); D0=opt.get('k1d0',2); DS=opt.get('ds'+str(NB),(NM-GB-D0-1)//4+(1 if NM>16 else 0))
    VW=I('s_waitcnt vmcnt(%d) lgkmcnt(0)'%(4+NQ))
    def step(s, G, c0=False, extra=None, vw=[VW], dense=False, pre_last=False):
        j=s&1
        spine=[m16(acc(a,t),BF+4*a,AB+16*j+4*t,'0' if c0 else None) for a in range(NFR) for t in range(4)]
        fill={}
        def add(g,x): fill.setdefault(g,[]).extend(x)
        add(GB,vw+[I('s_barrier')])
        ra=[[x] for x in rdA(1-j)]; ra[-1]+=advA(1-j)+(nxtA if j==0 else [])
        avail={GB:rdB(0,s+1)+ra}
        for a in range(1,NFR): avail.setdefault(max(GB,4*a+3),[]).extend(rdB(a,s+1))
        if pre_last: avail.setdefault(12,[]).extend(rdB(0,31,X0)+rdB(1,31,X0+4))
        queue=[]
        for g2 in range(GB,NM):
            queue+=avail.get(g2,[])
            n=1 if g2<NM-1 else len(queue)
            add(g2,flat(queue[:n])); queue=queue[n:]
        add(NM-3,[SMF])
        if pre_last: add(NM-1,[SMF.replace(vr(BF,8),vr(X0,8))])
        if G:
            if dense:
                for g,x in G: add(g,x)
            else:
                add(GB,G[0])
                for k,g in enumerate(G[1:]): add(min(GB+D0+k*DS,NM-1),g)
        if extra:
            for g,x in extra.items(): add(g,x)
        return interleave(spine,fill)
    X=ACC+16; R=ACC
    P=S+[I('s_waitcnt vmcnt(%d)'%(4+NQ))]
    for k in range(2): P+=unpack8(ACC+4*k,X+8*k)
    P+=[I('v_pk_add_f32 %s, %s, %s'%(p(R+2*i),p(X+2*i),p(X+8+2*i))) for i in range(4)]
    P+=[I('v_pk_add_f32 %s, %s, %s'%(p(R),p(R),p(R+2))), I('v_pk_add_f32 %s, %s, %s'%(p(R+4),p(R+4),p(R+6))), I('v_pk_add_f32 %s, %s, %s'%(p(R),p(R),p(R+4))),
        I('v_add_f32 v%d, v%d, v%d'%(R,R,R+1))]+wave_sum(R,R+1)+[I('v_mul_f32 v%d, 0xba800000, v%d'%(ST,R))]
    P+=[I('v_pk_add_f32 %s, %s, %s op_sel_hi:[1,0]'%(p(X+2*i),p(X+2*i),p(ST))) for i in range(8)]
    P+=[I('v_pk_mul_f32 %s, %s, %s'%(p(R+2*i),p(X+2*i),p(X+2*i))) for i in range(4)]
    P+=[I('v_pk_fma_f32 %s, %s, %s, %s'%(p(R+2*i),p(X+8+2*i),p(X+8+2*i),p(R+2*i))) for i in range(4)]
    P+=[I('v_pk_add_f32 %s, %s, %s'%(p(R),p(R),p(R+2))), I('v_pk_add_f32 %s, %s, %s'%(p(R+4),p(R+4),p(R+6))), I('v_pk_add_f32 %s, %s, %s'%(p(R),p(R),p(R+4))),
        I('v_add_f32 v%d, v%d, v%d'%(R,R,R+1))]+wave_sum(R,R+1)
    P+=[I('v_mov_b32 v%d, 0x3727c5ac'%(R+1)), I('v_fmac_f32 v%d, 0x3a800000, v%d'%(R+1,R)), I('v_rsq_f32 v%d, v%d'%(ST+1,R+1)), I('s_nop 0'),
        I('buffer_store_dwordx2 %s, v30, s[92:95], 0 offen sc0 sc1'%p(ST)), I('buffer_store_dword v31, v29, s[48:51], 0 offen sc0 sc1')]
    if isz:
        if opt.get('f4',0):
            P+=[I('s_mul_i32 s26, s23, %d'%(20*2048)), I('s_mul_i32 s27, s42, 10240'), I('s_add_u32 s38, s26, s27'), I('s_add_u32 s38, s38, 0x%x'%PST_OFF),
                I('s_mul_i32 s26, s32, 5'), I('s_add_u32 s26, s26, s33'), I('s_and_b32 s27, s26, 1'), I('s_lshr_b32 s26, s26, 1'), I('s_lshl_b32 s26, s26, 10'), I('s_lshl_b32 s27, s27, 3'),
                I('s_add_u32 s39, s26, s38'), I('s_add_u32 s39, s39, s27'), I('v_lshlrev_b32 v24, 4, v0')]
        else:
            P+=[I('s_mul_i32 s26, s23, %d'%(20*2048)), I('s_lshl_b32 s27, s42, 9'), I('s_add_u32 s38, s26, s27'), I('s_add_u32 s38, s38, 0x%x'%PST_OFF),
                I('s_mul_i32 s26, s32, 5'), I('s_add_u32 s26, s26, s33'), I('s_lshl_b32 s26, s26, 11'), I('s_add_u32 s39, s26, s38'), I('v_lshlrev_b32 v24, 3, v0')]
        P+=[I('v_mov_b32 v26, -1'), I('v_mov_b32 v27, -1'), I('buffer_store_dwordx2 v[26:27], v24, s[16:19], s39 offen sc0 sc1')]
    seq=dmaX()+dmaW(2+h)+dmaX(); ne=(0,9,14)[EB]
    if EB:
        kw=len(S); ks=[i for i,x in enumerate(P) if 'buffer_store' in x][0]
        G2=[seq[i]+seq[i+1] if len(seq[i])==1 and 'm0' in seq[i][0] else seq[i] for i in range(ne) if not (i and len(seq[i-1])==1 and 'm0' in seq[i-1][0])]
        lo={0:0,1:kw+1,2:ks}[opt.get('ebg',0) if h else opt.get('eba',1)]
        P=[x+' ; @sw' if i==kw else x for i,x in enumerate(P)]
        P=weave(P[:ks],G2[:7],lo,ks)+P[ks:]+flat(G2[7:])
        kw=[i for i,x in enumerate(P) if '@sw' in x][0]
        P[kw]=I('s_waitcnt vmcnt(%d)'%(4+NQ+sum('buffer_load' in x for x in P[:kw])))
        seq=seq[ne:]
    P+=[I('s_waitcnt vmcnt(%d)'%((3 if isz else 2)+(0,7,11)[EB])), I('s_barrier')]
    k0=len(P)
    P+=flat(rdB(0,0))+rdA(0)+advA(0)
    for a in range(1,NFR): P+=flat(rdB(a,0))
    P+=[I('s_mov_b32 s22, 6'), SMF]+([I('s_setprio %d'%opt['k1p'+kind])] if opt.get('k1p'+kind) else [])
    w0=lambda lab,Z: [I('s_cmp_lg_u32 s25, 0'), I('s_cbranch_scc1 %s_%s'%(lab,tg))]+Z+['%s_%s:'%(lab,tg)]
    pub=[] if h else w0('L_k1_np',[I('v_mov_b32 v28, 1'), I('v_mov_b32 v29, 0'), I('s_mov_b64 exec, 1'),
         I('buffer_atomic_add v28, v29, s[52:55], s47 offen sc1'), I('s_mov_b64 exec, -1'), I('v_lshlrev_b32 v27, 5, v0')])
    n0=len(seq)
    if not h: seq+=dmaW(4)
    if not seq: seq=[[]]
    pos=[(-1+(k*NM)//len(seq)) if k<n0 else max(GB,-1+(k*NM)//len(seq)) for k in range(len(seq))]
    VW1=I('s_waitcnt vmcnt(%d) lgkmcnt(0)'%(4 if EB and h else 4+NQ))
    ex0={}; ex1={GB+1:pub}
    if SDEF and setup:
        ch=chunks(setup)
        for k,c in enumerate(ch):
            g=(k*2*NM)//len(ch); (ex0 if g<NM else ex1).setdefault(g%NM,[]).extend(c)
    f0=step(0,list(zip(pos,seq)),c0=True,vw=[I('s_waitcnt lgkmcnt(0)')],dense=True,extra=ex0)
    f1=step(1,dma(1),extra=ex1,vw=[VW1])
    first=P[:k0]+auto_lgkm(P[k0:]+f0+f1,pre=[])
    body=auto_lgkm(flat([step(s,dma(s),extra=hooks.get('loop') if s==2 else None) for s in range(2,6)]))
    Lp='L_k1_loop_%s'%tg
    loop=[Lp+':']+body+[I('s_sub_u32 s22, s22, 1'), I('s_cmp_lg_u32 s22, 0'), I('s_cbranch_scc1 %s'%Lp)]
    ask=[I('s_mov_b64 exec, 0xff'), I('buffer_load_dword v28, v27, s[52:55], 0 offen sc1'), I('s_mov_b64 exec, -1')]
    chk=[] if h else w0('L_k1_ck',[I('s_mov_b32 s27, 0x40000'), 'L_k1_chl_%s:'%tg, I('v_cmp_le_u32 vcc, 32, v28'), I('s_nop 1'), I('s_and_b32 s26, vcc_lo, 0xff'), I('s_cmp_eq_u32 s26, 0xff'),
        I('s_cbranch_scc1 L_k1_ck_%s'%tg), I('s_sleep 2')]+cond(ask)+[I('s_waitcnt vmcnt(0)'), I('s_sub_u32 s27, s27, 1'), I('s_cmp_lg_u32 s27, 0'), I('s_cbranch_scc1 L_k1_chl_%s'%tg)])
    g=GB+1
    ex29={0:[I('v_bfe_u32 v1, v0, 3, 1'), I('v_and_b32 v24, 7, v0'), I('s_lshl_b32 s26, s23, 12')],
          1:[I('v_lshlrev_b32 v1, 7, v1'), I('s_lshl_b32 s27, s42, 10')],
          2:[I('v_lshl_add_u32 v1, v24, 3, v1'), I('s_add_u32 s43, s26, s27')]}
    for t in range(4): ex29[g+1+t]=tag([I('buffer_load_dwordx2 %s, v1, s[92:95], s43 offen offset:%d sc1'%(p(ST+2*t),256*t))],'st')
    ex28={0:[I('v_and_b32 v2, 31, v0'), I('s_add_u32 s26, s35, s46'), I('s_lshl_b32 s26, s26, 7'), I('s_add_u32 s26, s26, %d'%CS)],
          1:[I('v_lshl_add_u32 v2, v2, 2, s26'), I('v_lshrrev_b32 v3, 4, v0')],
          2:[I('v_lshlrev_b32 v3, 4, v3'), I('v_lshlrev_b32 v4, 4, v0')],
          6:[I('v_mov_b32 v6, %d'%(ARR+4*h)), I('v_mov_b32 v7, 0')], 7:[I('ds_write_b32 v6, v7')]}
    def merge(a,b):
        c={k:list(v) for k,v in a.items()}
        for k,v in (b or {}).items(): c.setdefault(k,[]).extend(v)
        return c
    tgd=lambda G: [tag(x,'k1') for x in G] if G else G
    e0=step(26,tgd(dma(26)),extra={0:[] if h else w0('L_k1_ak',cond(ask))})+step(27,tgd(dma(27)))+step(28,None,extra=merge(ex28,hooks.get(28)))
    e0+=step(29,None,extra=merge(ex29,hooks.get(29)),vw=[wvm('k1',True)]+chk,pre_last=True)
    csr=lambda a: CSB+4*(a&1)+(-8 if isz else 8)*((a>>1)&1)
    def rdc(i): return phys(i)+[I('s_lshl_b32 s26, s26, 7'), I('s_add_u32 s26, s26, %d'%(CS+(0 if h else 256))), I('v_add_u32 v5, s26, v3')]+[
        I('ds_read_b128 %s, v5 offset:%d'%(vr(csr(2*i+f),4),64*f)) for f in range(2)]
    def last2(prep, epi, span=16):
        spine=[m16(acc(2*i+f,t),(BF+8*i if j==0 else (X0 if i==0 else BF+8*(i-1)))+4*f,AB+16*j+4*t) for i in range(NB) for j in range(2) for f in range(2) for t in range(4)]
        fill={}
        def add(g,x): fill.setdefault(g,[]).extend(x)
        for k,r in enumerate(rdA(1)): add(k,[r])
        add(1,[I('v_bfe_u32 v5, v0, 4, 1')]); add(2,[I('v_cmp_eq_u32 vcc, 0, v5')])
        add(4,[I('v_add_f32 v%d, v%d, v%d'%(CD,CD,CD+1)), I('v_add_f32 v%d, v%d, v%d'%(CD+2,CD+2,CD+3))])
        add(5,[I('v_cndmask_b32 v%d, v%d, v%d, vcc'%(CD,CD+2,CD)), I('ds_write_b32 v2, v%d'%CD)])
        add(7,[I('s_waitcnt lgkmcnt(0)'), I('s_barrier'), '; @L2']+rdc(0))
        for i in range(1,NB):
            for k,r in enumerate(rdB(2*i,31,BF+8*(i-1))+rdB(2*i+1,31,BF+8*(i-1)+4)): add(16*(i-1)+8+k,r)
        add(11,[wvm('st')])
        for k,x in enumerate(prep): add(12+(k*4)//len(prep),[x])
        for g,x in hooks.get('l2',{}).items(): add(g,x)
        for i in range(NB-1):
            E=epi(i)
            for k,x in enumerate(E): add(16+span*i+(k*span)//len(E),[x])
        return interleave(spine,fill)+epi(NB-1)
    def center(a,pk):
        if pk: return [I('v_pk_fma_f32 %s, %s, %s, %s op_sel_hi:[1,0,1]'%(p(acc(a,t)+2*i),p(csr(a)+2*i),p(ST+2*t),p(acc(a,t)+2*i))) for t in range(4) for i in range(2)]
        return [I('v_fmac_f32 v%d, v%d, v%d'%(acc(a,t)+i,csr(a)+i,ST+2*t)) for t in range(4) for i in range(4)]
    def scale(a,pk):
        if pk: return [I('v_pk_mul_f32 %s, %s, %s op_sel_hi:[1,0]'%(p(acc(a,t)+2*i),p(acc(a,t)+2*i),p(24+2*t))) for t in range(4) for i in range(2)]
        return [I('v_mul_f32 v%d, v%d, v%d'%(acc(a,t)+i,acc(a,t)+i,24+2*t)) for t in range(4) for i in range(4)]
    def put(i):
        E=phys(i)+[I('s_lshl_b32 s26, s26, 17'), I('s_add_u32 s27, s26, s31')]
        for t in range(4):
            a=acc(2*i,t); b=acc(2*i+1,t)
            E+=[I('v_cvt_pk_bf16_f32 v%d, v%d, v%d'%(a,a,a+1)), I('v_cvt_pk_bf16_f32 v%d, v%d, v%d'%(a+1,a+2,a+3)),
                I('v_cvt_pk_bf16_f32 v%d, v%d, v%d'%(a+2,b,b+1)), I('v_cvt_pk_bf16_f32 v%d, v%d, v%d'%(a+3,b+2,b+3)),
                I('buffer_store_dwordx4 %s, v4, s[16:19], s27 offen offset:%d %s'%(vr(a,4),t*1024,STM))]
        return tag(E,'kst')
    aux={}
    if not isz:
        PK=opt.get('bmpk',0)
        NI=opt.get('ni'+tg,NB-1)
        def epi(i,pk):
            return (rdc(i+1) if i<NB-1 else [])+center(2*i,pk)+scale(2*i,pk)+center(2*i+1,pk)+scale(2*i+1,pk)+put(i)
        E=[I('s_setprio %d'%opt.get('gp' if h else 'qp',3 if h else 2))]
        if h and 'gpz' in opt: E+=[I('s_cmp_eq_u32 s58, 0'), I('s_cbranch_scc1 L_k1_gpz'), I('s_setprio %d'%opt['gpz']), 'L_k1_gpz:']
        E+=last2([I('v_mul_f32 v%d, s56, v%d'%(24+2*t,ST+2*t+1)) for t in range(4)],lambda i: epi(i,PK) if i<NI else [],16*(NB-1)//max(min(NI,NB-1),1))
        E+=flat([epi(i,1) for i in range(NI,NB)])+[I('s_setprio 0')]
    else:
        T=240; K1=88; K2=120; RR=24; SS=224; QQ=232
        def gel(a):
            xs=[(acc(a,0)+2*k,T+2*k,k//2) for k in range(8)]
            G=[I('v_pk_mul_f32 %s, %s, %s'%(p(w),p(x),p(x))) for x,w,t in xs]
            G+=[I('v_fma_f32 v%d, v%d, v%d, v%d'%(w+k,w+k,K2+2*t,K1+2*t)) for x,w,t in xs for k in range(2)]
            G+=[I('v_pk_mul_f32 %s, %s, %s'%(p(w),p(w),p(x))) for x,w,t in xs]
            G+=[I('v_exp_f32 v%d, v%d'%(w+k,w+k)) for x,w,t in xs for k in range(2)]
            G+=[I('v_pk_add_f32 %s, %s, 1.0 op_sel_hi:[1,0]'%(p(w),p(w))) for x,w,t in xs]
            G+=[I('v_rcp_f32 v%d, v%d'%(w+k,w+k)) for x,w,t in xs for k in range(2)]
            G+=[I('v_pk_mul_f32 %s, %s, %s'%(p(x),p(x),p(w))) for x,w,t in xs]
            return G
        prep=[I('v_mul_f32 v%d, 0x%x, v%d'%(K1+2*t,f2u(GC1),ST+2*t+1)) for t in range(4)]+[I('v_mul_f32 v%d, v%d, v%d'%(K2+2*t,ST+2*t+1,ST+2*t+1)) for t in range(4)]
        prep+=[I('v_mov_b32 v%d, v%d'%(RR+t,ST+2*t+1)) for t in range(4)]
        prep+=[I('v_mul_f32 v%d, v%d, v%d'%(K2+2*t,K2+2*t,K1+2*t)) for t in range(4)]+[I('v_mul_f32 v%d, 0x%x, v%d'%(K2+2*t,f2u(0.044715),K2+2*t)) for t in range(4)]
        def sums(a):
            Z=[]
            for t in range(4):
                x=acc(a,t)
                if a==0: Z+=[I('v_pk_add_f32 %s, %s, %s'%(p(SS+2*t),p(x),p(x+2))), I('v_pk_mul_f32 %s, %s, %s'%(p(QQ+2*t),p(x),p(x)))]
                else: Z+=[I('v_pk_add_f32 %s, %s, %s'%(p(SS+2*t),p(SS+2*t),p(x))), I('v_pk_fma_f32 %s, %s, %s, %s'%(p(QQ+2*t),p(x),p(x),p(QQ+2*t))),
                          I('v_pk_add_f32 %s, %s, %s'%(p(SS+2*t),p(SS+2*t),p(x+2)))]
                Z+=[I('v_pk_fma_f32 %s, %s, %s, %s'%(p(QQ+2*t),p(x+2),p(x+2),p(QQ+2*t)))]
            return Z
        ce=lambda i: center(2*i,1)+center(2*i+1,1)+(rdc(i+1) if i<NB-1 else [])
        def zepi(i):
            el=[(acc(a,t)+k,csr(a)+k,t,a,k) for a in (2*i,2*i+1) for k in range(4) for t in range(4)]
            w=lambda e: T+(e&15)
            def stage(s_,e):
                x,c,t,a,k=el[e]; first=(i==0 and a==0 and k<2)
                return {0:[I('v_fmac_f32 v%d, v%d, v%d'%(x,c,ST+2*t))], 1:[I('v_mul_f32 v%d, v%d, v%d'%(w(e),x,x))], 2:[I('v_fma_f32 v%d, v%d, v%d, v%d'%(w(e),w(e),K2+2*t,K1+2*t))],
                        3:[I('v_mul_f32 v%d, v%d, v%d'%(w(e),w(e),x))], 4:[I('v_exp_f32 v%d, v%d'%(w(e),w(e)))], 5:[I('v_add_f32 v%d, 1.0, v%d'%(w(e),w(e)))],
                        6:[I('v_rcp_f32 v%d, v%d'%(w(e),w(e)))], 7:[I('v_mul_f32 v%d, v%d, v%d'%(x,x,w(e)))],
                        8:[I('v_mov_b32 v%d, v%d'%(SS+2*t+(k&1),x)) if first else I('v_add_f32 v%d, v%d, v%d'%(SS+2*t+(k&1),SS+2*t+(k&1),x))],
                        9:[I('v_mul_f32 v%d, v%d, v%d'%(QQ+2*t+(k&1),x,x)) if first else I('v_fmac_f32 v%d, v%d, v%d'%(QQ+2*t+(k&1),x,x))]}[s_]
            order=opt.get('zord',[(0,0),(1,1),(4,4),(2,2),(3,3),(5,6),(6,7),(7,9),(8,10),(9,10)])
            out=[]
            for slot in range(32+max(d for _,d in order)):
                for s_,d in order:
                    if 0<=slot-d<32: out+=stage(s_,slot-d)
                if slot==0 and i<NB-1: out+=rdc(i+1)
            return out
        def zepk(blks):
            el=[(acc(a,t)+2*k,csr(a)+2*k,t,a,k) for i in blks for a in (2*i,2*i+1) for k in range(2) for t in range(4)]
            w=lambda e: T+2*(e&7)
            def stage(s_,e):
                x,c,t,a,k=el[e]; first=(a==0 and k==0); W=p(w(e)); X_=p(x)
                return {0:I('v_pk_fma_f32 %s, %s, %s, %s op_sel_hi:[1,0,1]'%(X_,p(c),p(ST+2*t),X_)), 1:I('v_pk_mul_f32 %s, %s, %s'%(W,X_,X_)),
                        2:I('v_pk_fma_f32 %s, %s, %s, %s op_sel_hi:[1,0,0]'%(W,W,p(K2+2*t),p(K1+2*t))), 3:I('v_pk_mul_f32 %s, %s, %s'%(W,W,X_)),
                        4:I('v_exp_f32 v%d, v%d'%(w(e),w(e))), 14:I('v_exp_f32 v%d, v%d'%(w(e)+1,w(e)+1)), 5:I('v_pk_add_f32 %s, %s, 1.0 op_sel_hi:[1,0]'%(W,W)),
                        6:I('v_rcp_f32 v%d, v%d'%(w(e),w(e))), 16:I('v_rcp_f32 v%d, v%d'%(w(e)+1,w(e)+1)), 7:I('v_pk_mul_f32 %s, %s, %s'%(X_,X_,W)),
                        8:I('v_pk_add_f32 %s, %s, 0 op_sel_hi:[1,0]'%(p(SS+2*t),X_)) if first else I('v_pk_add_f32 %s, %s, %s'%(p(SS+2*t),p(SS+2*t),X_)),
                        9:I('v_pk_mul_f32 %s, %s, %s'%(p(QQ+2*t),X_,X_)) if first else I('v_pk_fma_f32 %s, %s, %s, %s'%(p(QQ+2*t),X_,X_,p(QQ+2*t)))}[s_]
            order=[(4,4),(0,0),(1,1),(14,4),(2,2),(3,3),(6,6),(5,5),(7,7),(16,6),(8,8),(9,8)]
            out=[]; n=len(el)
            for slot in range(n+8):
                out+=[stage(s_,slot-d) for s_,d in order if 0<=slot-d<n]
                if slot%16==0 and slot<n and blks[slot//16]<NB-1: out+=rdc(blks[slot//16]+1)
            return out
        ZM=opt.get('zms',2)
        if ZM==2: E=[I('s_setprio %d'%opt.get('z2p',0))]+last2(prep,lambda i: zepi(0) if i==0 else [],16*(NB-1)-opt.get('zsh',0))+[I('s_setprio 2')]+zepk(list(range(1,NB)))
        elif ZM==3: E=[I('s_setprio %d'%opt.get('z2p',0))]+last2(prep,lambda i: [])+[I('s_setprio 2')]+zepk(list(range(NB)))
        else: E=[I('s_setprio %d'%opt.get('z2p',2))]+last2(prep,zepi if ZM else lambda i: (unpk if opt.get('zu',1) else list)(ce(i)+gel(2*i)+sums(2*i)+gel(2*i+1)+sums(2*i+1)))
        T=64
        for b in (SS,QQ): E+=[I('v_add_f32 v%d, v%d, v%d'%(b+2*t,b+2*t,b+2*t+1)) for t in range(4)]
        for b in (SS,QQ,QQ): E+=[I('v_mul_f32 v%d, v%d, v%d'%(b+2*t,b+2*t,RR+t)) for t in range(4)]
        for b in (SS,QQ): E+=[I('v_permlane16_swap_b32 v%d, v%d'%(b,b+2)), I('v_permlane16_swap_b32 v%d, v%d'%(b+4,b+6))]
        for b in (SS,QQ): E+=[I('v_add_f32 v%d, v%d, v%d'%(b,b,b+2)), I('v_add_f32 v%d, v%d, v%d'%(b+4,b+4,b+6))]
        for b in (SS,QQ): E+=[I('v_permlane32_swap_b32 v%d, v%d'%(b,b+4))]
        E+=[I('v_add_f32 v28, v%d, v%d'%(SS,SS+4)), I('v_add_f32 v29, v%d, v%d'%(QQ,QQ+4)), I('v_lshlrev_b32 v5, %d, v0'%(4 if opt.get('f4',0) else 3)), I('v_min_f32 v29, 0x7f800000, v29'),
            I('buffer_store_dwordx2 v[28:29], v5, s[16:19], s39 offen sc0 sc1'), I('s_setprio 0')]
        F=[I('s_mov_b32 s26, s38')]
        if opt.get('f4',0):
            for k in range(10):
                F+=[I('buffer_load_dwordx4 %s, v5, s[16:19], s26 offen offset:%d sc1'%(vr(T+4*k,4),(k&3)*1024))]
                if k&3==3: F+=[I('s_add_u32 s26, s26, 4096')]
        else:
            for k in range(20):
                F+=[I('buffer_load_dwordx2 %s, v5, s[16:19], s26 offen offset:%d sc1'%(p(T+2*k),(k&1)*2048))]
                if k&1: F+=[I('s_add_u32 s26, s26, 4096')]
        F+=[I('s_waitcnt vmcnt(%d)'%(5 if opt.get('f4',0) else 10))]+[I('v_pk_add_f32 %s, %s, %s'%(p(T+2*k),p(T+2*k),p(T+2*k+10))) for k in range(5)]
        F+=[I('s_waitcnt vmcnt(0)')]+[I('v_pk_add_f32 %s, %s, %s'%(p(T+20+2*k),p(T+20+2*k),p(T+30+2*k))) for k in range(5)]
        F+=[I('v_pk_add_f32 %s, %s, %s'%(p(T+2*k),p(T+2*k),p(T+20+2*k))) for k in range(5)]
        F+=[I('v_pk_add_f32 %s, %s, %s'%(p(T),p(T),p(T+2))), I('v_pk_add_f32 %s, %s, %s'%(p(T+4),p(T+4),p(T+6))),
            I('v_pk_add_f32 %s, %s, %s'%(p(T),p(T),p(T+8))), I('v_pk_add_f32 %s, %s, %s'%(p(T),p(T),p(T+4))), I('s_nop 0'),
            I('v_cmp_u_f32 vcc, v%d, v%d'%(T+1,T+1))]
        SH=40
        N=[I('v_mul_f32 v28, 0x%x, v%d'%(f2u(1/1792),T)), I('v_mul_f32 v29, 0x%x, v%d'%(f2u(1/1792),T+1)),
            I('v_fma_f32 v29, -v28, v28, v29'), I('v_max_f32 v29, 0, v29'), I('v_add_f32 v29, 0x3727c5ac, v29'), I('v_rsq_f32 v%d, v29'%ST),
            I('s_nop 0'), I('v_mul_f32 v%d, -v28, v%d'%(ST+1,ST))]
        N+=[I('v_mov_b32 v%d, v%d'%(ST+4+i,ST+i)) for i in range(2)]+[I('v_permlane32_swap_b32 v%d, v%d'%(ST+i,ST+4+i)) for i in range(2)]
        N+=[I('v_mov_b32 v%d, v%d'%(ST+2+i+4*k,ST+i+4*k)) for k in range(2) for i in range(2)]
        N+=[I('v_permlane16_swap_b32 v%d, v%d'%(ST+i+4*k,ST+2+i+4*k)) for k in range(2) for i in range(2)]
        N+=[I('v_mov_b32 v%d, v%d'%(SH+2*t,ST+2*t+1)) for t in range(4)]+[I('v_mul_f32 v%d, v%d, v%d'%(ST+2*t,ST+2*t,RR+t)) for t in range(4)]
        for i in range(NB):
            for a in (2*i,2*i+1):
                for t in range(4):
                    for k in range(2): N+=[I('v_pk_fma_f32 %s, %s, %s, %s op_sel_hi:[1,0,0]'%(p(acc(a,t)+2*k),p(acc(a,t)+2*k),p(ST+2*t),p(SH+2*t)))]
            N+=put(i)
        if opt.get('nu',0): N=unpk(N); F=unpk(F)
        aux={'F':F,'N':N}
    tail=auto_lgkm(e0+E,pre=body)
    return first, body, loop, tail, aux

def gen_k1only(name, opt):
    L=kernel_header(name); B=prologue(opt); C=[]
    for kind,NB in (('g',2),('q',3),('q',2),('z',3),('z',2)):
        first,body,loop,tail,aux=stream(kind,NB,opt); tg=kind+str(NB)
        if aux:
            tail=tail+[I('s_mov_b32 s27, 0x4000'), I('s_sleep %d'%opt.get('zs0',8)), 'L_zp_%s:'%tg]+aux['F']+[I('s_sub_u32 s27, s27, 1'), I('s_cbranch_scc1 L_zg_%s'%tg), I('s_cbranch_vccz L_zg_%s'%tg),
                I('s_sleep 2'), I('s_branch L_zp_%s'%tg), 'L_zg_%s:'%tg]+aux['N']
        tail=resolve_vm(tail)
        C+=first+loop+tail+[I('s_branch L_done')]
        t,_=fix_hazards(B+first+body+body+tail); check_waits(t,'k1'+tg)
        fix_hazards(body+body,auto=False,tag='k1loop'+tg)
    Zs=['L_done:']
    if opt.get('rt'): Zs+=[I('s_waitcnt vmcnt(0)'), I('s_barrier'), I('s_cmp_lg_u32 s25, 0'), I('s_cbranch_scc1 L_end')]
    Zs+=rt_end(opt,0,'k1',sreg=96)
    code,_=fix_hazards(B+C+Zs+['L_end:', I('s_endpgm')])
    return L+code, kernel_desc(name,256,256,102), '; @launch kernel=%s grid=(256,1,1) block=(512,1,1) lds=163840'%name
if __name__=='__main__':
    from build import *
    opt=json.loads(sys.argv[2]) if len(sys.argv)>2 else {}
    assemble([gen_k1only('x_kernel',opt)], sys.argv[1])
```

```python
from common import *
import k4a
from k4a import m16, flat, tag, cond, wvm, resolve_vm, sprinkle, unpk, OOB, RP
Q=240; KB=32; VB=48; SA=64; SB=80; PA=96; PB=104; OA=112; OB=128; LA=144; LB=148; ONES=152; vIDX=156
vK,vV0,vD=4,5,7
vL16=11
KV=131072
FR=32; G=96; ACC=160
vOA=224; vOB=228; vA=230; vB=238; vBIAS=242
zOA=192; zOB=196; zB=200; zIDX=202; zSEL=204; CD0=234; CD1=250
CSZ=12; NM_=(2,4,6,8); RS_=(28,30,254,10); vF=29
REG=[0,32768,65536,98304]
AR=32; FR3=160; Y=192; XR=224; S0=128; S1=144
vW=16; vA3=20; vB3=22; vX=28
WSL=lambda t: (t%8)*16384
def gen(name, opt={}):
    TST=opt.get('tst'); RO=opt.get('ro',8)
    L=kernel_header(name)
    STAMP=opt.get('stamp')
    def st(k): return [I('%s s[%d:%d]'%('s_memrealtime' if opt.get('real') else 's_memtime',76+2*k,77+2*k)), I('s_waitcnt lgkmcnt(0)')] if STAMP else []
    bar=[I('s_barrier')]; gbr=bar
    NC=opt.get('nc',11); CW=opt.get('cw',3); CQ=opt.get('cq',5); CK=opt.get('ck',8)
    NX=opt.get('nx',1); DE=opt.get('de',3)
    XB=opt.get('xb',{'q3':5,'q2':8,'z3':3,'z2':7}); DA=opt.get('da',{'q3':6,'q2':9,'z3':4,'z2':8}); XS=opt.get('xs',{'z3':3,'z2':7})
    PG=opt.get('pg_',1); PQ=opt.get('pq',{'q3':2,'q2':2}); ZQ=opt.get('zq',11); ZK=opt.get('zk',12); NZX=opt.get('nzx',1)
    GZE=opt.get('gze',1)
    FBR=opt.get('fbr',{}); XA=opt.get('xa',{})
    ALF=opt.get('alf',0)
    EX=opt.get('ex',{})
    NBAR=min(48+NZX+NC+15+NX-DA[c]+min(EX.get(c,0),EX.get('z3i',0) if c=='z3' else 99) for c in DA)
    assert NBAR>=65 or len(set(DA.values()))==1 and NBAR>=60
    assert PG+2<=min(XB[c]-FBR.get(c,0)*0 for c in XB if c=='q2' or (c=='q3' and GZE<2) or not GZE) and all(PQ[c]+1<=DA[c] and PQ[c]<=XB[c] for c in PQ) and min(XB.values())>=1
    assert max(DA['z3'],DA['z2'])+1+ALF<=ZK and ZQ<ZK and ZK<=15+NZX and all(XB[c]<=DA[c] for c in XB) and all(1<=XS[c]<=XB[c] for c in XS)
    p=lambda b: vr(b,2)
    b3addr=[I('v_lshrrev_b32 v13, 5, v0'), I('v_and_b32 v12, 31, v0'), I('v_lshlrev_b32 v12, 3, v12'), I('v_lshl_add_u32 v%d, v13, 10, v12'%vB3),
        I('v_add_u32 v%d, 65536, v%d'%(vB3+1,vB3))]
    b3addr+=[I('v_mov_b32 v%d, v%d'%(vA3,vL16)), I('v_add_u32 v%d, 4096, v%d'%(vA3+1,vL16)),
        I('s_lshl_b32 s43, s64, 2'), I('s_add_u32 s43, s43, s42')]
    def ldA(st_):
        Gr=[[I('buffer_load_dwordx4 %s, v%d, s[8:11], s24 offen offset:%d'%(vr(AR+32*st_+4*i,4),vA3+i//4,(i%4)*1024))] for i in range(8)]
        Gr[-1]+=[I('s_add_u32 s24, s24, 8192')]
        return Gr
    def dmaW(t):
        Gr=[[I('buffer_load_dwordx4 v%d, s[12:15], s58 offen offset:%d lds'%(vW+i,i*1024))] for i in range(4)]
        off=I('s_mov_b32 s58, %d'%((t-14)*128*2048)) if t>=14 else I('s_add_u32 s58, s%d, %d'%(56 if t<7 else 57,t*128*2048))
        return [[I('s_add_u32 m0, s41, %d'%WSL(t)), off]]+Gr
    def rd3(t,j):
        f=FR3+16*(j&1)
        if isinstance(t,tuple): return [I('ds_read_b64_tr_b16 %s, v%d offset:%d'%(vr(f+4*n+2*u,2),t[0],j*4096+u*2048+n*256)) for n in range(4) for u in range(2)]
        a=WSL(t)
        return [I('ds_read_b64_tr_b16 %s, v%d offset:%d'%(vr(f+4*n+2*u,2),vB3+(a>>16),(a&0xffff)+j*4096+u*2048+n*256)) for n in range(4) for u in range(2)]
    def tile3(t, aset, acc, c0, nxt, mid, early={}, late=[]):
        spine=[m16(acc[h]+4*n,FR3+16*(j&1)+4*n,AR+32*aset+8*j+4*h,'0' if (c0 and j==0) else None) for j in range(4) for n in range(4) for h in (0,1)]
        fill={}
        def add(g,x): fill.setdefault(g,[]).extend(x)
        add(23,mid)
        for j in range(4):
            R = rd3(t,j+1) if j<3 else (rd3(nxt,0) if nxt is not None else [])
            for k,r in enumerate(R): add(8*j+k,[r])
        for g,x in early.items(): add(g,x)
        for k,g in enumerate(late): add(24+(k*8)//len(late),g)
        return interleave(spine,fill)
    def pub1(lab,wave,off,n):
        return cond([I('s_cmp_lg_u32 s25, %d'%wave), I('s_cbranch_scc1 %s'%lab), I('s_mov_b64 exec, %d'%((1<<n)-1)), I('v_mov_b32 v14, 1'), I('v_lshlrev_b32 v15, 7, v0'),
                I('buffer_atomic_add v14, v15, s[48:51], %s offen sc1'%off), I('s_mov_b64 exec, -1'), lab+':'])
    def ask1(lab,wave,off):
        return [I('s_cmp_lg_u32 s25, %d'%wave), I('s_cbranch_scc1 %s'%lab), I('s_mov_b64 exec, 1'), I('v_mov_b32 v12, 0'),
                I('buffer_load_dword v15, v12, s[48:51], %s offen sc1'%off), I('s_mov_b64 exec, -1'), lab+':']
    def chk1(lab,wave,off,n,landed=False):
        return [I('s_cmp_lg_u32 s25, %d'%wave), I('s_cbranch_scc1 %s'%lab), I('s_mov_b64 exec, 1'), I('s_mov_b32 s27, 0x40000')]+([I('s_branch %s_k'%lab)] if landed else [])+[
                lab+'_l:', I('s_waitcnt vmcnt(0)'), lab+'_k:', I('v_readfirstlane_b32 s26, v15'), I('s_sub_u32 s27, s27, 1'), I('s_cmp_ge_u32 s26, %d'%n), I('s_cbranch_scc1 %s_g'%lab),
                I('s_sleep %d'%opt.get('slp',1)), I('buffer_load_dword v15, v12, s[48:51], %s offen sc1'%off), I('s_cmp_lg_u32 s27, 0'), I('s_cbranch_scc1 %s_l'%lab),
                lab+'_g:', I('s_mov_b64 exec, -1'), lab+':']
    def wait_lines(lab,nl,tgt,va,pre=None,vd=15):
        msk=(1<<nl)-1
        ld=cond([I('buffer_load_dword v%d, v%d, s[48:51], 0 offen sc1'%(vd,va))])
        return [I('s_mov_b64 exec, %d'%msk), I('s_mov_b32 s47, 0x40000')]+(ld if pre is None else pre+[I('s_branch %s_k'%lab)])+[lab+'_l:', I('s_waitcnt vmcnt(0)'), lab+'_k:', I('v_cmp_le_u32 s[26:27], %d, v%d'%(tgt,vd)), I('s_sub_u32 s47, s47, 1'),
                I('s_nop 0'), I('s_cmp_eq_u32 s26, %d'%msk), I('s_cbranch_scc1 %s_g'%lab), I('s_sleep %d'%opt.get('slp1',1))]+ld+[I('s_cmp_lg_u32 s47, 0'), I('s_cbranch_scc1 %s_l'%lab),
                lab+'_g:', I('s_mov_b64 exec, -1')]
    LRP=RP.bit_length()-1
    def arrive(lab,h,pre):
        return cond([I('v_mov_b32 v13, %d'%(KV+7*4096+4*h)), I('v_mov_b32 v14, 1'), I('v_lshlrev_b32 v15, 7, v0'), I('s_mov_b64 exec, 1')]+pre+[I('ds_add_rtn_u32 v13, v13, v14'), I('s_waitcnt lgkmcnt(0)'),
                I('v_readfirstlane_b32 s26, v13'), I('s_mov_b64 exec, %d'%((1<<RP)-1)), I('s_cmp_lg_u32 s26, 3'), I('s_cbranch_scc1 %s'%lab), I('buffer_atomic_add v14, v15, s[48:51], s74 offen sc1'), lab+':', I('s_mov_b64 exec, -1')])
    A1=[I('s_bfe_u32 s27, s2, 0x20003'), I('s_lshr_b32 s34, s2, 5'), I('v_lshlrev_b32 v%d, 4, v0'%vL16)]+([I('s_add_u32 s34, s34, s2'), I('s_and_b32 s34, s34, 7')] if opt.get('qmix',0) else [])+[
       I('s_and_b32 s26, s2, 7'), I('s_lshl_b32 s33, s26, 2'), I('s_add_u32 s33, s33, s27'),
       I('s_lshl_b32 s30, s34, 14'), I('s_lshl_b32 s27, s42, 12'), I('s_add_u32 s30, s30, s27'),
       I('s_and_b32 s26, s42, 1'), I('s_lshl_b32 s40, s26, 10'), I('s_lshl_b32 s41, s42, 10'), I('s_add_u32 s41, s41, %d'%KV),
       I('v_bfe_u32 v12, v0, 4, 1'), I('v_lshlrev_b32 v12, 7, v12'),
       I('s_cmp_ge_u32 s42, 2'), I('s_cselect_b32 s26, -1, 0'), I('v_and_b32 v12, s26, v12'), I('v_xor_b32 v%d, v%d, v12'%(vD,vL16)),
       I('s_lshl_b32 s26, s33, 17'), I('s_add_u32 s27, s26, 0x%x'%P1_OFF),
       I('s_lshr_b32 s35, s42, 1'), I('s_add_u32 s35, s35, 1'), I('s_lshl_b32 s35, s35, 22'), I('s_add_u32 s35, s35, s27')]
    A1+=srd(12,4,5,'s27',131072)+srd(8,4,5,'s35',131072)
    A1+=[I('v_lshl_add_u32 v12, v0, 5, s33'), I('v_mul_u32_u24 v13, 43, v12'), I('v_lshrrev_b32 v13, 10, v13'), I('v_mul_u32_u24 v14, 24, v13'), I('v_sub_u32 v12, v12, v14'),
         I('v_or_b32 v14, 1, v12'), I('v_cmp_gt_u32 vcc, 16, v12'), I('v_subrev_u32 v12, 15, v12'), I('v_mul_u32_u24 v12, 11, v12'), I('v_lshrrev_b32 v12, 5, v12'), I('v_lshlrev_b32 v12, 1, v12'),
         I('v_cndmask_b32 v12, v12, v14, vcc'), I('v_lshl_add_u32 v12, v13, 4, v12'), I('s_and_b32 s26, s34, %d'%(RP-1)), I('v_lshl_add_u32 v12, v12, %d, s26'%LRP), I('v_lshlrev_b32 v12, 7, v12')]
    def kvd(sl): return [I('s_add_u32 m0, s41, %d'%(sl*4096)), I('buffer_load_dwordx4 v%d, s[8:11], s40 offen lds'%vD), I('s_add_u32 s40, s40, 2048')]
    AL=[kvd(0)[0], I('s_nop 0')]+kvd(0)[1:]
    for i in range(4): AL+=[I('buffer_load_dwordx4 %s, v%d, s[12:15], s30 offen offset:%d'%(vr(Q+4*i,4),vL16,1024*i))]
    for sl in range(1,7): AL+=kvd(sl)
    dummy=lambda n: [I('v_mov_b32 v14, 0x%x'%OOB)]+[I('buffer_store_dwordx4 v[128:131], v14, s[16:19], 0 offen')]*n
    A2=[I('s_setprio %d'%opt.get('pa',1))]+srd(52,4,5,O_OFF,O_SIZE)
    A2+=[I('s_lshl_b32 s26, s34, 3'), I('s_lshl_b32 s27, s42, 1'), I('s_add_u32 s26, s26, s27'),
        I('s_lshl_b32 s26, s26, 5'), I('s_add_u32 s26, s26, s33'), I('s_lshl_b32 s46, s26, 11'),
        I('v_add_u32 v%d, %d, v%d'%(vK,KV,vL16)),
        I('v_bfe_u32 v14, v0, 1, 1'), I('v_and_b32 v13, 1, v0'), I('v_lshrrev_b32 v15, 2, v0'), I('v_lshlrev_b32 v12, 3, v14'), I('v_xor_b32 v15, v15, v12'),
        I('v_lshlrev_b32 v15, 4, v15'), I('v_lshl_add_u32 v15, v13, 3, v15'), I('v_lshl_add_u32 v15, v14, 8, v15'),
        I('v_add_u32 v%d, %d, v15'%(vV0,KV+2048)),
        I('v_lshrrev_b32 v12, 5, v0'), I('v_cmp_eq_u32 vcc, v14, v12'),
        I('v_mul_u32_u24 v13, 0xaaaa, v13'), I('v_add_u32 v%d, 0x4444, v13'%vIDX),
        I('v_mov_b32 v13, 0x3f803f80'), I('v_cndmask_b32 v%d, 0, v13, vcc'%ONES)]
    for i in range(1,4): A2+=[I('v_mov_b32 v%d, v%d'%(ONES+i,ONES))]
    NA2=min(min(DA[c]-XB[c]-XA.get(c,0) for c in XB),opt.get('na2',1))
    B=k4a.prologue(opt); CA=[]; trA=[]; PA_=[]
    for kind,NB in (('q',3),('q',2),('z',3),('z',2)):
        first,body1,loop1,tail,aux=k4a.stream(kind,NB,opt); tg=kind+str(NB)
        k=tail.index('; @L2')+1
        pos=opt.get('bp_'+tg,{'q3':[],'q2':[],'z3':[],'z2':[]}[tg])
        T=tail[:k]+sprinkle(tail[k:],pos,bar)+(st(3) if TST else [])+A1; nb=len(pos)
        fl=lambda vd: [I('s_mov_b64 exec, 7'), I('buffer_load_dword v%d, v12, s[48:51], 0 offen sc1'%vd), I('s_mov_b64 exec, -1')]
        FBk=FBR.get(tg,0); XAk=XA.get(tg,0)
        if kind=='q':
            assert nb<=PQ[tg]
            T+=bar*(PQ[tg]-nb)+arrive('L_t_p'+tg,0,[I('s_waitcnt vmcnt(0)')])+bar*(XB[tg]-PQ[tg]-FBk)
            if FBk: T+=fl(9)+bar*FBk
            pre=[I('s_waitcnt vmcnt(0)')] if FBk else None
        else:
            lab='L_t_z'+tg; F=aux['F']; kw=[i for i,x in enumerate(F) if 's_waitcnt' in x][0]
            ZFL=opt.get('zfl',1) and not ALF; NP=opt.get('nbp_'+tg,[])
            T+=bar*(XS[tg]-nb)+[I('s_mov_b32 s47, 0x4000')]
            if FBk: T+=([] if ZFL else fl(9))+F[:kw]+bar*FBk+[I('s_branch %s_w'%lab)]
            T+=[lab+'_l:']+([] if ZFL else fl(9))+F[:kw]+[lab+'_w:']+F[kw:]+[
                I('s_sub_u32 s47, s47, 1'), I('s_cbranch_scc1 %s_g'%lab), I('s_cbranch_vccz %s_g'%lab),
                I('s_sleep %d'%opt.get('zs1',2)), I('s_branch %s_l'%lab), lab+'_g:', '; @TR60']
            NN=sprinkle(aux['N'],NP,bar)+bar*(XB[tg]-XS[tg]-FBk-len(NP))
            if not ALF: T+=(tag(fl(9),'qf') if ZFL else [])+NN
            assert XB[tg]-XS[tg]-FBk-len(NP)>=0
            pre=[wvm('qf')] if ZFL else []
        if kind=='z' and ALF: T+=wait_lines('L_t_w'+tg,3,8,12,pre,9)+['; @TR61']+AL+NN+['; @TR62']+(st(4) if TST else [])+bar*XAk
        else: T+=['; @TR61']+wait_lines('L_t_w'+tg,3,8,12,pre,9)+(st(4) if TST else [])+['; @TR62']+AL+bar*XAk
        if kind=='z' and not ALF: T+=arrive('L_t_p'+tg,0,[wvm('kst')])
        assert DA[tg]-XB[tg]-NA2-XAk>=0
        T+=bar*(DA[tg]-XB[tg]-NA2-XAk)+[I('s_branch L_att')]
        T=resolve_vm(T)
        CA+=first+loop1+T; PA_.append((first,loop1,T,tg)); trA.append((tg,first+body1+body1+T))
        fix_hazards(body1+body1,auto=False,tag='k1loop'+tg)
    def rdK(i,base): return [I('ds_read_b128 %s, v%d offset:%d'%(vr(KB+8*(i&1)+4*f,4),vK,base+1024*f)) for f in range(2)]
    def rdV(i,base,v0=vV0,hs=1024): return [I('ds_read_b64_tr_b16 %s, v%d offset:%d'%(vr(VB+8*(i&1)+4*f+2*u,2),v0,base+512*f+hs*u)) for f in range(2) for u in range(2)]
    xf=((0,0),(0,1),(1,0),(1,1))
    qk=lambda S_,k,q: [m16(S_+8*x+4*f,k+4*f,q+4*x,'0') for x,f in xf]
    pv=lambda O_,v,P_,c0=False: [m16(O_+8*x+4*f,v+4*f,P_+4*x,'0' if c0 else None) for x,f in xf]
    smf=lambda L_,P_: [I('v_smfmac_f32_16x16x64_bf16 %s, %s, %s, v%d'%(vr(L_,4),vr(ONES,4),vr(P_,8),vIDX))]
    def cw(n,lab):
        if not ALF: return [I('s_waitcnt vmcnt(%d)'%n)]
        return [I('s_waitcnt vmcnt(%d)'%(n+12)), I('s_cmp_ge_u32 s2, 128'), I('s_cbranch_scc1 %s'%lab), I('s_waitcnt vmcnt(%d)'%(n+8)), I('s_cmp_ge_u32 s2, 96'), I('s_cbranch_scc1 %s'%lab), I('s_waitcnt vmcnt(%d)'%n), lab+':']
    A=['L_att:']+A2+bar*NA2+[I('s_mov_b32 s45, 6')]+cw(6,'L_att_w')+bar+rdK(0,0)+[I('s_waitcnt lgkmcnt(0)')]+qk(SA,KB,Q)+[I('s_nop 7')]
    def phase(S_,P_, mf, extra):
        ex=[I('v_exp_f32 v%d, v%d'%(S_+i,S_+i)) for i in range(16)]
        cv=[I('v_cvt_pk_bf16_f32 v%d, v%d, v%d'%(P_+i,S_+2*i,S_+2*i+1)) for i in range(8)]
        pat=opt.get('att_pat',[(2,0),(2,1),(2,1),(2,1),(2,1),(2,1),(2,1),(2,1),(0,1)])
        out=[]; e=0;c=0
        for k,(ne,nc) in enumerate(pat):
            out.append(mf[k]); out+=extra.get(k,[])
            out+=ex[e:e+ne]; e+=ne
            out+=cv[c:c+nc]; c+=nc
        assert e==16 and c==8
        return out
    AB=opt.get('att_bar',4); AD=opt.get('att_dma',2)
    def blocks(last,first=False):
        body=[]
        for i in range(8):
            kb=KB+8*(i&1); kn=KB+8*((i+1)&1); vb=VB+8*(i&1); vp=VB+8*((i+1)&1)
            rv=rdV(i,4096*i); rk=rdK(i+1,4096*((i+1)&7)); d=kvd((i+7)&7); sy=[I('s_waitcnt vmcnt(5)')]+bar
            qn=qk(SA,kn,Q)
            if first and i<ALF: sy=cw(5,'L_att_w%d'%i)+bar
            if first and i==ALF and ALF:
                sy=[I('s_cmp_eq_u32 s58, 0'), I('s_cbranch_scc1 L_att_pz'), I('v_mov_b32 v14, 1'), I('v_lshlrev_b32 v15, 7, v0'), I('s_mov_b64 exec, %d'%((1<<RP)-1)), I('s_waitcnt vmcnt(%d)'%ALF),
                    I('buffer_atomic_add v14, v15, s[48:51], s74 offen sc1'), I('s_mov_b64 exec, -1'), 'L_att_pz:', I('s_waitcnt vmcnt(5)')]+bar
            if last:
                if i>0: d=[]
                if 56+i>=NBAR: sy=[]
                else: sy=[I('s_waitcnt vmcnt(%d)'%(0 if 56+i==NBAR-1 else max(0,min(5,6-i))))]+bar
                if i==1: sy+=[I('v_mov_b32 v12, 0'), I('ds_write_b32 v%d, v12'%vK)]
                if i==7: rk=[]; qn=[I('s_nop 0')]*4
            ex={}
            for k in range(4): ex.setdefault((k*AB)//4,[]).append(rv[k])
            ex[AB]=sy+rk[:1]+d[:1]; ex[AB+1]=rk[1:]
            m1=pv(OB,vp,PB,first and i==1)+smf(LB,PB)
            if first and i==0: m1=[I('v_mov_b32 v%d, 0'%(LA+k)) for k in range(5)]; ex[6]=[I('v_mov_b32 v%d, 0'%(LA+k)) for k in range(5,8)]
            body+=phase(SA,PA,qk(SB,kb,Q+8)+m1,ex)+phase(SB,PB,qn+pv(OA,vb,PA,first and i==0)+smf(LA,PA),{AD:d[1:]})
        return body
    body=auto_lgkm(blocks(False))
    firstb=auto_lgkm(blocks(False,True),pre=body)
    lastb=auto_lgkm(blocks(True),pre=body)
    fix_hazards(body+body,auto=False,tag='att_loop')
    aloop=firstb+['L_att_loop:']+body+[I('s_sub_u32 s45, s45, 1'), I('s_cmp_lg_u32 s45, 0'), I('s_cbranch_scc1 L_att_loop')]+lastb
    AT=pv(OB,VB+8,PB)+smf(LB,PB)+[I('v_mov_b32 v160, 0x1f800000'), I('v_mov_b32 v161, 0x5f800000')]
    FB=[]
    for X,(O_,L_,Q_) in enumerate(((OA,LA,Q),(OB,LB,Q+8))):
        AT+=[I('v_pk_mul_f32 v[162:163], %s, 0 op_sel_hi:[1,0]'%p(O_))]
        for i in range(1,8): AT+=[I('v_pk_fma_f32 v[162:163], %s, 0, v[162:163] op_sel_hi:[1,0,1]'%p(O_+2*i))]
        AT+=[I('v_add_f32 v%d, v%d, v%d'%(L_,L_,L_+1)), I('v_add_f32 v%d, v%d, v%d'%(L_+2,L_+2,L_+3)),
             I('v_add_f32 v162, v162, v163'), I('v_add_f32 v163, v162, v%d'%(L_+2)), I('v_add_f32 v162, v162, v%d'%L_),
             I('v_cmp_nge_f32 vcc, v162, v160'), I('v_cmp_nle_f32 s[56:57], v162, v161'), I('v_cmp_nge_f32 s[26:27], v163, v160'), I('v_cmp_nle_f32 s[58:59], v163, v161'),
             I('s_or_b64 s[56:57], s[56:57], vcc'), I('s_or_b64 s[26:27], s[26:27], s[58:59]'), I('s_or_b64 s[56:57], s[56:57], s[26:27]'),
             I('s_cbranch_scc1 L_att_fb%d'%X), 'L_att_fb_ret%d:'%X, I('v_rcp_f32 v162, v%d'%L_), I('v_rcp_f32 v164, v%d'%(L_+2)), I('s_nop 0')]
        for i in range(8): AT+=[I('v_pk_mul_f32 %s, %s, %s op_sel_hi:[1,0]'%(p(O_+2*i),p(O_+2*i),p(162+2*(i//4))))]
        for i in range(8): AT+=[I('v_cvt_pk_bf16_f32 v%d, v%d, v%d'%(O_+i,O_+2*i,O_+2*i+1))]
        if X: AT+=[I('s_add_u32 s46, s46, 65536')]
        if X==1 and opt.get('jpm',0)>1: AT+=bar
        for h in range(2): AT+=[I('buffer_store_dwordx4 %s, v%d, s[52:55], s46 offen offset:%d sc0 sc1'%(vr(O_+4*h,4),vL16,1024*h))]
        if X==0 and opt.get('jpm',0): AT+=bar
        FS=SA
        F=['L_att_fb%d:'%X, I('s_waitcnt vmcnt(0)'),
           I('s_lshl_b32 s26, s33, 17'), I('s_add_u32 s27, s26, 0x%x'%(P1_OFF+32*131072))]+srd(16,4,5,'s27',131072)
        F+=[I('s_add_u32 s27, s26, 0x%x'%(P1_OFF+64*131072))]+srd(20,4,5,'s27',131072)
        F+=[I('v_bfe_u32 v12, v0, 4, 1'), I('v_lshlrev_b32 v12, 7, v12'), I('v_xor_b32 v8, v%d, v12'%vL16), I('v_add_u32 v9, 1024, v8'),
            I('s_lshl_b32 s26, s42, 10'), I('s_add_u32 s26, s26, 2048'), I('v_add_u32 v2, s26, v%d'%vV0)]
        F+=[I('v_mov_b32 v%d, 0'%(O_+i)) for i in range(16)]
        F+=[I('v_mov_b32 v%d, 0'%L_), I('v_mov_b32 v%d, 0'%(L_+2)), I('v_mov_b32 v164, 0xff800000'), I('v_mov_b32 v165, 0xff800000'), I('s_mov_b32 s59, 0'), 'L_att_fbl%d:'%X,
            I('buffer_load_dwordx4 %s, v%d, s[16:19], s59 offen'%(vr(KB,4),vL16)),
            I('buffer_load_dwordx4 %s, v%d, s[16:19], s59 offen offset:1024'%(vr(KB+4,4),vL16)),
            I('s_add_u32 m0, s41, 4096'), I('s_nop 0'), I('buffer_load_dwordx4 v8, s[20:23], s59 offen lds'),
            I('s_add_u32 m0, s41, 8192'), I('s_nop 0'), I('buffer_load_dwordx4 v9, s[20:23], s59 offen lds'),
            I('s_waitcnt vmcnt(0)')]
        F+=rdV(0,0,2,4096)+qk(FS,KB,Q_)
        for x in range(2):
            s8=FS+8*x; mo=164+x; lx=L_+2*x
            F+=[I('v_max3_f32 v13, v%d, v%d, v%d'%(s8,s8+1,mo))]+[I('v_max3_f32 v13, v%d, v%d, v13'%(s8+2*i,s8+2*i+1)) for i in range(1,4)]
            for sw in (16,32): F+=[I('v_mov_b32 v14, v13'), I('v_permlane%d_swap_b32 v13, v14'%sw), I('v_max_f32 v13, v13, v14')]
            F+=[I('v_sub_f32 v14, v%d, v13'%mo), I('v_exp_f32 v14, v14'), I('v_mov_b32 v%d, v13'%mo)]
            F+=[I('v_sub_f32 v%d, v%d, v13'%(s8+i,s8+i)) for i in range(8)]+[I('v_exp_f32 v%d, v%d'%(s8+i,s8+i)) for i in range(8)]
            F+=[I('v_mul_f32 v%d, v%d, v14'%(lx,lx))]
            for i in range(8): F+=[I('v_add_f32 v%d, v%d, v%d'%(lx,lx,s8+i)), I('v_mul_f32 v%d, v%d, v14'%(O_+8*x+i,O_+8*x+i))]
        for i in range(8): F+=[I('v_cvt_pk_bf16_f32 v%d, v%d, v%d'%(PA+i,FS+2*i,FS+2*i+1))]
        F+=[I('s_waitcnt lgkmcnt(0)')]+pv(O_,VB,PA)+[
            I('s_add_u32 s59, s59, 2048'), I('s_cmp_lg_u32 s59, 131072'), I('s_nop 7'), I('s_nop 7'), I('s_cbranch_scc1 L_att_fbl%d'%X)]
        for lx in (L_,L_+2):
            for sw in (16,32): F+=[I('v_mov_b32 v14, v%d'%lx), I('v_permlane%d_swap_b32 v%d, v14'%(sw,lx)), I('v_add_f32 v%d, v%d, v14'%(lx,lx))]
        F+=[I('s_branch L_att_fb_ret%d'%X)]
        FB+=F
    assert NBAR-64>=opt.get('jpm',0)+opt.get('jp',1)
    if opt.get('au',0): AT=unpk(AT)
    AT+=([] if TST else st(3))+[I('s_setprio %d'%opt.get('pa2',0))]
    AT+=[I('s_lshl_b32 s30, s34, 10'), I('s_add_u32 s30, s30, %d'%(256*128)), I('s_and_b32 s26, s2, 7'), I('s_lshl_b32 s26, s26, 2'), I('s_add_u32 s30, s30, s26'),
         I('v_mov_b32 v12, 1'), I('v_lshlrev_b32 v15, 7, v0')]+bar*min(max(0,NBAR-64),opt.get('jp',1))
    AT+=[I('s_mov_b64 exec, 1'), I('s_waitcnt vmcnt(0)'), I('ds_add_rtn_u32 v13, v%d, v12'%vK), I('s_waitcnt lgkmcnt(0)'), I('v_readfirstlane_b32 s26, v13'),
         I('s_mov_b64 exec, %d'%((1<<RO)-1)), I('s_cmp_lg_u32 s26, 3'), I('s_cbranch_scc1 L_a_np'), I('buffer_atomic_add v12, v15, s[48:51], s30 offen sc1'), 'L_a_np:', I('s_mov_b64 exec, -1')]
    AT+=st(6)+[I('s_branch L_fin')]
    S=[I('s_bfe_u32 s65, s2, 0x10002'), I('s_mul_i32 s65, s65, 7'), I('s_lshr_b32 s26, s2, 5'), I('s_add_u32 s65, s65, s26'),
       I('s_lshl_b32 s41, s42, 12'), I('s_lshl_b32 s26, s64, 18')]+srd(52,36,37,0,0x700000)+srd(36,72,73,'s26',128*2048)
    S+=[I('v_lshrrev_b32 v24, 3, v0'), I('v_lshrrev_b32 v25, 4, v0'), I('v_and_b32 v26, 7, v0'), I('s_lshl_b32 s26, s42, 5'), I('v_add_u32 v24, s26, v24'),
        I('v_xor_b32 v26, v26, v25'), I('v_xor_b32 v27, 4, v26'), I('v_lshlrev_b32 v26, 4, v26'), I('v_lshlrev_b32 v27, 4, v27')]
    for sh,base in ((12,vOA),(11,zOA)):
        for i in range(4): S+=[I('v_lshl_add_u32 v28, v24, %d, v%d'%(sh,26+(i&1))), I('v_add_u32 v%d, %d, v28'%(base+i, i*8*(1<<sh)-i*1024))]
    S+=[I('v_and_b32 v25, 1, v25'), I('v_lshlrev_b32 v25, 6, v25'), I('v_lshlrev_b32 v24, 4, v0'), I('v_xor_b32 v25, v24, v25'), I('s_lshl_b32 s26, s42, 17'), I('v_add_u32 v%d, s26, v25'%vOB)]
    S+=[I('v_and_b32 v24, 15, v0'), I('v_lshrrev_b32 v25, 4, v0'), I('v_bfe_u32 v26, v0, 1, 3'),
        I('s_lshr_b32 s26, s42, 1'), I('s_lshl_b32 s26, s26, 13'),
        I('v_lshlrev_b32 v24, 7, v24'), I('v_add_u32 v24, s26, v24'),
        I('v_xor_b32 v27, v25, v26'), I('v_lshl_add_u32 v%d, v27, 4, v24'%vA), I('v_xor_b32 v%d, 64, v%d'%(vA+1,vA))]
    S+=[I('v_add_u32 v%d, 65536, v%d'%(vA+2+j,vA+j)) for j in range(2)]
    S+=[I('v_bfe_u32 v24, v0, 4, 1'), I('v_and_b32 v25, 1, v0'), I('v_bfe_u32 v26, v0, 1, 1'), I('v_bfe_u32 v27, v0, 2, 2'),
        I('v_lshl_add_u32 v28, v24, 3, v27'), I('v_lshl_add_u32 v28, v26, 2, v28'),
        I('v_lshlrev_b32 v28, 4, v28'), I('v_lshl_add_u32 v28, v25, 3, v28'),
        I('v_lshl_add_u32 v28, v26, 8, v28'), I('v_lshrrev_b32 v23, 5, v0'), I('v_lshl_add_u32 v28, v23, 10, v28'),
        I('s_and_b32 s27, s42, 1'), I('s_lshl_b32 s26, s27, 13'), I('s_add_u32 s26, s26, 16384'),
        I('v_add_u32 v%d, s26, v28'%vB), I('v_xor_b32 v%d, 64, v%d'%(vB+1,vB))]
    S+=[I('v_add_u32 v%d, 65536, v%d'%(vB+2+u,vB+u)) for u in range(2)]
    S+=[I('v_lshlrev_b32 v28, 3, v24'), I('v_lshl_add_u32 v28, v27, 1, v28'), I('v_add_u32 v28, v25, v28'), I('v_lshlrev_b32 v28, 4, v28'), I('v_lshl_add_u32 v28, v26, 3, v28'),
        I('v_lshl_add_u32 v28, v23, 12, v28'), I('s_lshl_b32 s26, s27, 11'), I('s_add_u32 s26, s26, 16384'), I('v_add_u32 v%d, s26, v28'%zB), I('v_add_u32 v%d, 65536, v%d'%(zB+1,zB)),
        I('v_bfe_u32 v26, v0, 3, 1'), I('v_bfe_u32 v27, v0, 1, 2'), I('v_lshl_add_u32 v27, v26, 3, v27'), I('s_lshl_b32 s26, s42, 4'), I('v_add_u32 v27, s26, v27'),
        I('v_lshlrev_b32 v28, 6, v23'), I('v_lshl_add_u32 v28, v25, 5, v28'), I('v_lshl_add_u32 v28, v24, 4, v28'), I('s_lshl_b32 s26, s65, 8'), I('v_add_u32 v28, s26, v28'),
        I('s_movk_i32 s26, 7168'), I('v_mad_u32_u24 v%d, v27, s26, v28'%zOB)]
    S+=[I('v_add_u32 v%d, %d, v%d'%(zOB+i,((i&1)*4*7168+(i>>1)*128-1024*i)&0xffffffff,zOB)) for i in range(1,4)]
    S+=[I('v_mov_b32 v%d, v%d'%(zSEL+i,k4a.SEL)) for i in range(4)]+[I('v_mov_b32 v%d, v%d'%(zIDX,k4a.vIDX))]+[I('v_mov_b32 v%d, 0'%(c+i)) for c in (CD0,CD1) for i in range(4)]
    S+=[I('v_mov_b32 v%d, 0'%(vBIAS+2*t)) for t in range(4)]
    if opt.get('pf',2): S+=[I('s_lshr_b32 s26, s2, 3'), I('s_lshl_b32 s26, s26, 2'), I('s_add_u32 s26, s26, s42'), I('s_mul_i32 s26, s26, %d'%(8*7168)), I('s_bfe_u32 s27, s2, 0x10002'), I('s_mul_i32 s27, s27, 1792'), I('s_add_u32 s26, s26, s27'),
        I('v_lshrrev_b32 v24, 4, v0'), I('v_mul_u32_u24 v24, 7168, v24'), I('v_and_b32 v25, 15, v0'), I('v_lshl_add_u32 v24, v25, 7, v24'), I('v_add_u32 v24, s26, v24'),
        I('v_cmp_gt_u32 vcc, 14, v25'), I('v_mov_b32 v25, 0x%x'%OOB), I('v_cndmask_b32 v229, v25, v24, vcc'), I('s_mov_b32 s43, %d'%(4*7168))]
    PF=opt.get('pf',2)
    hk={'loop':{1:[I('s_cmp_lg_u32 s22, %d'%PF), I('s_cbranch_scc1 L_g_pf'), I('buffer_load_dword v14, v229, s[52:55], 0 offen'), I('buffer_load_dword v14, v229, s[52:55], s43 offen'), 'L_g_pf:']}} if PF else {}
    def dmaA(T):
        z=T<16
        Gr=[[I('buffer_load_dwordx4 v%d, s[%d:%d], s%d offen offset:%d lds'%((zOA if z else vOA)+i,36 if z else 16,39 if z else 19,28 if z else 40,1024*i))] for i in range(4)]
        Gr[-1]+=[I('s_add_u32 s%d, s%d, 128'%((28,28) if z else (40,40)))]
        return [[I('s_add_u32 m0, s41, %d'%REG[T%4])]]+[tag(g,'A%d'%T) for g in Gr]
    def dmaB(T):
        z=T<16
        Gr=[[I('buffer_load_dwordx4 v%d, s[%d:%d], s%d offen offset:%d lds'%(zOB+i if z else vOB,52 if z else 20,55 if z else 23,29 if z else 44,1024*i))] for i in range(4)]
        Gr[-1]+=[I('s_add_u32 s29, s29, %d'%(64*7168)) if z else I('s_add_u32 s44, s44, 4096')]
        return [[I('s_add_u32 m0, s41, %d'%(REG[T%4]+16384))]]+[tag(g,'B%d'%T) for g in Gr]
    def spread(Gs,g0,g1):
        d={}
        for k,g in enumerate(Gs): d.setdefault(g0+(k*(g1-g0))//len(Gs),[]).extend(g)
        return d
    hk[28]=spread([[I('s_mov_b32 s28, 0'), I('s_mov_b32 s29, 0')]]+dmaA(0)+dmaB(0),3,16)
    hk[29]=spread(dmaA(1)+dmaB(1),9,16)
    hk['l2']=spread(dmaA(2)+dmaB(2)+dmaA(3),8,opt.get('l2e',24))
    gfirst,gbody,gloop1,gtail,_=k4a.stream('g',2,opt,S,hk)
    if opt.get('clk'): gloop1=st(1)+gloop1+st(3)
    fix_hazards(gbody+gbody,auto=False,tag='k1loopg')
    W=st(0)+['; @TR62', I('v_lshlrev_b32 v%d, 4, v0'%vL16)]
    early=I('s_cmp_lg_u32 s58, 0') if GZE==1 else I('s_cmp_ge_u32 s2, 32')
    if GZE: W+=[early, I('s_cbranch_scc0 L_t_g0')]+arrive('L_t_g0a',1,[wvm('kst')])+['L_t_g0:']
    W+=[I('s_cmp_ge_u32 s2, 224'), I('s_cbranch_scc1 L_g_idle'), wvm('A0,B0')]+gbr
    w7=lambda lab,X: [I('s_cmp_lg_u32 s25, 7'), I('s_cbranch_scc1 %s'%lab)]+X+[lab+':']
    S2=[I('s_lshr_b32 s34, s2, 5'),
        I('s_lshl_b32 s26, s65, 2'), I('s_and_b32 s27, s42, 1'), I('s_lshl_b32 s27, s27, 1'), I('s_add_u32 s26, s26, s27'),
        I('s_lshl_b32 s30, s64, 2'), I('s_lshr_b32 s27, s42, 1'), I('s_lshl_b32 s27, s27, 1'), I('s_add_u32 s30, s30, s27'),
        I('s_mul_i32 s32, s30, 56'), I('s_add_u32 s32, s32, s26'), I('s_lshl_b32 s32, s32, 11'),
        I('s_lshl_b32 s26, s64, 19')]+srd(16,60,61,'s26',128*4096)+[I('s_lshl_b32 s26, s65, 19'), I('s_add_u32 s26, s26, 0x%x'%Z2N_OFF)]+srd(20,4,5,'s26',128*4096)+[
        I('s_mov_b32 s40, 0'), I('s_mov_b32 s44, 0')]
    S2+=[I('s_lshl_b32 s26, s65, 2'), I('v_add_u32 v12, s26, v0'), I('v_mul_u32_u24 v13, 74, v12'), I('v_lshrrev_b32 v13, 10, v13'), I('v_mul_u32_u24 v14, 14, v13'), I('v_sub_u32 v12, v12, v14'),
         I('v_add_u32 v12, 10, v12'), I('v_mul_u32_u24 v12, 43, v12'), I('v_lshrrev_b32 v12, 7, v12'), I('v_lshl_add_u32 v12, v13, 3, v12'), I('s_and_b32 s26, s64, %d'%(RP-1)),
         I('v_lshl_add_u32 v12, v12, %d, s26'%(LRP+1)), I('v_lshlrev_b32 v%d, 7, v12'%vF)]
    ZL=srd(8,62,63,0,4096)+[I('v_and_b32 v12, 15, v0'), I('v_lshlrev_b32 v12, 1, v12'), I('s_lshl_b32 s26, s30, 6')]
    ZL+=[I('buffer_load_short_d16_hi v%d, v12, s[8:11], s26 offen offset:%d'%(vBIAS+2*t,32*t)) for t in range(4)]
    ZL+=[I('s_lshl_b32 s26, s30, 9')]
    for t in range(4): ZL+=[I('buffer_load_dword v%d, v1, s[92:95], s26 offen offset:%d sc1'%(NM_[t],256*t)), I('buffer_load_dword v%d, v1, s[92:95], s26 offen offset:%d sc1'%(RS_[t],256*t+4))]
    S3=srd(52,4,5,H_OFF,H_SIZE)+[
        I('s_bfe_u32 s26, s2, 0x10002'), I('s_lshl_b32 s26, s26, 3'), I('s_add_u32 s59, s26, s34'), I('s_lshl_b32 s59, s59, 7'),
        I('v_bfe_u32 v10, v0, 3, 1'), I('v_bfe_u32 v12, v0, 1, 2'), I('v_lshl_add_u32 v10, v10, 4, v12'), I('s_lshl_b32 s26, s42, 5'), I('v_add_u32 v10, s26, v10'), I('v_lshlrev_b32 v10, 11, v10'),
        I('v_lshrrev_b32 v13, 4, v0'), I('v_lshl_add_u32 v10, v13, 5, v10'), I('v_and_b32 v12, 1, v0'), I('v_lshl_add_u32 v%d, v12, 4, v10'%vW)]
    for i in range(1,4): S3+=[I('v_add_u32 v%d, %d, v%d'%(vW+i,i*(4*2048-1024),vW))]
    S3+=[I('v_and_b32 v10, 15, v0'), I('v_lshlrev_b32 v10, 11, v10'), I('v_lshrrev_b32 v12, 5, v0'), I('v_lshl_add_u32 v10, v12, 4, v10'),
        I('v_bfe_u32 v12, v0, 4, 1'), I('v_lshl_add_u32 v%d, v12, 5, v10'%vX)]+b3addr
    S3+=[I('s_bfe_u32 s75, s2, 0x10002'), I('s_mul_i32 s56, s75, %d'%(7*128*2048)), I('s_sub_u32 s57, 0, s56'), I('s_sub_u32 s26, 0x380000, s59')]+srd(12,68,69,'s59','s26')
    ZE=[I('v_bfe_u32 v1, v0, 4, 1'), I('v_cmp_eq_u32 vcc, 0, v1'), I('v_lshrrev_b32 v1, 4, v0'), I('v_lshlrev_b32 v1, 4, v1')]
    for c in (CD0,CD1): ZE+=[I('v_add_f32 v%d, v%d, v%d'%(c,c,c+1)), I('v_add_f32 v%d, v%d, v%d'%(c+2,c+2,c+3)), I('v_cndmask_b32 v%d, v%d, v%d, vcc'%(c,c+2,c))]
    ZE+=[I('ds_bpermute_b32 v%d, v1, v%d offset:%d'%(CSZ+4*n+i,(CD0,CD1)[n>>1],64*(n&1)+4*i)) for n in range(4) for i in range(4)]
    gi=lambda n,t: G+32*(n>>1)+8*t+4*(n&1)
    ZC=[]
    for n in range(4):
        for t in range(4):
            for i in range(2): ZC+=[I('v_pk_fma_f32 %s, %s, %s, %s op_sel_hi:[1,0,1]'%(p(gi(n,t)+2*i),p(CSZ+4*n+2*i),p(NM_[t]),p(gi(n,t)+2*i)))]
        for t in range(4):
            for i in range(2): ZC+=[I('v_pk_mul_f32 %s, %s, %s op_sel_hi:[1,0]'%(p(gi(n,t)+2*i),p(gi(n,t)+2*i),p(RS_[t])))]
    ZG=[I('v_mov_b32 v2, 0x%x'%f2u(GC1)), I('v_mov_b32 v3, v2'), I('s_mov_b32 s28, 0x%x'%f2u(GC2)), I('s_mov_b32 s29, s28')]
    if opt.get('gms',1):
        w=lambda e: 12+(e&15)
        def stage(s_,e):
            x=G+e
            return {1:I('v_mul_f32 v%d, v%d, v%d'%(w(e),x,x)), 2:I('v_fma_f32 v%d, v%d, s28, v2'%(w(e),w(e))), 3:I('v_mul_f32 v%d, v%d, v%d'%(w(e),w(e),x)), 4:I('v_exp_f32 v%d, v%d'%(w(e),w(e))),
                    5:I('v_add_f32 v%d, 1.0, v%d'%(w(e),w(e))), 6:I('v_rcp_f32 v%d, v%d'%(w(e),w(e))), 7:I('v_mul_f32 v%d, v%d, v%d'%(x,x,w(e)))}[s_]
        order=[(1,0),(4,3),(2,1),(3,2),(5,5),(6,6),(7,8)]
        for slot in range(64+8): ZG+=[stage(s_,slot-d) for s_,d in order if 0<=slot-d<64]
    else:
        for k in range(0,32,2): ZG+=gelu_block([G+2*k,G+2*k+2],4,2,28)
    if opt.get('gu',1): ZC=unpk(ZC); ZG=unpk(ZG)
    def reads(T,j):
        slot=T%4; so=REG[slot]&0xffff; hi=REG[slot]>>16; f=FR+32*j
        Ra=[I('ds_read_b128 %s, v%d offset:%d'%(vr(f+4*t,4),vA+2*hi+j,so+t*2048)) for t in range(4)]
        if T<16: Rb=[I('ds_read_b64_tr_b16 %s, v%d offset:%d'%(vr(f+16+4*n+2*u,2),zB+hi,so+j*8192+u*1024+n*256)) for n in range(4) for u in range(2)]
        else: Rb=[I('ds_read_b64_tr_b16 %s, v%d offset:%d'%(vr(f+16+4*n+2*u,2),vB+2*hi+u,so+(n>>1)*4096+j*2048+(n&1)*512)) for n in range(4) for u in range(2)]
        return Rb[:2]+Ra+Rb[2:]
    gbar=opt.get('g2_bar',15)
    rp1=opt.get('g2_rp1',list(range(12))); rp2=opt.get('g2_rp2',list(range(gbar+1,gbar+13)))
    dgA=opt.get('g2_dgA',[17,21,25,29]); dgB=opt.get('g2_dgB',[1,5,9,13])
    GT0=opt.get('gt0',18); GT1=opt.get('gt1',42)
    zsm=lambda j,h: I('v_smfmac_f32_16x16x64_bf16 %s, %s, %s, v%d'%(vr((CD0,CD1)[h],4),vr(zSEL,4),vr(FR+32*j+16+8*h,8),zIDX))
    def zbar(i):
        X=w7('L_t_z1',wait_lines('L_t_z',4,32 if ALF else 8,vF,[wvm('zq')],229)) if i==ZK else []
        X+=gbr
        if i==ZQ: X+=w7('L_t_z0',[I('s_mov_b64 exec, 15')]+cond(tag([I('buffer_load_dword v229, v%d, s[48:51], 0 offen sc1'%vF)],'zq'))+[I('s_mov_b64 exec, -1')])
        return X
    nz0=int(len(ZG)*opt.get('zgf',1.0)) if NZX else 0
    ZG0=ZG[:nz0]; ZG=ZG[nz0:]
    def tile(T):
        z=T<16; c0=T in (0,16); ac=G if z else ACC
        spine=[m16(ac+32*(n>>1)+8*t+4*(n&1), FR+32*j+16+4*n, FR+32*j+4*t, '0' if (c0 and j==0) else None) for j in range(2) for n in range(4) for t in range(4)]
        fill={}
        def add(g,x): fill.setdefault(g,[]).extend(x)
        for pp,r in zip(rp1,reads(T,1)): add(pp,[r])
        if z:
            for j in range(2):
                for h in range(2): add(16*j+8*h+6,[zsm(j,h)])
        if T+3<=47:
            if not (16<=T+3<=min(ZK+2,18)):
                Gb=dmaB(T+3); add(dgB[0]-1,Gb[0])
                for pp,g in zip(dgB,Gb[1:]): add(pp,g)
        else:
            Gw=dmaW(2*(T-45)+1); add(-1,Gw[0])
            for pp,g in zip(dgB,Gw[1:]): add(pp,g)
        mid=[]
        if T==PG: mid+=([early, I('s_cbranch_scc1 L_t_g1')] if GZE else [])+arrive('L_t_g1a',1,[wvm('kst')])+['L_t_g1:']
        if T<47 and not (T==15 and NZX): mid+=[wvm('A%d,B%d'%(T+1,T+1),True)]
        else: mid+=[I('s_waitcnt lgkmcnt(0)')]
        if T<16: mid+=zbar(T+1)
        else: mid+=gbr
        add(gbar,mid)
        if T<47 and not (T==15 and NZX):
            for pp,r in zip(rp2,reads(T+1,0)): add(pp,[r])
        late=[]
        if T+1==ZK and T<16:
            for T2 in range(16,min(ZK+3,19)): late+=dmaB(T2)
        if T+4<=47: late+=dmaA(T+4)
        else: late+=dmaW(2*(T-44))
        if len(late)==5:
            add(gbar,late[0])
            for pp,g in zip(dgA,late[1:]): add(pp,g)
        else:
            for g,x in spread(late,gbar+1,32).items(): add(g,x)
        ex=[]
        if T==0: ex=S2
        if T==2: ex=ZL
        if T==16 and not NZX: ex=[I('s_nop 0')]*4+ZE
        if T==17 and not NZX: ex=ZC
        if GT0<=T<GT1: ex=ZG[(len(ZG)*(T-GT0))//(GT1-GT0):(len(ZG)*(T+1-GT0))//(GT1-GT0)]
        if T in (GT1,GT1+1): ex=S3[:len(S3)//2] if T==GT1 else S3[len(S3)//2:]
        for k,x in enumerate(ex): add((k*32)//len(ex),[x])
        out=interleave(spine,fill)
        if T==15 and NZX:
            X=[I('s_nop 7')]+ZE+ZC+ZG0; Y_=[]; zp=opt.get('zxp',[(k+1.0)/NZX for k in range(NZX-1)])
            for k in range(NZX-1):
                a=int(len(X)*(zp[k-1] if k else 0)); b=int(len(X)*zp[k])
                Y_+=X[a:b]+zbar(17+k)
                if 17+k==ZK: Y_+=flat(dmaB(16)+dmaB(17)+dmaB(18))
            out+=st(4)+Y_+X[int(len(X)*zp[-1]) if NZX>1 else 0:]+[wvm('A16,B16')]+gbr+reads(16,0)+st(2)
        return out
    assert GT1<=42 and PG not in (0,2)
    W+=reads(0,0)+[I('s_setprio %d'%opt.get('pg',0))]+([] if opt.get('clk') else st(1))
    for T in range(48): W+=tile(T)+(st(4) if T==15 and not NZX else [])
    k=gtail.index('; @L2')
    GW=resolve_vm(gtail+auto_lgkm(W,pre=[]))
    Ep=[]
    for nf in range(2):
        for m in range(2):
            a=ACC+16*(2*nf+m); g=G+16*(2*nf+m)
            for i in range(8): Ep+=[I('v_pk_add_f32 %s, %s, %s op_sel_hi:[1,0]'%(p(a+2*i),p(a+2*i),p(vBIAS+4*m+2*(i//4))))]
            for i in range(8): Ep+=[I('v_pk_mul_f32 %s, %s, %s'%(p(a+2*i),p(a+2*i),p(g+2*i)))]
            for i in range(8): Ep+=[I('v_cvt_pk_bf16_f32 v%d, v%d, v%d'%(a+i,a+2*i,a+2*i+1))]
            Ep+=[I('s_add_u32 s26, s32, %d'%(m*56*2048+nf*2048))]
            for h in range(2): Ep+=[I('buffer_store_dwordx4 %s, v%d, s[52:55], s26 offen offset:%d sc0 sc1'%(vr(a+4*h,4),vL16,1024*h))]
        if nf==0: Ep+=gbr
    if opt.get('eu',0): Ep=unpk(Ep)
    def bars(n,tag_):
        if n<=2: return gbr*n
        return [I('s_mov_b32 s47, %d'%n), 'L_%s:'%tag_]+gbr+[I('s_sub_u32 s47, s47, 1'), I('s_cmp_lg_u32 s47, 0'), I('s_cbranch_scc1 L_%s'%tag_)]
    Ep+=flat(dmaW(7))+st(6)+gbr*(CW-1)+[I('s_waitcnt vmcnt(4)')]+gbr
    Ep+=[I('s_lshl_b32 s30, s64, 1'), I('s_add_u32 s30, s30, s75'), I('s_lshl_b32 s30, s30, 8'), I('s_add_u32 s30, s30, %d'%(320*128))]+resolve_vm(pub1('L_c_pb',7,'s30',2))
    D=['L_gC:', I('s_lshl_b32 s30, s64, 1'), I('s_add_u32 s30, s30, s75'), I('s_lshl_b32 s30, s30, 1'), I('s_and_b32 s26, s34, 1'), I('s_add_u32 s30, s30, s26'), I('s_lshl_b32 s30, s30, 7'),
       I('s_add_u32 s30, s30, %d'%(320*128)), I('s_xor_b32 s35, s30, 256'),
       I('s_lshr_b32 s31, s64, 1'), I('s_lshl_b32 s31, s31, 3'), I('s_and_b32 s26, s34, %d'%(RO-1)), I('s_add_u32 s31, s31, s26'), I('s_lshl_b32 s31, s31, 7'), I('s_add_u32 s31, s31, %d'%(256*128))]+srd(52,72,73,0,0x400000)
    D+=[I('s_lshl_b32 s32, s43, 16'), I('s_add_u32 s32, s32, s59'), I('s_add_u32 s33, s32, 32768')]
    OE2=opt.get('oe',0)==2
    if not OE2: D+=[I('buffer_load_dwordx4 %s, v%d, s[52:55], s%d offen offset:%d'%(vr(XR+4*q,4),vX,32+q//2,64*(q&1))) for q in range(4)]
    D+=[I('s_mul_i32 s26, s43, %d'%(56*2048)), I('s_add_u32 s26, s26, 0x%x'%H_OFF)]+srd(8,4,5,'s26',56*2048)+[I('s_mul_i32 s24, s75, %d'%(7*8192))]
    D+=[I('s_lshl_b32 s26, s43, 16'), I('s_add_u32 s26, s26, 0x%x'%O_OFF)]+srd(16,4,5,'s26',65536)
    D+=[I('s_sub_u32 s26, 0x200000, s59')]+srd(20,66,67,'s59','s26')+srd(52,70,71,0,0x400000)
    TW=opt.get('tw',0); TH=opt.get('th',0); JA=opt.get('ja',1); JK=opt.get('jk',3)
    if TW:
        D+=[I('v_lshlrev_b32 v30, 11, v0'), I('s_bfe_u32 s26, s2, 0x20003'), I('s_lshl_b32 s26, s26, 2'), I('s_add_u32 s26, s26, s42'), I('s_mul_i32 s27, s26, %d'%(48*2048)), I('s_add_u32 s27, s27, s57'),
            I('s_add_u32 s27, s27, %d'%(1024*2048)), I('s_lshl_b32 s26, s26, 17'), I('s_bfm_b64 exec, 48, 0'), I('buffer_load_dword v13, v30, s[12:15], s27 offen'), I('s_mov_b64 exec, -1'),
            I('buffer_load_dword v13, v30, s[20:23], s26 offen')]
    if EX:
        tb=[EX.get(c,0) for c in ('q2','q3','q3','z2','z3','z3','z3','z3i')]
        D+=[I('s_mov_b32 s26, 0x%x'%sum(tb[i]<<(8*i) for i in range(4))), I('s_mov_b32 s27, 0x%x'%sum(tb[4+i]<<(8*i) for i in range(4))), I('s_lshl_b32 s28, s34, 3'), I('s_lshr_b64 s[26:27], s[26:27], s28'),
            I('s_and_b32 s47, s26, 0xff'), I('s_cbranch_scc0 L_c_ex0'), 'L_c_ex:']+gbr+[I('s_sub_u32 s47, s47, 1'), I('s_cmp_lg_u32 s47, 0'), I('s_cbranch_scc1 L_c_ex'), 'L_c_ex0:']
    if CQ==CW: D+=ask1('L_c_ak',7,'s30')
    for k in range(CW+1,CK+1):
        if k==CK: D+=chk1('L_c_ck',7,'s30',7)
        D+=gbr
        if k==CQ: D+=ask1('L_c_ak',7,'s30')
    nb=NC-2-CK
    for k in range(3):
        D+=flat(ldA(k))
        if k<2 and nb>0: D+=gbr; nb-=1
    if TH:
        D+=[I('v_lshlrev_b32 v30, 7, v0'), I('s_lshl_b32 s26, s34, 12'), I('s_add_u32 s26, s26, s24'), I('s_bfm_b64 exec, 32, 0'), I('buffer_load_dword v13, v30, s[8:11], s26 offen'), I('s_mov_b64 exec, -1')]
    if JA<0: D+=ask1('L_d_ak',7,'s35')
    D+=gbr*nb+[I('s_waitcnt vmcnt(%d)'%(17 if TH else 16))]+gbr+st(5)+rd3(0,0)
    DT=[]
    swW=[I('s_mov_b64 s[12:13], s[20:21]'), I('s_mov_b32 s14, s22')]
    swA=[I('s_mov_b64 s[8:9], s[16:17]'), I('s_mov_b32 s10, s18')]
    def earlyA(st_): return {3*k:g for k,g in enumerate(ldA(st_))}
    for j in range(14):
        w={0:16,1:16,2:20,11:16,12:8,13:63}.get(j,24)
        mid=[I('s_waitcnt vmcnt(%d)'%w)]+(chk1('L_d_ck',7,'s35',7,JK-JA>=2) if j==JK else [])+gbr
        if j==JA: mid+=ask1('L_d_ak',7,'s35')
        if j==JK and TH: mid+=[I('s_xor_b32 s26, s75, 1'), I('s_lshl_b32 s26, s26, 3'), I('s_add_u32 s26, s26, s34'), I('s_mul_i32 s26, s26, 7168'), I('s_bfm_b64 exec, 56, 0'), I('buffer_load_dword v13, v30, s[8:11], s26 offen'), I('s_mov_b64 exec, -1')]
        if opt.get('oe',0) and j==13: early_={0:[I('v_lshlrev_b32 v14, 2, v0')], opt.get('oep',8):[I('s_mov_b64 exec, 0xff'), I('buffer_load_dword v15, v14, s[48:51], s31 offen sc1'), I('s_mov_b64 exec, -1')]}
        if j==3: mid+=[I('s_xor_b32 s24, s75, 1'), I('s_mul_i32 s24, s24, %d'%(7*8192))]
        late=[]
        if j>=1:
            Gw=dmaW(j+7); mid=mid+(swW if j==7 else [])+Gw[0]; late=Gw[1:]
        DT+=tile3(j,j%4,(Y,Y+16),j==0,j+1 if j<13 else None,mid,earlyA((j+3)%4) if j<=10 else (early_ if opt.get('oe',0) and j==13 else {}),late)
    poll=[I('s_mov_b64 exec, 0xff'), I('buffer_load_dword v15, v14, s[48:51], s31 offen sc1'), I('s_mov_b64 exec, -1')]
    OE=opt.get('oe',0)
    DT+=[I('s_waitcnt lgkmcnt(0)')]+gbr+flat(dmaW(21))+swA+[I('s_mov_b32 s44, 0'), I('s_mov_b32 s45, 0')]+([] if OE else [I('v_lshlrev_b32 v14, 2, v0')]+poll)
    DT0=DT; DT=[]
    T3=FR3+16
    DT+=[I('s_mov_b32 s28, 0x%x'%f2u(-math.log2(math.e))), I('s_mov_b32 s29, s28')]
    for nf in range(2):
        y=Y+16*nf
        for i in range(8): DT+=[I('v_pk_mul_f32 %s, %s, s[28:29]'%(p(T3+2*i),p(y+2*i)))]
        for i in range(16): DT+=[I('v_exp_f32 v%d, v%d'%(T3+i,T3+i))]
        for i in range(8): DT+=[I('v_pk_add_f32 %s, %s, 1.0 op_sel_hi:[1,0]'%(p(T3+2*i),p(T3+2*i)))]
        for i in range(16): DT+=[I('v_rcp_f32 v%d, v%d'%(T3+i,T3+i))]
        for i in range(8): DT+=[I('v_pk_mul_f32 %s, %s, %s'%(p(y+2*i),p(y+2*i),p(T3+2*i)))]
    if opt.get('su',0): DT=unpk(DT)
    for q in range(4):
        DT+=[I('v_permlane16_swap_b32 v%d, v%d'%(XR+4*q,XR+4*q+2)), I('v_permlane16_swap_b32 v%d, v%d'%(XR+4*q+1,XR+4*q+3))]
    for i in range(15,-1,-1): DT+=[I('v_and_b32 v%d, 0xffff0000, v%d'%(XR+2*i+1,XR+i)), I('v_lshlrev_b32 v%d, 16, v%d'%(XR+2*i,XR+i))]
    SIL=DT; DT=DT0
    assert DE in (2,3)
    def issue(k,try_=False):
        lab='L_e%d%s'%(k,'t' if try_ else '')
        ck=[I('v_cmp_le_u32 vcc, 4, v15'), I('s_sub_u32 s47, s47, 1'), I('s_cselect_b32 s26, 0xff, 0'), I('s_or_b32 s26, s26, vcc_lo'), I('s_and_b32 s44, s26, 0xff'), I('s_andn2_b32 s26, s44, s45')]
        if not try_:
            X=[I('s_andn2_b32 s26, s44, s45'), I('s_cbranch_scc1 %s_h'%lab), I('s_waitcnt vmcnt(%d)'%(8 if k else 0)), I('s_mov_b32 s47, 0x40000'),
               lab+'_l:']+ck+[I('s_cbranch_scc1 %s_h'%lab), I('s_sleep %d'%opt.get('slp2',2))]+poll+[I('s_waitcnt vmcnt(0)'), I('s_branch %s_l'%lab), lab+'_h:']
        elif k==0: X=[I('s_mov_b32 s43, 0'), I('s_mov_b32 s47, 1'), I('s_waitcnt vmcnt(8)')]+ck+[I('s_cbranch_scc1 %s_h'%lab)]+poll+[I('s_branch L_sil'), lab+'_h:']
        else: X=[I('s_mov_b32 s43, %d'%k), I('s_andn2_b32 s26, s44, s45'), I('s_cbranch_scc0 L_sil')]
        X+=[I('s_ff1_i32_b32 s46, s26'), I('s_bitset1_b32 s45, s46'), I('s_lshl_b32 s24, s46, 13'), I('s_add_u32 s26, s46, 6'), I('s_and_b32 s26, s26, 7'), I('s_lshl_b32 s%d, s26, 14'%(36+k%4))]
        return X+(poll if k<7 else [])+flat(ldA(k%3))
    def after(k): return sum(8+(1 if x<7 else 0) for x in range(k+1,min(8,k+DE)))
    vE=lambda k: 24+(k&1)
    if OE==2: pass
    elif not OE:
        DT+=SIL+gbr*(NX-1)+[I('s_waitcnt vmcnt(0)')]+gbr+([] if opt.get('clk') else st(3))
        for k in range(DE): DT+=issue(k)
    else:
        assert NBAR-NX>=64+opt.get('jp',1)+opt.get('jpm',0)
        for k in range(DE): DT+=issue(k,True)
        DT+=[I('s_mov_b32 s43, %d'%DE), 'L_sil:']+SIL
        for k in range(DE): DT+=[I('s_cmp_gt_u32 s43, %d'%k), I('s_cbranch_scc1 L_e%ds'%k)]+issue(k)+['L_e%ds:'%k]
        DT+=gbr*(NX-1)+[I('s_waitcnt vmcnt(%d)'%after(0))]+gbr+([] if opt.get('clk') else st(3))
    DT+=[I('v_add_u32 v%d, s36, v%d'%(vE(0),vB3))]+rd3((vE(0),),0)
    for k in range(8):
        DT+=[I('s_waitcnt vmcnt(%d)'%after(k))]
        DT+=tile3((vE(k),),k%3,(S0,S1),k==0,(vE(k+1),) if k<7 else None,[],{0:[I('v_add_u32 v%d, s%d, v%d'%(vE(k+1),36+(k+1)%4,vB3))]} if k<7 else {})
        if k+DE<8: DT+=issue(k+DE)
    for nf in range(2):
        y=(S0,S1)[nf]
        for i in range(8): DT+=[I('v_pk_fma_f32 %s, %s, %s, %s'%(p(y+2*i),p(y+2*i),p(Y+16*nf+2*i),p(XR+16*nf+2*i)))]
        for i in range(8): DT+=[I('v_cvt_pk_bf16_f32 v%d, v%d, v%d'%(y+i,y+2*i,y+2*i+1))]
        for h in range(2):
            DT+=[I('v_permlane16_swap_b32 v%d, v%d'%(y+4*h,y+4*h+2)), I('v_permlane16_swap_b32 v%d, v%d'%(y+4*h+1,y+4*h+3))]
        for h in range(2):
            DT+=[I('buffer_store_dwordx4 %s, v%d, s[52:55], s%d offen offset:%d %s'%(vr(y+4*h,4),vX,32+nf,64*h,opt.get('out_mod','')))]
    if OE2:
        assert NX==1 and NBAR-NX>=64+opt.get('jp',1)+opt.get('jpm',0) and not TH
        SS_=(224,240); XR2=AR+64
        kA=[i for i,x in enumerate(D) if 'buffer_load_dwordx4 v[%d:'%AR in x and 's[8:11]' in x][0]
        cnt=[0]
        def tg3(x):
            if 'buffer_load_dwordx4' in x and 's[8:11]' in x: cnt[0]+=1; return x+' ; @t:A%d'%((cnt[0]-1)//8)
            return cond([x])[0]
        D=D[:kA]+[tg3(x) for x in D[kA:]]
        pol=lambda k: tag(poll,'p%d'%k)
        ck=[I('v_cmp_le_u32 vcc, 4, v15'), I('s_sub_u32 s47, s47, 1'), I('s_cselect_b32 s26, 0xff, 0'), I('s_or_b32 s26, s26, vcc_lo'), I('s_and_b32 s44, s26, 0xff'), I('s_andn2_b32 s26, s44, s45')]
        take=lambda k: [I('s_ff1_i32_b32 s46, s26'), I('s_bitset1_b32 s45, s46'), I('s_lshl_b32 s24, s46, 13'), I('s_add_u32 s26, s46, 6'), I('s_and_b32 s26, s26, 7'), I('s_lshl_b32 s%d, s26, 14'%(36+k%4))]
        lo=lambda k: [I('s_and_b32 s26, s26, 0x3f')] if k<2 else []
        def dec(k,mode):
            lab='L_e%d_%d'%(k,mode)
            X=[I('s_andn2_b32 s26, s44, s45')]+lo(k)+[I('s_cbranch_scc1 %s_h'%lab)]
            if mode==0:
                X=([I('s_cmp_lt_u32 s43, %d'%k), I('s_cbranch_scc1 %s_x'%lab)]+X if k else [])+[I('s_mov_b32 s47, 1'), wvm('p%d'%(k-1))]+ck+lo(k)+[I('s_cbranch_scc1 %s_h'%lab),
                   I('s_mov_b32 s43, %d'%k), I('s_mov_b32 s10, 0'), I('s_mov_b32 s24, 0'), I('s_branch %s_x'%lab), lab+'_h:']+take(k)+[lab+'_x:']
                return X
            X+=[I('s_mov_b32 s47, 0x40000')]+([wvm('p%d'%(k-1)), I('s_branch %s_k'%lab)] if mode==1 else [])+[lab+'_l:']+cond(poll)+[I('s_waitcnt vmcnt(0)'), lab+'_k:']+ck+lo(k)+[
                I('s_cbranch_scc1 %s_h'%lab), I('s_sleep %d'%opt.get('slp2',2)), I('s_branch %s_l'%lab), lab+'_h:']+take(k)
            return X
        vE=lambda k: 24+(k&1)
        w_=lambda e: 2+(e&7)
        stg={1:lambda e: I('v_mul_f32 v%d, s28, v%d'%(w_(e),Y+e)), 2:lambda e: I('v_exp_f32 v%d, v%d'%(w_(e),w_(e))), 3:lambda e: I('v_add_f32 v%d, 1.0, v%d'%(w_(e),w_(e))),
             4:lambda e: I('v_rcp_f32 v%d, v%d'%(w_(e),w_(e))), 5:lambda e: I('v_mul_f32 v%d, v%d, v%d'%(Y+e,Y+e,w_(e)))}
        SI=[stg[s_](slot-d) for slot in range(32+6) for s_,d in ((5,6),(1,0),(2,1),(3,3),(4,4)) if 0<=slot-d<32]
        XU=[]
        for q in range(4): XU+=[I('v_permlane16_swap_b32 v%d, v%d'%(XR2+4*q,XR2+4*q+2)), I('v_permlane16_swap_b32 v%d, v%d'%(XR2+4*q+1,XR2+4*q+3))]
        for i in range(15,-1,-1): XU+=[I('v_and_b32 v%d, 0xffff0000, v%d'%(XR2+2*i+1,XR2+i)), I('v_lshlrev_b32 v%d, 16, v%d'%(XR2+2*i,XR2+i))]
        ST0,ST1=opt.get('sil',(14,20)); AW=opt.get('aw',1)
        DT=[]
        for j in range(22):
            k=j-14; pre=[]; mid=[]; late=[]; early={}
            def add(g,x): early.setdefault(g,[]).extend(x)
            if j<=12: mid+=[wvm(','.join((['W%d'%(j+1)] if j+1>=8 else [])+([] if AW else ['A%d'%(j+1)])))] if (j+1>=8 or not AW) else []
            if j==JK: mid+=([wvm('ak')] if AW else [])+cond(chk1('L_d_ck',7,'s35',7,True))
            if j==13: mid+=[wvm('W19')]
            if j==15: mid+=[wvm('W21')]
            if j<=13 or j==15: mid+=gbr
            if j==JA: mid+=cond(tag(ask1('L_d_ak',7,'s35'),'ak'))
            if j==3: mid+=[I('s_xor_b32 s24, s75, 1'), I('s_mul_i32 s24, s24, %d'%(7*8192))]
            if 1<=j<=13:
                Gw=[tag(g,'W%d'%(j+7)) for g in dmaW(j+7)]; mid=mid+(swW if j==7 else [])+Gw[0]; late=Gw[1:]
            if j==10: add(0,[I('v_lshlrev_b32 v14, 2, v0'), I('s_mov_b32 s44, 0'), I('s_mov_b32 s45, 0'), I('s_mov_b32 s43, 3'), I('s_mov_b32 s36, 0')]+pol(-1))
            if j==11: pre+=swA
            if j==opt.get('xto',-1): add(1,[I('v_lshlrev_b32 v30, 7, v0'), I('s_lshl_b32 s26, s34, 13'), I('buffer_load_dword v13, v30, s[16:19], s26 offen')])
            if j==14:
                fx=[I('s_cmp_eq_u32 s43, 3'), I('s_cbranch_scc1 L_e_fx'), I('s_mov_b32 s10, s18')]
                for q in range(3): fx+=[I('s_cmp_gt_u32 s43, %d'%q), I('s_cbranch_scc1 L_e_fx%d'%q)]+dec(q,2)+flat(ldA((14+q)%4))+['L_e_fx%d:'%q]
                fx+=[I('v_add_u32 v%d, s36, v%d'%(vE(0),vB3))]+rd3((vE(0),),0)+[I('s_waitcnt vmcnt(0) lgkmcnt(0)'), 'L_e_fx:']
                Gw=[tag(g,'W21') for g in dmaW(21)]
                pre+=[I('s_waitcnt lgkmcnt(0)')]+gbr+st(3)+cond(fx)+[I('s_mov_b32 s28, 0x%x'%f2u(-math.log2(math.e)))]+Gw[0]
                for q,g in enumerate(Gw[1:]): add(1+3*q,g)
            if 11<=j<=18: pre+=dec(j-11,0 if j<14 else 1)+(pol(j-11) if j<18 else [])
            if j and (AW or j>=14): pre+=[wvm('A%d'%j)]
            if j<=18:
                for q,g in enumerate(ldA((j+3)%4)): add(3*q+(2 if j==14 else 0),tag(g,'A%d'%(j+3)))
            if 13<=j<21: add(0,[I('v_add_u32 v%d, s%d, v%d'%(vE(k+1),36+(k+1)%4,vB3))])
            if j==19:
                add(0,srd(20,72,73,0,0x400000))
                for q in range(4): add(2+3*q,tag([I('buffer_load_dwordx4 %s, v%d, s[20:23], s%d offen offset:%d'%(vr(XR2+4*q,4),vX,32+q//2,64*(q&1)))],'xr'))
            ex=[]
            if ST0<=j<ST1: ex=SI[(len(SI)*(j-ST0))//(ST1-ST0):(len(SI)*(j+1-ST0))//(ST1-ST0)]
            if j==21: ex=[wvm('xr')]+XU
            g0=4 if j==14 else 0
            for q,x in enumerate(ex): add(g0+(q*(32-g0))//len(ex),[x])
            nxt=j+1 if j<13 else ((vE(k+1),) if j<21 else None)
            DT+=pre+tile3(j if j<14 else (vE(k),),j%4,(Y,Y+16) if j<14 else SS_,j in (0,14),nxt,mid,early,late)
        for nf in range(2):
            y=SS_[nf]
            for i in range(8): DT+=[I('v_pk_fma_f32 %s, %s, %s, %s'%(p(y+2*i),p(y+2*i),p(Y+16*nf+2*i),p(XR2+16*nf+2*i)))]
            for i in range(8): DT+=[I('v_cvt_pk_bf16_f32 v%d, v%d, v%d'%(y+i,y+2*i,y+2*i+1))]
            for h in range(2):
                DT+=[I('v_permlane16_swap_b32 v%d, v%d'%(y+4*h,y+4*h+2)), I('v_permlane16_swap_b32 v%d, v%d'%(y+4*h+1,y+4*h+3))]
            for h in range(2):
                DT+=[I('buffer_store_dwordx4 %s, v%d, s[52:55], s%d offen offset:%d %s'%(vr(y+4*h,4),vX,32+nf,64*h,opt.get('out_mod','')))]
    k0=len(D)-8
    D=resolve_vm(D[:k0]+auto_lgkm(D[k0:]+DT,pre=[]))
    ID=['L_g_idle:', I('s_lshr_b32 s34, s2, 5')]+S3+([I('s_waitcnt vmcnt(0)')]+gbr*(PG+2) if GZE else gbr*(PG+1)+resolve_vm(arrive('L_t_pi',1,[I('s_waitcnt vmcnt(0)')]))+gbr)
    IDB=opt.get('idb',8); ID+=gbr*(IDB-(PG+2))
    ID+=[I('v_lshlrev_b32 v12, 7, v0'), I('s_sub_u32 s26, s2, 224'), I('s_lshl_b32 s26, s26, 2'), I('s_add_u32 s26, s26, s42'), I('s_lshl_b32 s26, s26, 13')]
    ID+=srd(8,66,67,0,0x200000)+srd(20,68,69,0,0x380000)
    for k in range(2): ID+=[I('s_add_u32 s27, s26, %d'%(k*0x100000)), I('buffer_load_dword v13, v12, s[8:11], s27 offen')]
    for k in range(4): ID+=[I('s_add_u32 s27, s26, %d'%(k*0x100000)), I('buffer_load_dword v13, v12, s[20:23], s27 offen')]
    for t in range(8): ID+=gbr+flat(dmaW(t))
    ID+=bars(1+48+NZX+CW+1-8-IDB,'g_idl')+[I('s_branch L_gC')]
    fin=['L_fin:']
    if STAMP:
        fin+=[I('s_waitcnt vmcnt(0)')]+st(7)
    if opt.get('wgst'):
        fin+=[I('s_cmp_lg_u32 s25, %d'%opt.get('wgw',0)), I('s_cbranch_scc1 L_nowg')]+srd(48,4,5,ST_OFF+2*65536,65536)+[I('s_lshl_b32 s26, s2, 4'), I('v_mov_b32 v1, s26')]
        fin+=[I('v_mov_b32 v%d, s%d'%(4+i,76+2*k)) for i,k in enumerate(opt['wgst'])]+[I('s_nop 1'), I('buffer_store_dwordx4 v[4:7], v1, s[48:51], 0 offen'), 'L_nowg:']
    if opt.get('rt'): fin+=[I('s_cmp_lg_u32 s25, 4'), I('s_cbranch_scc1 L_end')]
    fin+=rt_end(opt,0,'k2',sreg=96)+['L_end:', I('s_endpgm')]
    if opt.get('trc'):
        def trace(L,v,k0=0,kmax=64):
            out=[]; k=k0
            for x in L:
                if x.strip()=='s_barrier' and k+1<kmax:
                    out+=[I('s_memrealtime s[90:91]'), I('s_waitcnt lgkmcnt(0)'), I('v_writelane_b32 v%d, s90, %d'%(v,k)), x, I('s_memrealtime s[90:91]'), I('s_waitcnt lgkmcnt(0)'), I('v_writelane_b32 v%d, s90, %d'%(v,k+1))]; k+=2
                elif x.startswith('; @TR'): out+=[I('s_memrealtime s[90:91]'), I('s_waitcnt lgkmcnt(0)'), I('v_writelane_b32 v%d, s90, %s'%(v,x[5:]))]
                else: out.append(x)
            return out,k
        CA=[]
        if opt['trc']==3:
            def tr1(first,loop1,T,v):
                X,k=trace(first,255,2,54)
                lp=[loop1[0], I('s_memrealtime s[90:91]'), I('s_lshl_b32 s26, s22, 1'), I('s_sub_u32 m0, %d, s26'%(k+12)), I('s_waitcnt lgkmcnt(0)'), I('v_writelane_b32 v255, s90, m0'), I('s_add_u32 m0, m0, 1'), I('s_nop 0'), I('v_writelane_b32 v255, s90, m0')]+loop1[1:]
                j=T.index('; @L2'); Y,_=trace(T[:j],255,k+12,54)
                return [X[0], I('s_memrealtime s[90:91]'), I('s_waitcnt lgkmcnt(0)'), I('v_writelane_b32 v255, s90, 0'), I('v_writelane_b32 v255, s90, 1')]+X[1:],lp,Y+[I('v_mov_b32 v%d, v255'%v)]+T[j:]
            stp=lambda l: [I('s_memrealtime s[90:91]'), I('s_waitcnt lgkmcnt(0)'), I('v_writelane_b32 v255, s90, %d'%l)]
            kb=[i for i,x in enumerate(B) if 's_waitcnt lgkmcnt(0)' in x][-1]; kc=[i for i,x in enumerate(B) if 's_mov_b32 s4, s46' in x][0]; ka=[i for i,x in enumerate(B) if 'v_lshrrev_b32 v1, 6, v0' in x][0]
            B=B[:ka]+[I('s_memrealtime s[78:79]')]+B[ka:kb]+[I('s_memrealtime s[76:77]')]+B[kb:kb+1]+[I('v_writelane_b32 v255, s78, 54'), I('v_writelane_b32 v255, s76, 55')]+stp(56)+B[kb+1:kc]+stp(57)+B[kc:]
            def tr2(first):
                k=[i for i,x in enumerate(first) if 's_waitcnt vmcnt(' in x][0]
                return first[:k]+stp(58)+first[k:k+1]+stp(59)+first[k+1:]
            PA_=[(tr2(first),loop1,T,tg) for first,loop1,T,tg in PA_]; gfirst=tr2(gfirst)
            PA_=[tr1(first,loop1,T,6)+(tg,) for first,loop1,T,tg in PA_]
            gfirst,gloop1,GW=tr1(gfirst,gloop1,GW,31)
            tr0=trace; trace=lambda L,v,k0=0,kmax=64: tr0(L,v,k0,0)
        for first,loop1,T,tg in PA_:
            k=T.index('; @L2'); X,_=trace(T[k:],6); CA+=first+loop1+T[:k]+[I('s_memrealtime s[90:91]'), I('s_waitcnt lgkmcnt(0)'), I('v_writelane_b32 v6, s90, 63')]+X
        A,k=trace(A,6,40,60); k0=aloop.index('L_att_loop:'); X,_=trace(aloop[:k0],6,k,60); aloop=X+aloop[k0:]
        k=GW.index('; @L2'); X,_=trace(GW[k:],31,0,60 if opt['trc']==1 else 0); GW=GW[:k]+[I('s_memrealtime s[90:91]'), I('s_waitcnt lgkmcnt(0)'), I('v_writelane_b32 v31, s90, 63')]+X
        if opt['trc']==1: ID,_=trace(ID,31,0,30)
        elif opt['trc']==2:
            Ep,k=trace(Ep,31,0,60); D,_=trace(D,31,k,60)
        fin=['L_fin:', I('s_and_b32 s26, s25, 3'), I('s_cmp_lg_u32 s26, %d'%opt.get('trw',0)), I('s_cbranch_scc1 L_notr')]+srd(48,4,5,ST_OFF+0x100000,256*512)+[I('s_lshl_b32 s26, s2, 1'), I('s_lshr_b32 s27, s25, 2'), I('s_add_u32 s26, s26, s27'),
             I('s_lshl_b32 s26, s26, 8'), I('v_lshlrev_b32 v1, 2, v0'), I('s_cmp_ge_u32 s25, 4'), I('s_cbranch_scc1 L_trg'), I('v_mov_b32 v31, v6'), 'L_trg:', I('buffer_store_dword v31, v1, s[48:51], s26 offen'), 'L_notr:']+fin[1:]
    code=B+CA+A+st(1)+aloop+st(2)+AT+FB+gfirst+gloop1+GW+Ep+D+fin+ID+['L_cw1:']
    code,_=fix_hazards(code)
    for tg,tr in trA:
        t,_=fix_hazards(B+tr+A+firstb+body+body+lastb+AT); check_waits(t,'a'+tg)
    tr,_=fix_hazards(FB); check_waits(tr,'k2fb')
    tr,_=fix_hazards(B+gfirst+gbody+gbody+GW+Ep+D); check_waits(tr,'k2g')
    code=[x.strip() if opt.get('compact',1) else x for x in code if not x.startswith(';')]
    return L+code, kernel_desc(name,256,256,102), '; @launch %sgrid=(256,1,1) block=(512,1,1) lds=163840'%('' if name.startswith('recurrent') else 'kernel=%s '%name)
if __name__=='__main__':
    from build import *
    opt=json.loads(sys.argv[2]) if len(sys.argv)>2 else {}
    assemble([gen(opt.get('name','recurrent_scan__softmax_full_mha__mixer_gmlp__prompt_kernel'),opt)], sys.argv[1])
```

```python
from common import *
B_RING=98304; CS=131072+12288
ARR=131072+7*4096
STAT_OFF=0; PST_OFF=0x100000
QSCALE=f2u(32**-0.5*math.log2(math.e))
vOB=1; vOA=5; vA=9; vB=11; vIDX=15; ST=16
AB=32; BF=64; SEL=96; CD=100; ACC=128; X0=104; CSB=112
NQ=3; OOB=0x7fff0000
RP=4
def m16(d,a,b,c=None): return I('v_mfma_f32_16x16x32_bf16 %s, %s, %s, %s'%(vr(d,4),vr(a,4),vr(b,4),vr(d,4) if c is None else c))
p=lambda b: vr(b,2)
flat=lambda G:[x for g in G for x in g]
acc=lambda a,t: ACC+16*a+4*t
tag=lambda L,t: [x+' ; @t:'+t if is_instr(x) and x.strip().startswith('buffer_') else x for x in L]
cond=lambda L: [x+' ; @c' if is_instr(x) and x.strip().startswith('buffer_') else x for x in L]
def wvm(tags,lg=False): return I('s_waitcnt vmcnt(?)%s ; @w:%s'%(' lgkmcnt(0)' if lg else '',tags))
def resolve_vm(L):
    out=list(L)
    for i,x in enumerate(out):
        if '@w:' not in x: continue
        tg0,_,pl=x.split('@w:')[1].split()[0].partition('+'); tags=set(tg0.split(',')); n=int(pl or 0); best=None; seen=set()
        for y in reversed(out[:i]):
            if not (is_instr(y) and y.strip().startswith('buffer_')): continue
            t=y.split('@t:')[1].split()[0] if '@t:' in y else None
            if t in tags and t not in seen:
                seen.add(t)
                if best is None: best=n
                if seen==tags: break
            if '@c' not in y: n+=1
        assert seen==tags,(x,seen)
        out[i]=x.replace('vmcnt(?)','vmcnt(%d)'%min(best,63)).split(' ; @w')[0]
    return [x.split(' ; @')[0] if not x.startswith(';') else x for x in out]
def unpk(L):
    out=[]
    for x in L:
        m=re.match(r'\s*v_pk_(add|mul|fma)_f32 (.*)',x)
        if not m: out.append(x); continue
        c=Ins(x); ns=len(c.ops)-1
        mm=re.search(r'op_sel_hi:\[([01,]*)\]',c.mods); hi=[int(q) for q in mm.group(1).split(',')] if mm else [1]*ns
        assert 'op_sel:' not in c.mods and 'neg' not in c.mods
        def half(o,k):
            r=regs_of(o)
            return '%s%d'%r[k] if r else o
        for k in range(2):
            d=half(c.ops[0],k); sr_=[half(c.ops[1+i],k*hi[i]) for i in range(ns)]
            if m.group(1)=='fma':
                if sr_[2]==d and sr_[1][0]=='v': out.append(I('v_fmac_f32 %s, %s, %s'%(d,sr_[0],sr_[1])))
                elif sr_[2]==d and sr_[0][0]=='v': out.append(I('v_fmac_f32 %s, %s, %s'%(d,sr_[1],sr_[0])))
                else: out.append(I('v_fma_f32 %s, %s, %s, %s'%(d,sr_[0],sr_[1],sr_[2])))
            else:
                if sr_[1][0]!='v': sr_=sr_[::-1]
                out.append(I('v_%s_f32 %s, %s, %s'%(m.group(1),d,sr_[0],sr_[1])))
            if k==0: assert d not in [half(c.ops[1+i],hi[i]) for i in range(ns)],x
    return out
def sprinkle(L,pos,X):
    idx=sorted(int(q*len(L)) if isinstance(q,float) else q for q in pos)
    out=[]; k=0
    for i,x in enumerate(L):
        while k<len(idx) and idx[k]<=i: out+=X; k+=1
        out.append(x)
    out+=X*(len(idx)-k)
    return out

SCC_R=('s_cselect','s_cbranch_scc','s_addc','s_subb')
SCC_N=('s_mov','s_movk','s_mul','s_nop','s_waitcnt','s_setprio','s_barrier','s_bitset','s_load','s_getpc','s_sleep','s_branch','s_bfm')
def free_at(L,i,regs=('s26','s27')):
    need={'scc','vcc'}|set(regs)
    for x in L[i:]:
        if not is_instr(x): return False
        op=x.split()[0]; c=Ins(x); rd=set('%s%s'%r if r[0]!='x' else r[1] for r in c.r); wr=set('%s%s'%r if r[0]!='x' else r[1] for r in c.w)
        if op.startswith(SCC_R): rd.add('scc')
        if op.startswith('s_') and not op.startswith(SCC_N) and not op.startswith(('s_cselect','s_cbranch')): wr.add('scc')
        if 'vcc' in x: (wr if op.startswith('v_cmp') else rd).add('vcc')
        if rd&need: return False
        need-=wr
        if not need: break
    return True
def chunks(L):
    out=[[]]
    for i,x in enumerate(L):
        if out[-1] and free_at(L,i): out.append([])
        out[-1].append(x)
    return out
def weave(L,G,lo,hi):
    out=[]; k=0
    for i,x in enumerate(L):
        while k<len(G) and i>=lo+(k*(hi-lo))//len(G) and (free_at(L,i) or i>=hi): out+=G[k]; k+=1
        out.append(x)
    return out+flat(G[k:])

def prologue(opt):
    B=[I('s_cmp_ge_u32 s2, 256'), I('s_cbranch_scc1 L_end')]+rt_begin(opt,sreg=96)
    B+=[I('s_load_dwordx2 s[72:73], s[0:1], %d'%KA_X), I('s_load_dwordx2 s[6:7], s[0:1], %d'%KA_WQKV), I('s_load_dwordx2 s[36:37], s[0:1], %d'%KA_WIN),
        I('s_load_dwordx4 s[44:47], s[0:1], %d'%KA_DBG), I('s_load_dwordx4 s[60:63], s[0:1], %d'%KA_WSP), I('s_load_dwordx2 s[66:67], s[0:1], %d'%KA_WO),
        I('s_load_dwordx4 s[68:71], s[0:1], %d'%KA_WOUT),
        I('v_lshrrev_b32 v1, 6, v0'), I('v_and_b32 v0, 63, v0'), I('s_nop 0'), I('v_readfirstlane_b32 s25, v1'),
        I('s_and_b32 s23, s2, 1'), I('s_lshl_b32 s23, s23, 2'), I('s_bfe_u32 s24, s2, 0x20003'), I('s_add_u32 s23, s23, s24'),
        I('s_bfe_u32 s32, s2, 0x20001'), I('s_lshr_b32 s30, s2, 5'), I('s_lshl_b32 s24, s32, 3'), I('s_add_u32 s24, s24, s30'),
        I('s_lshl_b32 s26, s24, 14'), I('s_lshl_b32 s27, s25, 11'), I('s_add_u32 s21, s26, s27'),
        I('v_lshlrev_b32 v24, 4, v0'),
        I('v_lshrrev_b32 v25, 3, v0'), I('v_lshrrev_b32 v26, 4, v0'), I('v_and_b32 v27, 7, v0'), I('s_lshl_b32 s26, s25, 16'),
        I('v_lshlrev_b32 v25, 11, v25'), I('v_add_u32 v25, s26, v25'), I('v_xor_b32 v27, v27, v26'), I('v_xor_b32 v26, 4, v27'),
        I('v_lshl_add_u32 v27, v27, 4, v25'), I('v_lshl_add_u32 v26, v26, 4, v25')]
    for i in range(4): B+=[I('v_add_u32 v%d, %d, v%d'%(vOA+i, i*8*2048-i*1024, (27,26)[i&1]))]
    B+=[I('s_cmp_ge_u32 s30, 3'), I('s_cselect_b32 s58, 1, 0'), I('s_cselect_b32 s26, 3, 0'), I('s_cselect_b32 s27, 14, 24'), I('s_cselect_b32 s34, 0, 16'),
        I('s_cselect_b32 s89, %d, s58'%1024), I('s_cselect_b32 s88, %d, s58'%3584),
        I('s_sub_u32 s33, s30, s26'), I('s_mul_i32 s35, s33, 3'), I('s_sub_u32 s35, s35, 1'), I('s_max_i32 s35, s35, 0'),
        I('s_mul_i32 s27, s27, s32'), I('s_add_u32 s34, s34, s27'), I('s_add_u32 s34, s34, s35'),
        I('s_mul_i32 s22, s32, 24'), I('s_lshl_b32 s26, s30, 1'), I('s_add_u32 s22, s22, s26'), I('s_add_u32 s89, s89, 6144'),
        I('v_bfe_u32 v28, v0, 3, 1'), I('v_bfe_u32 v25, v0, 1, 2'), I('v_lshl_add_u32 v28, v28, 3, v25'),
        I('s_lshr_b32 s26, s25, 2'), I('s_lshl_b32 s26, s26, 5'), I('s_and_b32 s27, s25, 1'), I('s_lshl_b32 s27, s27, 4'), I('s_add_u32 s26, s26, s27'),
        I('s_and_b32 s27, s25, 2'), I('s_lshl_b32 s27, s27, 1'), I('s_add_u32 s26, s26, s27'), I('v_add_u32 v28, s26, v28'),
        I('v_lshrrev_b32 v25, 4, v0'), I('v_and_b32 v26, 1, v0'), I('v_lshlrev_b32 v25, 5, v25'), I('v_lshl_add_u32 v25, v26, 4, v25'),
        I('s_lshl_b32 s26, s22, 6'), I('s_movk_i32 s27, 6144'), I('v_add_u32 v26, s26, v25'), I('v_mad_u32_u24 v%d, v28, s27, v26'%vOB),
        I('s_lshl_b32 s26, s34, 6'), I('s_add_u32 s26, s26, s88'), I('s_sub_u32 s26, s26, 1024'), I('v_add_u32 v26, s26, v25'), I('v_mad_u32_u24 v%d, v28, s89, v26'%(vOB+1)),
        I('s_cmp_lg_u32 s33, 0'), I('s_cselect_b32 s26, 32, 0'), I('v_cmp_gt_u32 vcc, s26, v0'), I('v_add_u32 v25, %d, v%d'%((128-1024)&0xffffffff,vOB+1)), I('v_mov_b32 v26, 0x%x'%OOB),
        I('v_cndmask_b32 v%d, v26, v25, vcc'%(vOB+2)),
        I('s_and_b32 s42, s25, 3'), I('s_mul_i32 s28, s42, %d'%(NQ*1024)), I('s_add_u32 s28, s28, %d'%B_RING), I('s_lshr_b32 s26, s25, 2'), I('s_lshl_b32 s26, s26, 14'), I('s_add_u32 s40, s28, s26'),
        I('s_lshl_b32 s29, s25, 12'), I('s_lshl_b32 s26, s23, 19'), I('s_add_u32 m0, s29, 65536'), I('s_cmp_lg_u32 s58, 0'),
        I('s_waitcnt lgkmcnt(0)')]
    B+=[I('s_cselect_b32 s84, s36, s6'), I('s_cselect_b32 s85, s37, s7')]+srd(12,72,73,'s26',256*2048)
    if opt.get('cw_'):
        B+=['L_cw0:', I('s_getpc_b64 s[16:17]'), I('s_mov_b32 s18, L_cw1-L_cw0'), I('s_mov_b32 s19, 0x20000'), I('s_lshr_b32 s27, s2, 3'), I('s_lshl_b32 s27, s27, 3'), I('s_add_u32 s27, s27, s25'), I('s_lshl_b32 s27, s27, 9'),
            I('v_lshlrev_b32 v22, 6, v0'), I('v_cmp_gt_u32 vcc, 8, v0'), I('v_add_u32 v22, s27, v22'), I('v_mov_b32 v23, 0x%x'%OOB), I('v_cndmask_b32 v22, v23, v22, vcc'), I('buffer_load_dword v14, v22, s[16:19], 0 offen')]
    for k in range(2): B+=[I('buffer_load_dwordx4 %s, v24, s[12:15], s21 offen offset:%d'%(vr(ACC+4*k,4),1024*k))]
    for i in range(4): B+=[I('buffer_load_dwordx4 v%d, s[12:15], 0 offen offset:%d lds'%(vOA+i,i*1024))]
    B+=[I('s_mov_b32 m0, s40'), I('s_lshl_b32 s86, s89, 10'), I('s_mov_b32 s87, 0x20000')]+srd(8,6,7,0,0x600000)
    B+=[I('buffer_load_dwordx4 v%d, s[%d:%d], 0 offen offset:%d lds'%(vOB+i,(8,84,84)[i],(11,87,87)[i],i*1024)) for i in range(NQ)]
    B+=[I('s_mov_b32 s4, s46'), I('s_mov_b32 s5, s47')]
    B+=srd(16,4,5,0,O_OFF)+srd(92,4,5,STAT_OFF,256*128)+srd(52,44,45,0,256)+srd(48,4,5,FLAG_OFF,65536)
    B+=[I('s_lshl_b32 s26, s23, 5'), I('s_add_u32 s26, s26, s24'), I('s_lshl_b32 s26, s26, 7'), I('s_lshl_b32 s27, s25, 3'), I('s_add_u32 s26, s26, s27'),
        I('v_mov_b32 v22, s26'), I('v_cmp_eq_u32 vcc, 0, v0'), I('v_mov_b32 v29, 0x%x'%OOB), I('v_cndmask_b32 v30, v29, v22, vcc'),
        I('s_lshl_b32 s26, s2, 8'), I('s_cmp_lg_u32 s25, 0'), I('s_cselect_b32 s26, 0x%x, s26'%OOB),
        I('v_and_b32 v22, 7, v0'), I('v_lshl_add_u32 v22, v22, 2, s26'), I('v_lshrrev_b32 v23, 3, v0'), I('v_lshl_add_u32 v22, v23, 7, v22'), I('v_cmp_gt_u32 vcc, 16, v0'),
        I('v_cndmask_b32 v29, v29, v22, vcc'), I('v_mov_b32 v31, 0'), I('s_lshl_b32 s47, s23, 5'),
        I('s_lshl_b32 s89, s89, 6'), I('s_mov_b32 s88, s89'), I('s_mov_b32 s20, %d'%(64*6144)), I('s_mov_b32 s21, 128'),
        I('s_mov_b32 s57, 32768'), I('s_mov_b32 s59, 0xffff0000'), I('s_mov_b32 s40, 2'),
        I('s_lshl_b32 s26, s24, 1'), I('s_lshr_b32 s27, s25, 2'), I('s_add_u32 s26, s26, s27'), I('s_lshl_b32 s74, s26, %d'%(7+RP.bit_length()-1)),
        I('s_lshl_b32 s31, s23, 14'), I('s_lshl_b32 s26, s42, 12'), I('s_add_u32 s31, s31, s26'),
        I('s_lshl_b32 s64, s23, 1'), I('s_bfe_u32 s26, s2, 0x10001'), I('s_add_u32 s64, s64, s26'),
        I('s_cmp_ge_u32 s25, 4'), I('s_cbranch_scc1 L_k1_g'),
        I('s_cmp_lg_u32 s58, 0'), I('s_cbranch_scc1 L_k1_z'), I('s_cmp_lg_u32 s33, 0'), I('s_cbranch_scc1 L_k1_q3'), I('s_branch L_k1_q2'),
        'L_k1_z:', I('s_cmp_lg_u32 s33, 0'), I('s_cbranch_scc1 L_k1_z3'), I('s_branch L_k1_z2')]
    return B

def stream(kind, NB, opt, setup=[], hooks={}):
    tg=kind+str(NB); h=1 if kind=='g' else 0; isz=kind=='z'
    NFR=2*NB; NM=4*NFR; STM=opt.get('st_mod','sc0 sc1')
    S=['L_k1_%s:'%(tg if kind!='g' else 'g')]
    if kind=='g': S+=[I('s_mov_b32 s34, s22')]
    S+=[I('s_lshl_b32 s26, s34, 17'), I('s_add_u32 s31, s31, s26'), I('s_add_u32 s31, s31, 0x%x'%(Z2N_OFF if isz else P1_OFF)), I('s_mov_b32 s35, %d'%(0 if h else 2))]
    if not isz: S+=[I('s_cmp_lt_u32 s34, 32'), I('s_cselect_b32 s56, 0x%x, 1.0'%QSCALE)]
    S+=[I('v_and_b32 v24, 15, v0'), I('v_lshrrev_b32 v25, 4, v0'), I('v_bfe_u32 v26, v0, 1, 3'), I('s_lshl_b32 s26, s42, 13'), I('s_add_u32 s26, s26, 65536'),
        I('v_lshlrev_b32 v24, 7, v24'), I('v_add_u32 v24, s26, v24'),
        I('v_xor_b32 v27, v25, v26'), I('v_lshl_add_u32 v%d, v27, 4, v24'%vA), I('v_xor_b32 v%d, 64, v%d'%(vA+1,vA))]
    S+=[I('v_lshrrev_b32 v24, 5, v0'), I('v_mul_u32_u24 v24, %d, v24'%(NQ*1024)), I('v_and_b32 v25, 31, v0'), I('v_lshl_add_u32 v24, v25, 3, v24'),
        I('s_cmp_ge_u32 s42, %d'%NB), I('s_cselect_b32 s27, %d, 0'%NB), I('s_sub_u32 s46, s42, s27')]
    def phys(i): return [I('s_add_u32 s26, s46, %d'%i), I('s_cmp_ge_u32 s26, %d'%NB), I('s_cselect_b32 s27, %d, 0'%NB), I('s_sub_u32 s26, s26, s27')]
    for i in range(NB):
        S+=phys(i)+[I('s_lshl_b32 s26, s26, 9'), I('s_add_u32 s26, s26, %d'%(B_RING+(0 if h else 1024))), I('v_add_u32 v%d, s26, v24'%(vB+i))]
    S+=[I('v_bfe_u32 v24, v0, 1, 1'), I('v_lshrrev_b32 v25, 5, v0'), I('v_cmp_eq_u32 vcc, v24, v25'), I('v_mov_b32 v24, 0x3f803f80'),
        I('v_cndmask_b32 v%d, 0, v24, vcc'%SEL)]+[I('v_mov_b32 v%d, v%d'%(SEL+i,SEL)) for i in range(1,4)]
    S+=[I('v_and_b32 v24, 1, v0'), I('v_mul_u32_u24 v24, 0xaaaa, v24'), I('v_add_u32 v%d, 0x4444, v24'%vIDX)]+[I('v_mov_b32 v%d, 0'%(CD+i)) for i in range(4)]
    SDEF=opt.get('sdef',0); EB=opt.get('eb',0)
    WP=opt.get('wp',0); vPF=112
    PFS=[I('s_bfe_u32 s26, s2, 0x20003'), I('s_cmp_eq_u32 s26, s42'), I('s_cselect_b32 s26, 0, 64'), I('v_or_b32 v24, s26, v0'), I('v_mov_b32 v26, 0x%x'%OOB),
         I('v_and_b32 v25, 0x71, v24'), I('v_cmp_eq_u32 vcc, 0, v25'), I('v_cndmask_b32 v%d, v26, v%d, vcc'%(vPF,vOB)),
         I('v_and_b32 v25, 0x51, v24'), I('v_cmp_eq_u32 vcc, 0, v25'), I('v_cndmask_b32 v%d, v26, v%d, vcc'%(vPF+1,vOB+1)),
         I('v_and_b32 v25, 0x71, v24'), I('v_cmp_eq_u32 vcc, 16, v25'), I('v_add_u32 v24, 1024, v%d'%(vOB+2)), I('v_cndmask_b32 v%d, v%d, v24, vcc'%(vPF+1,vPF+1))]
    if WP: S+=PFS
    pfW=[[I('buffer_load_dword v%d, v%d, s[8:11], s20 offen'%(vPF+2,vPF))],[I('buffer_load_dword v%d, v%d, s[84:87], s88 offen offset:1024'%(vPF+2,vPF+1))]] if WP else []
    NP_=len(pfW)
    if not SDEF: S+=setup
    def dmaW(s):
        G=[[I('buffer_load_dwordx4 v%d, s[%d:%d], s%d offen offset:%d lds'%(vOB+i,(8,84,84)[i],(11,87,87)[i],(20,88,88)[i],i*1024))] for i in range(NQ)]
        G[-1]+=[I('s_add_u32 s20, s20, %d'%(64*6144)), I('s_add_u32 s88, s88, s89')]
        return [[I('s_add_u32 m0, s28, %d'%((s%4)*16384))]]+G
    def dmaX():
        G=[[I('buffer_load_dwordx4 v%d, s[12:15], s21 offen offset:%d lds'%(vOA+i,i*1024))] for i in range(4)]
        G[-1]+=[I('s_add_u32 s21, s21, 128'), I('s_add_u32 s29, s29, 32768'), I('s_cmp_ge_u32 s29, 98304'), I('s_cselect_b32 s26, 98304, 0'), I('s_sub_u32 s29, s29, s26')]
        return [[I('s_mov_b32 m0, s29')]]+G
    def dma(s):
        if (s&1)==h: return dmaW(s+4)+(pfW if s<=25 else []) if s+4<=31 else None
        return dmaX() if s<=26 else None
    def rdA(j): return [I('ds_read_b128 %s, v%d offset:%d'%(vr(AB+16*j+4*t,4),vA+j,t*2048)) for t in range(4)]
    advA=lambda j: [I('v_add_u32 v%d, s59, v%d'%(vA+j,vA+j))]
    nxtA=[I('s_add_u32 s40, s40, 1'), I('s_cmp_eq_u32 s40, 3'), I('s_cselect_b32 s40, 0, s40'), I('s_cmp_eq_u32 s40, 2'), I('s_cselect_b32 s59, 0xffff0000, s57')]
    def rdB(a,s,dst=None): return [[I('ds_read_b64_tr_b16 %s, v%d offset:%d'%(vr((BF+4*a if dst is None else dst)+2*u,2),vB+a//2,(s%4)*16384+2*u*NQ*1024+(a&1)*256))] for u in range(2)]
    SMF=I('v_smfmac_f32_16x16x64_bf16 %s, %s, %s, v%d'%(vr(CD,4),vr(SEL,4),vr(BF,8),vIDX))
    GB=opt.get('gb'+kind,opt.get('k1gb',3)); D0=opt.get('k1d0',2); DS=opt.get('ds'+str(NB),(NM-GB-D0-1)//4+(1 if NM>16 else 0))
    VW=I('s_waitcnt vmcnt(%d) lgkmcnt(0)'%(4+NQ+NP_)); VWt=I('s_waitcnt vmcnt(%d) lgkmcnt(0)'%(4+NQ))
    def step(s, G, c0=False, extra=None, vw=[VW], dense=False, pre_last=False):
        j=s&1
        spine=[m16(acc(a,t),BF+4*a,AB+16*j+4*t,'0' if c0 else None) for a in range(NFR) for t in (range(3,-1,-1) if opt.get('ch',0)&8 and a&1 else range(4))]
        fill={}
        def add(g,x): fill.setdefault(g,[]).extend(x)
        add(GB,vw+[I('s_barrier')])
        ra=[[x] for x in rdA(1-j)]; ra[-1]+=advA(1-j)+(nxtA if j==0 else [])
        avail={GB:rdB(0,s+1)+ra}
        for a in range(1,NFR): avail.setdefault(max(GB,4*a+3),[]).extend(rdB(a,s+1))
        if pre_last: avail.setdefault(12,[]).extend(rdB(0,31,X0)+rdB(1,31,X0+4))
        queue=[]
        for g2 in range(GB,NM):
            queue+=avail.get(g2,[])
            n=1 if g2<NM-1 else len(queue)
            add(g2,flat(queue[:n])); queue=queue[n:]
        add(NM-3,[SMF])
        if pre_last: add(NM-1,[SMF.replace(vr(BF,8),vr(X0,8))])
        if G:
            if dense:
                for g,x in G: add(g,x)
            else:
                add(GB,G[0])
                for k,g in enumerate(G[1:]): add(min(GB+D0+k*DS,NM-1),g)
        if extra:
            for g,x in extra.items(): add(g,x)
        return interleave(spine,fill)
    CHK=opt.get('ch',0)&16; NBASE=([224,64,80] if NB==3 else [64,80]); NR=lambda a,j: NBASE[a//2]+8*j+4*(a&1)
    rdT=lambda t: [rdA(j)[t] for j in range(2)]
    rdN=lambda a,D: [r for j in range(2) for r in flat(rdB(a,2*D+j,NR(a,j)))]
    smfN=lambda j: SMF.replace(vr(BF,8),vr(NR(0,j),8))
    B0=opt.get('k1b'+str(NB),opt.get('k1b0',9)); WS=opt.get('k1ws'+str(NB),2 if NB==2 else 4); XS_=opt.get('k1xs'+str(NB),3 if NB==2 else 5); LD=opt.get('k1ld',1); SP=opt.get('k1sp',[5,9]); BE=opt.get('k1be',0); B1=NM-1+BE; assert not BE or (B0 is not None and not WP and BE<=4)
    def dstep(D, c0=False, extra=None, vw=None, pre=[], pre_last=False, tg_=lambda G:G):
        path=[(a,2*hf+(k^(a&1))) for hf in range(2) for a in range(NFR) for k in range(2)]
        spine=[m16(acc(a,t),NR(a,j),AB+16*j+4*t,'0' if c0 and q==0 else None) for i,(a,t) in enumerate(path) for q,j in enumerate(((0,1),(1,0))[i&1])]
        fill={}
        def add(g,x): fill.setdefault(g,[]).extend(x)
        for g,x in pre: add(g,x)
        late=rdN(NFR-1,D)+rdT(2)+rdT(3)
        for k,r in enumerate(late): add(k//LD,[r])
        add(7//LD,advA(0)+advA(1)+nxtA)
        for j in range(2): add(SP[j],[smfN(j)])
        W=tg_(dmaW(2*D+4+h)) if D<=13 else None; Xd=dmaX() if D<=12 else None
        nw=0
        if B0 is not None:
            add(B0,[I('s_waitcnt %slgkmcnt(0)'%('vmcnt(%d) '%(7 if D<=13 else 3) if BE else '')) if not (BE and D==14) else wvm('k1+3',True), I('s_barrier')])
            if W:
                add(B0,W[0])
                for k,g in enumerate(W[1:]): add(B0+1+k*WS,g); nw+=B0+1+k*WS<B1
        add(B1,(vw or [I('s_waitcnt vmcnt(%d)%s'%(4+nw+(NP_ if D else 0),'' if B0 is not None else ' lgkmcnt(0)'))])+[I('s_barrier')])
        x0=B1+2
        if B0 is None and W:
            add(NM-1,W[0])
            for k,g in enumerate(W[1:]): add(NM+2*k,g)
            x0=NM+6
        elif W: x0=max(x0,B0+1+2*WS+1)
        if WP and D<=12:
            for k,g in enumerate(pfW): add(x0+k,g)
            x0+=2
        if Xd:
            add(x0-1,Xd[0])
            st_=min(XS_,(2*NM-1-x0)//3)
            for k,g in enumerate(Xd[1:]): add(x0+k*st_,g)
        for k,r in enumerate(rdT(1)+rdT(0)+flat([rdN(a,D+1) for a in range(NFR-1)])): add(NM+k,[r])
        if pre_last: add(2*NM-3,[smfN(0)]); add(2*NM-1,[smfN(1)])
        for g,x in (extra or {}).items(): add(g,x)
        return interleave(spine,fill)
    def two(e0_,e1_):
        c={k:list(v) for k,v in (e0_ or {}).items()}
        for k,v in (e1_ or {}).items(): c.setdefault(k+NM,[]).extend(v)
        return c
    X=ACC+16; R=ACC
    P=S+[I('s_waitcnt vmcnt(%d)'%(4+NQ))]
    for k in range(2): P+=unpack8(ACC+4*k,X+8*k)
    P+=[I('v_pk_add_f32 %s, %s, %s'%(p(R+2*i),p(X+2*i),p(X+8+2*i))) for i in range(4)]
    P+=[I('v_pk_add_f32 %s, %s, %s'%(p(R),p(R),p(R+2))), I('v_pk_add_f32 %s, %s, %s'%(p(R+4),p(R+4),p(R+6))), I('v_pk_add_f32 %s, %s, %s'%(p(R),p(R),p(R+4))),
        I('v_add_f32 v%d, v%d, v%d'%(R,R,R+1))]+wave_sum(R,R+1)+[I('v_mul_f32 v%d, 0xba800000, v%d'%(ST,R))]
    P+=[I('v_pk_add_f32 %s, %s, %s op_sel_hi:[1,0]'%(p(X+2*i),p(X+2*i),p(ST))) for i in range(8)]
    P+=[I('v_pk_mul_f32 %s, %s, %s'%(p(R+2*i),p(X+2*i),p(X+2*i))) for i in range(4)]
    P+=[I('v_pk_fma_f32 %s, %s, %s, %s'%(p(R+2*i),p(X+8+2*i),p(X+8+2*i),p(R+2*i))) for i in range(4)]
    P+=[I('v_pk_add_f32 %s, %s, %s'%(p(R),p(R),p(R+2))), I('v_pk_add_f32 %s, %s, %s'%(p(R+4),p(R+4),p(R+6))), I('v_pk_add_f32 %s, %s, %s'%(p(R),p(R),p(R+4))),
        I('v_add_f32 v%d, v%d, v%d'%(R,R,R+1))]+wave_sum(R,R+1)
    P+=[I('v_mov_b32 v%d, 0x3727c5ac'%(R+1)), I('v_fmac_f32 v%d, 0x3a800000, v%d'%(R+1,R)), I('v_rsq_f32 v%d, v%d'%(ST+1,R+1)), I('s_nop 0'),
        I('buffer_store_dwordx2 %s, v30, s[92:95], 0 offen sc0 sc1'%p(ST)), I('buffer_store_dword v31, v29, s[48:51], 0 offen sc0 sc1')]
    if isz:
        if opt.get('f4',0):
            P+=[I('s_mul_i32 s26, s23, %d'%(20*2048)), I('s_mul_i32 s27, s42, 10240'), I('s_add_u32 s38, s26, s27'), I('s_add_u32 s38, s38, 0x%x'%PST_OFF),
                I('s_mul_i32 s26, s32, 5'), I('s_add_u32 s26, s26, s33'), I('s_and_b32 s27, s26, 1'), I('s_lshr_b32 s26, s26, 1'), I('s_lshl_b32 s26, s26, 10'), I('s_lshl_b32 s27, s27, 3'),
                I('s_add_u32 s39, s26, s38'), I('s_add_u32 s39, s39, s27'), I('v_lshlrev_b32 v24, 4, v0')]
        else:
            P+=[I('s_mul_i32 s26, s23, %d'%(20*2048)), I('s_lshl_b32 s27, s42, 9'), I('s_add_u32 s38, s26, s27'), I('s_add_u32 s38, s38, 0x%x'%PST_OFF),
                I('s_mul_i32 s26, s32, 5'), I('s_add_u32 s26, s26, s33'), I('s_lshl_b32 s26, s26, 11'), I('s_add_u32 s39, s26, s38'), I('v_lshlrev_b32 v24, 3, v0')]
        P+=[I('v_mov_b32 v26, -1'), I('v_mov_b32 v27, -1'), I('buffer_store_dwordx2 v[26:27], v24, s[16:19], s39 offen sc0 sc1')]
    seq=dmaX()+dmaW(2+h)+dmaX(); ne=(0,9,14)[EB]
    if EB:
        kw=len(S); ks=[i for i,x in enumerate(P) if 'buffer_store' in x][0]
        G2=[seq[i]+seq[i+1] if len(seq[i])==1 and 'm0' in seq[i][0] else seq[i] for i in range(ne) if not (i and len(seq[i-1])==1 and 'm0' in seq[i-1][0])]
        lo={0:0,1:kw+1,2:ks}[opt.get('ebg',0) if h else opt.get('eba',1)]
        P=[x+' ; @sw' if i==kw else x for i,x in enumerate(P)]
        P=weave(P[:ks],G2[:7],lo,ks)+P[ks:]+flat(G2[7:])
        kw=[i for i,x in enumerate(P) if '@sw' in x][0]
        P[kw]=I('s_waitcnt vmcnt(%d)'%(4+NQ+sum('buffer_load' in x for x in P[:kw])))
        seq=seq[ne:]
    P+=[I('s_waitcnt vmcnt(%d)'%((3 if isz else 2)+(0,7,11)[EB])), I('s_barrier')]
    k0=len(P)
    if CHK: P+=rdN(0,0)[:2]+rdT(0)[:1]+rdN(0,0)[2:]+rdT(0)[1:]+rdT(1)[::-1]+flat([rdN(a,0) for a in range(1,NFR-1)])
    else:
        P+=flat(rdB(0,0))+rdA(0)+advA(0)
        for a in range(1,NFR): P+=flat(rdB(a,0))
    P+=[I('s_mov_b32 s22, 6')]+([] if CHK else [SMF])+([I('s_setprio %d'%opt['k1p'+kind])] if opt.get('k1p'+kind) else [])
    w0=lambda lab,Z: [I('s_cmp_lg_u32 s25, 0'), I('s_cbranch_scc1 %s_%s'%(lab,tg))]+Z+['%s_%s:'%(lab,tg)]
    pub=[] if h else w0('L_k1_np',[I('v_mov_b32 v28, 1'), I('v_mov_b32 v29, 0'), I('s_mov_b64 exec, 1'),
         I('buffer_atomic_add v28, v29, s[52:55], s47 offen sc1'), I('s_mov_b64 exec, -1'), I('v_lshlrev_b32 v27, 5, v0')])
    n0=len(seq)
    if not h: seq+=dmaW(4)+pfW
    if not seq: seq=[[]]
    pos=[(-1+(k*NM)//len(seq)) if k<n0 else max(GB,-1+(k*NM)//len(seq)) for k in range(len(seq))]
    VW1=I('s_waitcnt vmcnt(%d) lgkmcnt(0)'%(4 if EB and h else 4+NQ+NP_))
    ex0={}; ex1={GB+1:list(pub)}
    if SDEF and setup:
        ch=chunks(setup)
        for k,c in enumerate(ch):
            g=(k*2*NM)//len(ch); (ex0 if g<NM else ex1).setdefault(g%NM,[]).extend(c)
    if CHK:
        assert EB==1 and not hooks.get('loop')
        for x in setup+flat(flat([list(v.values()) for v in hooks.values()])):
            if is_instr(x): assert not any(r[0]=='v' and 64<=r[1]<96 for r in Ins(x).w),x
        e1=dict(ex1); e1[GB+1]=e1[GB+1][len(pub):]; e1[BE]=pub+e1.get(BE,[])
        f01=dstep(0,c0=True,extra=two(ex0,e1),pre=[(-1+(k*(B0 or NM-1))//n0,seq[k]) for k in range(n0)])
        first=P[:k0]+auto_lgkm(P[k0:]+f01,pre=[])
        body=auto_lgkm(dstep(1)+dstep(2))
    else:
        f0=step(0,list(zip(pos,seq)),c0=True,vw=[I('s_waitcnt lgkmcnt(0)')],dense=True,extra=ex0)
        f1=step(1,dma(1),extra=ex1,vw=[VW1])
        first=P[:k0]+auto_lgkm(P[k0:]+f0+f1,pre=[])
        body=auto_lgkm(flat([step(s,dma(s),extra=hooks.get('loop') if s==2 else None) for s in range(2,6)]))
    Lp='L_k1_loop_%s'%tg
    loop=[Lp+':']+body+[I('s_sub_u32 s22, s22, 1'), I('s_cmp_lg_u32 s22, 0'), I('s_cbranch_scc1 %s'%Lp)]
    ask=[I('s_mov_b64 exec, 0xff'), I('buffer_load_dword v28, v27, s[52:55], 0 offen sc1'), I('s_mov_b64 exec, -1')]
    chk=[] if h else w0('L_k1_ck',[I('s_mov_b32 s27, 0x40000'), 'L_k1_chl_%s:'%tg, I('v_cmp_le_u32 vcc, 32, v28'), I('s_nop 1'), I('s_and_b32 s26, vcc_lo, 0xff'), I('s_cmp_eq_u32 s26, 0xff'),
        I('s_cbranch_scc1 L_k1_ck_%s'%tg), I('s_sleep 2')]+cond(ask)+[I('s_waitcnt vmcnt(0)'), I('s_sub_u32 s27, s27, 1'), I('s_cmp_lg_u32 s27, 0'), I('s_cbranch_scc1 L_k1_chl_%s'%tg)])
    g=GB+1
    ex29={0:[I('v_bfe_u32 v1, v0, 3, 1'), I('v_and_b32 v24, 7, v0'), I('s_lshl_b32 s26, s23, 12')],
          1:[I('v_lshlrev_b32 v1, 7, v1'), I('s_lshl_b32 s27, s42, 10')],
          2:[I('v_lshl_add_u32 v1, v24, 3, v1'), I('s_add_u32 s43, s26, s27')]}
    for t in range(4): ex29[g+1+t]=tag([I('buffer_load_dwordx2 %s, v1, s[92:95], s43 offen offset:%d sc1'%(p(ST+2*t),256*t))],'st')
    ex28={0:[I('v_and_b32 v2, 31, v0'), I('s_add_u32 s26, s35, s46'), I('s_lshl_b32 s26, s26, 7'), I('s_add_u32 s26, s26, %d'%CS)],
          1:[I('v_lshl_add_u32 v2, v2, 2, s26'), I('v_lshrrev_b32 v3, 4, v0')],
          2:[I('v_lshlrev_b32 v3, 4, v3'), I('v_lshlrev_b32 v4, 4, v0')],
          6:[I('v_mov_b32 v6, %d'%(ARR+4*h)), I('v_mov_b32 v7, 0')], 7:[I('ds_write_b32 v6, v7')]}
    def merge(a,b):
        c={k:list(v) for k,v in a.items()}
        for k,v in (b or {}).items(): c.setdefault(k,[]).extend(v)
        return c
    tgd=lambda G: [tag(x,'k1') for x in G] if G else G
    e0=step(26,tgd(dma(26)),extra={0:[] if h else w0('L_k1_ak',cond(ask))})+step(27,tgd(dma(27)),vw=[VWt])+step(28,None,extra=merge(ex28,hooks.get(28)),vw=[VWt])
    e0+=step(29,None,extra=merge(ex29,hooks.get(29)),vw=[wvm('k1',True)]+chk,pre_last=True)
    if CHK:
        x29={k-NM:v for k,v in ((NM-4+k if k<3 else NM+BE+k-g-1,v) for k,v in ex29.items())}
        e0=dstep(13,extra={0:[] if h else w0('L_k1_ak',cond(ask))},tg_=tgd)
        e0+=dstep(14,extra=two(merge(ex28,hooks.get(28)),merge(x29,hooks.get(29))),vw=[wvm('k1',B0 is None)]+chk,pre_last=True)
    csr=lambda a: CSB+4*(a&1)+(-8 if isz else 8)*((a>>1)&1)
    def rdc(i): return phys(i)+[I('s_lshl_b32 s26, s26, 7'), I('s_add_u32 s26, s26, %d'%(CS+(0 if h else 256))), I('v_add_u32 v5, s26, v3')]+[
        I('ds_read_b128 %s, v5 offset:%d'%(vr(csr(2*i+f),4),64*f)) for f in range(2)]
    def last2(prep, epi, span=16):
        spine=[m16(acc(2*i+f,t),(BF+8*i if j==0 else (X0 if i==0 else BF+8*(i-1)))+4*f,AB+16*j+4*t) for i in range(NB) for j in range(2) for f in range(2) for t in range(4)]
        p8=((0,0),(0,1),(1,1),(1,0),(1,2),(1,3),(0,3),(0,2))
        if CHK: spine=[m16(acc(2*i+f,t),NR(2*i+f,j),AB+16*j+4*t) for i in range(NB) for n,(f,t) in enumerate(p8) for j in ((0,1),(1,0))[n&1]]
        fill={}
        def add(g,x): fill.setdefault(g,[]).extend(x)
        for k,r in enumerate(rdT(2)+rdT(3) if CHK else rdA(1)): add(k,[r])
        add(1,[I('v_bfe_u32 v5, v0, 4, 1')]); add(2,[I('v_cmp_eq_u32 vcc, 0, v5')])
        add(4,[I('v_add_f32 v%d, v%d, v%d'%(CD,CD,CD+1)), I('v_add_f32 v%d, v%d, v%d'%(CD+2,CD+2,CD+3))])
        add(5,[I('v_cndmask_b32 v%d, v%d, v%d, vcc'%(CD,CD+2,CD)), I('ds_write_b32 v2, v%d'%CD)])
        add(7,[I('s_waitcnt lgkmcnt(0)'), I('s_barrier'), '; @L2']+rdc(0))
        if CHK:
            for k,r in enumerate(rdN(NFR-1,15)): add(8+k,[r])
        for i in range(1,0 if CHK else NB):
            for k,r in enumerate(rdB(2*i,31,BF+8*(i-1))+rdB(2*i+1,31,BF+8*(i-1)+4)): add(16*(i-1)+8+k,r)
        add(11,[wvm('st')])
        for k,x in enumerate(prep): add(12+(k*4)//len(prep),[x])
        for g,x in hooks.get('l2',{}).items(): add(g,x)
        for i in range(NB-1):
            E=epi(i)
            for k,x in enumerate(E): add(16+span*i+(k*span)//len(E),[x])
        return interleave(spine,fill)+epi(NB-1)
    def center(a,pk):
        if pk: return [I('v_pk_fma_f32 %s, %s, %s, %s op_sel_hi:[1,0,1]'%(p(acc(a,t)+2*i),p(csr(a)+2*i),p(ST+2*t),p(acc(a,t)+2*i))) for t in range(4) for i in range(2)]
        return [I('v_fmac_f32 v%d, v%d, v%d'%(acc(a,t)+i,csr(a)+i,ST+2*t)) for t in range(4) for i in range(4)]
    def scale(a,pk):
        if pk: return [I('v_pk_mul_f32 %s, %s, %s op_sel_hi:[1,0]'%(p(acc(a,t)+2*i),p(acc(a,t)+2*i),p(24+2*t))) for t in range(4) for i in range(2)]
        return [I('v_mul_f32 v%d, v%d, v%d'%(acc(a,t)+i,acc(a,t)+i,24+2*t)) for t in range(4) for i in range(4)]
    def put(i):
        E=phys(i)+[I('s_lshl_b32 s26, s26, 17'), I('s_add_u32 s27, s26, s31')]
        for t in range(4):
            a=acc(2*i,t); b=acc(2*i+1,t)
            E+=[I('v_cvt_pk_bf16_f32 v%d, v%d, v%d'%(a,a,a+1)), I('v_cvt_pk_bf16_f32 v%d, v%d, v%d'%(a+1,a+2,a+3)),
                I('v_cvt_pk_bf16_f32 v%d, v%d, v%d'%(a+2,b,b+1)), I('v_cvt_pk_bf16_f32 v%d, v%d, v%d'%(a+3,b+2,b+3)),
                I('buffer_store_dwordx4 %s, v4, s[16:19], s27 offen offset:%d %s'%(vr(a,4),t*1024,STM))]
        return tag(E,'kst')
    aux={}
    if not isz:
        PK=opt.get('bmpk',0)
        NI=opt.get('ni'+tg,NB-1)
        def epi(i,pk):
            return (rdc(i+1) if i<NB-1 else [])+center(2*i,pk)+scale(2*i,pk)+center(2*i+1,pk)+scale(2*i+1,pk)+put(i)
        E=[I('s_setprio %d'%opt.get('gp' if h else 'qp',3 if h else 2))]
        if h and 'gpz' in opt: E+=[I('s_cmp_eq_u32 s58, 0'), I('s_cbranch_scc1 L_k1_gpz'), I('s_setprio %d'%opt['gpz']), 'L_k1_gpz:']
        E+=last2([I('v_mul_f32 v%d, s56, v%d'%(24+2*t,ST+2*t+1)) for t in range(4)],lambda i: epi(i,PK) if i<NI else [],16*(NB-1)//max(min(NI,NB-1),1))
        E+=flat([epi(i,1) for i in range(NI,NB)])+[I('s_setprio 0')]
    else:
        T=240; K1=96 if CHK else 88; K2=120; RR=24; SS=224; QQ=232
        def gel(a):
            xs=[(acc(a,0)+2*k,T+2*k,k//2) for k in range(8)]
            G=[I('v_pk_mul_f32 %s, %s, %s'%(p(w),p(x),p(x))) for x,w,t in xs]
            G+=[I('v_fma_f32 v%d, v%d, v%d, v%d'%(w+k,w+k,K2+2*t,K1+2*t)) for x,w,t in xs for k in range(2)]
            G+=[I('v_pk_mul_f32 %s, %s, %s'%(p(w),p(w),p(x))) for x,w,t in xs]
            G+=[I('v_exp_f32 v%d, v%d'%(w+k,w+k)) for x,w,t in xs for k in range(2)]
            G+=[I('v_pk_add_f32 %s, %s, 1.0 op_sel_hi:[1,0]'%(p(w),p(w))) for x,w,t in xs]
            G+=[I('v_rcp_f32 v%d, v%d'%(w+k,w+k)) for x,w,t in xs for k in range(2)]
            G+=[I('v_pk_mul_f32 %s, %s, %s'%(p(x),p(x),p(w))) for x,w,t in xs]
            return G
        prep=[I('v_mul_f32 v%d, 0x%x, v%d'%(K1+2*t,f2u(GC1),ST+2*t+1)) for t in range(4)]+[I('v_mul_f32 v%d, v%d, v%d'%(K2+2*t,ST+2*t+1,ST+2*t+1)) for t in range(4)]
        prep+=[I('v_mov_b32 v%d, v%d'%(RR+t,ST+2*t+1)) for t in range(4)]
        prep+=[I('v_mul_f32 v%d, v%d, v%d'%(K2+2*t,K2+2*t,K1+2*t)) for t in range(4)]+[I('v_mul_f32 v%d, 0x%x, v%d'%(K2+2*t,f2u(0.044715),K2+2*t)) for t in range(4)]
        def sums(a):
            Z=[]
            for t in range(4):
                x=acc(a,t)
                if a==0: Z+=[I('v_pk_add_f32 %s, %s, %s'%(p(SS+2*t),p(x),p(x+2))), I('v_pk_mul_f32 %s, %s, %s'%(p(QQ+2*t),p(x),p(x)))]
                else: Z+=[I('v_pk_add_f32 %s, %s, %s'%(p(SS+2*t),p(SS+2*t),p(x))), I('v_pk_fma_f32 %s, %s, %s, %s'%(p(QQ+2*t),p(x),p(x),p(QQ+2*t))),
                          I('v_pk_add_f32 %s, %s, %s'%(p(SS+2*t),p(SS+2*t),p(x+2)))]
                Z+=[I('v_pk_fma_f32 %s, %s, %s, %s'%(p(QQ+2*t),p(x+2),p(x+2),p(QQ+2*t)))]
            return Z
        ce=lambda i: center(2*i,1)+center(2*i+1,1)+(rdc(i+1) if i<NB-1 else [])
        def zepi(i):
            el=[(acc(a,t)+k,csr(a)+k,t,a,k) for a in (2*i,2*i+1) for k in range(4) for t in range(4)]
            w=lambda e: T+(e&15)
            def stage(s_,e):
                x,c,t,a,k=el[e]; first=(i==0 and a==0 and k<2)
                return {0:[I('v_fmac_f32 v%d, v%d, v%d'%(x,c,ST+2*t))], 1:[I('v_mul_f32 v%d, v%d, v%d'%(w(e),x,x))], 2:[I('v_fma_f32 v%d, v%d, v%d, v%d'%(w(e),w(e),K2+2*t,K1+2*t))],
                        3:[I('v_mul_f32 v%d, v%d, v%d'%(w(e),w(e),x))], 4:[I('v_exp_f32 v%d, v%d'%(w(e),w(e)))], 5:[I('v_add_f32 v%d, 1.0, v%d'%(w(e),w(e)))],
                        6:[I('v_rcp_f32 v%d, v%d'%(w(e),w(e)))], 7:[I('v_mul_f32 v%d, v%d, v%d'%(x,x,w(e)))],
                        8:[I('v_mov_b32 v%d, v%d'%(SS+2*t+(k&1),x)) if first else I('v_add_f32 v%d, v%d, v%d'%(SS+2*t+(k&1),SS+2*t+(k&1),x))],
                        9:[I('v_mul_f32 v%d, v%d, v%d'%(QQ+2*t+(k&1),x,x)) if first else I('v_fmac_f32 v%d, v%d, v%d'%(QQ+2*t+(k&1),x,x))]}[s_]
            order=opt.get('zord',[(0,0),(1,1),(4,4),(2,2),(3,3),(5,6),(6,7),(7,9),(8,10),(9,10)])
            out=[]
            for slot in range(32+max(d for _,d in order)):
                for s_,d in order:
                    if 0<=slot-d<32: out+=stage(s_,slot-d)
                if slot==0 and i<NB-1: out+=rdc(i+1)
            return out
        def zepk(blks):
            el=[(acc(a,t)+2*k,csr(a)+2*k,t,a,k) for i in blks for a in (2*i,2*i+1) for k in range(2) for t in range(4)]
            w=lambda e: T+2*(e&7)
            def stage(s_,e):
                x,c,t,a,k=el[e]; first=(a==0 and k==0); W=p(w(e)); X_=p(x)
                return {0:I('v_pk_fma_f32 %s, %s, %s, %s op_sel_hi:[1,0,1]'%(X_,p(c),p(ST+2*t),X_)), 1:I('v_pk_mul_f32 %s, %s, %s'%(W,X_,X_)),
                        2:I('v_pk_fma_f32 %s, %s, %s, %s op_sel_hi:[1,0,0]'%(W,W,p(K2+2*t),p(K1+2*t))), 3:I('v_pk_mul_f32 %s, %s, %s'%(W,W,X_)),
                        4:I('v_exp_f32 v%d, v%d'%(w(e),w(e))), 14:I('v_exp_f32 v%d, v%d'%(w(e)+1,w(e)+1)), 5:I('v_pk_add_f32 %s, %s, 1.0 op_sel_hi:[1,0]'%(W,W)),
                        6:I('v_rcp_f32 v%d, v%d'%(w(e),w(e))), 16:I('v_rcp_f32 v%d, v%d'%(w(e)+1,w(e)+1)), 7:I('v_pk_mul_f32 %s, %s, %s'%(X_,X_,W)),
                        8:I('v_pk_add_f32 %s, %s, 0 op_sel_hi:[1,0]'%(p(SS+2*t),X_)) if first else I('v_pk_add_f32 %s, %s, %s'%(p(SS+2*t),p(SS+2*t),X_)),
                        9:I('v_pk_mul_f32 %s, %s, %s'%(p(QQ+2*t),X_,X_)) if first else I('v_pk_fma_f32 %s, %s, %s, %s'%(p(QQ+2*t),X_,X_,p(QQ+2*t)))}[s_]
            order=[(4,4),(0,0),(1,1),(14,4),(2,2),(3,3),(6,6),(5,5),(7,7),(16,6),(8,8),(9,8)]
            out=[]; n=len(el)
            for slot in range(n+8):
                out+=[stage(s_,slot-d) for s_,d in order if 0<=slot-d<n]
                if slot%16==0 and slot<n and blks[slot//16]<NB-1: out+=rdc(blks[slot//16]+1)
            return out
        ZM=opt.get('zms',2)
        if ZM==2: E=[I('s_setprio %d'%opt.get('z2p',0))]+last2(prep,lambda i: zepi(0) if i==0 else [],16*(NB-1)-opt.get('zsh',0))+[I('s_setprio 2')]+zepk(list(range(1,NB)))
        elif ZM==3: E=[I('s_setprio %d'%opt.get('z2p',0))]+last2(prep,lambda i: [])+[I('s_setprio 2')]+zepk(list(range(NB)))
        else: E=[I('s_setprio %d'%opt.get('z2p',2))]+last2(prep,zepi if ZM else lambda i: (unpk if opt.get('zu',1) else list)(ce(i)+gel(2*i)+sums(2*i)+gel(2*i+1)+sums(2*i+1)))
        T=64
        for b in (SS,QQ): E+=[I('v_add_f32 v%d, v%d, v%d'%(b+2*t,b+2*t,b+2*t+1)) for t in range(4)]
        for b in (SS,QQ,QQ): E+=[I('v_mul_f32 v%d, v%d, v%d'%(b+2*t,b+2*t,RR+t)) for t in range(4)]
        for b in (SS,QQ): E+=[I('v_permlane16_swap_b32 v%d, v%d'%(b,b+2)), I('v_permlane16_swap_b32 v%d, v%d'%(b+4,b+6))]
        for b in (SS,QQ): E+=[I('v_add_f32 v%d, v%d, v%d'%(b,b,b+2)), I('v_add_f32 v%d, v%d, v%d'%(b+4,b+4,b+6))]
        for b in (SS,QQ): E+=[I('v_permlane32_swap_b32 v%d, v%d'%(b,b+4))]
        E+=[I('v_add_f32 v28, v%d, v%d'%(SS,SS+4)), I('v_add_f32 v29, v%d, v%d'%(QQ,QQ+4)), I('v_lshlrev_b32 v5, %d, v0'%(4 if opt.get('f4',0) else 3)), I('v_min_f32 v29, 0x7f800000, v29'),
            I('buffer_store_dwordx2 v[28:29], v5, s[16:19], s39 offen sc0 sc1'), I('s_setprio 0')]
        F=[I('s_mov_b32 s26, s38')]
        if opt.get('f4',0):
            for k in range(10):
                F+=[I('buffer_load_dwordx4 %s, v5, s[16:19], s26 offen offset:%d sc1'%(vr(T+4*k,4),(k&3)*1024))]
                if k&3==3: F+=[I('s_add_u32 s26, s26, 4096')]
        else:
            for k in range(20):
                F+=[I('buffer_load_dwordx2 %s, v5, s[16:19], s26 offen offset:%d sc1'%(p(T+2*k),(k&1)*2048))]
                if k&1: F+=[I('s_add_u32 s26, s26, 4096')]
        F+=[I('s_waitcnt vmcnt(%d)'%(5 if opt.get('f4',0) else 10))]+[I('v_pk_add_f32 %s, %s, %s'%(p(T+2*k),p(T+2*k),p(T+2*k+10))) for k in range(5)]
        F+=[I('s_waitcnt vmcnt(0)')]+[I('v_pk_add_f32 %s, %s, %s'%(p(T+20+2*k),p(T+20+2*k),p(T+30+2*k))) for k in range(5)]
        F+=[I('v_pk_add_f32 %s, %s, %s'%(p(T+2*k),p(T+2*k),p(T+20+2*k))) for k in range(5)]
        F+=[I('v_pk_add_f32 %s, %s, %s'%(p(T),p(T),p(T+2))), I('v_pk_add_f32 %s, %s, %s'%(p(T+4),p(T+4),p(T+6))),
            I('v_pk_add_f32 %s, %s, %s'%(p(T),p(T),p(T+8))), I('v_pk_add_f32 %s, %s, %s'%(p(T),p(T),p(T+4))), I('s_nop 0'),
            I('v_cmp_u_f32 vcc, v%d, v%d'%(T+1,T+1))]
        SH=40
        N=[I('v_mul_f32 v28, 0x%x, v%d'%(f2u(1/1792),T)), I('v_mul_f32 v29, 0x%x, v%d'%(f2u(1/1792),T+1)),
            I('v_fma_f32 v29, -v28, v28, v29'), I('v_max_f32 v29, 0, v29'), I('v_add_f32 v29, 0x3727c5ac, v29'), I('v_rsq_f32 v%d, v29'%ST),
            I('s_nop 0'), I('v_mul_f32 v%d, -v28, v%d'%(ST+1,ST))]
        N+=[I('v_mov_b32 v%d, v%d'%(ST+4+i,ST+i)) for i in range(2)]+[I('v_permlane32_swap_b32 v%d, v%d'%(ST+i,ST+4+i)) for i in range(2)]
        N+=[I('v_mov_b32 v%d, v%d'%(ST+2+i+4*k,ST+i+4*k)) for k in range(2) for i in range(2)]
        N+=[I('v_permlane16_swap_b32 v%d, v%d'%(ST+i+4*k,ST+2+i+4*k)) for k in range(2) for i in range(2)]
        N+=[I('v_mov_b32 v%d, v%d'%(SH+2*t,ST+2*t+1)) for t in range(4)]+[I('v_mul_f32 v%d, v%d, v%d'%(ST+2*t,ST+2*t,RR+t)) for t in range(4)]
        for i in range(NB):
            for a in (2*i,2*i+1):
                for t in range(4):
                    for k in range(2): N+=[I('v_pk_fma_f32 %s, %s, %s, %s op_sel_hi:[1,0,0]'%(p(acc(a,t)+2*k),p(acc(a,t)+2*k),p(ST+2*t),p(SH+2*t)))]
            N+=put(i)
        if opt.get('nu',0): N=unpk(N); F=unpk(F)
        aux={'F':F,'N':N}
    tail=auto_lgkm(e0+E,pre=body)
    return first, body, loop, tail, aux

def gen_k1only(name, opt):
    L=kernel_header(name); B=prologue(opt); C=[]
    for kind,NB in (('g',2),('q',3),('q',2),('z',3),('z',2)):
        first,body,loop,tail,aux=stream(kind,NB,opt); tg=kind+str(NB)
        if aux:
            tail=tail+[I('s_mov_b32 s27, 0x4000'), I('s_sleep %d'%opt.get('zs0',8)), 'L_zp_%s:'%tg]+aux['F']+[I('s_sub_u32 s27, s27, 1'), I('s_cbranch_scc1 L_zg_%s'%tg), I('s_cbranch_vccz L_zg_%s'%tg),
                I('s_sleep 2'), I('s_branch L_zp_%s'%tg), 'L_zg_%s:'%tg]+aux['N']
        tail=resolve_vm(tail)
        C+=first+loop+tail+[I('s_branch L_done')]
        t,_=fix_hazards(B+first+body+body+tail); check_waits(t,'k1'+tg)
        fix_hazards(body+body,auto=False,tag='k1loop'+tg)
    Zs=['L_done:']
    if opt.get('rt'): Zs+=[I('s_waitcnt vmcnt(0)'), I('s_barrier'), I('s_cmp_lg_u32 s25, 0'), I('s_cbranch_scc1 L_end')]
    Zs+=rt_end(opt,0,'k1',sreg=96)
    code,_=fix_hazards(B+C+Zs+['L_end:', I('s_endpgm')])
    return L+code, kernel_desc(name,256,256,102), '; @launch kernel=%s grid=(256,1,1) block=(512,1,1) lds=163840'%name
if __name__=='__main__':
    from build import *
    opt=json.loads(sys.argv[2]) if len(sys.argv)>2 else {}
    assemble([gen_k1only('x_kernel',opt)], sys.argv[1])
```

```python
from common import *
import k4a
from k4a import m16, flat, tag, cond, wvm, resolve_vm, sprinkle, unpk, OOB, RP
Q=240; KB=32; VB=48; SA=64; SB=80; PA=96; PB=104; OA=112; OB=128; LA=144; LB=148; ONES=152; vIDX=156
vK,vV0,vD=4,5,7
vL16=11
KV=131072
FR=32; G=96; ACC=160
vOA=224; vOB=228; vA=230; vB=238; vBIAS=242
zOA=192; zOB=196; zB=200; zIDX=202; zSEL=204; CD0=234; CD1=250
CSZ=12; NM_=(2,4,6,8); RS_=(28,30,254,10); vF=29
REG=[0,32768,65536,98304]
AR=32; FR3=160; Y=192; XR=224; S0=128; S1=144
vW=16; vA3=20; vB3=22; vX=28
WSL=lambda t: (t%8)*16384
def gen(name, opt={}):
    TST=opt.get('tst'); RO=opt.get('ro',8)
    L=kernel_header(name)
    STAMP=opt.get('stamp')
    def st(k): return [I('%s s[%d:%d]'%('s_memrealtime' if opt.get('real') else 's_memtime',76+2*k,77+2*k)), I('s_waitcnt lgkmcnt(0)')] if STAMP else []
    bar=[I('s_barrier')]; gbr=bar
    NC=opt.get('nc',11); CW=opt.get('cw',3); CQ=opt.get('cq',5); CK=opt.get('ck',8)
    NX=opt.get('nx',1); DE=opt.get('de',3)
    XB=opt.get('xb',{'q3':5,'q2':8,'z3':3,'z2':7}); DA=opt.get('da',{'q3':6,'q2':9,'z3':4,'z2':8}); XS=opt.get('xs',{'z3':3,'z2':7})
    PG=opt.get('pg_',1); PQ=opt.get('pq',{'q3':2,'q2':2}); ZQ=opt.get('zq',11); ZK=opt.get('zk',12); NZX=opt.get('nzx',1)
    GZE=opt.get('gze',1)
    FBR=opt.get('fbr',{}); XA=opt.get('xa',{})
    ALF=opt.get('alf',0)
    EX=opt.get('ex',{})
    NBAR=min(48+NZX+NC+15+NX-DA[c]+min(EX.get(c,0),EX.get('z3i',0) if c=='z3' else 99) for c in DA)
    assert NBAR>=65 or len(set(DA.values()))==1 and NBAR>=60
    assert PG+2<=min(XB[c]-FBR.get(c,0)*0 for c in XB if c=='q2' or (c=='q3' and GZE<2) or not GZE) and all(PQ[c]+1<=DA[c] and PQ[c]<=XB[c] for c in PQ) and min(XB.values())>=1
    assert max(DA['z3'],DA['z2'])+1+ALF<=ZK and ZQ<ZK and ZK<=15+NZX and all(XB[c]<=DA[c] for c in XB) and all(1<=XS[c]<=XB[c] for c in XS)
    p=lambda b: vr(b,2)
    b3addr=[I('v_lshrrev_b32 v13, 5, v0'), I('v_and_b32 v12, 31, v0'), I('v_lshlrev_b32 v12, 3, v12'), I('v_lshl_add_u32 v%d, v13, 10, v12'%vB3),
        I('v_add_u32 v%d, 65536, v%d'%(vB3+1,vB3))]
    b3addr+=[I('v_mov_b32 v%d, v%d'%(vA3,vL16)), I('v_add_u32 v%d, 4096, v%d'%(vA3+1,vL16)),
        I('s_lshl_b32 s43, s64, 2'), I('s_add_u32 s43, s43, s42')]
    def ldA(st_):
        Gr=[[I('buffer_load_dwordx4 %s, v%d, s[8:11], s24 offen offset:%d'%(vr(AR+32*st_+4*i,4),vA3+i//4,(i%4)*1024))] for i in range(8)]
        Gr[-1]+=[I('s_add_u32 s24, s24, 8192')]
        return Gr
    def dmaW(t):
        Gr=[[I('buffer_load_dwordx4 v%d, s[12:15], s58 offen offset:%d lds'%(vW+i,i*1024))] for i in range(4)]
        off=I('s_mov_b32 s58, %d'%((t-14)*128*2048)) if t>=14 else I('s_add_u32 s58, s%d, %d'%(56 if t<7 else 57,t*128*2048))
        return [[I('s_add_u32 m0, s41, %d'%WSL(t)), off]]+Gr
    def rd3(t,j):
        f=FR3+16*(j&1)
        if isinstance(t,tuple): return [I('ds_read_b64_tr_b16 %s, v%d offset:%d'%(vr(f+4*n+2*u,2),t[0],j*4096+u*2048+n*256)) for n in range(4) for u in range(2)]
        a=WSL(t)
        return [I('ds_read_b64_tr_b16 %s, v%d offset:%d'%(vr(f+4*n+2*u,2),vB3+(a>>16),(a&0xffff)+j*4096+u*2048+n*256)) for n in range(4) for u in range(2)]
    CH=opt.get('ch',0)
    def rd3n(t,jp,n): return [r for j in ((2*jp,2*jp+1)) for r in rd3(t,j)[2*n:2*n+2]]
    def rd3p(t): return rd3n(t,0,0)+rd3n(t,0,1) if CH&2 else rd3(t,0)
    def tile3(t, aset, acc, c0, nxt, mid, early={}, late=[]):
        spine=[m16(acc[h]+4*n,FR3+16*(j&1)+4*n,AR+32*aset+8*j+4*h,'0' if (c0 and j==0) else None) for j in range(4) for n in range(4) for h in (0,1)]
        fill={}
        def add(g,x): fill.setdefault(g,[]).extend(x)
        if CH&2:
            spine=[m16(acc[h]+4*n,FR3+16*(j&1)+4*n,AR+32*aset+8*j+4*h,'0' if (c0 and jp==0 and q==0) else None)
                   for jp in range(2) for n in range(4) for k,h in enumerate(((0,1),(1,0))[n&1]) for q,j in enumerate(((2*jp,2*jp+1),(2*jp+1,2*jp))[k])]
            B3=opt.get('b3',23); add(B3,mid)
            R=rd3n(t,0,2)+rd3n(t,0,3)+flat([rd3n(t,1,n) for n in range(4)])
            e3=opt.get('e3',0)
            for k,r in enumerate(R): add(k if k<8 else max(k-e3,4*((k-8)//4)+3),[r])
            if nxt is not None:
                for k,r in enumerate(rd3p(nxt)): add(max(B3+1+k,19+4*(k//4)),[r])
        else:
            add(23,mid)
            for j in range(4):
                R = rd3(t,j+1) if j<3 else (rd3(nxt,0) if nxt is not None else [])
                for k,r in enumerate(R): add(8*j+k,[r])
        for g,x in early.items(): add(g,x)
        for k,g in enumerate(late): add(24+(k*8)//len(late),g)
        return interleave(spine,fill)
    def pub1(lab,wave,off,n):
        return cond([I('s_cmp_lg_u32 s25, %d'%wave), I('s_cbranch_scc1 %s'%lab), I('s_mov_b64 exec, %d'%((1<<n)-1)), I('v_mov_b32 v14, 1'), I('v_lshlrev_b32 v15, 7, v0'),
                I('buffer_atomic_add v14, v15, s[48:51], %s offen sc1'%off), I('s_mov_b64 exec, -1'), lab+':'])
    def ask1(lab,wave,off):
        return [I('s_cmp_lg_u32 s25, %d'%wave), I('s_cbranch_scc1 %s'%lab), I('s_mov_b64 exec, 1'), I('v_mov_b32 v12, 0'),
                I('buffer_load_dword v15, v12, s[48:51], %s offen sc1'%off), I('s_mov_b64 exec, -1'), lab+':']
    def chk1(lab,wave,off,n,landed=False):
        return [I('s_cmp_lg_u32 s25, %d'%wave), I('s_cbranch_scc1 %s'%lab), I('s_mov_b64 exec, 1'), I('s_mov_b32 s27, 0x40000')]+([I('s_branch %s_k'%lab)] if landed else [])+[
                lab+'_l:', I('s_waitcnt vmcnt(0)'), lab+'_k:', I('v_readfirstlane_b32 s26, v15'), I('s_sub_u32 s27, s27, 1'), I('s_cmp_ge_u32 s26, %d'%n), I('s_cbranch_scc1 %s_g'%lab),
                I('s_sleep %d'%opt.get('slp',1)), I('buffer_load_dword v15, v12, s[48:51], %s offen sc1'%off), I('s_cmp_lg_u32 s27, 0'), I('s_cbranch_scc1 %s_l'%lab),
                lab+'_g:', I('s_mov_b64 exec, -1'), lab+':']
    def wait_lines(lab,nl,tgt,va,pre=None,vd=15):
        msk=(1<<nl)-1
        ld=cond([I('buffer_load_dword v%d, v%d, s[48:51], 0 offen sc1'%(vd,va))])
        return [I('s_mov_b64 exec, %d'%msk), I('s_mov_b32 s47, 0x40000')]+(ld if pre is None else pre+[I('s_branch %s_k'%lab)])+[lab+'_l:', I('s_waitcnt vmcnt(0)'), lab+'_k:', I('v_cmp_le_u32 s[26:27], %d, v%d'%(tgt,vd)), I('s_sub_u32 s47, s47, 1'),
                I('s_nop 0'), I('s_cmp_eq_u32 s26, %d'%msk), I('s_cbranch_scc1 %s_g'%lab), I('s_sleep %d'%opt.get('slp1',1))]+ld+[I('s_cmp_lg_u32 s47, 0'), I('s_cbranch_scc1 %s_l'%lab),
                lab+'_g:', I('s_mov_b64 exec, -1')]
    LRP=RP.bit_length()-1
    def arrive(lab,h,pre):
        return cond([I('v_mov_b32 v13, %d'%(KV+7*4096+4*h)), I('v_mov_b32 v14, 1'), I('v_lshlrev_b32 v15, 7, v0'), I('s_mov_b64 exec, 1')]+pre+[I('ds_add_rtn_u32 v13, v13, v14'), I('s_waitcnt lgkmcnt(0)'),
                I('v_readfirstlane_b32 s26, v13'), I('s_mov_b64 exec, %d'%((1<<RP)-1)), I('s_cmp_lg_u32 s26, 3'), I('s_cbranch_scc1 %s'%lab), I('buffer_atomic_add v14, v15, s[48:51], s74 offen sc1'), lab+':', I('s_mov_b64 exec, -1')])
    A1=[I('s_bfe_u32 s27, s2, 0x20003'), I('s_lshr_b32 s34, s2, 5'), I('v_lshlrev_b32 v%d, 4, v0'%vL16)]+([I('s_add_u32 s34, s34, s2'), I('s_and_b32 s34, s34, 7')] if opt.get('qmix',0) else [])+[
       I('s_and_b32 s26, s2, 7'), I('s_lshl_b32 s33, s26, 2'), I('s_add_u32 s33, s33, s27'),
       I('s_lshl_b32 s30, s34, 14'), I('s_lshl_b32 s27, s42, 12'), I('s_add_u32 s30, s30, s27'),
       I('s_and_b32 s26, s42, 1'), I('s_lshl_b32 s40, s26, 10'), I('s_lshl_b32 s41, s42, 10'), I('s_add_u32 s41, s41, %d'%KV),
       I('v_bfe_u32 v12, v0, 4, 1'), I('v_lshlrev_b32 v12, 7, v12'),
       I('s_cmp_ge_u32 s42, 2'), I('s_cselect_b32 s26, -1, 0'), I('v_and_b32 v12, s26, v12'), I('v_xor_b32 v%d, v%d, v12'%(vD,vL16)),
       I('s_lshl_b32 s26, s33, 17'), I('s_add_u32 s27, s26, 0x%x'%P1_OFF),
       I('s_lshr_b32 s35, s42, 1'), I('s_add_u32 s35, s35, 1'), I('s_lshl_b32 s35, s35, 22'), I('s_add_u32 s35, s35, s27')]
    A1+=srd(12,4,5,'s27',131072)+srd(8,4,5,'s35',131072)
    A1+=[I('v_lshl_add_u32 v12, v0, 5, s33'), I('v_mul_u32_u24 v13, 43, v12'), I('v_lshrrev_b32 v13, 10, v13'), I('v_mul_u32_u24 v14, 24, v13'), I('v_sub_u32 v12, v12, v14'),
         I('v_or_b32 v14, 1, v12'), I('v_cmp_gt_u32 vcc, 16, v12'), I('v_subrev_u32 v12, 15, v12'), I('v_mul_u32_u24 v12, 11, v12'), I('v_lshrrev_b32 v12, 5, v12'), I('v_lshlrev_b32 v12, 1, v12'),
         I('v_cndmask_b32 v12, v12, v14, vcc'), I('v_lshl_add_u32 v12, v13, 4, v12'), I('s_and_b32 s26, s34, %d'%(RP-1)), I('v_lshl_add_u32 v12, v12, %d, s26'%LRP), I('v_lshlrev_b32 v12, 7, v12')]
    def kvd(sl): return [I('s_add_u32 m0, s41, %d'%(sl*4096)), I('buffer_load_dwordx4 v%d, s[8:11], s40 offen lds'%vD), I('s_add_u32 s40, s40, 2048')]
    AL=[kvd(0)[0], I('s_nop 0')]+kvd(0)[1:]
    for i in range(4): AL+=[I('buffer_load_dwordx4 %s, v%d, s[12:15], s30 offen offset:%d'%(vr(Q+4*i,4),vL16,1024*i))]
    for sl in range(1,7): AL+=kvd(sl)
    dummy=lambda n: [I('v_mov_b32 v14, 0x%x'%OOB)]+[I('buffer_store_dwordx4 v[128:131], v14, s[16:19], 0 offen')]*n
    A2=[I('s_setprio %d'%opt.get('pa',1))]+srd(52,4,5,O_OFF,O_SIZE)
    A2+=[I('s_lshl_b32 s26, s34, 3'), I('s_lshl_b32 s27, s42, 1'), I('s_add_u32 s26, s26, s27'),
        I('s_lshl_b32 s26, s26, 5'), I('s_add_u32 s26, s26, s33'), I('s_lshl_b32 s46, s26, 11'),
        I('v_add_u32 v%d, %d, v%d'%(vK,KV,vL16)),
        I('v_bfe_u32 v14, v0, 1, 1'), I('v_and_b32 v13, 1, v0'), I('v_lshrrev_b32 v15, 2, v0'), I('v_lshlrev_b32 v12, 3, v14'), I('v_xor_b32 v15, v15, v12'),
        I('v_lshlrev_b32 v15, 4, v15'), I('v_lshl_add_u32 v15, v13, 3, v15'), I('v_lshl_add_u32 v15, v14, 8, v15'),
        I('v_add_u32 v%d, %d, v15'%(vV0,KV+2048)),
        I('v_lshrrev_b32 v12, 5, v0'), I('v_cmp_eq_u32 vcc, v14, v12'),
        I('v_mul_u32_u24 v13, 0xaaaa, v13'), I('v_add_u32 v%d, 0x4444, v13'%vIDX),
        I('v_mov_b32 v13, 0x3f803f80'), I('v_cndmask_b32 v%d, 0, v13, vcc'%ONES)]
    for i in range(1,4): A2+=[I('v_mov_b32 v%d, v%d'%(ONES+i,ONES))]
    NA2=min(min(DA[c]-XB[c]-XA.get(c,0) for c in XB),opt.get('na2',1))
    B=k4a.prologue(opt); CA=[]; trA=[]; PA_=[]
    for kind,NB in (('q',3),('q',2),('z',3),('z',2)):
        first,body1,loop1,tail,aux=k4a.stream(kind,NB,opt); tg=kind+str(NB)
        k=tail.index('; @L2')+1
        pos=opt.get('bp_'+tg,{'q3':[],'q2':[],'z3':[],'z2':[]}[tg])
        T=tail[:k]+sprinkle(tail[k:],pos,bar)+(st(3) if TST else [])+A1; nb=len(pos)
        fl=lambda vd: [I('s_mov_b64 exec, 7'), I('buffer_load_dword v%d, v12, s[48:51], 0 offen sc1'%vd), I('s_mov_b64 exec, -1')]
        FBk=FBR.get(tg,0); XAk=XA.get(tg,0)
        if kind=='q':
            assert nb<=PQ[tg]
            T+=bar*(PQ[tg]-nb)+arrive('L_t_p'+tg,0,[I('s_waitcnt vmcnt(0)')])+bar*(XB[tg]-PQ[tg]-FBk)
            if FBk: T+=fl(9)+bar*FBk
            pre=[I('s_waitcnt vmcnt(0)')] if FBk else None
        else:
            lab='L_t_z'+tg; F=aux['F']; kw=[i for i,x in enumerate(F) if 's_waitcnt' in x][0]
            ZFL=opt.get('zfl',1) and not ALF; NP=opt.get('nbp_'+tg,[])
            T+=bar*(XS[tg]-nb)+[I('s_mov_b32 s47, 0x4000')]
            if FBk: T+=([] if ZFL else fl(9))+F[:kw]+bar*FBk+[I('s_branch %s_w'%lab)]
            T+=[lab+'_l:']+([] if ZFL else fl(9))+F[:kw]+[lab+'_w:']+F[kw:]+[
                I('s_sub_u32 s47, s47, 1'), I('s_cbranch_scc1 %s_g'%lab), I('s_cbranch_vccz %s_g'%lab),
                I('s_sleep %d'%opt.get('zs1',2)), I('s_branch %s_l'%lab), lab+'_g:', '; @TR60']
            NN=sprinkle(aux['N'],NP,bar)+bar*(XB[tg]-XS[tg]-FBk-len(NP))
            if not ALF: T+=(tag(fl(9),'qf') if ZFL else [])+NN
            assert XB[tg]-XS[tg]-FBk-len(NP)>=0
            pre=[wvm('qf')] if ZFL else []
        if kind=='z' and ALF: T+=wait_lines('L_t_w'+tg,3,8,12,pre,9)+['; @TR61']+AL+NN+['; @TR62']+(st(4) if TST else [])+bar*XAk
        else: T+=['; @TR61']+wait_lines('L_t_w'+tg,3,8,12,pre,9)+(st(4) if TST else [])+['; @TR62']+AL+bar*XAk
        if kind=='z' and not ALF: T+=arrive('L_t_p'+tg,0,[wvm('kst')])
        assert DA[tg]-XB[tg]-NA2-XAk>=0
        T+=bar*(DA[tg]-XB[tg]-NA2-XAk)+[I('s_branch L_att')]
        T=resolve_vm(T)
        CA+=first+loop1+T; PA_.append((first,loop1,T,tg)); trA.append((tg,first+body1+body1+T))
        fix_hazards(body1+body1,auto=False,tag='k1loop'+tg)
    def rdK(i,base): return [I('ds_read_b128 %s, v%d offset:%d'%(vr(KB+8*(i&1)+4*f,4),vK,base+1024*f)) for f in range(2)]
    def rdV(i,base,v0=vV0,hs=1024): return [I('ds_read_b64_tr_b16 %s, v%d offset:%d'%(vr(VB+8*(i&1)+4*f+2*u,2),v0,base+512*f+hs*u)) for f in range(2) for u in range(2)]
    xf=((0,0),(0,1),(1,1),(1,0)) if CH&4 else ((0,0),(0,1),(1,0),(1,1))
    qk=lambda S_,k,q: [m16(S_+8*x+4*f,k+4*f,q+4*x,'0') for x,f in xf]
    pv=lambda O_,v,P_,c0=False: [m16(O_+8*x+4*f,v+4*f,P_+4*x,'0' if c0 else None) for x,f in xf]
    smf=lambda L_,P_: [I('v_smfmac_f32_16x16x64_bf16 %s, %s, %s, v%d'%(vr(L_,4),vr(ONES,4),vr(P_,8),vIDX))]
    def cw(n,lab):
        if not ALF: return [I('s_waitcnt vmcnt(%d)'%n)]
        return [I('s_waitcnt vmcnt(%d)'%(n+12)), I('s_cmp_ge_u32 s2, 128'), I('s_cbranch_scc1 %s'%lab), I('s_waitcnt vmcnt(%d)'%(n+8)), I('s_cmp_ge_u32 s2, 96'), I('s_cbranch_scc1 %s'%lab), I('s_waitcnt vmcnt(%d)'%n), lab+':']
    A=['L_att:']+A2+bar*NA2+[I('s_mov_b32 s45, 6')]+cw(6,'L_att_w')+bar+rdK(0,0)+[I('s_waitcnt lgkmcnt(0)')]+qk(SA,KB,Q)+[I('s_nop 7')]
    def phase(S_,P_, mf, extra):
        ex=[I('v_exp_f32 v%d, v%d'%(S_+i,S_+i)) for i in range(16)]
        cv=[I('v_cvt_pk_bf16_f32 v%d, v%d, v%d'%(P_+i,S_+2*i,S_+2*i+1)) for i in range(8)]
        pat=opt.get('att_pat',[(2,0),(2,1),(2,1),(2,1),(2,1),(2,1),(2,1),(2,1),(0,1)])
        out=[]; e=0;c=0
        for k,(ne,nc) in enumerate(pat):
            out.append(mf[k]); out+=extra.get(k,[])
            out+=ex[e:e+ne]; e+=ne
            out+=cv[c:c+nc]; c+=nc
        assert e==16 and c==8
        return out
    AB=opt.get('att_bar',4); AD=opt.get('att_dma',2)
    def blocks(last,first=False):
        body=[]
        for i in range(8):
            kb=KB+8*(i&1); kn=KB+8*((i+1)&1); vb=VB+8*(i&1); vp=VB+8*((i+1)&1)
            rv=rdV(i,4096*i); rk=rdK(i+1,4096*((i+1)&7)); d=kvd((i+7)&7); sy=[I('s_waitcnt vmcnt(5)')]+bar
            qn=qk(SA,kn,Q)
            if first and i<ALF: sy=cw(5,'L_att_w%d'%i)+bar
            if first and i==ALF and ALF:
                sy=[I('s_cmp_eq_u32 s58, 0'), I('s_cbranch_scc1 L_att_pz'), I('v_mov_b32 v14, 1'), I('v_lshlrev_b32 v15, 7, v0'), I('s_mov_b64 exec, %d'%((1<<RP)-1)), I('s_waitcnt vmcnt(%d)'%ALF),
                    I('buffer_atomic_add v14, v15, s[48:51], s74 offen sc1'), I('s_mov_b64 exec, -1'), 'L_att_pz:', I('s_waitcnt vmcnt(5)')]+bar
            if last:
                if i>0: d=[]
                if 56+i>=NBAR: sy=[]
                else: sy=[I('s_waitcnt vmcnt(%d)'%(0 if 56+i==NBAR-1 else max(0,min(5,6-i))))]+bar
                if i==1: sy+=[I('v_mov_b32 v12, 0'), I('ds_write_b32 v%d, v12'%vK)]
                if i==7: rk=[]; qn=[I('s_nop 0')]*4
            ex={}
            for k in range(4): ex.setdefault((k*AB)//4,[]).append(rv[k])
            ex[AB]=sy+rk[:1]+d[:1]; ex[AB+1]=rk[1:]
            m1=pv(OB,vp,PB,first and i==1)+smf(LB,PB)
            if first and i==0: m1=[I('v_mov_b32 v%d, 0'%(LA+k)) for k in range(5)]; ex[6]=[I('v_mov_b32 v%d, 0'%(LA+k)) for k in range(5,8)]
            body+=phase(SA,PA,qk(SB,kb,Q+8)+m1,ex)+phase(SB,PB,qn+pv(OA,vb,PA,first and i==0)+smf(LA,PA),{AD:d[1:]})
        return body
    body=auto_lgkm(blocks(False))
    firstb=auto_lgkm(blocks(False,True),pre=body)
    lastb=auto_lgkm(blocks(True),pre=body)
    fix_hazards(body+body,auto=False,tag='att_loop')
    aloop=firstb+['L_att_loop:']+body+[I('s_sub_u32 s45, s45, 1'), I('s_cmp_lg_u32 s45, 0'), I('s_cbranch_scc1 L_att_loop')]+lastb
    AT=([I('s_setprio %d'%opt['pat'])] if 'pat' in opt else [])+bar*opt.get('jp0',0)+pv(OB,VB+8,PB)+smf(LB,PB)+[I('v_mov_b32 v160, 0x1f800000'), I('v_mov_b32 v161, 0x5f800000')]
    FB=[]
    for X,(O_,L_,Q_) in enumerate(((OA,LA,Q),(OB,LB,Q+8))):
        AT+=[I('v_pk_mul_f32 v[162:163], %s, 0 op_sel_hi:[1,0]'%p(O_))]
        for i in range(1,8): AT+=[I('v_pk_fma_f32 v[162:163], %s, 0, v[162:163] op_sel_hi:[1,0,1]'%p(O_+2*i))]
        AT+=[I('v_add_f32 v%d, v%d, v%d'%(L_,L_,L_+1)), I('v_add_f32 v%d, v%d, v%d'%(L_+2,L_+2,L_+3)),
             I('v_add_f32 v162, v162, v163'), I('v_add_f32 v163, v162, v%d'%(L_+2)), I('v_add_f32 v162, v162, v%d'%L_),
             I('v_cmp_nge_f32 vcc, v162, v160'), I('v_cmp_nle_f32 s[56:57], v162, v161'), I('v_cmp_nge_f32 s[26:27], v163, v160'), I('v_cmp_nle_f32 s[58:59], v163, v161'),
             I('s_or_b64 s[56:57], s[56:57], vcc'), I('s_or_b64 s[26:27], s[26:27], s[58:59]'), I('s_or_b64 s[56:57], s[56:57], s[26:27]'),
             I('s_cbranch_scc1 L_att_fb%d'%X), 'L_att_fb_ret%d:'%X, I('v_rcp_f32 v162, v%d'%L_), I('v_rcp_f32 v164, v%d'%(L_+2)), I('s_nop 0')]
        for i in range(8): AT+=[I('v_pk_mul_f32 %s, %s, %s op_sel_hi:[1,0]'%(p(O_+2*i),p(O_+2*i),p(162+2*(i//4))))]
        for i in range(8): AT+=[I('v_cvt_pk_bf16_f32 v%d, v%d, v%d'%(O_+i,O_+2*i,O_+2*i+1))]
        if X: AT+=[I('s_add_u32 s46, s46, 65536')]
        if X==1 and opt.get('jpm',0)>1: AT+=bar
        for h in range(2): AT+=[I('buffer_store_dwordx4 %s, v%d, s[52:55], s46 offen offset:%d sc0 sc1'%(vr(O_+4*h,4),vL16,1024*h))]
        if X==0 and opt.get('jpm',0): AT+=bar
        FS=SA
        F=['L_att_fb%d:'%X, I('s_waitcnt vmcnt(0)'),
           I('s_lshl_b32 s26, s33, 17'), I('s_add_u32 s27, s26, 0x%x'%(P1_OFF+32*131072))]+srd(16,4,5,'s27',131072)
        F+=[I('s_add_u32 s27, s26, 0x%x'%(P1_OFF+64*131072))]+srd(20,4,5,'s27',131072)
        F+=[I('v_bfe_u32 v12, v0, 4, 1'), I('v_lshlrev_b32 v12, 7, v12'), I('v_xor_b32 v8, v%d, v12'%vL16), I('v_add_u32 v9, 1024, v8'),
            I('s_lshl_b32 s26, s42, 10'), I('s_add_u32 s26, s26, 2048'), I('v_add_u32 v2, s26, v%d'%vV0)]
        F+=[I('v_mov_b32 v%d, 0'%(O_+i)) for i in range(16)]
        F+=[I('v_mov_b32 v%d, 0'%L_), I('v_mov_b32 v%d, 0'%(L_+2)), I('v_mov_b32 v164, 0xff800000'), I('v_mov_b32 v165, 0xff800000'), I('s_mov_b32 s59, 0'), 'L_att_fbl%d:'%X,
            I('buffer_load_dwordx4 %s, v%d, s[16:19], s59 offen'%(vr(KB,4),vL16)),
            I('buffer_load_dwordx4 %s, v%d, s[16:19], s59 offen offset:1024'%(vr(KB+4,4),vL16)),
            I('s_add_u32 m0, s41, 4096'), I('s_nop 0'), I('buffer_load_dwordx4 v8, s[20:23], s59 offen lds'),
            I('s_add_u32 m0, s41, 8192'), I('s_nop 0'), I('buffer_load_dwordx4 v9, s[20:23], s59 offen lds'),
            I('s_waitcnt vmcnt(0)')]
        F+=rdV(0,0,2,4096)+qk(FS,KB,Q_)
        for x in range(2):
            s8=FS+8*x; mo=164+x; lx=L_+2*x
            F+=[I('v_max3_f32 v13, v%d, v%d, v%d'%(s8,s8+1,mo))]+[I('v_max3_f32 v13, v%d, v%d, v13'%(s8+2*i,s8+2*i+1)) for i in range(1,4)]
            for sw in (16,32): F+=[I('v_mov_b32 v14, v13'), I('v_permlane%d_swap_b32 v13, v14'%sw), I('v_max_f32 v13, v13, v14')]
            F+=[I('v_sub_f32 v14, v%d, v13'%mo), I('v_exp_f32 v14, v14'), I('v_mov_b32 v%d, v13'%mo)]
            F+=[I('v_sub_f32 v%d, v%d, v13'%(s8+i,s8+i)) for i in range(8)]+[I('v_exp_f32 v%d, v%d'%(s8+i,s8+i)) for i in range(8)]
            F+=[I('v_mul_f32 v%d, v%d, v14'%(lx,lx))]
            for i in range(8): F+=[I('v_add_f32 v%d, v%d, v%d'%(lx,lx,s8+i)), I('v_mul_f32 v%d, v%d, v14'%(O_+8*x+i,O_+8*x+i))]
        for i in range(8): F+=[I('v_cvt_pk_bf16_f32 v%d, v%d, v%d'%(PA+i,FS+2*i,FS+2*i+1))]
        F+=[I('s_waitcnt lgkmcnt(0)')]+pv(O_,VB,PA)+[
            I('s_add_u32 s59, s59, 2048'), I('s_cmp_lg_u32 s59, 131072'), I('s_nop 7'), I('s_nop 7'), I('s_cbranch_scc1 L_att_fbl%d'%X)]
        for lx in (L_,L_+2):
            for sw in (16,32): F+=[I('v_mov_b32 v14, v%d'%lx), I('v_permlane%d_swap_b32 v%d, v14'%(sw,lx)), I('v_add_f32 v%d, v%d, v14'%(lx,lx))]
        F+=[I('s_branch L_att_fb_ret%d'%X)]
        FB+=F
    assert NBAR-64>=opt.get('jpm',0)+opt.get('jp',1)+opt.get('jp0',0)
    if opt.get('au',0): AT=unpk(AT)
    AT+=([] if TST else st(3))+[I('s_setprio %d'%opt.get('pa2',0))]
    AT+=[I('s_lshl_b32 s30, s34, 10'), I('s_add_u32 s30, s30, %d'%(256*128)), I('s_and_b32 s26, s2, 7'), I('s_lshl_b32 s26, s26, 2'), I('s_add_u32 s30, s30, s26'),
         I('v_mov_b32 v12, 1'), I('v_lshlrev_b32 v15, 7, v0')]+bar*min(max(0,NBAR-64),opt.get('jp',1))
    AT+=[I('s_mov_b64 exec, 1'), I('s_waitcnt vmcnt(0)'), I('ds_add_rtn_u32 v13, v%d, v12'%vK), I('s_waitcnt lgkmcnt(0)'), I('v_readfirstlane_b32 s26, v13'),
         I('s_mov_b64 exec, %d'%((1<<RO)-1)), I('s_cmp_lg_u32 s26, 3'), I('s_cbranch_scc1 L_a_np'), I('buffer_atomic_add v12, v15, s[48:51], s30 offen sc1'), 'L_a_np:', I('s_mov_b64 exec, -1')]
    AT+=st(6)+[I('s_branch L_fin')]
    S=[I('s_bfe_u32 s65, s2, 0x10002'), I('s_mul_i32 s65, s65, 7'), I('s_lshr_b32 s26, s2, 5'), I('s_add_u32 s65, s65, s26'),
       I('s_lshl_b32 s41, s42, 12'), I('s_lshl_b32 s26, s64, 18')]+srd(52,36,37,0,0x700000)+srd(36,72,73,'s26',128*2048)
    S+=[I('v_lshrrev_b32 v24, 3, v0'), I('v_lshrrev_b32 v25, 4, v0'), I('v_and_b32 v26, 7, v0'), I('s_lshl_b32 s26, s42, 5'), I('v_add_u32 v24, s26, v24'),
        I('v_xor_b32 v26, v26, v25'), I('v_xor_b32 v27, 4, v26'), I('v_lshlrev_b32 v26, 4, v26'), I('v_lshlrev_b32 v27, 4, v27')]
    for sh,base in ((12,vOA),(11,zOA)):
        for i in range(4): S+=[I('v_lshl_add_u32 v28, v24, %d, v%d'%(sh,26+(i&1))), I('v_add_u32 v%d, %d, v28'%(base+i, i*8*(1<<sh)-i*1024))]
    S+=[I('v_and_b32 v25, 1, v25'), I('v_lshlrev_b32 v25, 6, v25'), I('v_lshlrev_b32 v24, 4, v0'), I('v_xor_b32 v25, v24, v25'), I('s_lshl_b32 s26, s42, 17'), I('v_add_u32 v%d, s26, v25'%vOB)]
    S+=[I('v_and_b32 v24, 15, v0'), I('v_lshrrev_b32 v25, 4, v0'), I('v_bfe_u32 v26, v0, 1, 3'),
        I('s_lshr_b32 s26, s42, 1'), I('s_lshl_b32 s26, s26, 13'),
        I('v_lshlrev_b32 v24, 7, v24'), I('v_add_u32 v24, s26, v24'),
        I('v_xor_b32 v27, v25, v26'), I('v_lshl_add_u32 v%d, v27, 4, v24'%vA), I('v_xor_b32 v%d, 64, v%d'%(vA+1,vA))]
    S+=[I('v_add_u32 v%d, 65536, v%d'%(vA+2+j,vA+j)) for j in range(2)]
    S+=[I('v_bfe_u32 v24, v0, 4, 1'), I('v_and_b32 v25, 1, v0'), I('v_bfe_u32 v26, v0, 1, 1'), I('v_bfe_u32 v27, v0, 2, 2'),
        I('v_lshl_add_u32 v28, v24, 3, v27'), I('v_lshl_add_u32 v28, v26, 2, v28'),
        I('v_lshlrev_b32 v28, 4, v28'), I('v_lshl_add_u32 v28, v25, 3, v28'),
        I('v_lshl_add_u32 v28, v26, 8, v28'), I('v_lshrrev_b32 v23, 5, v0'), I('v_lshl_add_u32 v28, v23, 10, v28'),
        I('s_and_b32 s27, s42, 1'), I('s_lshl_b32 s26, s27, 13'), I('s_add_u32 s26, s26, 16384'),
        I('v_add_u32 v%d, s26, v28'%vB), I('v_xor_b32 v%d, 64, v%d'%(vB+1,vB))]
    S+=[I('v_add_u32 v%d, 65536, v%d'%(vB+2+u,vB+u)) for u in range(2)]
    S+=[I('v_lshlrev_b32 v28, 3, v24'), I('v_lshl_add_u32 v28, v27, 1, v28'), I('v_add_u32 v28, v25, v28'), I('v_lshlrev_b32 v28, 4, v28'), I('v_lshl_add_u32 v28, v26, 3, v28'),
        I('v_lshl_add_u32 v28, v23, 12, v28'), I('s_lshl_b32 s26, s27, 11'), I('s_add_u32 s26, s26, 16384'), I('v_add_u32 v%d, s26, v28'%zB), I('v_add_u32 v%d, 65536, v%d'%(zB+1,zB)),
        I('v_bfe_u32 v26, v0, 3, 1'), I('v_bfe_u32 v27, v0, 1, 2'), I('v_lshl_add_u32 v27, v26, 3, v27'), I('s_lshl_b32 s26, s42, 4'), I('v_add_u32 v27, s26, v27'),
        I('v_lshlrev_b32 v28, 6, v23'), I('v_lshl_add_u32 v28, v25, 5, v28'), I('v_lshl_add_u32 v28, v24, 4, v28'), I('s_lshl_b32 s26, s65, 8'), I('v_add_u32 v28, s26, v28'),
        I('s_movk_i32 s26, 7168'), I('v_mad_u32_u24 v%d, v27, s26, v28'%zOB)]
    S+=[I('v_add_u32 v%d, %d, v%d'%(zOB+i,((i&1)*4*7168+(i>>1)*128-1024*i)&0xffffffff,zOB)) for i in range(1,4)]
    S+=[I('v_mov_b32 v%d, v%d'%(zSEL+i,k4a.SEL)) for i in range(4)]+[I('v_mov_b32 v%d, v%d'%(zIDX,k4a.vIDX))]+[I('v_mov_b32 v%d, 0'%(c+i)) for c in (CD0,CD1) for i in range(4)]
    S+=[I('v_mov_b32 v%d, 0'%(vBIAS+2*t)) for t in range(4)]
    if opt.get('pf',2): S+=[I('s_lshr_b32 s26, s2, 3'), I('s_lshl_b32 s26, s26, 2'), I('s_add_u32 s26, s26, s42'), I('s_mul_i32 s26, s26, %d'%(8*7168)), I('s_bfe_u32 s27, s2, 0x10002'), I('s_mul_i32 s27, s27, 1792'), I('s_add_u32 s26, s26, s27'),
        I('v_lshrrev_b32 v24, 4, v0'), I('v_mul_u32_u24 v24, 7168, v24'), I('v_and_b32 v25, 15, v0'), I('v_lshl_add_u32 v24, v25, 7, v24'), I('v_add_u32 v24, s26, v24'),
        I('v_cmp_gt_u32 vcc, 14, v25'), I('v_mov_b32 v25, 0x%x'%OOB), I('v_cndmask_b32 v229, v25, v24, vcc'), I('s_mov_b32 s43, %d'%(4*7168))]
    PF=opt.get('pf',2)
    hk={'loop':{1:[I('s_cmp_lg_u32 s22, %d'%PF), I('s_cbranch_scc1 L_g_pf'), I('buffer_load_dword v14, v229, s[52:55], 0 offen'), I('buffer_load_dword v14, v229, s[52:55], s43 offen'), 'L_g_pf:']}} if PF else {}
    def dmaA(T):
        z=T<16
        Gr=[[I('buffer_load_dwordx4 v%d, s[%d:%d], s%d offen offset:%d lds'%((zOA if z else vOA)+i,36 if z else 16,39 if z else 19,28 if z else 40,1024*i))] for i in range(4)]
        Gr[-1]+=[I('s_add_u32 s%d, s%d, 128'%((28,28) if z else (40,40)))]
        return [[I('s_add_u32 m0, s41, %d'%REG[T%4])]]+[tag(g,'A%d'%T) for g in Gr]
    def dmaB(T):
        z=T<16
        Gr=[[I('buffer_load_dwordx4 v%d, s[%d:%d], s%d offen offset:%d lds'%(zOB+i if z else vOB,52 if z else 20,55 if z else 23,29 if z else 44,1024*i))] for i in range(4)]
        Gr[-1]+=[I('s_add_u32 s29, s29, %d'%(64*7168)) if z else I('s_add_u32 s44, s44, 4096')]
        return [[I('s_add_u32 m0, s41, %d'%(REG[T%4]+16384))]]+[tag(g,'B%d'%T) for g in Gr]
    def spread(Gs,g0,g1):
        d={}
        for k,g in enumerate(Gs): d.setdefault(g0+(k*(g1-g0))//len(Gs),[]).extend(g)
        return d
    hk[28]=spread([[I('s_mov_b32 s28, 0'), I('s_mov_b32 s29, 0')]]+dmaA(0)+dmaB(0),3,16)
    hk[29]=spread(dmaA(1)+dmaB(1),9,16)
    hk['l2']=spread(dmaA(2)+dmaB(2)+dmaA(3),8,opt.get('l2e',24))
    gfirst,gbody,gloop1,gtail,_=k4a.stream('g',2,opt,S,hk)
    if opt.get('clk'): gloop1=st(1)+gloop1+st(3)
    fix_hazards(gbody+gbody,auto=False,tag='k1loopg')
    W=st(0)+['; @TR62', I('v_lshlrev_b32 v%d, 4, v0'%vL16)]
    early=I('s_cmp_lg_u32 s58, 0') if GZE==1 else I('s_cmp_ge_u32 s2, 32')
    if GZE: W+=[early, I('s_cbranch_scc0 L_t_g0')]+arrive('L_t_g0a',1,[wvm('kst')])+['L_t_g0:']
    W+=[I('s_cmp_ge_u32 s2, 224'), I('s_cbranch_scc1 L_g_idle'), wvm('A0,B0')]+gbr
    w7=lambda lab,X: [I('s_cmp_lg_u32 s25, 7'), I('s_cbranch_scc1 %s'%lab)]+X+[lab+':']
    S2=[I('s_lshr_b32 s34, s2, 5'),
        I('s_lshl_b32 s26, s65, 2'), I('s_and_b32 s27, s42, 1'), I('s_lshl_b32 s27, s27, 1'), I('s_add_u32 s26, s26, s27'),
        I('s_lshl_b32 s30, s64, 2'), I('s_lshr_b32 s27, s42, 1'), I('s_lshl_b32 s27, s27, 1'), I('s_add_u32 s30, s30, s27'),
        I('s_mul_i32 s32, s30, 56'), I('s_add_u32 s32, s32, s26'), I('s_lshl_b32 s32, s32, 11'),
        I('s_lshl_b32 s26, s64, 19')]+srd(16,60,61,'s26',128*4096)+[I('s_lshl_b32 s26, s65, 19'), I('s_add_u32 s26, s26, 0x%x'%Z2N_OFF)]+srd(20,4,5,'s26',128*4096)+[
        I('s_mov_b32 s40, 0'), I('s_mov_b32 s44, 0')]
    S2+=[I('s_lshl_b32 s26, s65, 2'), I('v_add_u32 v12, s26, v0'), I('v_mul_u32_u24 v13, 74, v12'), I('v_lshrrev_b32 v13, 10, v13'), I('v_mul_u32_u24 v14, 14, v13'), I('v_sub_u32 v12, v12, v14'),
         I('v_add_u32 v12, 10, v12'), I('v_mul_u32_u24 v12, 43, v12'), I('v_lshrrev_b32 v12, 7, v12'), I('v_lshl_add_u32 v12, v13, 3, v12'), I('s_and_b32 s26, s64, %d'%(RP-1)),
         I('v_lshl_add_u32 v12, v12, %d, s26'%(LRP+1)), I('v_lshlrev_b32 v%d, 7, v12'%vF)]
    ZL=srd(8,62,63,0,4096)+[I('v_and_b32 v12, 15, v0'), I('v_lshlrev_b32 v12, 1, v12'), I('s_lshl_b32 s26, s30, 6')]
    ZL+=[I('buffer_load_short_d16_hi v%d, v12, s[8:11], s26 offen offset:%d'%(vBIAS+2*t,32*t)) for t in range(4)]
    ZL+=[I('s_lshl_b32 s26, s30, 9')]
    for t in range(4): ZL+=[I('buffer_load_dword v%d, v1, s[92:95], s26 offen offset:%d sc1'%(NM_[t],256*t)), I('buffer_load_dword v%d, v1, s[92:95], s26 offen offset:%d sc1'%(RS_[t],256*t+4))]
    S3=srd(52,4,5,H_OFF,H_SIZE)+[
        I('s_bfe_u32 s26, s2, 0x10002'), I('s_lshl_b32 s26, s26, 3'), I('s_add_u32 s59, s26, s34'), I('s_lshl_b32 s59, s59, 7'),
        I('v_bfe_u32 v10, v0, 3, 1'), I('v_bfe_u32 v12, v0, 1, 2'), I('v_lshl_add_u32 v10, v10, 4, v12'), I('s_lshl_b32 s26, s42, 5'), I('v_add_u32 v10, s26, v10'), I('v_lshlrev_b32 v10, 11, v10'),
        I('v_lshrrev_b32 v13, 4, v0'), I('v_lshl_add_u32 v10, v13, 5, v10'), I('v_and_b32 v12, 1, v0'), I('v_lshl_add_u32 v%d, v12, 4, v10'%vW)]
    for i in range(1,4): S3+=[I('v_add_u32 v%d, %d, v%d'%(vW+i,i*(4*2048-1024),vW))]
    S3+=[I('v_and_b32 v10, 15, v0'), I('v_lshlrev_b32 v10, 11, v10'), I('v_lshrrev_b32 v12, 5, v0'), I('v_lshl_add_u32 v10, v12, 4, v10'),
        I('v_bfe_u32 v12, v0, 4, 1'), I('v_lshl_add_u32 v%d, v12, 5, v10'%vX)]+b3addr
    S3+=[I('s_bfe_u32 s75, s2, 0x10002'), I('s_mul_i32 s56, s75, %d'%(7*128*2048)), I('s_sub_u32 s57, 0, s56'), I('s_sub_u32 s26, 0x380000, s59')]+srd(12,68,69,'s59','s26')
    ZE=[I('v_bfe_u32 v1, v0, 4, 1'), I('v_cmp_eq_u32 vcc, 0, v1'), I('v_lshrrev_b32 v1, 4, v0'), I('v_lshlrev_b32 v1, 4, v1')]
    for c in (CD0,CD1): ZE+=[I('v_add_f32 v%d, v%d, v%d'%(c,c,c+1)), I('v_add_f32 v%d, v%d, v%d'%(c+2,c+2,c+3)), I('v_cndmask_b32 v%d, v%d, v%d, vcc'%(c,c+2,c))]
    ZE+=[I('ds_bpermute_b32 v%d, v1, v%d offset:%d'%(CSZ+4*n+i,(CD0,CD1)[n>>1],64*(n&1)+4*i)) for n in range(4) for i in range(4)]
    gi=lambda n,t: G+32*(n>>1)+8*t+4*(n&1)
    ZC=[]
    for n in range(4):
        for t in range(4):
            for i in range(2): ZC+=[I('v_pk_fma_f32 %s, %s, %s, %s op_sel_hi:[1,0,1]'%(p(gi(n,t)+2*i),p(CSZ+4*n+2*i),p(NM_[t]),p(gi(n,t)+2*i)))]
        for t in range(4):
            for i in range(2): ZC+=[I('v_pk_mul_f32 %s, %s, %s op_sel_hi:[1,0]'%(p(gi(n,t)+2*i),p(gi(n,t)+2*i),p(RS_[t])))]
    ZG=[I('v_mov_b32 v2, 0x%x'%f2u(GC1)), I('v_mov_b32 v3, v2'), I('s_mov_b32 s28, 0x%x'%f2u(GC2)), I('s_mov_b32 s29, s28')]
    if opt.get('gms',1):
        w=lambda e: 12+(e&15)
        def stage(s_,e):
            x=G+e
            return {1:I('v_mul_f32 v%d, v%d, v%d'%(w(e),x,x)), 2:I('v_fma_f32 v%d, v%d, s28, v2'%(w(e),w(e))), 3:I('v_mul_f32 v%d, v%d, v%d'%(w(e),w(e),x)), 4:I('v_exp_f32 v%d, v%d'%(w(e),w(e))),
                    5:I('v_add_f32 v%d, 1.0, v%d'%(w(e),w(e))), 6:I('v_rcp_f32 v%d, v%d'%(w(e),w(e))), 7:I('v_mul_f32 v%d, v%d, v%d'%(x,x,w(e)))}[s_]
        order=[(1,0),(4,3),(2,1),(3,2),(5,5),(6,6),(7,8)]
        for slot in range(64+8): ZG+=[stage(s_,slot-d) for s_,d in order if 0<=slot-d<64]
    else:
        for k in range(0,32,2): ZG+=gelu_block([G+2*k,G+2*k+2],4,2,28)
    if opt.get('gu',1): ZC=unpk(ZC); ZG=unpk(ZG)
    def reads(T,j):
        slot=T%4; so=REG[slot]&0xffff; hi=REG[slot]>>16; f=FR+32*j
        Ra=[I('ds_read_b128 %s, v%d offset:%d'%(vr(f+4*t,4),vA+2*hi+j,so+t*2048)) for t in range(4)]
        if T<16: Rb=[I('ds_read_b64_tr_b16 %s, v%d offset:%d'%(vr(f+16+4*n+2*u,2),zB+hi,so+j*8192+u*1024+n*256)) for n in range(4) for u in range(2)]
        else: Rb=[I('ds_read_b64_tr_b16 %s, v%d offset:%d'%(vr(f+16+4*n+2*u,2),vB+2*hi+u,so+(n>>1)*4096+j*2048+(n&1)*512)) for n in range(4) for u in range(2)]
        if CH&1: return Ra,Rb
        return Rb[:2]+Ra+Rb[2:]
    def rdT(T,t): return [reads(T,j)[0][t] for j in range(2)]
    def rdN(T,n): return [r for j in range(2) for r in reads(T,j)[1][2*n:2*n+2]]
    rdE=lambda T: rdT(T,1)+rdT(T,0)+rdN(T,0)+rdN(T,1)+rdN(T,2) if CH&1 else reads(T,0)
    rdL=lambda T: rdN(T,3)+rdT(T,3)+rdT(T,2) if CH&1 else reads(T,1)
    path=[(n,2*hf+(k^(n&1))) for hf in range(2) for n in range(4) for k in range(2)]
    gbar=opt.get('g2_bar',15)
    rp1=opt.get('g2_rp1',list(range(12))); rp2=opt.get('g2_rp2',list(range(gbar+1,gbar+13)))
    if CH&1: rp2=list(range(16,32)); assert gbar==15
    dgA=opt.get('g2_dgA',[17,21,25,29]); dgB=opt.get('g2_dgB',[1,5,9,13])
    GT0=opt.get('gt0',18); GT1=opt.get('gt1',42)
    zsm=lambda j,h: I('v_smfmac_f32_16x16x64_bf16 %s, %s, %s, v%d'%(vr((CD0,CD1)[h],4),vr(zSEL,4),vr(FR+32*j+16+8*h,8),zIDX))
    def zbar(i):
        X=w7('L_t_z1',wait_lines('L_t_z',4,32 if ALF else 8,vF,[wvm('zq')],229)) if i==ZK else []
        X+=gbr
        if i==ZQ: X+=w7('L_t_z0',[I('s_mov_b64 exec, 15')]+cond(tag([I('buffer_load_dword v229, v%d, s[48:51], 0 offen sc1'%vF)],'zq'))+[I('s_mov_b64 exec, -1')])
        return X
    nz0=int(len(ZG)*opt.get('zgf',1.0)) if NZX else 0
    ZG0=ZG[:nz0]; ZG=ZG[nz0:]
    def tile(T):
        z=T<16; c0=T in (0,16); ac=G if z else ACC
        spine=[m16(ac+32*(n>>1)+8*t+4*(n&1), FR+32*j+16+4*n, FR+32*j+4*t, '0' if (c0 and j==0) else None) for j in range(2) for n in range(4) for t in range(4)]
        if CH&1: spine=[m16(ac+32*(n>>1)+8*t+4*(n&1), FR+32*j+16+4*n, FR+32*j+4*t, '0' if (c0 and q==0) else None) for i,(n,t) in enumerate(path) for q,j in enumerate(((0,1),(1,0))[i&1])]
        fill={}
        def add(g,x): fill.setdefault(g,[]).extend(x)
        for pp,r in zip(rp1,rdL(T)): add(pp,[r])
        if z:
            for j in range(2):
                for h in range(2): add((7,11,17,21)[2*h+j] if CH&1 else 16*j+8*h+6,[zsm(j,h)])
        if T+3<=47:
            if not (16<=T+3<=min(ZK+2,18)):
                Gb=dmaB(T+3); add(dgB[0]-1,Gb[0])
                for pp,g in zip(dgB,Gb[1:]): add(pp,g)
        else:
            Gw=dmaW(2*(T-45)+1); add(-1,Gw[0])
            for pp,g in zip(dgB,Gw[1:]): add(pp,g)
        mid=[]
        if T==PG: mid+=([early, I('s_cbranch_scc1 L_t_g1')] if GZE else [])+arrive('L_t_g1a',1,[wvm('kst')])+['L_t_g1:']
        if T<47 and not (T==15 and NZX): mid+=[wvm('A%d,B%d'%(T+1,T+1),True)]
        else: mid+=[I('s_waitcnt lgkmcnt(0)')]
        if T<16: mid+=zbar(T+1)
        else: mid+=gbr
        add(gbar,mid)
        if T<47 and not (T==15 and NZX):
            for pp,r in zip(rp2,rdE(T+1)): add(pp,[r])
        late=[]
        if T+1==ZK and T<16:
            for T2 in range(16,min(ZK+3,19)): late+=dmaB(T2)
        if T+4<=47: late+=dmaA(T+4)
        else: late+=dmaW(2*(T-44))
        if len(late)==5:
            add(gbar,late[0])
            for pp,g in zip(dgA,late[1:]): add(pp,g)
        else:
            for g,x in spread(late,gbar+1,32).items(): add(g,x)
        ex=[]
        if T==0: ex=S2
        if T==2: ex=ZL
        if T==16 and not NZX: ex=[I('s_nop 0')]*4+ZE
        if T==17 and not NZX: ex=ZC
        if GT0<=T<GT1: ex=ZG[(len(ZG)*(T-GT0))//(GT1-GT0):(len(ZG)*(T+1-GT0))//(GT1-GT0)]
        if T in (GT1,GT1+1): ex=S3[:len(S3)//2] if T==GT1 else S3[len(S3)//2:]
        for k,x in enumerate(ex): add((k*32)//len(ex),[x])
        out=interleave(spine,fill)
        if T==15 and NZX:
            X=[I('s_nop 7')]+ZE+ZC+ZG0; Y_=[]; zp=opt.get('zxp',[(k+1.0)/NZX for k in range(NZX-1)])
            for k in range(NZX-1):
                a=int(len(X)*(zp[k-1] if k else 0)); b=int(len(X)*zp[k])
                Y_+=X[a:b]+zbar(17+k)
                if 17+k==ZK: Y_+=flat(dmaB(16)+dmaB(17)+dmaB(18))
            out+=st(4)+Y_+X[int(len(X)*zp[-1]) if NZX>1 else 0:]+[wvm('A16,B16')]+gbr+rdE(16)+st(2)
        return out
    assert GT1<=42 and PG not in (0,2)
    W+=rdE(0)+[I('s_setprio %d'%opt.get('pg',0))]+([] if opt.get('clk') else st(1))
    for T in range(48): W+=tile(T)+(st(4) if T==15 and not NZX else [])
    k=gtail.index('; @L2')
    GW=resolve_vm(gtail+auto_lgkm(W,pre=[]))
    Ep=[]
    for nf in range(2):
        for m in range(2):
            a=ACC+16*(2*nf+m); g=G+16*(2*nf+m)
            for i in range(8): Ep+=[I('v_pk_add_f32 %s, %s, %s op_sel_hi:[1,0]'%(p(a+2*i),p(a+2*i),p(vBIAS+4*m+2*(i//4))))]
            for i in range(8): Ep+=[I('v_pk_mul_f32 %s, %s, %s'%(p(a+2*i),p(a+2*i),p(g+2*i)))]
            for i in range(8): Ep+=[I('v_cvt_pk_bf16_f32 v%d, v%d, v%d'%(a+i,a+2*i,a+2*i+1))]
            Ep+=[I('s_add_u32 s26, s32, %d'%(m*56*2048+nf*2048))]
            for h in range(2): Ep+=[I('buffer_store_dwordx4 %s, v%d, s[52:55], s26 offen offset:%d sc0 sc1'%(vr(a+4*h,4),vL16,1024*h))]
        if nf==0: Ep+=gbr
    if opt.get('eu',0): Ep=unpk(Ep)
    def bars(n,tag_):
        if n<=2: return gbr*n
        return [I('s_mov_b32 s47, %d'%n), 'L_%s:'%tag_]+gbr+[I('s_sub_u32 s47, s47, 1'), I('s_cmp_lg_u32 s47, 0'), I('s_cbranch_scc1 L_%s'%tag_)]
    Ep+=flat(dmaW(7))+st(6)+gbr*(CW-1)+[I('s_waitcnt vmcnt(4)')]+gbr
    Ep+=[I('s_lshl_b32 s30, s64, 1'), I('s_add_u32 s30, s30, s75'), I('s_lshl_b32 s30, s30, 8'), I('s_add_u32 s30, s30, %d'%(320*128))]+resolve_vm(pub1('L_c_pb',7,'s30',2))
    D=['L_gC:', I('s_lshl_b32 s30, s64, 1'), I('s_add_u32 s30, s30, s75'), I('s_lshl_b32 s30, s30, 1'), I('s_and_b32 s26, s34, 1'), I('s_add_u32 s30, s30, s26'), I('s_lshl_b32 s30, s30, 7'),
       I('s_add_u32 s30, s30, %d'%(320*128)), I('s_xor_b32 s35, s30, 256'),
       I('s_lshr_b32 s31, s64, 1'), I('s_lshl_b32 s31, s31, 3'), I('s_and_b32 s26, s34, %d'%(RO-1)), I('s_add_u32 s31, s31, s26'), I('s_lshl_b32 s31, s31, 7'), I('s_add_u32 s31, s31, %d'%(256*128))]+srd(52,72,73,0,0x400000)
    D+=[I('s_lshl_b32 s32, s43, 16'), I('s_add_u32 s32, s32, s59'), I('s_add_u32 s33, s32, 32768')]
    OE2=opt.get('oe',0)==2
    if not OE2: D+=[I('buffer_load_dwordx4 %s, v%d, s[52:55], s%d offen offset:%d'%(vr(XR+4*q,4),vX,32+q//2,64*(q&1))) for q in range(4)]
    D+=[I('s_mul_i32 s26, s43, %d'%(56*2048)), I('s_add_u32 s26, s26, 0x%x'%H_OFF)]+srd(8,4,5,'s26',56*2048)+[I('s_mul_i32 s24, s75, %d'%(7*8192))]
    D+=[I('s_lshl_b32 s26, s43, 16'), I('s_add_u32 s26, s26, 0x%x'%O_OFF)]+srd(16,4,5,'s26',65536)
    D+=[I('s_sub_u32 s26, 0x200000, s59')]+srd(20,66,67,'s59','s26')+srd(52,70,71,0,0x400000)
    TW=opt.get('tw',0); TH=opt.get('th',0); JA=opt.get('ja',1); JK=opt.get('jk',3)
    if TW:
        D+=[I('v_lshlrev_b32 v30, 11, v0'), I('s_bfe_u32 s26, s2, 0x20003'), I('s_lshl_b32 s26, s26, 2'), I('s_add_u32 s26, s26, s42'), I('s_mul_i32 s27, s26, %d'%(48*2048)), I('s_add_u32 s27, s27, s57'),
            I('s_add_u32 s27, s27, %d'%(1024*2048)), I('s_lshl_b32 s26, s26, 17'), I('s_bfm_b64 exec, 48, 0'), I('buffer_load_dword v13, v30, s[12:15], s27 offen'), I('s_mov_b64 exec, -1'),
            I('buffer_load_dword v13, v30, s[20:23], s26 offen')]
    if EX:
        tb=[EX.get(c,0) for c in ('q2','q3','q3','z2','z3','z3','z3','z3i')]
        D+=[I('s_mov_b32 s26, 0x%x'%sum(tb[i]<<(8*i) for i in range(4))), I('s_mov_b32 s27, 0x%x'%sum(tb[4+i]<<(8*i) for i in range(4))), I('s_lshl_b32 s28, s34, 3'), I('s_lshr_b64 s[26:27], s[26:27], s28'),
            I('s_and_b32 s47, s26, 0xff'), I('s_cbranch_scc0 L_c_ex0'), 'L_c_ex:']+gbr+[I('s_sub_u32 s47, s47, 1'), I('s_cmp_lg_u32 s47, 0'), I('s_cbranch_scc1 L_c_ex'), 'L_c_ex0:']
    if CQ==CW: D+=ask1('L_c_ak',7,'s30')
    for k in range(CW+1,CK+1):
        if k==CK: D+=chk1('L_c_ck',7,'s30',7)
        D+=gbr
        if k==CQ: D+=ask1('L_c_ak',7,'s30')
    nb=NC-2-CK
    for k in range(3):
        D+=flat(ldA(k))
        if k<2 and nb>0: D+=gbr; nb-=1
    if TH:
        D+=[I('v_lshlrev_b32 v30, 7, v0'), I('s_lshl_b32 s26, s34, 12'), I('s_add_u32 s26, s26, s24'), I('s_bfm_b64 exec, 32, 0'), I('buffer_load_dword v13, v30, s[8:11], s26 offen'), I('s_mov_b64 exec, -1')]
    if JA<0: D+=ask1('L_d_ak',7,'s35')
    D+=gbr*nb+[I('s_waitcnt vmcnt(%d)'%(17 if TH else 16))]+gbr+st(5)+rd3p(0)
    DT=[]
    swW=[I('s_mov_b64 s[12:13], s[20:21]'), I('s_mov_b32 s14, s22')]
    swA=[I('s_mov_b64 s[8:9], s[16:17]'), I('s_mov_b32 s10, s18')]
    def earlyA(st_): return {3*k:g for k,g in enumerate(ldA(st_))}
    for j in range(14):
        w={0:16,1:16,2:20,11:16,12:8,13:63}.get(j,24)
        mid=[I('s_waitcnt vmcnt(%d)'%w)]+(chk1('L_d_ck',7,'s35',7,JK-JA>=2) if j==JK else [])+gbr
        if j==JA: mid+=ask1('L_d_ak',7,'s35')
        if j==JK and TH: mid+=[I('s_xor_b32 s26, s75, 1'), I('s_lshl_b32 s26, s26, 3'), I('s_add_u32 s26, s26, s34'), I('s_mul_i32 s26, s26, 7168'), I('s_bfm_b64 exec, 56, 0'), I('buffer_load_dword v13, v30, s[8:11], s26 offen'), I('s_mov_b64 exec, -1')]
        if opt.get('oe',0) and j==13: early_={0:[I('v_lshlrev_b32 v14, 2, v0')], opt.get('oep',8):[I('s_mov_b64 exec, 0xff'), I('buffer_load_dword v15, v14, s[48:51], s31 offen sc1'), I('s_mov_b64 exec, -1')]}
        if j==3: mid+=[I('s_xor_b32 s24, s75, 1'), I('s_mul_i32 s24, s24, %d'%(7*8192))]
        late=[]
        if j>=1:
            Gw=dmaW(j+7); mid=mid+(swW if j==7 else [])+Gw[0]; late=Gw[1:]
        DT+=tile3(j,j%4,(Y,Y+16),j==0,j+1 if j<13 else None,mid,earlyA((j+3)%4) if j<=10 else (early_ if opt.get('oe',0) and j==13 else {}),late)
    poll=[I('s_mov_b64 exec, 0xff'), I('buffer_load_dword v15, v14, s[48:51], s31 offen sc1'), I('s_mov_b64 exec, -1')]
    OE=opt.get('oe',0)
    DT+=[I('s_waitcnt lgkmcnt(0)')]+gbr+flat(dmaW(21))+swA+[I('s_mov_b32 s44, 0'), I('s_mov_b32 s45, 0')]+([] if OE else [I('v_lshlrev_b32 v14, 2, v0')]+poll)
    DT0=DT; DT=[]
    T3=FR3+16
    DT+=[I('s_mov_b32 s28, 0x%x'%f2u(-math.log2(math.e))), I('s_mov_b32 s29, s28')]
    for nf in range(2):
        y=Y+16*nf
        for i in range(8): DT+=[I('v_pk_mul_f32 %s, %s, s[28:29]'%(p(T3+2*i),p(y+2*i)))]
        for i in range(16): DT+=[I('v_exp_f32 v%d, v%d'%(T3+i,T3+i))]
        for i in range(8): DT+=[I('v_pk_add_f32 %s, %s, 1.0 op_sel_hi:[1,0]'%(p(T3+2*i),p(T3+2*i)))]
        for i in range(16): DT+=[I('v_rcp_f32 v%d, v%d'%(T3+i,T3+i))]
        for i in range(8): DT+=[I('v_pk_mul_f32 %s, %s, %s'%(p(y+2*i),p(y+2*i),p(T3+2*i)))]
    if opt.get('su',0): DT=unpk(DT)
    for q in range(4):
        DT+=[I('v_permlane16_swap_b32 v%d, v%d'%(XR+4*q,XR+4*q+2)), I('v_permlane16_swap_b32 v%d, v%d'%(XR+4*q+1,XR+4*q+3))]
    for i in range(15,-1,-1): DT+=[I('v_and_b32 v%d, 0xffff0000, v%d'%(XR+2*i+1,XR+i)), I('v_lshlrev_b32 v%d, 16, v%d'%(XR+2*i,XR+i))]
    SIL=DT; DT=DT0
    assert DE in (2,3)
    def issue(k,try_=False):
        lab='L_e%d%s'%(k,'t' if try_ else '')
        ck=[I('v_cmp_le_u32 vcc, 4, v15'), I('s_sub_u32 s47, s47, 1'), I('s_cselect_b32 s26, 0xff, 0'), I('s_or_b32 s26, s26, vcc_lo'), I('s_and_b32 s44, s26, 0xff'), I('s_andn2_b32 s26, s44, s45')]
        if not try_:
            X=[I('s_andn2_b32 s26, s44, s45'), I('s_cbranch_scc1 %s_h'%lab), I('s_waitcnt vmcnt(%d)'%(8 if k else 0)), I('s_mov_b32 s47, 0x40000'),
               lab+'_l:']+ck+[I('s_cbranch_scc1 %s_h'%lab), I('s_sleep %d'%opt.get('slp2',2))]+poll+[I('s_waitcnt vmcnt(0)'), I('s_branch %s_l'%lab), lab+'_h:']
        elif k==0: X=[I('s_mov_b32 s43, 0'), I('s_mov_b32 s47, 1'), I('s_waitcnt vmcnt(8)')]+ck+[I('s_cbranch_scc1 %s_h'%lab)]+poll+[I('s_branch L_sil'), lab+'_h:']
        else: X=[I('s_mov_b32 s43, %d'%k), I('s_andn2_b32 s26, s44, s45'), I('s_cbranch_scc0 L_sil')]
        X+=[I('s_ff1_i32_b32 s46, s26'), I('s_bitset1_b32 s45, s46'), I('s_lshl_b32 s24, s46, 13'), I('s_add_u32 s26, s46, 6'), I('s_and_b32 s26, s26, 7'), I('s_lshl_b32 s%d, s26, 14'%(36+k%4))]
        return X+(poll if k<7 else [])+flat(ldA(k%3))
    def after(k): return sum(8+(1 if x<7 else 0) for x in range(k+1,min(8,k+DE)))
    vE=lambda k: 24+(k&1)
    if OE==2: pass
    elif not OE:
        DT+=SIL+gbr*(NX-1)+[I('s_waitcnt vmcnt(0)')]+gbr+([] if opt.get('clk') else st(3))
        for k in range(DE): DT+=issue(k)
    else:
        assert NBAR-NX>=64+opt.get('jp',1)+opt.get('jpm',0)+opt.get('jp0',0)
        for k in range(DE): DT+=issue(k,True)
        DT+=[I('s_mov_b32 s43, %d'%DE), 'L_sil:']+SIL
        for k in range(DE): DT+=[I('s_cmp_gt_u32 s43, %d'%k), I('s_cbranch_scc1 L_e%ds'%k)]+issue(k)+['L_e%ds:'%k]
        DT+=gbr*(NX-1)+[I('s_waitcnt vmcnt(%d)'%after(0))]+gbr+([] if opt.get('clk') else st(3))
    DT+=[I('v_add_u32 v%d, s36, v%d'%(vE(0),vB3))]+rd3p((vE(0),))
    for k in range(8):
        DT+=[I('s_waitcnt vmcnt(%d)'%after(k))]
        DT+=tile3((vE(k),),k%3,(S0,S1),k==0,(vE(k+1),) if k<7 else None,[],{0:[I('v_add_u32 v%d, s%d, v%d'%(vE(k+1),36+(k+1)%4,vB3))]} if k<7 else {})
        if k+DE<8: DT+=issue(k+DE)
    for nf in range(2):
        y=(S0,S1)[nf]
        for i in range(8): DT+=[I('v_pk_fma_f32 %s, %s, %s, %s'%(p(y+2*i),p(y+2*i),p(Y+16*nf+2*i),p(XR+16*nf+2*i)))]
        for i in range(8): DT+=[I('v_cvt_pk_bf16_f32 v%d, v%d, v%d'%(y+i,y+2*i,y+2*i+1))]
        for h in range(2):
            DT+=[I('v_permlane16_swap_b32 v%d, v%d'%(y+4*h,y+4*h+2)), I('v_permlane16_swap_b32 v%d, v%d'%(y+4*h+1,y+4*h+3))]
        for h in range(2):
            DT+=[I('buffer_store_dwordx4 %s, v%d, s[52:55], s%d offen offset:%d %s'%(vr(y+4*h,4),vX,32+nf,64*h,opt.get('out_mod','')))]
    if OE2:
        assert NX==1 and NBAR-NX>=64+opt.get('jp',1)+opt.get('jpm',0)+opt.get('jp0',0) and not TH
        SS_=(224,240); XR2=AR+64
        kA=[i for i,x in enumerate(D) if 'buffer_load_dwordx4 v[%d:'%AR in x and 's[8:11]' in x][0]
        cnt=[0]
        def tg3(x):
            if 'buffer_load_dwordx4' in x and 's[8:11]' in x: cnt[0]+=1; return x+' ; @t:A%d'%((cnt[0]-1)//8)
            return cond([x])[0]
        D=D[:kA]+[tg3(x) for x in D[kA:]]
        pol=lambda k: tag(poll,'p%d'%k)
        ck=[I('v_cmp_le_u32 vcc, 4, v15'), I('s_sub_u32 s47, s47, 1'), I('s_cselect_b32 s26, 0xff, 0'), I('s_or_b32 s26, s26, vcc_lo'), I('s_and_b32 s44, s26, 0xff'), I('s_andn2_b32 s26, s44, s45')]
        take=lambda k: [I('s_ff1_i32_b32 s46, s26'), I('s_bitset1_b32 s45, s46'), I('s_lshl_b32 s24, s46, 13'), I('s_add_u32 s26, s46, 6'), I('s_and_b32 s26, s26, 7'), I('s_lshl_b32 s%d, s26, 14'%(36+k%4))]
        lo=lambda k: [I('s_and_b32 s26, s26, 0x3f')] if k<2 else []
        def dec(k,mode):
            lab='L_e%d_%d'%(k,mode)
            X=[I('s_andn2_b32 s26, s44, s45')]+lo(k)+[I('s_cbranch_scc1 %s_h'%lab)]
            if mode==0:
                X=([I('s_cmp_lt_u32 s43, %d'%k), I('s_cbranch_scc1 %s_x'%lab)]+X if k else [])+[I('s_mov_b32 s47, 1'), wvm('p%d'%(k-1))]+ck+lo(k)+[I('s_cbranch_scc1 %s_h'%lab),
                   I('s_mov_b32 s43, %d'%k), I('s_mov_b32 s10, 0'), I('s_mov_b32 s24, 0'), I('s_branch %s_x'%lab), lab+'_h:']+take(k)+[lab+'_x:']
                return X
            X+=[I('s_mov_b32 s47, 0x40000')]+([wvm('p%d'%(k-1)), I('s_branch %s_k'%lab)] if mode==1 else [])+[lab+'_l:']+cond(poll)+[I('s_waitcnt vmcnt(0)'), lab+'_k:']+ck+lo(k)+[
                I('s_cbranch_scc1 %s_h'%lab), I('s_sleep %d'%opt.get('slp2',2)), I('s_branch %s_l'%lab), lab+'_h:']+take(k)
            return X
        vE=lambda k: 24+(k&1)
        w_=lambda e: 2+(e&7)
        stg={1:lambda e: I('v_mul_f32 v%d, s28, v%d'%(w_(e),Y+e)), 2:lambda e: I('v_exp_f32 v%d, v%d'%(w_(e),w_(e))), 3:lambda e: I('v_add_f32 v%d, 1.0, v%d'%(w_(e),w_(e))),
             4:lambda e: I('v_rcp_f32 v%d, v%d'%(w_(e),w_(e))), 5:lambda e: I('v_mul_f32 v%d, v%d, v%d'%(Y+e,Y+e,w_(e)))}
        SI=[stg[s_](slot-d) for slot in range(32+6) for s_,d in ((5,6),(1,0),(2,1),(3,3),(4,4)) if 0<=slot-d<32]
        XU=[]
        for q in range(4): XU+=[I('v_permlane16_swap_b32 v%d, v%d'%(XR2+4*q,XR2+4*q+2)), I('v_permlane16_swap_b32 v%d, v%d'%(XR2+4*q+1,XR2+4*q+3))]
        for i in range(15,-1,-1): XU+=[I('v_and_b32 v%d, 0xffff0000, v%d'%(XR2+2*i+1,XR2+i)), I('v_lshlrev_b32 v%d, 16, v%d'%(XR2+2*i,XR2+i))]
        ST0,ST1=opt.get('sil',(14,20)); AW=opt.get('aw',1)
        DT=[]
        for j in range(22):
            k=j-14; pre=[]; mid=[]; late=[]; early={}
            def add(g,x): early.setdefault(g,[]).extend(x)
            if j<=12: mid+=[wvm(','.join((['W%d'%(j+1)] if j+1>=8 else [])+([] if AW else ['A%d'%(j+1)])))] if (j+1>=8 or not AW) else []
            if j==JK: mid+=([wvm('ak')] if AW else [])+cond(chk1('L_d_ck',7,'s35',7,True))
            if j==13: mid+=[wvm('W19')]
            if j==15: mid+=[wvm('W21')]
            if j<=13 or j==15: mid+=gbr
            if j==JA: mid+=cond(tag(ask1('L_d_ak',7,'s35'),'ak'))
            if j==3: mid+=[I('s_xor_b32 s24, s75, 1'), I('s_mul_i32 s24, s24, %d'%(7*8192))]
            if 1<=j<=13:
                Gw=[tag(g,'W%d'%(j+7)) for g in dmaW(j+7)]; mid=mid+(swW if j==7 else [])+Gw[0]; late=Gw[1:]
            if j==10: add(0,[I('v_lshlrev_b32 v14, 2, v0'), I('s_mov_b32 s44, 0'), I('s_mov_b32 s45, 0'), I('s_mov_b32 s43, 3'), I('s_mov_b32 s36, 0')]+pol(-1))
            if j==11: pre+=swA
            if j==opt.get('xto',-1): add(1,[I('v_lshlrev_b32 v30, 7, v0'), I('s_lshl_b32 s26, s34, 13'), I('buffer_load_dword v13, v30, s[16:19], s26 offen')])
            if j==14:
                fx=[I('s_cmp_eq_u32 s43, 3'), I('s_cbranch_scc1 L_e_fx'), I('s_mov_b32 s10, s18')]
                for q in range(3): fx+=[I('s_cmp_gt_u32 s43, %d'%q), I('s_cbranch_scc1 L_e_fx%d'%q)]+dec(q,2)+flat(ldA((14+q)%4))+['L_e_fx%d:'%q]
                fx+=[I('v_add_u32 v%d, s36, v%d'%(vE(0),vB3))]+rd3p((vE(0),))+[I('s_waitcnt vmcnt(0) lgkmcnt(0)'), 'L_e_fx:']
                Gw=[tag(g,'W21') for g in dmaW(21)]
                pre+=[I('s_waitcnt lgkmcnt(0)')]+gbr+st(3)+cond(fx)+[I('s_mov_b32 s28, 0x%x'%f2u(-math.log2(math.e)))]+Gw[0]
                for q,g in enumerate(Gw[1:]): add(1+3*q,g)
            if 11<=j<=18: pre+=dec(j-11,0 if j<14 else 1)+(pol(j-11) if j<18 else [])
            if j and (AW or j>=14): pre+=[wvm('A%d'%j)]
            if j<=18:
                for q,g in enumerate(ldA((j+3)%4)): add(3*q+(2 if j==14 else 0),tag(g,'A%d'%(j+3)))
            if 13<=j<21: add(0,[I('v_add_u32 v%d, s%d, v%d'%(vE(k+1),36+(k+1)%4,vB3))])
            if j==19:
                add(0,srd(20,72,73,0,0x400000))
                for q in range(4): add(2+3*q,tag([I('buffer_load_dwordx4 %s, v%d, s[20:23], s%d offen offset:%d'%(vr(XR2+4*q,4),vX,32+q//2,64*(q&1)))],'xr'))
            ex=[]
            if ST0<=j<ST1: ex=SI[(len(SI)*(j-ST0))//(ST1-ST0):(len(SI)*(j+1-ST0))//(ST1-ST0)]
            if j==21: ex=[wvm('xr')]+XU
            g0=4 if j==14 else 0
            for q,x in enumerate(ex): add(g0+(q*(32-g0))//len(ex),[x])
            nxt=j+1 if j<13 else ((vE(k+1),) if j<21 else None)
            DT+=pre+tile3(j if j<14 else (vE(k),),j%4,(Y,Y+16) if j<14 else SS_,j in (0,14),nxt,mid,early,late)
        for nf in range(2):
            y=SS_[nf]
            for i in range(8): DT+=[I('v_pk_fma_f32 %s, %s, %s, %s'%(p(y+2*i),p(y+2*i),p(Y+16*nf+2*i),p(XR2+16*nf+2*i)))]
            for i in range(8): DT+=[I('v_cvt_pk_bf16_f32 v%d, v%d, v%d'%(y+i,y+2*i,y+2*i+1))]
            for h in range(2):
                DT+=[I('v_permlane16_swap_b32 v%d, v%d'%(y+4*h,y+4*h+2)), I('v_permlane16_swap_b32 v%d, v%d'%(y+4*h+1,y+4*h+3))]
            for h in range(2):
                DT+=[I('buffer_store_dwordx4 %s, v%d, s[52:55], s%d offen offset:%d %s'%(vr(y+4*h,4),vX,32+nf,64*h,opt.get('out_mod','')))]
    k0=len(D)-8
    D=resolve_vm(D[:k0]+auto_lgkm(D[k0:]+DT,pre=[]))
    ID=['L_g_idle:', I('s_lshr_b32 s34, s2, 5')]+S3+([I('s_waitcnt vmcnt(0)')]+gbr*(PG+2) if GZE else gbr*(PG+1)+resolve_vm(arrive('L_t_pi',1,[I('s_waitcnt vmcnt(0)')]))+gbr)
    IDB=opt.get('idb',8); ID+=gbr*(IDB-(PG+2))
    ID+=[I('v_lshlrev_b32 v12, 7, v0'), I('s_sub_u32 s26, s2, 224'), I('s_lshl_b32 s26, s26, 2'), I('s_add_u32 s26, s26, s42'), I('s_lshl_b32 s26, s26, 13')]
    ID+=srd(8,66,67,0,0x200000)+srd(20,68,69,0,0x380000)
    for k in range(2): ID+=[I('s_add_u32 s27, s26, %d'%(k*0x100000)), I('buffer_load_dword v13, v12, s[8:11], s27 offen')]
    for k in range(4): ID+=[I('s_add_u32 s27, s26, %d'%(k*0x100000)), I('buffer_load_dword v13, v12, s[20:23], s27 offen')]
    for t in range(8): ID+=gbr+flat(dmaW(t))
    ID+=bars(1+48+NZX+CW+1-8-IDB,'g_idl')+[I('s_branch L_gC')]
    fin=['L_fin:']
    if STAMP:
        fin+=[I('s_waitcnt vmcnt(0)')]+st(7)
    if opt.get('wgst'):
        fin+=[I('s_cmp_lg_u32 s25, %d'%opt.get('wgw',0)), I('s_cbranch_scc1 L_nowg')]+srd(48,4,5,ST_OFF+2*65536,65536)+[I('s_lshl_b32 s26, s2, 4'), I('v_mov_b32 v1, s26')]
        fin+=[I('v_mov_b32 v%d, s%d'%(4+i,76+2*k)) for i,k in enumerate(opt['wgst'])]+[I('s_nop 1'), I('buffer_store_dwordx4 v[4:7], v1, s[48:51], 0 offen'), 'L_nowg:']
    if opt.get('rt'): fin+=[I('s_cmp_lg_u32 s25, 4'), I('s_cbranch_scc1 L_end')]
    fin+=rt_end(opt,0,'k2',sreg=96)+['L_end:', I('s_endpgm')]
    if opt.get('trc'):
        def trace(L,v,k0=0,kmax=64):
            out=[]; k=k0
            for x in L:
                if x.strip()=='s_barrier' and k+1<kmax:
                    out+=[I('s_memrealtime s[90:91]'), I('s_waitcnt lgkmcnt(0)'), I('v_writelane_b32 v%d, s90, %d'%(v,k)), x, I('s_memrealtime s[90:91]'), I('s_waitcnt lgkmcnt(0)'), I('v_writelane_b32 v%d, s90, %d'%(v,k+1))]; k+=2
                elif x.startswith('; @TR'): out+=[I('s_memrealtime s[90:91]'), I('s_waitcnt lgkmcnt(0)'), I('v_writelane_b32 v%d, s90, %s'%(v,x[5:]))]
                else: out.append(x)
            return out,k
        CA=[]
        if opt['trc']==3:
            def tr1(first,loop1,T,v):
                X,k=trace(first,255,2,54)
                lp=[loop1[0], I('s_memrealtime s[90:91]'), I('s_lshl_b32 s26, s22, 1'), I('s_sub_u32 m0, %d, s26'%(k+12)), I('s_waitcnt lgkmcnt(0)'), I('v_writelane_b32 v255, s90, m0'), I('s_add_u32 m0, m0, 1'), I('s_nop 0'), I('v_writelane_b32 v255, s90, m0')]+loop1[1:]
                j=T.index('; @L2'); Y,_=trace(T[:j],255,k+12,54)
                return [X[0], I('s_memrealtime s[90:91]'), I('s_waitcnt lgkmcnt(0)'), I('v_writelane_b32 v255, s90, 0'), I('v_writelane_b32 v255, s90, 1')]+X[1:],lp,Y+[I('v_mov_b32 v%d, v255'%v)]+T[j:]
            stp=lambda l: [I('s_memrealtime s[90:91]'), I('s_waitcnt lgkmcnt(0)'), I('v_writelane_b32 v255, s90, %d'%l)]
            kb=[i for i,x in enumerate(B) if 's_waitcnt lgkmcnt(0)' in x][-1]; kc=[i for i,x in enumerate(B) if 's_mov_b32 s4, s46' in x][0]; ka=[i for i,x in enumerate(B) if 'v_lshrrev_b32 v1, 6, v0' in x][0]
            B=B[:ka]+[I('s_memrealtime s[78:79]')]+B[ka:kb]+[I('s_memrealtime s[76:77]')]+B[kb:kb+1]+[I('v_writelane_b32 v255, s78, 54'), I('v_writelane_b32 v255, s76, 55')]+stp(56)+B[kb+1:kc]+stp(57)+B[kc:]
            def tr2(first):
                k=[i for i,x in enumerate(first) if 's_waitcnt vmcnt(' in x][0]
                return first[:k]+stp(58)+first[k:k+1]+stp(59)+first[k+1:]
            PA_=[(tr2(first),loop1,T,tg) for first,loop1,T,tg in PA_]; gfirst=tr2(gfirst)
            PA_=[tr1(first,loop1,T,6)+(tg,) for first,loop1,T,tg in PA_]
            gfirst,gloop1,GW=tr1(gfirst,gloop1,GW,31)
            tr0=trace; trace=lambda L,v,k0=0,kmax=64: tr0(L,v,k0,0)
        for first,loop1,T,tg in PA_:
            k=T.index('; @L2'); X,_=trace(T[k:],6); CA+=first+loop1+T[:k]+[I('s_memrealtime s[90:91]'), I('s_waitcnt lgkmcnt(0)'), I('v_writelane_b32 v6, s90, 63')]+X
        A,k=trace(A,6,40,60); k0=aloop.index('L_att_loop:'); X,_=trace(aloop[:k0],6,k,60); aloop=X+aloop[k0:]
        k=GW.index('; @L2'); X,_=trace(GW[k:],31,0,60 if opt['trc']==1 else 0); GW=GW[:k]+[I('s_memrealtime s[90:91]'), I('s_waitcnt lgkmcnt(0)'), I('v_writelane_b32 v31, s90, 63')]+X
        if opt['trc']==1: ID,_=trace(ID,31,0,30)
        elif opt['trc']==2:
            Ep,k=trace(Ep,31,0,60); D,_=trace(D,31,k,60)
        fin=['L_fin:', I('s_and_b32 s26, s25, 3'), I('s_cmp_lg_u32 s26, %d'%opt.get('trw',0)), I('s_cbranch_scc1 L_notr')]+srd(48,4,5,ST_OFF+0x100000,256*512)+[I('s_lshl_b32 s26, s2, 1'), I('s_lshr_b32 s27, s25, 2'), I('s_add_u32 s26, s26, s27'),
             I('s_lshl_b32 s26, s26, 8'), I('v_lshlrev_b32 v1, 2, v0'), I('s_cmp_ge_u32 s25, 4'), I('s_cbranch_scc1 L_trg'), I('v_mov_b32 v31, v6'), 'L_trg:', I('buffer_store_dword v31, v1, s[48:51], s26 offen'), 'L_notr:']+fin[1:]
    code=B+CA+A+st(1)+aloop+st(2)+AT+FB+gfirst+gloop1+GW+Ep+D+fin+ID+['L_cw1:']
    code,_=fix_hazards(code)
    for tg,tr in trA:
        t,_=fix_hazards(B+tr+A+firstb+body+body+lastb+AT); check_waits(t,'a'+tg)
    tr,_=fix_hazards(FB); check_waits(tr,'k2fb')
    tr,_=fix_hazards(B+gfirst+gbody+gbody+GW+Ep+D); check_waits(tr,'k2g')
    code=[x.strip() if opt.get('compact',1) else x for x in code if not x.startswith(';')]
    return L+code, kernel_desc(name,256,256,102), '; @launch %sgrid=(256,1,1) block=(512,1,1) lds=163840'%('' if name.startswith('recurrent') else 'kernel=%s '%name)
if __name__=='__main__':
    from build import *
    opt=json.loads(sys.argv[2]) if len(sys.argv)>2 else {}
    assemble([gen(opt.get('name','recurrent_scan__softmax_full_mha__mixer_gmlp__prompt_kernel'),opt)], sys.argv[1])
```

```python
from common import *
B_RING=98304; CS=131072+12288
ARR=131072+7*4096
STAT_OFF=0; PST_OFF=0x100000
QSCALE=f2u(32**-0.5*math.log2(math.e))
vOB=1; vOA=5; vA=9; vB=11; vIDX=15; ST=16
AB=32; BF=64; SEL=96; CD=100; ACC=128; X0=104; CSB=112
NQ=3; OOB=0x7fff0000
RP=4
def m16(d,a,b,c=None): return I('v_mfma_f32_16x16x32_bf16 %s, %s, %s, %s'%(vr(d,4),vr(a,4),vr(b,4),vr(d,4) if c is None else c))
p=lambda b: vr(b,2)
flat=lambda G:[x for g in G for x in g]
acc=lambda a,t: ACC+16*a+4*t
tag=lambda L,t: [x+' ; @t:'+t if is_instr(x) and x.strip().startswith('buffer_') else x for x in L]
cond=lambda L: [x+' ; @c' if is_instr(x) and x.strip().startswith('buffer_') else x for x in L]
def wvm(tags,lg=False): return I('s_waitcnt vmcnt(?)%s ; @w:%s'%(' lgkmcnt(0)' if lg else '',tags))
def resolve_vm(L):
    out=list(L)
    for i,x in enumerate(out):
        if '@w:' not in x: continue
        tg0,_,pl=x.split('@w:')[1].split()[0].partition('+'); tags=set(tg0.split(',')); n=int(pl or 0); best=None; seen=set()
        for y in reversed(out[:i]):
            if not (is_instr(y) and y.strip().startswith('buffer_')): continue
            t=y.split('@t:')[1].split()[0] if '@t:' in y else None
            if t in tags and t not in seen:
                seen.add(t)
                if best is None: best=n
                if seen==tags: break
            if '@c' not in y: n+=1
        assert seen==tags,(x,seen)
        out[i]=x.replace('vmcnt(?)','vmcnt(%d)'%min(best,63)).split(' ; @w')[0]
    return [x.split(' ; @')[0] if not x.startswith(';') else x for x in out]
def unpk(L):
    out=[]
    for x in L:
        m=re.match(r'\s*v_pk_(add|mul|fma)_f32 (.*)',x)
        if not m: out.append(x); continue
        c=Ins(x); ns=len(c.ops)-1
        mm=re.search(r'op_sel_hi:\[([01,]*)\]',c.mods); hi=[int(q) for q in mm.group(1).split(',')] if mm else [1]*ns
        assert 'op_sel:' not in c.mods and 'neg' not in c.mods
        def half(o,k):
            r=regs_of(o)
            return '%s%d'%r[k] if r else o
        for k in range(2):
            d=half(c.ops[0],k); sr_=[half(c.ops[1+i],k*hi[i]) for i in range(ns)]
            if m.group(1)=='fma':
                if sr_[2]==d and sr_[1][0]=='v': out.append(I('v_fmac_f32 %s, %s, %s'%(d,sr_[0],sr_[1])))
                elif sr_[2]==d and sr_[0][0]=='v': out.append(I('v_fmac_f32 %s, %s, %s'%(d,sr_[1],sr_[0])))
                else: out.append(I('v_fma_f32 %s, %s, %s, %s'%(d,sr_[0],sr_[1],sr_[2])))
            else:
                if sr_[1][0]!='v': sr_=sr_[::-1]
                out.append(I('v_%s_f32 %s, %s, %s'%(m.group(1),d,sr_[0],sr_[1])))
            if k==0: assert d not in [half(c.ops[1+i],hi[i]) for i in range(ns)],x
    return out
def sprinkle(L,pos,X):
    idx=sorted(int(q*len(L)) if isinstance(q,float) else q for q in pos)
    out=[]; k=0
    for i,x in enumerate(L):
        while k<len(idx) and idx[k]<=i: out+=X; k+=1
        out.append(x)
    out+=X*(len(idx)-k)
    return out

def keep_pairs(fill,n,lo=0,grp=2,hi=1):
    for g in range(n):
        if g%grp in (0,grp-1): fill[g]=[I('s_setprio %d'%(lo if g%grp else lo+hi))]+fill.get(g,[])
SCC_R=('s_cselect','s_cbranch_scc','s_addc','s_subb')
SCC_N=('s_mov','s_movk','s_mul','s_nop','s_waitcnt','s_setprio','s_barrier','s_bitset','s_load','s_getpc','s_sleep','s_branch','s_bfm')
def free_at(L,i,regs=('s26','s27')):
    need={'scc','vcc'}|set(regs)
    for x in L[i:]:
        if not is_instr(x): return False
        op=x.split()[0]; c=Ins(x); rd=set('%s%s'%r if r[0]!='x' else r[1] for r in c.r); wr=set('%s%s'%r if r[0]!='x' else r[1] for r in c.w)
        if op.startswith(SCC_R): rd.add('scc')
        if op.startswith('s_') and not op.startswith(SCC_N) and not op.startswith(('s_cselect','s_cbranch')): wr.add('scc')
        if 'vcc' in x: (wr if op.startswith('v_cmp') else rd).add('vcc')
        if rd&need: return False
        need-=wr
        if not need: break
    return True
def chunks(L):
    out=[[]]
    for i,x in enumerate(L):
        if out[-1] and free_at(L,i): out.append([])
        out[-1].append(x)
    return out
def weave(L,G,lo,hi):
    out=[]; k=0
    for i,x in enumerate(L):
        while k<len(G) and i>=lo+(k*(hi-lo))//len(G) and (free_at(L,i) or i>=hi): out+=G[k]; k+=1
        out.append(x)
    return out+flat(G[k:])

def prologue(opt):
    B=[I('s_cmp_ge_u32 s2, 256'), I('s_cbranch_scc1 L_end')]+rt_begin(opt,sreg=96)
    B+=[I('s_load_dwordx2 s[72:73], s[0:1], %d'%KA_X), I('s_load_dwordx2 s[6:7], s[0:1], %d'%KA_WQKV), I('s_load_dwordx2 s[36:37], s[0:1], %d'%KA_WIN),
        I('s_load_dwordx4 s[44:47], s[0:1], %d'%KA_DBG), I('s_load_dwordx4 s[60:63], s[0:1], %d'%KA_WSP), I('s_load_dwordx2 s[66:67], s[0:1], %d'%KA_WO),
        I('s_load_dwordx4 s[68:71], s[0:1], %d'%KA_WOUT),
        I('v_lshrrev_b32 v1, 6, v0'), I('v_and_b32 v0, 63, v0'), I('s_nop 0'), I('v_readfirstlane_b32 s25, v1'),
        I('s_and_b32 s23, s2, 1'), I('s_lshl_b32 s23, s23, 2'), I('s_bfe_u32 s24, s2, 0x20003'), I('s_add_u32 s23, s23, s24'),
        I('s_bfe_u32 s32, s2, 0x20001'), I('s_lshr_b32 s30, s2, 5'), I('s_lshl_b32 s24, s32, 3'), I('s_add_u32 s24, s24, s30'),
        I('s_lshl_b32 s26, s24, 14'), I('s_lshl_b32 s27, s25, 11'), I('s_add_u32 s21, s26, s27'),
        I('v_lshlrev_b32 v24, 4, v0'),
        I('v_lshrrev_b32 v25, 3, v0'), I('v_lshrrev_b32 v26, 4, v0'), I('v_and_b32 v27, 7, v0'), I('s_lshl_b32 s26, s25, 16'),
        I('v_lshlrev_b32 v25, 11, v25'), I('v_add_u32 v25, s26, v25'), I('v_xor_b32 v27, v27, v26'), I('v_xor_b32 v26, 4, v27'),
        I('v_lshl_add_u32 v27, v27, 4, v25'), I('v_lshl_add_u32 v26, v26, 4, v25')]
    for i in range(4): B+=[I('v_add_u32 v%d, %d, v%d'%(vOA+i, i*8*2048-i*1024, (27,26)[i&1]))]
    B+=[I('s_cmp_ge_u32 s30, 3'), I('s_cselect_b32 s58, 1, 0'), I('s_cselect_b32 s26, 3, 0'), I('s_cselect_b32 s27, 14, 24'), I('s_cselect_b32 s34, 0, 16'),
        I('s_cselect_b32 s89, %d, s58'%1024), I('s_cselect_b32 s88, %d, s58'%3584),
        I('s_sub_u32 s33, s30, s26'), I('s_mul_i32 s35, s33, 3'), I('s_sub_u32 s35, s35, 1'), I('s_max_i32 s35, s35, 0'),
        I('s_mul_i32 s27, s27, s32'), I('s_add_u32 s34, s34, s27'), I('s_add_u32 s34, s34, s35'),
        I('s_mul_i32 s22, s32, 24'), I('s_lshl_b32 s26, s30, 1'), I('s_add_u32 s22, s22, s26'), I('s_add_u32 s89, s89, 6144'),
        I('v_bfe_u32 v28, v0, 3, 1'), I('v_bfe_u32 v25, v0, 1, 2'), I('v_lshl_add_u32 v28, v28, 3, v25'),
        I('s_lshr_b32 s26, s25, 2'), I('s_lshl_b32 s26, s26, 5'), I('s_and_b32 s27, s25, 1'), I('s_lshl_b32 s27, s27, 4'), I('s_add_u32 s26, s26, s27'),
        I('s_and_b32 s27, s25, 2'), I('s_lshl_b32 s27, s27, 1'), I('s_add_u32 s26, s26, s27'), I('v_add_u32 v28, s26, v28'),
        I('v_lshrrev_b32 v25, 4, v0'), I('v_and_b32 v26, 1, v0'), I('v_lshlrev_b32 v25, 5, v25'), I('v_lshl_add_u32 v25, v26, 4, v25'),
        I('s_lshl_b32 s26, s22, 6'), I('s_movk_i32 s27, 6144'), I('v_add_u32 v26, s26, v25'), I('v_mad_u32_u24 v%d, v28, s27, v26'%vOB),
        I('s_lshl_b32 s26, s34, 6'), I('s_add_u32 s26, s26, s88'), I('s_sub_u32 s26, s26, 1024'), I('v_add_u32 v26, s26, v25'), I('v_mad_u32_u24 v%d, v28, s89, v26'%(vOB+1)),
        I('s_cmp_lg_u32 s33, 0'), I('s_cselect_b32 s26, 32, 0'), I('v_cmp_gt_u32 vcc, s26, v0'), I('v_add_u32 v25, %d, v%d'%((128-1024)&0xffffffff,vOB+1)), I('v_mov_b32 v26, 0x%x'%OOB),
        I('v_cndmask_b32 v%d, v26, v25, vcc'%(vOB+2)),
        I('s_and_b32 s42, s25, 3'), I('s_mul_i32 s28, s42, %d'%(NQ*1024)), I('s_add_u32 s28, s28, %d'%B_RING), I('s_lshr_b32 s26, s25, 2'), I('s_lshl_b32 s26, s26, 14'), I('s_add_u32 s40, s28, s26'),
        I('s_lshl_b32 s29, s25, 12'), I('s_lshl_b32 s26, s23, 19'), I('s_add_u32 m0, s29, 65536'), I('s_cmp_lg_u32 s58, 0'),
        I('s_waitcnt lgkmcnt(0)')]
    B+=[I('s_cselect_b32 s84, s36, s6'), I('s_cselect_b32 s85, s37, s7')]+srd(12,72,73,'s26',256*2048)
    if opt.get('cw_'):
        B+=['L_cw0:', I('s_getpc_b64 s[16:17]'), I('s_mov_b32 s18, L_cw1-L_cw0'), I('s_mov_b32 s19, 0x20000'), I('s_lshr_b32 s27, s2, 3'), I('s_lshl_b32 s27, s27, 3'), I('s_add_u32 s27, s27, s25'), I('s_lshl_b32 s27, s27, 9'),
            I('v_lshlrev_b32 v22, 6, v0'), I('v_cmp_gt_u32 vcc, 8, v0'), I('v_add_u32 v22, s27, v22'), I('v_mov_b32 v23, 0x%x'%OOB), I('v_cndmask_b32 v22, v23, v22, vcc'), I('buffer_load_dword v14, v22, s[16:19], 0 offen')]
    for k in range(2): B+=[I('buffer_load_dwordx4 %s, v24, s[12:15], s21 offen offset:%d'%(vr(ACC+4*k,4),1024*k))]
    for i in range(4): B+=[I('buffer_load_dwordx4 v%d, s[12:15], 0 offen offset:%d lds'%(vOA+i,i*1024))]
    B+=[I('s_mov_b32 m0, s40'), I('s_lshl_b32 s86, s89, 10'), I('s_mov_b32 s87, 0x20000')]+srd(8,6,7,0,0x600000)
    B+=[I('buffer_load_dwordx4 v%d, s[%d:%d], 0 offen offset:%d lds'%(vOB+i,(8,84,84)[i],(11,87,87)[i],i*1024)) for i in range(NQ)]
    B+=[I('s_mov_b32 s4, s46'), I('s_mov_b32 s5, s47')]
    B+=srd(16,4,5,0,O_OFF)+srd(92,4,5,STAT_OFF,256*128)+srd(52,44,45,0,256)+srd(48,4,5,FLAG_OFF,65536)
    B+=[I('s_lshl_b32 s26, s23, 5'), I('s_add_u32 s26, s26, s24'), I('s_lshl_b32 s26, s26, 7'), I('s_lshl_b32 s27, s25, 3'), I('s_add_u32 s26, s26, s27'),
        I('v_mov_b32 v22, s26'), I('v_cmp_eq_u32 vcc, 0, v0'), I('v_mov_b32 v29, 0x%x'%OOB), I('v_cndmask_b32 v30, v29, v22, vcc'),
        I('s_lshl_b32 s26, s2, 8'), I('s_cmp_lg_u32 s25, 0'), I('s_cselect_b32 s26, 0x%x, s26'%OOB),
        I('v_and_b32 v22, 7, v0'), I('v_lshl_add_u32 v22, v22, 2, s26'), I('v_lshrrev_b32 v23, 3, v0'), I('v_lshl_add_u32 v22, v23, 7, v22'), I('v_cmp_gt_u32 vcc, 16, v0'),
        I('v_cndmask_b32 v29, v29, v22, vcc'), I('v_mov_b32 v31, 0'), I('s_lshl_b32 s47, s23, 5'),
        I('s_lshl_b32 s89, s89, 6'), I('s_mov_b32 s88, s89'), I('s_mov_b32 s20, %d'%(64*6144)), I('s_mov_b32 s21, 128'),
        I('s_mov_b32 s57, 32768'), I('s_mov_b32 s59, 0xffff0000'), I('s_mov_b32 s40, 2'),
        I('s_lshl_b32 s26, s24, 1'), I('s_lshr_b32 s27, s25, 2'), I('s_add_u32 s26, s26, s27'), I('s_lshl_b32 s74, s26, %d'%(7+RP.bit_length()-1)),
        I('s_lshl_b32 s31, s23, 14'), I('s_lshl_b32 s26, s42, 12'), I('s_add_u32 s31, s31, s26'),
        I('s_lshl_b32 s64, s23, 1'), I('s_bfe_u32 s26, s2, 0x10001'), I('s_add_u32 s64, s64, s26'),
        I('s_cmp_ge_u32 s25, 4'), I('s_cbranch_scc1 L_k1_g'),
        I('s_cmp_lg_u32 s58, 0'), I('s_cbranch_scc1 L_k1_z'), I('s_cmp_lg_u32 s33, 0'), I('s_cbranch_scc1 L_k1_q3'), I('s_branch L_k1_q2'),
        'L_k1_z:', I('s_cmp_lg_u32 s33, 0'), I('s_cbranch_scc1 L_k1_z3'), I('s_branch L_k1_z2')]
    return B

def stream(kind, NB, opt, setup=[], hooks={}):
    tg=kind+str(NB); h=1 if kind=='g' else 0; isz=kind=='z'
    NFR=2*NB; NM=4*NFR; STM=opt.get('st_mod','sc0 sc1')
    S=['L_k1_%s:'%(tg if kind!='g' else 'g')]
    if kind=='g': S+=[I('s_mov_b32 s34, s22')]
    S+=[I('s_lshl_b32 s26, s34, 17'), I('s_add_u32 s31, s31, s26'), I('s_add_u32 s31, s31, 0x%x'%(Z2N_OFF if isz else P1_OFF)), I('s_mov_b32 s35, %d'%(0 if h else 2))]
    if not isz: S+=[I('s_cmp_lt_u32 s34, 32'), I('s_cselect_b32 s56, 0x%x, 1.0'%QSCALE)]
    S+=[I('v_and_b32 v24, 15, v0'), I('v_lshrrev_b32 v25, 4, v0'), I('v_bfe_u32 v26, v0, 1, 3'), I('s_lshl_b32 s26, s42, 13'), I('s_add_u32 s26, s26, 65536'),
        I('v_lshlrev_b32 v24, 7, v24'), I('v_add_u32 v24, s26, v24'),
        I('v_xor_b32 v27, v25, v26'), I('v_lshl_add_u32 v%d, v27, 4, v24'%vA), I('v_xor_b32 v%d, 64, v%d'%(vA+1,vA))]
    S+=[I('v_lshrrev_b32 v24, 5, v0'), I('v_mul_u32_u24 v24, %d, v24'%(NQ*1024)), I('v_and_b32 v25, 31, v0'), I('v_lshl_add_u32 v24, v25, 3, v24'),
        I('s_cmp_ge_u32 s42, %d'%NB), I('s_cselect_b32 s27, %d, 0'%NB), I('s_sub_u32 s46, s42, s27')]
    def phys(i): return [I('s_add_u32 s26, s46, %d'%i), I('s_cmp_ge_u32 s26, %d'%NB), I('s_cselect_b32 s27, %d, 0'%NB), I('s_sub_u32 s26, s26, s27')]
    for i in range(NB):
        S+=phys(i)+[I('s_lshl_b32 s26, s26, 9'), I('s_add_u32 s26, s26, %d'%(B_RING+(0 if h else 1024))), I('v_add_u32 v%d, s26, v24'%(vB+i))]
    S+=[I('v_bfe_u32 v24, v0, 1, 1'), I('v_lshrrev_b32 v25, 5, v0'), I('v_cmp_eq_u32 vcc, v24, v25'), I('v_mov_b32 v24, 0x3f803f80'),
        I('v_cndmask_b32 v%d, 0, v24, vcc'%SEL)]+([I('v_and_b32 v24, 8, v0'), I('v_cmp_eq_u32 vcc, 0, v24'), I('v_cndmask_b32 v%d, 0, v%d, vcc'%(SEL,SEL))] if opt.get('o8') else [])+[I('v_mov_b32 v%d, v%d'%(SEL+i,SEL)) for i in range(1,4)]
    S+=[I('v_and_b32 v24, 1, v0'), I('v_mul_u32_u24 v24, 0xaaaa, v24'), I('v_add_u32 v%d, 0x4444, v24'%vIDX)]+[I('v_mov_b32 v%d, 0'%(CD+i)) for i in range(4)]
    SDEF=opt.get('sdef',0); EB=opt.get('eb',0)
    WP=opt.get('wp',0); vPF=112
    PFS=[I('s_bfe_u32 s26, s2, 0x20003'), I('s_cmp_eq_u32 s26, s42'), I('s_cselect_b32 s26, 0, 64'), I('v_or_b32 v24, s26, v0'), I('v_mov_b32 v26, 0x%x'%OOB),
         I('v_and_b32 v25, 0x71, v24'), I('v_cmp_eq_u32 vcc, 0, v25'), I('v_cndmask_b32 v%d, v26, v%d, vcc'%(vPF,vOB)),
         I('v_and_b32 v25, 0x51, v24'), I('v_cmp_eq_u32 vcc, 0, v25'), I('v_cndmask_b32 v%d, v26, v%d, vcc'%(vPF+1,vOB+1)),
         I('v_and_b32 v25, 0x71, v24'), I('v_cmp_eq_u32 vcc, 16, v25'), I('v_add_u32 v24, 1024, v%d'%(vOB+2)), I('v_cndmask_b32 v%d, v%d, v24, vcc'%(vPF+1,vPF+1))]
    if WP: S+=PFS
    pfW=[[I('buffer_load_dword v%d, v%d, s[8:11], s20 offen'%(vPF+2,vPF))],[I('buffer_load_dword v%d, v%d, s[84:87], s88 offen offset:1024'%(vPF+2,vPF+1))]] if WP else []
    NP_=len(pfW)
    if not SDEF: S+=setup
    def dmaW(s):
        G=[[I('buffer_load_dwordx4 v%d, s[%d:%d], s%d offen offset:%d lds'%(vOB+i,(8,84,84)[i],(11,87,87)[i],(20,88,88)[i],i*1024))] for i in range(NQ)]
        G[-1]+=[I('s_add_u32 s20, s20, %d'%(64*6144)), I('s_add_u32 s88, s88, s89')]
        return [[I('s_add_u32 m0, s28, %d'%((s%4)*16384))]]+G
    def dmaX():
        G=[[I('buffer_load_dwordx4 v%d, s[12:15], s21 offen offset:%d lds'%(vOA+i,i*1024))] for i in range(4)]
        G[-1]+=[I('s_add_u32 s21, s21, 128'), I('s_add_u32 s29, s29, 32768'), I('s_cmp_ge_u32 s29, 98304'), I('s_cselect_b32 s26, 98304, 0'), I('s_sub_u32 s29, s29, s26')]
        return [[I('s_mov_b32 m0, s29')]]+G
    def dma(s):
        if (s&1)==h: return dmaW(s+4)+(pfW if s<=25 else []) if s+4<=31 else None
        return dmaX() if s<=26 else None
    def rdA(j): return [I('ds_read_b128 %s, v%d offset:%d'%(vr(AB+16*j+4*t,4),vA+j,t*2048)) for t in range(4)]
    advA=lambda j: [I('v_add_u32 v%d, s59, v%d'%(vA+j,vA+j))]
    nxtA=[I('s_add_u32 s40, s40, 1'), I('s_cmp_eq_u32 s40, 3'), I('s_cselect_b32 s40, 0, s40'), I('s_cmp_eq_u32 s40, 2'), I('s_cselect_b32 s59, 0xffff0000, s57')]
    def rdB(a,s,dst=None): return [[I('ds_read_b64_tr_b16 %s, v%d offset:%d'%(vr((BF+4*a if dst is None else dst)+2*u,2),vB+a//2,(s%4)*16384+2*u*NQ*1024+(a&1)*256))] for u in range(2)]
    SMF=I('v_smfmac_f32_16x16x64_bf16 %s, %s, %s, v%d'%(vr(CD,4),vr(SEL,4),vr(BF,8),vIDX))
    GB=opt.get('gb'+kind,opt.get('k1gb',3)); D0=opt.get('k1d0',2); DS=opt.get('ds'+str(NB),(NM-GB-D0-1)//4+(1 if NM>16 else 0))
    VW=I('s_waitcnt vmcnt(%d) lgkmcnt(0)'%(4+NQ+NP_)); VWt=I('s_waitcnt vmcnt(%d) lgkmcnt(0)'%(4+NQ))
    def step(s, G, c0=False, extra=None, vw=[VW], dense=False, pre_last=False):
        j=s&1
        spine=[m16(acc(a,t),BF+4*a,AB+16*j+4*t,'0' if c0 else None) for a in range(NFR) for t in (range(3,-1,-1) if opt.get('ch',0)&8 and a&1 else range(4))]
        fill={}
        def add(g,x): fill.setdefault(g,[]).extend(x)
        add(GB,vw+[I('s_barrier')])
        ra=[[x] for x in rdA(1-j)]; ra[-1]+=advA(1-j)+(nxtA if j==0 else [])
        avail={GB:rdB(0,s+1)+ra}
        for a in range(1,NFR): avail.setdefault(max(GB,4*a+3),[]).extend(rdB(a,s+1))
        if pre_last: avail.setdefault(12,[]).extend(rdB(0,31,X0)+rdB(1,31,X0+4))
        queue=[]
        for g2 in range(GB,NM):
            queue+=avail.get(g2,[])
            n=1 if g2<NM-1 else len(queue)
            add(g2,flat(queue[:n])); queue=queue[n:]
        add(NM-3,[SMF])
        if pre_last: add(NM-1,[SMF.replace(vr(BF,8),vr(X0,8))])
        if G:
            if dense:
                for g,x in G: add(g,x)
            else:
                add(GB,G[0])
                for k,g in enumerate(G[1:]): add(min(GB+D0+k*DS,NM-1),g)
        if extra:
            for g,x in extra.items(): add(g,x)
        return interleave(spine,fill)
    CHK=opt.get('ch',0)&16; NBASE=([224,64,80] if NB==3 else [64,80]); NR=lambda a,j: NBASE[a//2]+8*j+4*(a&1)
    rdT=lambda t: [rdA(j)[t] for j in range(2)]
    rdN=lambda a,D: [r for j in range(2) for r in flat(rdB(a,2*D+j,NR(a,j)))]
    smfN=lambda j: SMF.replace(vr(BF,8),vr(NR(0,j),8))
    B0=opt.get('k1b'+str(NB),opt.get('k1b0',9)); WS=opt.get('k1ws'+str(NB),2 if NB==2 else 4); XS_=opt.get('k1xs'+str(NB),3 if NB==2 else 5); LD=opt.get('k1ld',1); SP=opt.get('k1sp',[5,9]); BE=opt.get('k1be',0); B1=NM-1+BE; assert not BE or (B0 is not None and not WP and BE<=4)
    def dstep(D, c0=False, extra=None, vw=None, pre=[], pre_last=False, tg_=lambda G:G):
        path=[(a,2*hf+(k^(a&1))) for hf in range(2) for a in range(NFR) for k in range(2)]
        spine=[m16(acc(a,t),NR(a,j),AB+16*j+4*t,'0' if c0 and q==0 else None) for i,(a,t) in enumerate(path) for q,j in enumerate(((0,1),(1,0))[i&1])]
        fill={}
        def add(g,x): fill.setdefault(g,[]).extend(x)
        for g,x in pre: add(g,x)
        late=rdN(NFR-1,D)+rdT(2)+rdT(3)
        for k,r in enumerate(late): add(k//LD,[r])
        add(7//LD,advA(0)+advA(1)+nxtA)
        for j in range(2): add(SP[j],[smfN(j)])
        W=tg_(dmaW(2*D+4+h)) if D<=13 else None; Xd=dmaX() if D<=12 else None
        nw=0
        if B0 is not None:
            add(B0,[I('s_waitcnt %slgkmcnt(0)'%('vmcnt(%d) '%(7 if D<=13 else 3) if BE else '')) if not (BE and D==14) else wvm('k1+3',True), I('s_barrier')])
            if W:
                add(B0,W[0])
                for k,g in enumerate(W[1:]): add(B0+1+k*WS,g); nw+=B0+1+k*WS<B1
        add(B1,(vw or [I('s_waitcnt vmcnt(%d)%s'%(4+nw+(NP_ if D else 0),'' if B0 is not None else ' lgkmcnt(0)'))])+[I('s_barrier')])
        x0=B1+2
        if B0 is None and W:
            add(NM-1,W[0])
            for k,g in enumerate(W[1:]): add(NM+2*k,g)
            x0=NM+6
        elif W: x0=max(x0,B0+1+2*WS+opt.get('k1xo'+str(NB),1))
        if WP and D<=12:
            for k,g in enumerate(pfW): add(x0+k,g)
            x0+=2
        if Xd:
            add(x0-1,Xd[0])
            st_=min(XS_,(2*NM-1-x0)//3)
            for k,g in enumerate(Xd[1:]): add(x0+k*st_,g)
        for k,r in enumerate(rdT(1)+rdT(0)+flat([rdN(a,D+1) for a in range(NFR-1)])): add(NM+k,[r])
        if pre_last: add(2*NM-3,[smfN(0)]); add(2*NM-1,[smfN(1)])
        for g,x in (extra or {}).items(): add(g,x)
        if opt.get('kp',0)&4: keep_pairs(fill,2*NM,0,opt.get('k1kn'+str(NB),opt.get('k1kn',2)))
        return interleave(spine,fill)
    def two(e0_,e1_):
        c={k:list(v) for k,v in (e0_ or {}).items()}
        for k,v in (e1_ or {}).items(): c.setdefault(k+NM,[]).extend(v)
        return c
    X=ACC+16; R=ACC
    P=S+[I('s_waitcnt vmcnt(%d)'%(4+NQ))]
    for k in range(2): P+=unpack8(ACC+4*k,X+8*k)
    P+=[I('v_pk_add_f32 %s, %s, %s'%(p(R+2*i),p(X+2*i),p(X+8+2*i))) for i in range(4)]
    P+=[I('v_pk_add_f32 %s, %s, %s'%(p(R),p(R),p(R+2))), I('v_pk_add_f32 %s, %s, %s'%(p(R+4),p(R+4),p(R+6))), I('v_pk_add_f32 %s, %s, %s'%(p(R),p(R),p(R+4))),
        I('v_add_f32 v%d, v%d, v%d'%(R,R,R+1))]+wave_sum(R,R+1)+[I('v_mul_f32 v%d, 0xba800000, v%d'%(ST,R))]
    P+=[I('v_pk_add_f32 %s, %s, %s op_sel_hi:[1,0]'%(p(X+2*i),p(X+2*i),p(ST))) for i in range(8)]
    P+=[I('v_pk_mul_f32 %s, %s, %s'%(p(R+2*i),p(X+2*i),p(X+2*i))) for i in range(4)]
    P+=[I('v_pk_fma_f32 %s, %s, %s, %s'%(p(R+2*i),p(X+8+2*i),p(X+8+2*i),p(R+2*i))) for i in range(4)]
    P+=[I('v_pk_add_f32 %s, %s, %s'%(p(R),p(R),p(R+2))), I('v_pk_add_f32 %s, %s, %s'%(p(R+4),p(R+4),p(R+6))), I('v_pk_add_f32 %s, %s, %s'%(p(R),p(R),p(R+4))),
        I('v_add_f32 v%d, v%d, v%d'%(R,R,R+1))]+wave_sum(R,R+1)
    P+=[I('v_mov_b32 v%d, 0x3727c5ac'%(R+1)), I('v_fmac_f32 v%d, 0x3a800000, v%d'%(R+1,R)), I('v_rsq_f32 v%d, v%d'%(ST+1,R+1)), I('s_nop 0'),
        I('buffer_store_dwordx2 %s, v30, s[92:95], 0 offen sc0 sc1'%p(ST)), I('buffer_store_dword v31, v29, s[48:51], 0 offen sc0 sc1')]
    if isz:
        if opt.get('f4',0):
            P+=[I('s_mul_i32 s26, s23, %d'%(20*2048)), I('s_mul_i32 s27, s42, 10240'), I('s_add_u32 s38, s26, s27'), I('s_add_u32 s38, s38, 0x%x'%PST_OFF),
                I('s_mul_i32 s26, s32, 5'), I('s_add_u32 s26, s26, s33'), I('s_and_b32 s27, s26, 1'), I('s_lshr_b32 s26, s26, 1'), I('s_lshl_b32 s26, s26, 10'), I('s_lshl_b32 s27, s27, 3'),
                I('s_add_u32 s39, s26, s38'), I('s_add_u32 s39, s39, s27'), I('v_lshlrev_b32 v24, 4, v0')]
        else:
            P+=[I('s_mul_i32 s26, s23, %d'%(20*2048)), I('s_lshl_b32 s27, s42, 9'), I('s_add_u32 s38, s26, s27'), I('s_add_u32 s38, s38, 0x%x'%PST_OFF),
                I('s_mul_i32 s26, s32, 5'), I('s_add_u32 s26, s26, s33'), I('s_lshl_b32 s26, s26, 11'), I('s_add_u32 s39, s26, s38'), I('v_lshlrev_b32 v24, 3, v0')]
        P+=[I('v_mov_b32 v26, -1'), I('v_mov_b32 v27, -1'), I('buffer_store_dwordx2 v[26:27], v24, s[16:19], s39 offen sc0 sc1')]
    seq=dmaX()+dmaW(2+h)+dmaX(); ne=(0,9,14)[EB]
    if EB:
        kw=len(S); ks=[i for i,x in enumerate(P) if 'buffer_store' in x][0]
        G2=[seq[i]+seq[i+1] if len(seq[i])==1 and 'm0' in seq[i][0] else seq[i] for i in range(ne) if not (i and len(seq[i-1])==1 and 'm0' in seq[i-1][0])]
        lo={0:0,1:kw+1,2:ks}[opt.get('ebg',0) if h else opt.get('eba',1)]
        P=[x+' ; @sw' if i==kw else x for i,x in enumerate(P)]
        P=weave(P[:ks],G2[:7],lo,ks)+P[ks:]+flat(G2[7:])
        kw=[i for i,x in enumerate(P) if '@sw' in x][0]
        P[kw]=I('s_waitcnt vmcnt(%d)'%(4+NQ+sum('buffer_load' in x for x in P[:kw])))
        seq=seq[ne:]
    P+=[I('s_waitcnt vmcnt(%d)'%((3 if isz else 2)+(0,7,11)[EB])), I('s_barrier')]
    k0=len(P)
    if CHK: P+=rdN(0,0)[:2]+rdT(0)[:1]+rdN(0,0)[2:]+rdT(0)[1:]+rdT(1)[::-1]+flat([rdN(a,0) for a in range(1,NFR-1)])
    else:
        P+=flat(rdB(0,0))+rdA(0)+advA(0)
        for a in range(1,NFR): P+=flat(rdB(a,0))
    P+=[I('s_mov_b32 s22, 6')]+([] if CHK else [SMF])+([I('s_setprio %d'%opt['k1p'+kind])] if opt.get('k1p'+kind) else [])
    w0=lambda lab,Z: [I('s_cmp_lg_u32 s25, 0'), I('s_cbranch_scc1 %s_%s'%(lab,tg))]+Z+['%s_%s:'%(lab,tg)]
    pub=[] if h else w0('L_k1_np',[I('v_mov_b32 v28, 1'), I('v_mov_b32 v29, 0'), I('s_mov_b64 exec, 1'),
         I('buffer_atomic_add v28, v29, s[52:55], s47 offen sc1'), I('s_mov_b64 exec, -1'), I('v_lshlrev_b32 v27, 5, v0')])
    n0=len(seq)
    if not h: seq+=dmaW(4)+pfW
    if not seq: seq=[[]]
    pos=[(-1+(k*NM)//len(seq)) if k<n0 else max(GB,-1+(k*NM)//len(seq)) for k in range(len(seq))]
    VW1=I('s_waitcnt vmcnt(%d) lgkmcnt(0)'%(4 if EB and h else 4+NQ+NP_))
    ex0={}; ex1={GB+1:list(pub)}
    if SDEF and setup:
        ch=chunks(setup)
        for k,c in enumerate(ch):
            g=(k*2*NM)//len(ch); (ex0 if g<NM else ex1).setdefault(g%NM,[]).extend(c)
    if CHK:
        assert EB==1 and not hooks.get('loop')
        for x in setup+flat(flat([list(v.values()) for v in hooks.values()])):
            if is_instr(x): assert not any(r[0]=='v' and 64<=r[1]<96 for r in Ins(x).w),x
        e1=dict(ex1); e1[GB+1]=e1[GB+1][len(pub):]; e1[BE]=pub+e1.get(BE,[])
        f01=dstep(0,c0=True,extra=two(ex0,e1),pre=[(-1+(k*(B0 or NM-1))//n0,seq[k]) for k in range(n0)])
        first=P[:k0]+auto_lgkm(P[k0:]+f01,pre=[])
        body=auto_lgkm(dstep(1)+dstep(2))
    else:
        f0=step(0,list(zip(pos,seq)),c0=True,vw=[I('s_waitcnt lgkmcnt(0)')],dense=True,extra=ex0)
        f1=step(1,dma(1),extra=ex1,vw=[VW1])
        first=P[:k0]+auto_lgkm(P[k0:]+f0+f1,pre=[])
        body=auto_lgkm(flat([step(s,dma(s),extra=hooks.get('loop') if s==2 else None) for s in range(2,6)]))
    Lp='L_k1_loop_%s'%tg
    loop=[Lp+':']+body+[I('s_sub_u32 s22, s22, 1'), I('s_cmp_lg_u32 s22, 0'), I('s_cbranch_scc1 %s'%Lp)]
    ask=[I('s_mov_b64 exec, 0xff'), I('buffer_load_dword v28, v27, s[52:55], 0 offen sc1'), I('s_mov_b64 exec, -1')]
    chk=[] if h else w0('L_k1_ck',[I('s_mov_b32 s27, 0x40000'), 'L_k1_chl_%s:'%tg, I('v_cmp_le_u32 vcc, 32, v28'), I('s_nop 1'), I('s_and_b32 s26, vcc_lo, 0xff'), I('s_cmp_eq_u32 s26, 0xff'),
        I('s_cbranch_scc1 L_k1_ck_%s'%tg), I('s_sleep 2')]+cond(ask)+[I('s_waitcnt vmcnt(0)'), I('s_sub_u32 s27, s27, 1'), I('s_cmp_lg_u32 s27, 0'), I('s_cbranch_scc1 L_k1_chl_%s'%tg)])
    g=GB+1
    ex29={0:[I('v_bfe_u32 v1, v0, 3, 1'), I('v_and_b32 v24, 7, v0'), I('s_lshl_b32 s26, s23, 12')],
          1:[I('v_lshlrev_b32 v1, 7, v1'), I('s_lshl_b32 s27, s42, 10')],
          2:[I('v_lshl_add_u32 v1, v24, 3, v1'), I('s_add_u32 s43, s26, s27')]}
    for t in range(4): ex29[g+1+t]=tag([I('buffer_load_dwordx2 %s, v1, s[92:95], s43 offen offset:%d sc1'%(p(ST+2*t),256*t))],'st')
    ex28={0:[I('v_and_b32 v2, 31, v0'), I('s_add_u32 s26, s35, s46'), I('s_lshl_b32 s26, s26, 7'), I('s_add_u32 s26, s26, %d'%CS)],
          1:[I('v_lshl_add_u32 v2, v2, 2, s26'), I('v_lshrrev_b32 v3, 4, v0')],
          2:[I('v_lshlrev_b32 v3, 4, v3'), I('v_lshlrev_b32 v4, 4, v0')],
          6:[I('v_mov_b32 v6, %d'%(ARR+4*h)), I('v_mov_b32 v7, 0')], 7:[I('ds_write_b32 v6, v7')]}
    def merge(a,b):
        c={k:list(v) for k,v in a.items()}
        for k,v in (b or {}).items(): c.setdefault(k,[]).extend(v)
        return c
    tgd=lambda G: [tag(x,'k1') for x in G] if G else G
    e0=step(26,tgd(dma(26)),extra={0:[] if h else w0('L_k1_ak',cond(ask))})+step(27,tgd(dma(27)),vw=[VWt])+step(28,None,extra=merge(ex28,hooks.get(28)),vw=[VWt])
    e0+=step(29,None,extra=merge(ex29,hooks.get(29)),vw=[wvm('k1',True)]+chk,pre_last=True)
    if CHK:
        x29={k-NM:v for k,v in ((NM-4+k if k<3 else NM+BE+k-g-1,v) for k,v in ex29.items())}
        e0=dstep(13,extra={0:[] if h else w0('L_k1_ak',cond(ask))},tg_=tgd)
        e0+=dstep(14,extra=two(merge(ex28,hooks.get(28)),merge(x29,hooks.get(29))),vw=[wvm('k1',B0 is None)]+chk,pre_last=True)
    csr=lambda a: CSB+4*(a&1)+(-8 if isz else 8)*((a>>1)&1)
    def rdc(i): return phys(i)+[I('s_lshl_b32 s26, s26, 7'), I('s_add_u32 s26, s26, %d'%(CS+(0 if h else 256))), I('v_add_u32 v5, s26, v3')]+[
        I('ds_read_b128 %s, v5 offset:%d'%(vr(csr(2*i+f),4),64*f)) for f in range(2)]
    def last2(prep, epi, span=16):
        spine=[m16(acc(2*i+f,t),(BF+8*i if j==0 else (X0 if i==0 else BF+8*(i-1)))+4*f,AB+16*j+4*t) for i in range(NB) for j in range(2) for f in range(2) for t in range(4)]
        p8=((0,0),(0,1),(1,1),(1,0),(1,2),(1,3),(0,3),(0,2))
        if CHK: spine=[m16(acc(2*i+f,t),NR(2*i+f,j),AB+16*j+4*t) for i in range(NB) for n,(f,t) in enumerate(p8) for j in ((0,1),(1,0))[n&1]]
        fill={}
        def add(g,x): fill.setdefault(g,[]).extend(x)
        for k,r in enumerate(rdT(2)+rdT(3) if CHK else rdA(1)): add(k,[r])
        add(1,[I('v_bfe_u32 v5, v0, 4, 1')]); add(2,[I('v_cmp_eq_u32 vcc, 0, v5')])
        add(4,[I('v_add_f32 v%d, v%d, v%d'%(CD,CD,CD+1)), I('v_add_f32 v%d, v%d, v%d'%(CD+2,CD+2,CD+3))])
        add(5,[I('v_cndmask_b32 v%d, v%d, v%d, vcc'%(CD,CD+2,CD))]+([I('s_mov_b32 exec_hi, 0')] if opt.get('o8') else [])+[I('ds_write_b32 v2, v%d'%CD)]+([I('s_mov_b32 exec_hi, -1')] if opt.get('o8') else []))
        add(7,[I('s_waitcnt lgkmcnt(0)'), I('s_barrier'), '; @L2']+rdc(0))
        if CHK:
            for k,r in enumerate(rdN(NFR-1,15)): add(8+k,[r])
        for i in range(1,0 if CHK else NB):
            for k,r in enumerate(rdB(2*i,31,BF+8*(i-1))+rdB(2*i+1,31,BF+8*(i-1)+4)): add(16*(i-1)+8+k,r)
        add(11,[wvm('st')])
        for k,x in enumerate(prep): add(12+(k*4)//len(prep),[x])
        for g,x in hooks.get('l2',{}).items(): add(g,x)
        for i in range(NB-1):
            E=epi(i)
            for k,x in enumerate(E): add(16+span*i+(k*span)//len(E),[x])
        return interleave(spine,fill)+epi(NB-1)
    def center(a,pk):
        if pk: return [I('v_pk_fma_f32 %s, %s, %s, %s op_sel_hi:[1,0,1]'%(p(acc(a,t)+2*i),p(csr(a)+2*i),p(ST+2*t),p(acc(a,t)+2*i))) for t in range(4) for i in range(2)]
        return [I('v_fmac_f32 v%d, v%d, v%d'%(acc(a,t)+i,csr(a)+i,ST+2*t)) for t in range(4) for i in range(4)]
    def scale(a,pk):
        if pk: return [I('v_pk_mul_f32 %s, %s, %s op_sel_hi:[1,0]'%(p(acc(a,t)+2*i),p(acc(a,t)+2*i),p(24+2*t))) for t in range(4) for i in range(2)]
        return [I('v_mul_f32 v%d, v%d, v%d'%(acc(a,t)+i,acc(a,t)+i,24+2*t)) for t in range(4) for i in range(4)]
    def put(i):
        E=phys(i)+[I('s_lshl_b32 s26, s26, 17'), I('s_add_u32 s27, s26, s31')]
        for t in range(4):
            a=acc(2*i,t); b=acc(2*i+1,t)
            E+=[I('v_cvt_pk_bf16_f32 v%d, v%d, v%d'%(a,a,a+1)), I('v_cvt_pk_bf16_f32 v%d, v%d, v%d'%(a+1,a+2,a+3)),
                I('v_cvt_pk_bf16_f32 v%d, v%d, v%d'%(a+2,b,b+1)), I('v_cvt_pk_bf16_f32 v%d, v%d, v%d'%(a+3,b+2,b+3)),
                I('buffer_store_dwordx4 %s, v4, s[16:19], s27 offen offset:%d %s'%(vr(a,4),t*1024,STM))]
        return tag(E,'kst')
    aux={}
    if not isz:
        PK=opt.get('bmpk',0)
        NI=opt.get('ni'+tg,NB-1)
        def epi(i,pk):
            return (rdc(i+1) if i<NB-1 else [])+center(2*i,pk)+scale(2*i,pk)+center(2*i+1,pk)+scale(2*i+1,pk)+put(i)
        E=[I('s_setprio %d'%opt.get('gp' if h else 'qp',3 if h else 2))]
        if h and 'gpz' in opt: E+=[I('s_cmp_eq_u32 s58, 0'), I('s_cbranch_scc1 L_k1_gpz'), I('s_setprio %d'%opt['gpz']), 'L_k1_gpz:']
        E+=last2([I('v_mul_f32 v%d, s56, v%d'%(24+2*t,ST+2*t+1)) for t in range(4)],lambda i: epi(i,PK) if i<NI else [],16*(NB-1)//max(min(NI,NB-1),1))
        E+=flat([epi(i,1) for i in range(NI,NB)])+[I('s_setprio 0')]
    else:
        T=240; K1=96 if CHK else 88; K2=120; RR=24; SS=224; QQ=232
        def gel(a):
            xs=[(acc(a,0)+2*k,T+2*k,k//2) for k in range(8)]
            G=[I('v_pk_mul_f32 %s, %s, %s'%(p(w),p(x),p(x))) for x,w,t in xs]
            G+=[I('v_fma_f32 v%d, v%d, v%d, v%d'%(w+k,w+k,K2+2*t,K1+2*t)) for x,w,t in xs for k in range(2)]
            G+=[I('v_pk_mul_f32 %s, %s, %s'%(p(w),p(w),p(x))) for x,w,t in xs]
            G+=[I('v_exp_f32 v%d, v%d'%(w+k,w+k)) for x,w,t in xs for k in range(2)]
            G+=[I('v_pk_add_f32 %s, %s, 1.0 op_sel_hi:[1,0]'%(p(w),p(w))) for x,w,t in xs]
            G+=[I('v_rcp_f32 v%d, v%d'%(w+k,w+k)) for x,w,t in xs for k in range(2)]
            G+=[I('v_pk_mul_f32 %s, %s, %s'%(p(x),p(x),p(w))) for x,w,t in xs]
            return G
        prep=[I('v_mul_f32 v%d, 0x%x, v%d'%(K1+2*t,f2u(GC1),ST+2*t+1)) for t in range(4)]+[I('v_mul_f32 v%d, v%d, v%d'%(K2+2*t,ST+2*t+1,ST+2*t+1)) for t in range(4)]
        prep+=[I('v_mov_b32 v%d, v%d'%(RR+t,ST+2*t+1)) for t in range(4)]
        prep+=[I('v_mul_f32 v%d, v%d, v%d'%(K2+2*t,K2+2*t,K1+2*t)) for t in range(4)]+[I('v_mul_f32 v%d, 0x%x, v%d'%(K2+2*t,f2u(0.044715),K2+2*t)) for t in range(4)]
        def sums(a):
            Z=[]
            for t in range(4):
                x=acc(a,t)
                if a==0: Z+=[I('v_pk_add_f32 %s, %s, %s'%(p(SS+2*t),p(x),p(x+2))), I('v_pk_mul_f32 %s, %s, %s'%(p(QQ+2*t),p(x),p(x)))]
                else: Z+=[I('v_pk_add_f32 %s, %s, %s'%(p(SS+2*t),p(SS+2*t),p(x))), I('v_pk_fma_f32 %s, %s, %s, %s'%(p(QQ+2*t),p(x),p(x),p(QQ+2*t))),
                          I('v_pk_add_f32 %s, %s, %s'%(p(SS+2*t),p(SS+2*t),p(x+2)))]
                Z+=[I('v_pk_fma_f32 %s, %s, %s, %s'%(p(QQ+2*t),p(x+2),p(x+2),p(QQ+2*t)))]
            return Z
        ce=lambda i: center(2*i,1)+center(2*i+1,1)+(rdc(i+1) if i<NB-1 else [])
        def zepi(i):
            el=[(acc(a,t)+k,csr(a)+k,t,a,k) for a in (2*i,2*i+1) for k in range(4) for t in range(4)]
            w=lambda e: T+(e&15)
            def stage(s_,e):
                x,c,t,a,k=el[e]; first=(i==0 and a==0 and k<2)
                return {0:[I('v_fmac_f32 v%d, v%d, v%d'%(x,c,ST+2*t))], 1:[I('v_mul_f32 v%d, v%d, v%d'%(w(e),x,x))], 2:[I('v_fma_f32 v%d, v%d, v%d, v%d'%(w(e),w(e),K2+2*t,K1+2*t))],
                        3:[I('v_mul_f32 v%d, v%d, v%d'%(w(e),w(e),x))], 4:[I('v_exp_f32 v%d, v%d'%(w(e),w(e)))], 5:[I('v_add_f32 v%d, 1.0, v%d'%(w(e),w(e)))],
                        6:[I('v_rcp_f32 v%d, v%d'%(w(e),w(e)))], 7:[I('v_mul_f32 v%d, v%d, v%d'%(x,x,w(e)))],
                        8:[I('v_mov_b32 v%d, v%d'%(SS+2*t+(k&1),x)) if first else I('v_add_f32 v%d, v%d, v%d'%(SS+2*t+(k&1),SS+2*t+(k&1),x))],
                        9:[I('v_mul_f32 v%d, v%d, v%d'%(QQ+2*t+(k&1),x,x)) if first else I('v_fmac_f32 v%d, v%d, v%d'%(QQ+2*t+(k&1),x,x))]}[s_]
            order=opt.get('zord',[(0,0),(1,1),(4,4),(2,2),(3,3),(5,6),(6,7),(7,9),(8,10),(9,10)])
            out=[]
            for slot in range(32+max(d for _,d in order)):
                for s_,d in order:
                    if 0<=slot-d<32: out+=stage(s_,slot-d)
                if slot==0 and i<NB-1: out+=rdc(i+1)
            return out
        def zepk(blks):
            el=[(acc(a,t)+2*k,csr(a)+2*k,t,a,k) for i in blks for a in (2*i,2*i+1) for k in range(2) for t in range(4)]
            w=lambda e: T+2*(e&7)
            def stage(s_,e):
                x,c,t,a,k=el[e]; first=(a==0 and k==0); W=p(w(e)); X_=p(x)
                return {0:I('v_pk_fma_f32 %s, %s, %s, %s op_sel_hi:[1,0,1]'%(X_,p(c),p(ST+2*t),X_)), 1:I('v_pk_mul_f32 %s, %s, %s'%(W,X_,X_)),
                        2:I('v_pk_fma_f32 %s, %s, %s, %s op_sel_hi:[1,0,0]'%(W,W,p(K2+2*t),p(K1+2*t))), 3:I('v_pk_mul_f32 %s, %s, %s'%(W,W,X_)),
                        4:I('v_exp_f32 v%d, v%d'%(w(e),w(e))), 14:I('v_exp_f32 v%d, v%d'%(w(e)+1,w(e)+1)), 5:I('v_pk_add_f32 %s, %s, 1.0 op_sel_hi:[1,0]'%(W,W)),
                        6:I('v_rcp_f32 v%d, v%d'%(w(e),w(e))), 16:I('v_rcp_f32 v%d, v%d'%(w(e)+1,w(e)+1)), 7:I('v_pk_mul_f32 %s, %s, %s'%(X_,X_,W)),
                        8:I('v_pk_add_f32 %s, %s, 0 op_sel_hi:[1,0]'%(p(SS+2*t),X_)) if first else I('v_pk_add_f32 %s, %s, %s'%(p(SS+2*t),p(SS+2*t),X_)),
                        9:I('v_pk_mul_f32 %s, %s, %s'%(p(QQ+2*t),X_,X_)) if first else I('v_pk_fma_f32 %s, %s, %s, %s'%(p(QQ+2*t),X_,X_,p(QQ+2*t)))}[s_]
            order=[(4,4),(0,0),(1,1),(14,4),(2,2),(3,3),(6,6),(5,5),(7,7),(16,6),(8,8),(9,8)]
            out=[]; n=len(el)
            for slot in range(n+8):
                out+=[stage(s_,slot-d) for s_,d in order if 0<=slot-d<n]
                if slot%16==0 and slot<n and blks[slot//16]<NB-1: out+=rdc(blks[slot//16]+1)
            return out
        ZM=opt.get('zms',2)
        if ZM==2: E=[I('s_setprio %d'%opt.get('z2p',0))]+last2(prep,lambda i: zepi(0) if i==0 else [],16*(NB-1)-opt.get('zsh',0))+[I('s_setprio %d'%opt.get('zkp',2))]+zepk(list(range(1,NB)))
        elif ZM==3: E=[I('s_setprio %d'%opt.get('z2p',0))]+last2(prep,lambda i: [])+[I('s_setprio 2')]+zepk(list(range(NB)))
        else: E=[I('s_setprio %d'%opt.get('z2p',2))]+last2(prep,zepi if ZM else lambda i: (unpk if opt.get('zu',1) else list)(ce(i)+gel(2*i)+sums(2*i)+gel(2*i+1)+sums(2*i+1)))
        T=64
        for b in (SS,QQ): E+=[I('v_add_f32 v%d, v%d, v%d'%(b+2*t,b+2*t,b+2*t+1)) for t in range(4)]
        for b in (SS,QQ,QQ): E+=[I('v_mul_f32 v%d, v%d, v%d'%(b+2*t,b+2*t,RR+t)) for t in range(4)]
        for b in (SS,QQ): E+=[I('v_permlane16_swap_b32 v%d, v%d'%(b,b+2)), I('v_permlane16_swap_b32 v%d, v%d'%(b+4,b+6))]
        for b in (SS,QQ): E+=[I('v_add_f32 v%d, v%d, v%d'%(b,b,b+2)), I('v_add_f32 v%d, v%d, v%d'%(b+4,b+4,b+6))]
        for b in (SS,QQ): E+=[I('v_permlane32_swap_b32 v%d, v%d'%(b,b+4))]
        E+=[I('v_add_f32 v28, v%d, v%d'%(SS,SS+4)), I('v_add_f32 v29, v%d, v%d'%(QQ,QQ+4)), I('v_lshlrev_b32 v5, %d, v0'%(4 if opt.get('f4',0) else 3)), I('v_min_f32 v29, 0x7f800000, v29'),
            I('buffer_store_dwordx2 v[28:29], v5, s[16:19], s39 offen sc0 sc1'), I('s_setprio 0')]
        F=[I('s_mov_b32 s26, s38')]
        if opt.get('f4',0):
            for k in range(10):
                F+=[I('buffer_load_dwordx4 %s, v5, s[16:19], s26 offen offset:%d sc1'%(vr(T+4*k,4),(k&3)*1024))]
                if k&3==3: F+=[I('s_add_u32 s26, s26, 4096')]
        else:
            for k in range(20):
                F+=[I('buffer_load_dwordx2 %s, v5, s[16:19], s26 offen offset:%d sc1'%(p(T+2*k),(k&1)*2048))]
                if k&1: F+=[I('s_add_u32 s26, s26, 4096')]
        F+=[I('s_waitcnt vmcnt(%d)'%(5 if opt.get('f4',0) else 10))]+[I('v_pk_add_f32 %s, %s, %s'%(p(T+2*k),p(T+2*k),p(T+2*k+10))) for k in range(5)]
        F+=[I('s_waitcnt vmcnt(0)')]+[I('v_pk_add_f32 %s, %s, %s'%(p(T+20+2*k),p(T+20+2*k),p(T+30+2*k))) for k in range(5)]
        F+=[I('v_pk_add_f32 %s, %s, %s'%(p(T+2*k),p(T+2*k),p(T+20+2*k))) for k in range(5)]
        F+=[I('v_pk_add_f32 %s, %s, %s'%(p(T),p(T),p(T+2))), I('v_pk_add_f32 %s, %s, %s'%(p(T+4),p(T+4),p(T+6))),
            I('v_pk_add_f32 %s, %s, %s'%(p(T),p(T),p(T+8))), I('v_pk_add_f32 %s, %s, %s'%(p(T),p(T),p(T+4))), I('s_nop 0'),
            I('v_cmp_u_f32 vcc, v%d, v%d'%(T+1,T+1))]
        SH=40
        N=[I('v_mul_f32 v28, 0x%x, v%d'%(f2u(1/1792),T)), I('v_mul_f32 v29, 0x%x, v%d'%(f2u(1/1792),T+1)),
            I('v_fma_f32 v29, -v28, v28, v29'), I('v_max_f32 v29, 0, v29'), I('v_add_f32 v29, 0x3727c5ac, v29'), I('v_rsq_f32 v%d, v29'%ST),
            I('s_nop 0'), I('v_mul_f32 v%d, -v28, v%d'%(ST+1,ST))]
        N+=[I('v_mov_b32 v%d, v%d'%(ST+4+i,ST+i)) for i in range(2)]+[I('v_permlane32_swap_b32 v%d, v%d'%(ST+i,ST+4+i)) for i in range(2)]
        N+=[I('v_mov_b32 v%d, v%d'%(ST+2+i+4*k,ST+i+4*k)) for k in range(2) for i in range(2)]
        N+=[I('v_permlane16_swap_b32 v%d, v%d'%(ST+i+4*k,ST+2+i+4*k)) for k in range(2) for i in range(2)]
        N+=[I('v_mov_b32 v%d, v%d'%(SH+2*t,ST+2*t+1)) for t in range(4)]+[I('v_mul_f32 v%d, v%d, v%d'%(ST+2*t,ST+2*t,RR+t)) for t in range(4)]
        for i in range(NB):
            for a in (2*i,2*i+1):
                for t in range(4):
                    for k in range(2): N+=[I('v_pk_fma_f32 %s, %s, %s, %s op_sel_hi:[1,0,0]'%(p(acc(a,t)+2*k),p(acc(a,t)+2*k),p(ST+2*t),p(SH+2*t)))]
            N+=put(i)
        if opt.get('nu',0): N=unpk(N); F=unpk(F)
        aux={'F':F,'N':N}
    tail=auto_lgkm(e0+E,pre=body)
    return first, body, loop, tail, aux

def gen_k1only(name, opt):
    L=kernel_header(name); B=prologue(opt); C=[]
    for kind,NB in (('g',2),('q',3),('q',2),('z',3),('z',2)):
        first,body,loop,tail,aux=stream(kind,NB,opt); tg=kind+str(NB)
        if aux:
            tail=tail+[I('s_mov_b32 s27, 0x4000'), I('s_sleep %d'%opt.get('zs0',8)), 'L_zp_%s:'%tg]+aux['F']+[I('s_sub_u32 s27, s27, 1'), I('s_cbranch_scc1 L_zg_%s'%tg), I('s_cbranch_vccz L_zg_%s'%tg),
                I('s_sleep 2'), I('s_branch L_zp_%s'%tg), 'L_zg_%s:'%tg]+aux['N']
        tail=resolve_vm(tail)
        C+=first+loop+tail+[I('s_branch L_done')]
        t,_=fix_hazards(B+first+body+body+tail); check_waits(t,'k1'+tg)
        fix_hazards(body+body,auto=False,tag='k1loop'+tg)
    Zs=['L_done:']
    if opt.get('rt'): Zs+=[I('s_waitcnt vmcnt(0)'), I('s_barrier'), I('s_cmp_lg_u32 s25, 0'), I('s_cbranch_scc1 L_end')]
    Zs+=rt_end(opt,0,'k1',sreg=96)
    code,_=fix_hazards(B+C+Zs+['L_end:', I('s_endpgm')])
    return L+code, kernel_desc(name,256,256,102), '; @launch kernel=%s grid=(256,1,1) block=(512,1,1) lds=163840'%name
if __name__=='__main__':
    from build import *
    opt=json.loads(sys.argv[2]) if len(sys.argv)>2 else {}
    assemble([gen_k1only('x_kernel',opt)], sys.argv[1])
```

```python
from common import *
import k4a
from k4a import m16, flat, tag, cond, wvm, resolve_vm, sprinkle, unpk, OOB, RP
Q=240; KB=32; VB=48; SA=64; SB=80; PA=96; PB=104; OA=112; OB=128; LA=144; LB=148; ONES=152; vIDX=156
vK,vV0,vD=4,5,7
vL16=11
KV=131072
FR=32; G=96; ACC=160
vOA=224; vOB=228; vA=230; vB=238; vBIAS=242
zOA=192; zOB=196; zB=200; zIDX=202; zSEL=204; CD0=234; CD1=250
CSZ=12; NM_=(2,4,6,8); RS_=(28,30,254,10); vF=29
REG=[0,32768,65536,98304]
AR=32; FR3=160; Y=192; XR=224; S0=128; S1=144
vW=16; vA3=20; vB3=22; vX=28
WSL=lambda t: (t%8)*16384
def gen(name, opt={}):
    TST=opt.get('tst'); RO=opt.get('ro',8)
    L=kernel_header(name)
    STAMP=opt.get('stamp')
    def st(k): return [I('%s s[%d:%d]'%('s_memrealtime' if opt.get('real') else 's_memtime',76+2*k,77+2*k)), I('s_waitcnt lgkmcnt(0)')] if STAMP else []
    bar=[I('s_barrier')]; gbr=bar
    NC=opt.get('nc',11); CW=opt.get('cw',3); CQ=opt.get('cq',5); CK=opt.get('ck',8)
    NX=opt.get('nx',1); DE=opt.get('de',3)
    XB=opt.get('xb',{'q3':5,'q2':8,'z3':3,'z2':7}); DA=opt.get('da',{'q3':6,'q2':9,'z3':4,'z2':8}); XS=opt.get('xs',{'z3':3,'z2':7})
    PG=opt.get('pg_',1); PQ=opt.get('pq',{'q3':2,'q2':2}); ZQ=opt.get('zq',11); ZK=opt.get('zk',12); NZX=opt.get('nzx',1)
    GZE=opt.get('gze',1)
    FBR=opt.get('fbr',{}); XA=opt.get('xa',{})
    ALF=opt.get('alf',0)
    EX=opt.get('ex',{})
    NBAR=min(48+NZX+NC+15+NX-DA[c]+min(EX.get(c,0),EX.get('z3i',0) if c=='z3' else 99) for c in DA)
    assert NBAR>=65 or len(set(DA.values()))==1 and NBAR>=60
    assert PG+2<=min(XB[c]-FBR.get(c,0)*0 for c in XB if c=='q2' or (c=='q3' and GZE<2) or not GZE) and all(PQ[c]+1<=DA[c] and PQ[c]<=XB[c] for c in PQ) and min(XB.values())>=1
    assert max(DA['z3'],DA['z2'])+1+ALF<=ZK and ZQ<ZK and ZK<=15+NZX and all(XB[c]<=DA[c] for c in XB) and all(1<=XS[c]<=XB[c] for c in XS)
    p=lambda b: vr(b,2)
    b3addr=[I('v_lshrrev_b32 v13, 5, v0'), I('v_and_b32 v12, 31, v0'), I('v_lshlrev_b32 v12, 3, v12'), I('v_lshl_add_u32 v%d, v13, 10, v12'%vB3),
        I('v_add_u32 v%d, 65536, v%d'%(vB3+1,vB3))]
    b3addr+=[I('v_mov_b32 v%d, v%d'%(vA3,vL16)), I('v_add_u32 v%d, 4096, v%d'%(vA3+1,vL16)),
        I('s_lshl_b32 s43, s64, 2'), I('s_add_u32 s43, s43, s42')]
    def ldA(st_):
        Gr=[[I('buffer_load_dwordx4 %s, v%d, s[8:11], s24 offen offset:%d'%(vr(AR+32*st_+4*i,4),vA3+i//4,(i%4)*1024))] for i in range(8)]
        Gr[-1]+=[I('s_add_u32 s24, s24, 8192')]
        return Gr
    def dmaW(t):
        Gr=[[I('buffer_load_dwordx4 v%d, s[12:15], s58 offen offset:%d lds'%(vW+i,i*1024))] for i in range(4)]
        off=I('s_mov_b32 s58, %d'%((t-14)*128*2048)) if t>=14 else I('s_add_u32 s58, s%d, %d'%(56 if t<7 else 57,t*128*2048))
        return [[I('s_add_u32 m0, s41, %d'%WSL(t)), off]]+Gr
    def rd3(t,j):
        f=FR3+16*(j&1)
        if isinstance(t,tuple): return [I('ds_read_b64_tr_b16 %s, v%d offset:%d'%(vr(f+4*n+2*u,2),t[0],j*4096+u*2048+n*256)) for n in range(4) for u in range(2)]
        a=WSL(t)
        return [I('ds_read_b64_tr_b16 %s, v%d offset:%d'%(vr(f+4*n+2*u,2),vB3+(a>>16),(a&0xffff)+j*4096+u*2048+n*256)) for n in range(4) for u in range(2)]
    CH=opt.get('ch',0)
    def rd3n(t,jp,n): return [r for j in ((2*jp,2*jp+1)) for r in rd3(t,j)[2*n:2*n+2]]
    def rd3p(t): return rd3n(t,0,0)+rd3n(t,0,1) if CH&2 else rd3(t,0)
    def tile3(t, aset, acc, c0, nxt, mid, early={}, late=[]):
        spine=[m16(acc[h]+4*n,FR3+16*(j&1)+4*n,AR+32*aset+8*j+4*h,'0' if (c0 and j==0) else None) for j in range(4) for n in range(4) for h in (0,1)]
        fill={}
        def add(g,x): fill.setdefault(g,[]).extend(x)
        if CH&2:
            spine=[m16(acc[h]+4*n,FR3+16*(j&1)+4*n,AR+32*aset+8*j+4*h,'0' if (c0 and jp==0 and q==0) else None)
                   for jp in range(2) for n in range(4) for k,h in enumerate(((0,1),(1,0))[n&1]) for q,j in enumerate(((2*jp,2*jp+1),(2*jp+1,2*jp))[k])]
            B3=opt.get('b3',23); add(B3,mid)
            R=rd3n(t,0,2)+rd3n(t,0,3)+flat([rd3n(t,1,n) for n in range(4)])
            e3=opt.get('e3',0)
            for k,r in enumerate(R): add(k if k<8 else max(k-e3,4*((k-8)//4)+3),[r])
            if nxt is not None:
                for k,r in enumerate(rd3p(nxt)): add(max(B3+1+k,19+4*(k//4)),[r])
        else:
            add(23,mid)
            for j in range(4):
                R = rd3(t,j+1) if j<3 else (rd3(nxt,0) if nxt is not None else [])
                for k,r in enumerate(R): add(8*j+k,[r])
        for g,x in early.items(): add(g,x)
        for k,g in enumerate(late): add(24+(k*8)//len(late),g)
        if opt.get('kp',0)&2: k4a.keep_pairs(fill,32,opt.get('pg',0),opt.get('kpn',2),opt.get('kph',1))
        return interleave(spine,fill)
    def pub1(lab,wave,off,n):
        return cond([I('s_cmp_lg_u32 s25, %d'%wave), I('s_cbranch_scc1 %s'%lab), I('s_mov_b64 exec, %d'%((1<<n)-1)), I('v_mov_b32 v14, 1'), I('v_lshlrev_b32 v15, 7, v0'),
                I('buffer_atomic_add v14, v15, s[48:51], %s offen sc1'%off), I('s_mov_b64 exec, -1'), lab+':'])
    def ask1(lab,wave,off):
        return [I('s_cmp_lg_u32 s25, %d'%wave), I('s_cbranch_scc1 %s'%lab), I('s_mov_b64 exec, 1'), I('v_mov_b32 v12, 0'),
                I('buffer_load_dword v15, v12, s[48:51], %s offen sc1'%off), I('s_mov_b64 exec, -1'), lab+':']
    def chk1(lab,wave,off,n,landed=False):
        return [I('s_cmp_lg_u32 s25, %d'%wave), I('s_cbranch_scc1 %s'%lab), I('s_mov_b64 exec, 1'), I('s_mov_b32 s27, 0x40000')]+([I('s_branch %s_k'%lab)] if landed else [])+[
                lab+'_l:', I('s_waitcnt vmcnt(0)'), lab+'_k:', I('v_readfirstlane_b32 s26, v15'), I('s_sub_u32 s27, s27, 1'), I('s_cmp_ge_u32 s26, %d'%n), I('s_cbranch_scc1 %s_g'%lab),
                I('s_sleep %d'%opt.get('slp',1)), I('buffer_load_dword v15, v12, s[48:51], %s offen sc1'%off), I('s_cmp_lg_u32 s27, 0'), I('s_cbranch_scc1 %s_l'%lab),
                lab+'_g:', I('s_mov_b64 exec, -1'), lab+':']
    def wait_lines(lab,nl,tgt,va,pre=None,vd=15):
        msk=(1<<nl)-1
        ld=cond([I('buffer_load_dword v%d, v%d, s[48:51], 0 offen sc1'%(vd,va))])
        return [I('s_mov_b64 exec, %d'%msk), I('s_mov_b32 s47, 0x40000')]+(ld if pre is None else pre+[I('s_branch %s_k'%lab)])+[lab+'_l:', I('s_waitcnt vmcnt(0)'), lab+'_k:', I('v_cmp_le_u32 s[26:27], %d, v%d'%(tgt,vd)), I('s_sub_u32 s47, s47, 1'),
                I('s_nop 0'), I('s_cmp_eq_u32 s26, %d'%msk), I('s_cbranch_scc1 %s_g'%lab), I('s_sleep %d'%opt.get('slp1',1))]+ld+[I('s_cmp_lg_u32 s47, 0'), I('s_cbranch_scc1 %s_l'%lab),
                lab+'_g:', I('s_mov_b64 exec, -1')]
    LRP=RP.bit_length()-1
    def arrive(lab,h,pre):
        return cond([I('v_mov_b32 v13, %d'%(KV+7*4096+4*h)), I('v_mov_b32 v14, 1'), I('v_lshlrev_b32 v15, 7, v0'), I('s_mov_b64 exec, 1')]+pre+[I('ds_add_rtn_u32 v13, v13, v14'), I('s_waitcnt lgkmcnt(0)'),
                I('v_readfirstlane_b32 s26, v13'), I('s_mov_b64 exec, %d'%((1<<RP)-1)), I('s_cmp_lg_u32 s26, 3'), I('s_cbranch_scc1 %s'%lab), I('buffer_atomic_add v14, v15, s[48:51], s74 offen sc1'), lab+':', I('s_mov_b64 exec, -1')])
    A1=[I('s_bfe_u32 s27, s2, 0x20003'), I('s_lshr_b32 s34, s2, 5'), I('v_lshlrev_b32 v%d, 4, v0'%vL16)]+([I('s_add_u32 s34, s34, s2'), I('s_and_b32 s34, s34, 7')] if opt.get('qmix',0) else [])+[
       I('s_and_b32 s26, s2, 7'), I('s_lshl_b32 s33, s26, 2'), I('s_add_u32 s33, s33, s27'),
       I('s_lshl_b32 s30, s34, 14'), I('s_lshl_b32 s27, s42, 12'), I('s_add_u32 s30, s30, s27'),
       I('s_and_b32 s26, s42, 1'), I('s_lshl_b32 s40, s26, 10'), I('s_lshl_b32 s41, s42, 10'), I('s_add_u32 s41, s41, %d'%KV),
       I('v_bfe_u32 v12, v0, 4, 1'), I('v_lshlrev_b32 v12, 7, v12'),
       I('s_cmp_ge_u32 s42, 2'), I('s_cselect_b32 s26, -1, 0'), I('v_and_b32 v12, s26, v12'), I('v_xor_b32 v%d, v%d, v12'%(vD,vL16)),
       I('s_lshl_b32 s26, s33, 17'), I('s_add_u32 s27, s26, 0x%x'%P1_OFF),
       I('s_lshr_b32 s35, s42, 1'), I('s_add_u32 s35, s35, 1'), I('s_lshl_b32 s35, s35, 22'), I('s_add_u32 s35, s35, s27')]
    A1+=srd(12,4,5,'s27',131072)+srd(8,4,5,'s35',131072)
    A1+=[I('v_lshl_add_u32 v12, v0, 5, s33'), I('v_mul_u32_u24 v13, 43, v12'), I('v_lshrrev_b32 v13, 10, v13'), I('v_mul_u32_u24 v14, 24, v13'), I('v_sub_u32 v12, v12, v14'),
         I('v_or_b32 v14, 1, v12'), I('v_cmp_gt_u32 vcc, 16, v12'), I('v_subrev_u32 v12, 15, v12'), I('v_mul_u32_u24 v12, 11, v12'), I('v_lshrrev_b32 v12, 5, v12'), I('v_lshlrev_b32 v12, 1, v12'),
         I('v_cndmask_b32 v12, v12, v14, vcc'), I('v_lshl_add_u32 v12, v13, 4, v12'), I('s_and_b32 s26, s34, %d'%(RP-1)), I('v_lshl_add_u32 v12, v12, %d, s26'%LRP), I('v_lshlrev_b32 v12, 7, v12')]
    def kvd(sl): return [I('s_add_u32 m0, s41, %d'%(sl*4096)), I('buffer_load_dwordx4 v%d, s[8:11], s40 offen lds'%vD), I('s_add_u32 s40, s40, 2048')]
    AL=[kvd(0)[0], I('s_nop 0')]+kvd(0)[1:]
    for i in range(4): AL+=[I('buffer_load_dwordx4 %s, v%d, s[12:15], s30 offen offset:%d'%(vr(Q+4*i,4),vL16,1024*i))]
    for sl in range(1,7): AL+=kvd(sl)
    dummy=lambda n: [I('v_mov_b32 v14, 0x%x'%OOB)]+[I('buffer_store_dwordx4 v[128:131], v14, s[16:19], 0 offen')]*n
    A2=[I('s_setprio %d'%opt.get('pa',1))]+srd(52,4,5,O_OFF,O_SIZE)
    A2+=[I('s_lshl_b32 s26, s34, 3'), I('s_lshl_b32 s27, s42, 1'), I('s_add_u32 s26, s26, s27'),
        I('s_lshl_b32 s26, s26, 5'), I('s_add_u32 s26, s26, s33'), I('s_lshl_b32 s46, s26, 11'),
        I('v_add_u32 v%d, %d, v%d'%(vK,KV,vL16)),
        I('v_bfe_u32 v14, v0, 1, 1'), I('v_and_b32 v13, 1, v0'), I('v_lshrrev_b32 v15, 2, v0'), I('v_lshlrev_b32 v12, 3, v14'), I('v_xor_b32 v15, v15, v12'),
        I('v_lshlrev_b32 v15, 4, v15'), I('v_lshl_add_u32 v15, v13, 3, v15'), I('v_lshl_add_u32 v15, v14, 8, v15'),
        I('v_add_u32 v%d, %d, v15'%(vV0,KV+2048)),
        I('v_lshrrev_b32 v12, 5, v0'), I('v_cmp_eq_u32 vcc, v14, v12'),
        I('v_mul_u32_u24 v13, 0xaaaa, v13'), I('v_add_u32 v%d, 0x4444, v13'%vIDX),
        I('v_mov_b32 v13, 0x3f803f80'), I('v_cndmask_b32 v%d, 0, v13, vcc'%ONES)]
    if opt.get('o4'): A2+=[I('v_and_b32 v12, 12, v0'), I('v_cmp_eq_u32 vcc, 0, v12'), I('v_cndmask_b32 v%d, 0, v%d, vcc'%(ONES,ONES))]
    for i in range(1,4): A2+=[I('v_mov_b32 v%d, v%d'%(ONES+i,ONES))]
    NA2=min(min(DA[c]-XB[c]-XA.get(c,0) for c in XB),opt.get('na2',1))
    B=k4a.prologue(opt); CA=[]; trA=[]; PA_=[]
    for kind,NB in (('q',3),('q',2),('z',3),('z',2)):
        first,body1,loop1,tail,aux=k4a.stream(kind,NB,opt); tg=kind+str(NB)
        k=tail.index('; @L2')+1
        pos=opt.get('bp_'+tg,{'q3':[],'q2':[],'z3':[],'z2':[]}[tg])
        T=tail[:k]+sprinkle(tail[k:],pos,bar)+(st(3) if TST else [])+A1; nb=len(pos)
        fl=lambda vd: [I('s_mov_b64 exec, 7'), I('buffer_load_dword v%d, v12, s[48:51], 0 offen sc1'%vd), I('s_mov_b64 exec, -1')]
        FBk=FBR.get(tg,0); XAk=XA.get(tg,0)
        if kind=='q':
            assert nb<=PQ[tg]
            T+=bar*(PQ[tg]-nb)+arrive('L_t_p'+tg,0,[I('s_waitcnt vmcnt(0)')])+bar*(XB[tg]-PQ[tg]-FBk)
            if FBk: T+=fl(9)+bar*FBk
            pre=[I('s_waitcnt vmcnt(0)')] if FBk else None
        else:
            lab='L_t_z'+tg; F=aux['F']; kw=[i for i,x in enumerate(F) if 's_waitcnt' in x][0]
            ZFL=opt.get('zfl',1) and not ALF; NP=opt.get('nbp_'+tg,[])
            T+=bar*(XS[tg]-nb)+[I('s_mov_b32 s47, 0x4000')]
            if FBk: T+=([] if ZFL else fl(9))+F[:kw]+bar*FBk+[I('s_branch %s_w'%lab)]
            T+=[lab+'_l:']+([] if ZFL else fl(9))+F[:kw]+[lab+'_w:']+F[kw:]+[
                I('s_sub_u32 s47, s47, 1'), I('s_cbranch_scc1 %s_g'%lab), I('s_cbranch_vccz %s_g'%lab),
                I('s_sleep %d'%opt.get('zs1',2)), I('s_branch %s_l'%lab), lab+'_g:', '; @TR60']
            NN=sprinkle(aux['N'],NP,bar)+bar*(XB[tg]-XS[tg]-FBk-len(NP))
            if not ALF: T+=(tag(fl(9),'qf') if ZFL else [])+NN
            assert XB[tg]-XS[tg]-FBk-len(NP)>=0
            pre=[wvm('qf')] if ZFL else []
        if kind=='z' and ALF: T+=wait_lines('L_t_w'+tg,3,8,12,pre,9)+['; @TR61']+AL+NN+['; @TR62']+(st(4) if TST else [])+bar*XAk
        else: T+=['; @TR61']+wait_lines('L_t_w'+tg,3,8,12,pre,9)+(st(4) if TST else [])+['; @TR62']+AL+bar*XAk
        if kind=='z' and not ALF: T+=arrive('L_t_p'+tg,0,[wvm('kst')])
        assert DA[tg]-XB[tg]-NA2-XAk>=0
        T+=bar*(DA[tg]-XB[tg]-NA2-XAk)+[I('s_branch L_att')]
        T=resolve_vm(T)
        CA+=first+loop1+T; PA_.append((first,loop1,T,tg)); trA.append((tg,first+body1+body1+T))
        fix_hazards(body1+body1,auto=False,tag='k1loop'+tg)
    def rdK(i,base): return [I('ds_read_b128 %s, v%d offset:%d'%(vr(KB+8*(i&1)+4*f,4),vK,base+1024*f)) for f in range(2)]
    def rdV(i,base,v0=vV0,hs=1024): return [I('ds_read_b64_tr_b16 %s, v%d offset:%d'%(vr(VB+8*(i&1)+4*f+2*u,2),v0,base+512*f+hs*u)) for f in range(2) for u in range(2)]
    xf=((0,0),(0,1),(1,1),(1,0)) if CH&4 else ((0,0),(0,1),(1,0),(1,1))
    qk=lambda S_,k,q: [m16(S_+8*x+4*f,k+4*f,q+4*x,'0') for x,f in xf]
    pv=lambda O_,v,P_,c0=False: [m16(O_+8*x+4*f,v+4*f,P_+4*x,'0' if c0 else None) for x,f in xf]
    smf=lambda L_,P_: [I('v_smfmac_f32_16x16x64_bf16 %s, %s, %s, v%d'%(vr(L_,4),vr(ONES,4),vr(P_,8),vIDX))]
    SP=opt.get('sp',0)
    PA_s,PB_s,ONE1=(96,176,192) if SP else (PA,PB,None)
    sm_=lambda d,a,b: I('v_smfmac_f32_16x16x64_bf16 %s, %s, %s, v%d'%(vr(d,4),vr(a,4),vr(b,8),vIDX))
    if SP:
        pvs=lambda O_,v,P_,c0=False: [sm_(O_+8*x+4*f,v+4*f,P_+8*x) for x,f in xf]
        smfs=lambda L_,P_: [sm_(L_,ONE1,P_+8), sm_(L_,ONES,P_)]
        k=[i for i,x in enumerate(A2) if 'v_lshrrev_b32 v12, 5, v0' in x][0]
        A2=A2[:k]+[I('v_and_b32 v12, 3, v0'), I('v_mov_b32 v%d, 0xdddd'%vIDX), I('v_mov_b32 v13, 0x3f803f80'), I('v_cmp_eq_u32 vcc, 0, v12'), I('v_cndmask_b32 v%d, 0, v13, vcc'%ONES),
                   I('v_cmp_eq_u32 vcc, 2, v12'), I('v_cndmask_b32 v%d, 0, v13, vcc'%ONE1)]+[I('v_mov_b32 v%d, v%d'%(o+i,o)) for o in (ONES,ONE1) for i in range(1,4)]
    else: pvs,smfs=pv,smf
    def cw(n,lab):
        if not ALF: return [I('s_waitcnt vmcnt(%d)'%n)]
        return [I('s_waitcnt vmcnt(%d)'%(n+12)), I('s_cmp_ge_u32 s2, 128'), I('s_cbranch_scc1 %s'%lab), I('s_waitcnt vmcnt(%d)'%(n+8)), I('s_cmp_ge_u32 s2, 96'), I('s_cbranch_scc1 %s'%lab), I('s_waitcnt vmcnt(%d)'%n), lab+':']
    if opt.get('tr'): A2+=[I('s_mov_b32 s66, 0x07060302'), I('v_mov_b32 v157, s66')]
    A=['L_att:']+A2+bar*NA2+[I('s_mov_b32 s45, 6')]+cw(6,'L_att_w')+bar+rdK(0,0)+[I('s_waitcnt lgkmcnt(0)')]+qk(SA,KB,Q)+([I('v_mov_b32 v%d, 0'%(LA+k)) for k in range(8)] if opt.get('vs') else [I('v_mov_b32 v%d, 0'%(OA+k)) for k in range(40)] if SP else [])+[I('s_nop 7')]
    VS=opt.get('vs',0)
    def phase(S_,P_, mf, extra):
        ex=[I('v_exp_f32 v%d, v%d'%(S_+i,S_+i)) for i in range(16)]
        if SP:
            ex=[I('v_exp_f32 v%d, v%d'%(P_+i,S_+i)) for i in range(16)]; out=[]; e=0
            for k,ne in enumerate(opt.get('sp_pat',[2,2,2,2,2,2,1,1,1,1])):
                out+=[mf[k]]+extra.get(k,[])+ex[e:e+ne]; e+=ne
            assert e==16
            return [x for x in out if x]
        Lr=LA if S_==SA else LB
        ad=[I('v_add_f32 v%d, v%d, v%d'%(Lr+2*(i//8)+(i&1),Lr+2*(i//8)+(i&1),S_+i)) for i in range(16)]
        cv=[I('v_cvt_pk_bf16_f32 v%d, v%d, v%d'%(P_+i,S_+2*i,S_+2*i+1)) for i in range(8)]
        if opt.get('tr'): cv=[I('v_perm_b32 v%d, v%d, v%d, %s'%(P_+i,S_+2*i+1,S_+2*i,('s66','v157')[opt['tr']-1])) for i in range(8)]
        pat=opt.get('att_pat',[(2,0),(2,1),(2,1),(2,1),(2,1),(2,1),(2,1),(2,1),(0,1)])
        out=[]; e=0;c=0
        for k,(ne,nc) in enumerate(pat):
            TP=opt.get('tp')
            if TP and 'mfma' in mf[k]: out+=[I('s_setprio %d'%TP[0]), mf[k], I('s_setprio %d'%TP[1])]
            elif not (VS and 'smfmac' in mf[k]): out.append(mf[k])
            out+=extra.get(k,[])
            if VS==2 and ne==2 and nc==1: out+=[ex[e],ad[2*c],ex[e+1],ad[2*c+1],cv[c]]; e+=2; c+=1; continue
            out+=ex[e:e+ne]; e+=ne
            out+=cv[c:c+nc]
            if VS: out+=ad[2*c:2*(c+nc)]
            c+=nc
        assert e==16 and c==8
        return out
    AB=opt.get('att_bar',4); AD=opt.get('att_dma',2)
    def blocks(last,first=False):
        body=[]
        for i in range(8):
            kb=KB+8*(i&1); kn=KB+8*((i+1)&1); vb=VB+8*(i&1); vp=VB+8*((i+1)&1)
            rv=rdV(i,4096*i); rk=rdK(i+1,4096*((i+1)&7)); d=kvd((i+7)&7); sy=[I('s_waitcnt vmcnt(5)')]+bar
            qn=qk(SA,kn,Q)
            if first and i<ALF: sy=cw(5,'L_att_w%d'%i)+bar
            if first and i==ALF and ALF:
                sy=[I('s_cmp_eq_u32 s58, 0'), I('s_cbranch_scc1 L_att_pz'), I('v_mov_b32 v14, 1'), I('v_lshlrev_b32 v15, 7, v0'), I('s_mov_b64 exec, %d'%((1<<RP)-1)), I('s_waitcnt vmcnt(%d)'%ALF),
                    I('buffer_atomic_add v14, v15, s[48:51], s74 offen sc1'), I('s_mov_b64 exec, -1'), 'L_att_pz:', I('s_waitcnt vmcnt(5)')]+bar
            if last:
                if i>0: d=[]
                if 56+i>=NBAR: sy=[]
                else: sy=[I('s_waitcnt vmcnt(%d)'%(0 if 56+i==NBAR-1 else max(0,min(5,6-i))))]+bar
                if i==1: sy+=[I('v_mov_b32 v12, 0'), I('ds_write_b32 v%d, v12'%vK)]
                if i==7: rk=[]; qn=[I('s_nop 0')]*4
            ex={}
            for k in range(4): ex.setdefault((k*AB)//4,[]).append(rv[k])
            ex[AB]=sy+rk[:1]+d[:1]; ex[AB+1]=rk[1:]
            m1=pvs(OB,vp,PB_s,first and i==1)+smfs(LB,PB_s)
            if first and i==0 and SP: m1=['']*6
            elif first and i==0 and VS: m1=[I('s_nop 0')]*5
            elif first and i==0: m1=[I('v_mov_b32 v%d, 0'%(LA+k)) for k in range(5)]; ex[6]=ex.get(6,[])+[I('v_mov_b32 v%d, 0'%(LA+k)) for k in range(5,8)]
            body+=phase(SA,PA_s,qk(SB,kb,Q+8)+m1,ex)+phase(SB,PB_s,qn+pvs(OA,vb,PA_s,first and i==0)+smfs(LA,PA_s),{AD:d[1:]})
        return body
    body=auto_lgkm(blocks(False))
    firstb=auto_lgkm(blocks(False,True),pre=body)
    lastb=auto_lgkm(blocks(True),pre=body)
    fix_hazards(body+body,auto=False,tag='att_loop')
    aloop=firstb+['L_att_loop:']+body+[I('s_sub_u32 s45, s45, 1'), I('s_cmp_lg_u32 s45, 0'), I('s_cbranch_scc1 L_att_loop')]+lastb
    AT=([I('s_setprio %d'%opt['pat'])] if 'pat' in opt else [])+bar*opt.get('jp0',0)+pvs(OB,VB+8,PB_s)+([] if VS else smfs(LB,PB_s))+[I('v_mov_b32 v160, 0x1f800000'), I('v_mov_b32 v161, 0x5f800000')]
    FB=[]
    for X,(O_,L_,Q_) in enumerate(((OA,LA,Q),(OB,LB,Q+8))):
        AT+=[I('v_pk_mul_f32 v[162:163], %s, 0 op_sel_hi:[1,0]'%p(O_))]
        for i in range(1,8): AT+=[I('v_pk_fma_f32 v[162:163], %s, 0, v[162:163] op_sel_hi:[1,0,1]'%p(O_+2*i))]
        AT+=[I('v_add_f32 v%d, v%d, v%d'%(L_,L_,L_+1)), I('v_add_f32 v%d, v%d, v%d'%(L_+2,L_+2,L_+3))]
        for w_ in ((16,32) if VS or opt.get('o4') else ()):
            AT+=[I('v_mov_b32 v%d, v%d'%(L_+1,L_)), I('v_mov_b32 v%d, v%d'%(L_+3,L_+2)), I('s_nop 1'), I('v_permlane%d_swap_b32 v%d, v%d'%(w_,L_,L_+1)), I('v_permlane%d_swap_b32 v%d, v%d'%(w_,L_+2,L_+3)), I('s_nop 1'),
                 I('v_add_f32 v%d, v%d, v%d'%(L_,L_,L_+1)), I('v_add_f32 v%d, v%d, v%d'%(L_+2,L_+2,L_+3))]
        AT+=[
             I('v_add_f32 v162, v162, v163'), I('v_add_f32 v163, v162, v%d'%(L_+2)), I('v_add_f32 v162, v162, v%d'%L_),
             I('v_cmp_nge_f32 vcc, v162, v160'), I('v_cmp_nle_f32 s[56:57], v162, v161'), I('v_cmp_nge_f32 s[26:27], v163, v160'), I('v_cmp_nle_f32 s[58:59], v163, v161'),
             I('s_or_b64 s[56:57], s[56:57], vcc'), I('s_or_b64 s[26:27], s[26:27], s[58:59]'), I('s_or_b64 s[56:57], s[56:57], s[26:27]'),
             I('s_cbranch_scc1 L_att_fb%d'%X), 'L_att_fb_ret%d:'%X, I('v_rcp_f32 v162, v%d'%L_), I('v_rcp_f32 v164, v%d'%(L_+2)), I('s_nop 0')]
        for i in range(8): AT+=[I('v_pk_mul_f32 %s, %s, %s op_sel_hi:[1,0]'%(p(O_+2*i),p(O_+2*i),p(162+2*(i//4))))]
        for i in range(8): AT+=[I('v_cvt_pk_bf16_f32 v%d, v%d, v%d'%(O_+i,O_+2*i,O_+2*i+1))]
        if X: AT+=[I('s_add_u32 s46, s46, 65536')]
        if X==1 and opt.get('jpm',0)>1: AT+=bar
        for h in range(2): AT+=[I('buffer_store_dwordx4 %s, v%d, s[52:55], s46 offen offset:%d sc0 sc1'%(vr(O_+4*h,4),vL16,1024*h))]
        if X==0 and opt.get('jpm',0): AT+=bar
        FS=SA
        F=['L_att_fb%d:'%X, I('s_waitcnt vmcnt(0)'),
           I('s_lshl_b32 s26, s33, 17'), I('s_add_u32 s27, s26, 0x%x'%(P1_OFF+32*131072))]+srd(16,4,5,'s27',131072)
        F+=[I('s_add_u32 s27, s26, 0x%x'%(P1_OFF+64*131072))]+srd(20,4,5,'s27',131072)
        F+=[I('v_bfe_u32 v12, v0, 4, 1'), I('v_lshlrev_b32 v12, 7, v12'), I('v_xor_b32 v8, v%d, v12'%vL16), I('v_add_u32 v9, 1024, v8'),
            I('s_lshl_b32 s26, s42, 10'), I('s_add_u32 s26, s26, 2048'), I('v_add_u32 v2, s26, v%d'%vV0)]
        F+=[I('v_mov_b32 v%d, 0'%(O_+i)) for i in range(16)]
        F+=[I('v_mov_b32 v%d, 0'%L_), I('v_mov_b32 v%d, 0'%(L_+2)), I('v_mov_b32 v164, 0xff800000'), I('v_mov_b32 v165, 0xff800000'), I('s_mov_b32 s59, 0'), 'L_att_fbl%d:'%X,
            I('buffer_load_dwordx4 %s, v%d, s[16:19], s59 offen'%(vr(KB,4),vL16)),
            I('buffer_load_dwordx4 %s, v%d, s[16:19], s59 offen offset:1024'%(vr(KB+4,4),vL16)),
            I('s_add_u32 m0, s41, 4096'), I('s_nop 0'), I('buffer_load_dwordx4 v8, s[20:23], s59 offen lds'),
            I('s_add_u32 m0, s41, 8192'), I('s_nop 0'), I('buffer_load_dwordx4 v9, s[20:23], s59 offen lds'),
            I('s_waitcnt vmcnt(0)')]
        F+=rdV(0,0,2,4096)+qk(FS,KB,Q_)
        for x in range(2):
            s8=FS+8*x; mo=164+x; lx=L_+2*x
            F+=[I('v_max3_f32 v13, v%d, v%d, v%d'%(s8,s8+1,mo))]+[I('v_max3_f32 v13, v%d, v%d, v13'%(s8+2*i,s8+2*i+1)) for i in range(1,4)]
            for sw in (16,32): F+=[I('v_mov_b32 v14, v13'), I('v_permlane%d_swap_b32 v13, v14'%sw), I('v_max_f32 v13, v13, v14')]
            F+=[I('v_sub_f32 v14, v%d, v13'%mo), I('v_exp_f32 v14, v14'), I('v_mov_b32 v%d, v13'%mo)]
            F+=[I('v_sub_f32 v%d, v%d, v13'%(s8+i,s8+i)) for i in range(8)]+[I('v_exp_f32 v%d, v%d'%(s8+i,s8+i)) for i in range(8)]
            F+=[I('v_mul_f32 v%d, v%d, v14'%(lx,lx))]
            for i in range(8): F+=[I('v_add_f32 v%d, v%d, v%d'%(lx,lx,s8+i)), I('v_mul_f32 v%d, v%d, v14'%(O_+8*x+i,O_+8*x+i))]
        for i in range(8): F+=[I('v_cvt_pk_bf16_f32 v%d, v%d, v%d'%(PA+i,FS+2*i,FS+2*i+1))]
        F+=[I('s_waitcnt lgkmcnt(0)')]+pv(O_,VB,PA)+[
            I('s_add_u32 s59, s59, 2048'), I('s_cmp_lg_u32 s59, 131072'), I('s_nop 7'), I('s_nop 7'), I('s_cbranch_scc1 L_att_fbl%d'%X)]
        for lx in (L_,L_+2):
            for sw in (16,32): F+=[I('v_mov_b32 v14, v%d'%lx), I('v_permlane%d_swap_b32 v%d, v14'%(sw,lx)), I('v_add_f32 v%d, v%d, v14'%(lx,lx))]
        F+=[I('s_branch L_att_fb_ret%d'%X)]
        FB+=F
    assert NBAR-64>=opt.get('jpm',0)+opt.get('jp',1)+opt.get('jp0',0)
    if opt.get('au',0): AT=unpk(AT)
    AT+=([] if TST else st(3))+[I('s_setprio %d'%opt.get('pa2',0))]
    AT+=[I('s_lshl_b32 s30, s34, 10'), I('s_add_u32 s30, s30, %d'%(256*128)), I('s_and_b32 s26, s2, 7'), I('s_lshl_b32 s26, s26, 2'), I('s_add_u32 s30, s30, s26'),
         I('v_mov_b32 v12, 1'), I('v_lshlrev_b32 v15, 7, v0')]+bar*min(max(0,NBAR-64),opt.get('jp',1))
    AT+=[I('s_mov_b64 exec, 1'), I('s_waitcnt vmcnt(0)'), I('ds_add_rtn_u32 v13, v%d, v12'%vK), I('s_waitcnt lgkmcnt(0)'), I('v_readfirstlane_b32 s26, v13'),
         I('s_mov_b64 exec, %d'%((1<<RO)-1)), I('s_cmp_lg_u32 s26, 3'), I('s_cbranch_scc1 L_a_np'), I('buffer_atomic_add v12, v15, s[48:51], s30 offen sc1'), 'L_a_np:', I('s_mov_b64 exec, -1')]
    AT+=st(6)+[I('s_branch L_fin')]
    S=[I('s_bfe_u32 s65, s2, 0x10002'), I('s_mul_i32 s65, s65, 7'), I('s_lshr_b32 s26, s2, 5'), I('s_add_u32 s65, s65, s26'),
       I('s_lshl_b32 s41, s42, 12'), I('s_lshl_b32 s26, s64, 18')]+srd(52,36,37,0,0x700000)+srd(36,72,73,'s26',128*2048)
    S+=[I('v_lshrrev_b32 v24, 3, v0'), I('v_lshrrev_b32 v25, 4, v0'), I('v_and_b32 v26, 7, v0'), I('s_lshl_b32 s26, s42, 5'), I('v_add_u32 v24, s26, v24'),
        I('v_xor_b32 v26, v26, v25'), I('v_xor_b32 v27, 4, v26'), I('v_lshlrev_b32 v26, 4, v26'), I('v_lshlrev_b32 v27, 4, v27')]
    for sh,base in ((12,vOA),(11,zOA)):
        for i in range(4): S+=[I('v_lshl_add_u32 v28, v24, %d, v%d'%(sh,26+(i&1))), I('v_add_u32 v%d, %d, v28'%(base+i, i*8*(1<<sh)-i*1024))]
    S+=[I('v_and_b32 v25, 1, v25'), I('v_lshlrev_b32 v25, 6, v25'), I('v_lshlrev_b32 v24, 4, v0'), I('v_xor_b32 v25, v24, v25'), I('s_lshl_b32 s26, s42, 17'), I('v_add_u32 v%d, s26, v25'%vOB)]
    S+=[I('v_and_b32 v24, 15, v0'), I('v_lshrrev_b32 v25, 4, v0'), I('v_bfe_u32 v26, v0, 1, 3'),
        I('s_lshr_b32 s26, s42, 1'), I('s_lshl_b32 s26, s26, 13'),
        I('v_lshlrev_b32 v24, 7, v24'), I('v_add_u32 v24, s26, v24'),
        I('v_xor_b32 v27, v25, v26'), I('v_lshl_add_u32 v%d, v27, 4, v24'%vA), I('v_xor_b32 v%d, 64, v%d'%(vA+1,vA))]
    S+=[I('v_add_u32 v%d, 65536, v%d'%(vA+2+j,vA+j)) for j in range(2)]
    S+=[I('v_bfe_u32 v24, v0, 4, 1'), I('v_and_b32 v25, 1, v0'), I('v_bfe_u32 v26, v0, 1, 1'), I('v_bfe_u32 v27, v0, 2, 2'),
        I('v_lshl_add_u32 v28, v24, 3, v27'), I('v_lshl_add_u32 v28, v26, 2, v28'),
        I('v_lshlrev_b32 v28, 4, v28'), I('v_lshl_add_u32 v28, v25, 3, v28'),
        I('v_lshl_add_u32 v28, v26, 8, v28'), I('v_lshrrev_b32 v23, 5, v0'), I('v_lshl_add_u32 v28, v23, 10, v28'),
        I('s_and_b32 s27, s42, 1'), I('s_lshl_b32 s26, s27, 13'), I('s_add_u32 s26, s26, 16384'),
        I('v_add_u32 v%d, s26, v28'%vB), I('v_xor_b32 v%d, 64, v%d'%(vB+1,vB))]
    S+=[I('v_add_u32 v%d, 65536, v%d'%(vB+2+u,vB+u)) for u in range(2)]
    S+=[I('v_lshlrev_b32 v28, 3, v24'), I('v_lshl_add_u32 v28, v27, 1, v28'), I('v_add_u32 v28, v25, v28'), I('v_lshlrev_b32 v28, 4, v28'), I('v_lshl_add_u32 v28, v26, 3, v28'),
        I('v_lshl_add_u32 v28, v23, 12, v28'), I('s_lshl_b32 s26, s27, 11'), I('s_add_u32 s26, s26, 16384'), I('v_add_u32 v%d, s26, v28'%zB), I('v_add_u32 v%d, 65536, v%d'%(zB+1,zB)),
        I('v_bfe_u32 v26, v0, 3, 1'), I('v_bfe_u32 v27, v0, 1, 2'), I('v_lshl_add_u32 v27, v26, 3, v27'), I('s_lshl_b32 s26, s42, 4'), I('v_add_u32 v27, s26, v27'),
        I('v_lshlrev_b32 v28, 6, v23'), I('v_lshl_add_u32 v28, v25, 5, v28'), I('v_lshl_add_u32 v28, v24, 4, v28'), I('s_lshl_b32 s26, s65, 8'), I('v_add_u32 v28, s26, v28'),
        I('s_movk_i32 s26, 7168'), I('v_mad_u32_u24 v%d, v27, s26, v28'%zOB)]
    S+=[I('v_add_u32 v%d, %d, v%d'%(zOB+i,((i&1)*4*7168+(i>>1)*128-1024*i)&0xffffffff,zOB)) for i in range(1,4)]
    S+=[I('v_mov_b32 v%d, v%d'%(zSEL+i,k4a.SEL)) for i in range(4)]+[I('v_mov_b32 v%d, v%d'%(zIDX,k4a.vIDX))]+[I('v_mov_b32 v%d, 0'%(c+i)) for c in (CD0,CD1) for i in range(4)]
    S+=[I('v_mov_b32 v%d, 0'%(vBIAS+2*t)) for t in range(4)]
    if opt.get('pf',2): S+=[I('s_lshr_b32 s26, s2, 3'), I('s_lshl_b32 s26, s26, 2'), I('s_add_u32 s26, s26, s42'), I('s_mul_i32 s26, s26, %d'%(8*7168)), I('s_bfe_u32 s27, s2, 0x10002'), I('s_mul_i32 s27, s27, 1792'), I('s_add_u32 s26, s26, s27'),
        I('v_lshrrev_b32 v24, 4, v0'), I('v_mul_u32_u24 v24, 7168, v24'), I('v_and_b32 v25, 15, v0'), I('v_lshl_add_u32 v24, v25, 7, v24'), I('v_add_u32 v24, s26, v24'),
        I('v_cmp_gt_u32 vcc, 14, v25'), I('v_mov_b32 v25, 0x%x'%OOB), I('v_cndmask_b32 v229, v25, v24, vcc'), I('s_mov_b32 s43, %d'%(4*7168))]
    PF=opt.get('pf',2)
    hk={'loop':{1:[I('s_cmp_lg_u32 s22, %d'%PF), I('s_cbranch_scc1 L_g_pf'), I('buffer_load_dword v14, v229, s[52:55], 0 offen'), I('buffer_load_dword v14, v229, s[52:55], s43 offen'), 'L_g_pf:']}} if PF else {}
    def dmaA(T):
        z=T<16
        Gr=[[I('buffer_load_dwordx4 v%d, s[%d:%d], s%d offen offset:%d lds'%((zOA if z else vOA)+i,36 if z else 16,39 if z else 19,28 if z else 40,1024*i))] for i in range(4)]
        Gr[-1]+=[I('s_add_u32 s%d, s%d, 128'%((28,28) if z else (40,40)))]
        return [[I('s_add_u32 m0, s41, %d'%REG[T%4])]]+[tag(g,'A%d'%T) for g in Gr]
    def dmaB(T):
        z=T<16
        Gr=[[I('buffer_load_dwordx4 v%d, s[%d:%d], s%d offen offset:%d lds'%(zOB+i if z else vOB,52 if z else 20,55 if z else 23,29 if z else 44,1024*i))] for i in range(4)]
        Gr[-1]+=[I('s_add_u32 s29, s29, %d'%(64*7168)) if z else I('s_add_u32 s44, s44, 4096')]
        return [[I('s_add_u32 m0, s41, %d'%(REG[T%4]+16384))]]+[tag(g,'B%d'%T) for g in Gr]
    def spread(Gs,g0,g1):
        d={}
        for k,g in enumerate(Gs): d.setdefault(g0+(k*(g1-g0))//len(Gs),[]).extend(g)
        return d
    hk[28]=spread([[I('s_mov_b32 s28, 0'), I('s_mov_b32 s29, 0')]]+dmaA(0)+dmaB(0),3,16)
    hk[29]=spread(dmaA(1)+dmaB(1),9,16)
    hk['l2']=spread(dmaA(2)+dmaB(2)+dmaA(3),8,opt.get('l2e',24))
    gfirst,gbody,gloop1,gtail,_=k4a.stream('g',2,opt,S,hk)
    if opt.get('clk'): gloop1=st(1)+gloop1+st(3)
    fix_hazards(gbody+gbody,auto=False,tag='k1loopg')
    W=st(0)+['; @TR62', I('v_lshlrev_b32 v%d, 4, v0'%vL16)]
    early=I('s_cmp_lg_u32 s58, 0') if GZE==1 else I('s_cmp_ge_u32 s2, 32')
    if GZE: W+=[early, I('s_cbranch_scc0 L_t_g0')]+arrive('L_t_g0a',1,[wvm('kst')])+['L_t_g0:']
    W+=[I('s_cmp_ge_u32 s2, 224'), I('s_cbranch_scc1 L_g_idle'), wvm('A0,B0')]+gbr
    w7=lambda lab,X: [I('s_cmp_lg_u32 s25, 7'), I('s_cbranch_scc1 %s'%lab)]+X+[lab+':']
    S2=[I('s_lshr_b32 s34, s2, 5'),
        I('s_lshl_b32 s26, s65, 2'), I('s_and_b32 s27, s42, 1'), I('s_lshl_b32 s27, s27, 1'), I('s_add_u32 s26, s26, s27'),
        I('s_lshl_b32 s30, s64, 2'), I('s_lshr_b32 s27, s42, 1'), I('s_lshl_b32 s27, s27, 1'), I('s_add_u32 s30, s30, s27'),
        I('s_mul_i32 s32, s30, 56'), I('s_add_u32 s32, s32, s26'), I('s_lshl_b32 s32, s32, 11'),
        I('s_lshl_b32 s26, s64, 19')]+srd(16,60,61,'s26',128*4096)+[I('s_lshl_b32 s26, s65, 19'), I('s_add_u32 s26, s26, 0x%x'%Z2N_OFF)]+srd(20,4,5,'s26',128*4096)+[
        I('s_mov_b32 s40, 0'), I('s_mov_b32 s44, 0')]
    S2+=[I('s_lshl_b32 s26, s65, 2'), I('v_add_u32 v12, s26, v0'), I('v_mul_u32_u24 v13, 74, v12'), I('v_lshrrev_b32 v13, 10, v13'), I('v_mul_u32_u24 v14, 14, v13'), I('v_sub_u32 v12, v12, v14'),
         I('v_add_u32 v12, 10, v12'), I('v_mul_u32_u24 v12, 43, v12'), I('v_lshrrev_b32 v12, 7, v12'), I('v_lshl_add_u32 v12, v13, 3, v12'), I('s_and_b32 s26, s64, %d'%(RP-1)),
         I('v_lshl_add_u32 v12, v12, %d, s26'%(LRP+1)), I('v_lshlrev_b32 v%d, 7, v12'%vF)]
    ZL=srd(8,62,63,0,4096)+[I('v_and_b32 v12, 15, v0'), I('v_lshlrev_b32 v12, 1, v12'), I('s_lshl_b32 s26, s30, 6')]
    ZL+=[I('buffer_load_short_d16_hi v%d, v12, s[8:11], s26 offen offset:%d'%(vBIAS+2*t,32*t)) for t in range(4)]
    ZL+=[I('s_lshl_b32 s26, s30, 9')]
    for t in range(4): ZL+=[I('buffer_load_dword v%d, v1, s[92:95], s26 offen offset:%d sc1'%(NM_[t],256*t)), I('buffer_load_dword v%d, v1, s[92:95], s26 offen offset:%d sc1'%(RS_[t],256*t+4))]
    S3=srd(52,4,5,H_OFF,H_SIZE)+[
        I('s_bfe_u32 s26, s2, 0x10002'), I('s_lshl_b32 s26, s26, 3'), I('s_add_u32 s59, s26, s34'), I('s_lshl_b32 s59, s59, 7'),
        I('v_bfe_u32 v10, v0, 3, 1'), I('v_bfe_u32 v12, v0, 1, 2'), I('v_lshl_add_u32 v10, v10, 4, v12'), I('s_lshl_b32 s26, s42, 5'), I('v_add_u32 v10, s26, v10'), I('v_lshlrev_b32 v10, 11, v10'),
        I('v_lshrrev_b32 v13, 4, v0'), I('v_lshl_add_u32 v10, v13, 5, v10'), I('v_and_b32 v12, 1, v0'), I('v_lshl_add_u32 v%d, v12, 4, v10'%vW)]
    for i in range(1,4): S3+=[I('v_add_u32 v%d, %d, v%d'%(vW+i,i*(4*2048-1024),vW))]
    S3+=[I('v_and_b32 v10, 15, v0'), I('v_lshlrev_b32 v10, 11, v10'), I('v_lshrrev_b32 v12, 5, v0'), I('v_lshl_add_u32 v10, v12, 4, v10'),
        I('v_bfe_u32 v12, v0, 4, 1'), I('v_lshl_add_u32 v%d, v12, 5, v10'%vX)]+b3addr
    S3+=[I('s_bfe_u32 s75, s2, 0x10002'), I('s_mul_i32 s56, s75, %d'%(7*128*2048)), I('s_sub_u32 s57, 0, s56'), I('s_sub_u32 s26, 0x380000, s59')]+srd(12,68,69,'s59','s26')
    ZE=[I('v_bfe_u32 v1, v0, 4, 1'), I('v_cmp_eq_u32 vcc, 0, v1'), I('v_lshrrev_b32 v1, 4, v0'), I('v_lshlrev_b32 v1, 4, v1')]
    for c in (CD0,CD1): ZE+=[I('v_add_f32 v%d, v%d, v%d'%(c,c,c+1)), I('v_add_f32 v%d, v%d, v%d'%(c+2,c+2,c+3)), I('v_cndmask_b32 v%d, v%d, v%d, vcc'%(c,c+2,c))]
    ZE+=[I('ds_bpermute_b32 v%d, v1, v%d offset:%d'%(CSZ+4*n+i,(CD0,CD1)[n>>1],64*(n&1)+4*i)) for n in range(4) for i in range(4)]
    gi=lambda n,t: G+32*(n>>1)+8*t+4*(n&1)
    ZC=[]
    for n in range(4):
        for t in range(4):
            for i in range(2): ZC+=[I('v_pk_fma_f32 %s, %s, %s, %s op_sel_hi:[1,0,1]'%(p(gi(n,t)+2*i),p(CSZ+4*n+2*i),p(NM_[t]),p(gi(n,t)+2*i)))]
        for t in range(4):
            for i in range(2): ZC+=[I('v_pk_mul_f32 %s, %s, %s op_sel_hi:[1,0]'%(p(gi(n,t)+2*i),p(gi(n,t)+2*i),p(RS_[t])))]
    ZG=[I('v_mov_b32 v2, 0x%x'%f2u(GC1)), I('v_mov_b32 v3, v2'), I('s_mov_b32 s28, 0x%x'%f2u(GC2)), I('s_mov_b32 s29, s28')]
    if opt.get('gms',1):
        w=lambda e: 12+(e&15)
        def stage(s_,e):
            x=G+e
            return {1:I('v_mul_f32 v%d, v%d, v%d'%(w(e),x,x)), 2:I('v_fma_f32 v%d, v%d, s28, v2'%(w(e),w(e))), 3:I('v_mul_f32 v%d, v%d, v%d'%(w(e),w(e),x)), 4:I('v_exp_f32 v%d, v%d'%(w(e),w(e))),
                    5:I('v_add_f32 v%d, 1.0, v%d'%(w(e),w(e))), 6:I('v_rcp_f32 v%d, v%d'%(w(e),w(e))), 7:I('v_mul_f32 v%d, v%d, v%d'%(x,x,w(e)))}[s_]
        order=[(1,0),(4,3),(2,1),(3,2),(5,5),(6,6),(7,8)]
        for slot in range(64+8): ZG+=[stage(s_,slot-d) for s_,d in order if 0<=slot-d<64]
    else:
        for k in range(0,32,2): ZG+=gelu_block([G+2*k,G+2*k+2],4,2,28)
    if opt.get('gu',1): ZC=unpk(ZC); ZG=unpk(ZG)
    def reads(T,j):
        slot=T%4; so=REG[slot]&0xffff; hi=REG[slot]>>16; f=FR+32*j
        Ra=[I('ds_read_b128 %s, v%d offset:%d'%(vr(f+4*t,4),vA+2*hi+j,so+t*2048)) for t in range(4)]
        if T<16: Rb=[I('ds_read_b64_tr_b16 %s, v%d offset:%d'%(vr(f+16+4*n+2*u,2),zB+hi,so+j*8192+u*1024+n*256)) for n in range(4) for u in range(2)]
        else: Rb=[I('ds_read_b64_tr_b16 %s, v%d offset:%d'%(vr(f+16+4*n+2*u,2),vB+2*hi+u,so+(n>>1)*4096+j*2048+(n&1)*512)) for n in range(4) for u in range(2)]
        if CH&1: return Ra,Rb
        return Rb[:2]+Ra+Rb[2:]
    def rdT(T,t): return [reads(T,j)[0][t] for j in range(2)]
    def rdN(T,n): return [r for j in range(2) for r in reads(T,j)[1][2*n:2*n+2]]
    rdE=lambda T: rdT(T,1)+rdT(T,0)+rdN(T,0)+rdN(T,1)+rdN(T,2) if CH&1 else reads(T,0)
    rdL=lambda T: rdN(T,3)+rdT(T,3)+rdT(T,2) if CH&1 else reads(T,1)
    path=[(n,2*hf+(k^(n&1))) for hf in range(2) for n in range(4) for k in range(2)]
    gbar=opt.get('g2_bar',15)
    rp1=opt.get('g2_rp1',list(range(12))); rp2=opt.get('g2_rp2',list(range(gbar+1,gbar+13)))
    if CH&1: rp2=list(range(16,32)); assert gbar==15
    dgA=opt.get('g2_dgA',[17,21,25,29]); dgB=opt.get('g2_dgB',[1,5,9,13])
    GT0=opt.get('gt0',18); GT1=opt.get('gt1',42)
    zsm=lambda j,h: I('v_smfmac_f32_16x16x64_bf16 %s, %s, %s, v%d'%(vr((CD0,CD1)[h],4),vr(zSEL,4),vr(FR+32*j+16+8*h,8),zIDX))
    def zbar(i):
        X=w7('L_t_z1',wait_lines('L_t_z',4,32 if ALF else 8,vF,[wvm('zq')],229)) if i==ZK else []
        X+=gbr
        if i==ZQ: X+=w7('L_t_z0',[I('s_mov_b64 exec, 15')]+cond(tag([I('buffer_load_dword v229, v%d, s[48:51], 0 offen sc1'%vF)],'zq'))+[I('s_mov_b64 exec, -1')])
        return X
    nz0=int(len(ZG)*opt.get('zgf',1.0)) if NZX else 0
    ZG0=ZG[:nz0]; ZG=ZG[nz0:]
    def tile(T):
        z=T<16; c0=T in (0,16); ac=G if z else ACC
        spine=[m16(ac+32*(n>>1)+8*t+4*(n&1), FR+32*j+16+4*n, FR+32*j+4*t, '0' if (c0 and j==0) else None) for j in range(2) for n in range(4) for t in range(4)]
        if CH&1: spine=[m16(ac+32*(n>>1)+8*t+4*(n&1), FR+32*j+16+4*n, FR+32*j+4*t, '0' if (c0 and q==0) else None) for i,(n,t) in enumerate(path) for q,j in enumerate(((0,1),(1,0))[i&1])]
        fill={}
        def add(g,x): fill.setdefault(g,[]).extend(x)
        for pp,r in zip(rp1,rdL(T)): add(pp,[r])
        if z:
            for j in range(2):
                for h in range(2): add(opt.get('zsp',(7,11,17,21))[2*h+j] if CH&1 else 16*j+8*h+6,[zsm(j,h)])
        if T+3<=47:
            if not (16<=T+3<=min(ZK+2,18)):
                Gb=dmaB(T+3); add(dgB[0]-1,Gb[0])
                for pp,g in zip(dgB,Gb[1:]): add(pp,g)
        else:
            Gw=dmaW(2*(T-45)+1); add(-1,Gw[0])
            for pp,g in zip(dgB,Gw[1:]): add(pp,g)
        mid=[]
        if T==PG: mid+=([early, I('s_cbranch_scc1 L_t_g1')] if GZE else [])+arrive('L_t_g1a',1,[wvm('kst')])+['L_t_g1:']
        if T<47 and not (T==15 and NZX): mid+=[wvm('A%d,B%d'%(T+1,T+1),True)]
        else: mid+=[I('s_waitcnt lgkmcnt(0)')]
        if T<16: mid+=zbar(T+1)
        else: mid+=gbr
        add(gbar,mid)
        if T<47 and not (T==15 and NZX):
            for pp,r in zip(rp2,rdE(T+1)): add(pp,[r])
        late=[]
        if T+1==ZK and T<16:
            for T2 in range(16,min(ZK+3,19)): late+=dmaB(T2)
        if T+4<=47: late+=dmaA(T+4)
        else: late+=dmaW(2*(T-44))
        if len(late)==5:
            add(gbar,late[0])
            for pp,g in zip(dgA,late[1:]): add(pp,g)
        else:
            for g,x in spread(late,gbar+1,32).items(): add(g,x)
        ex=[]
        if T==0: ex=S2
        if T==2: ex=ZL
        if T==16 and not NZX: ex=[I('s_nop 0')]*4+ZE
        if T==17 and not NZX: ex=ZC
        if GT0<=T<GT1: ex=ZG[(len(ZG)*(T-GT0))//(GT1-GT0):(len(ZG)*(T+1-GT0))//(GT1-GT0)]
        if T in (GT1,GT1+1): ex=S3[:len(S3)//2] if T==GT1 else S3[len(S3)//2:]
        for k,x in enumerate(ex): add((((k*32)//len(ex))|opt.get('exq',0))&~opt.get('exm',0),[x])
        if opt.get('kp',0)&1: k4a.keep_pairs(fill,32,opt.get('pg',0),opt.get('kpn',2),opt.get('kph',1))
        out=interleave(spine,fill)
        if T==15 and NZX:
            X=[I('s_nop 7')]+ZE+ZC+ZG0; Y_=[]; zp=opt.get('zxp',[(k+1.0)/NZX for k in range(NZX-1)])
            for k in range(NZX-1):
                a=int(len(X)*(zp[k-1] if k else 0)); b=int(len(X)*zp[k])
                Y_+=X[a:b]+zbar(17+k)
                if 17+k==ZK: Y_+=flat(dmaB(16)+dmaB(17)+dmaB(18))
            out+=st(4)+Y_+X[int(len(X)*zp[-1]) if NZX>1 else 0:]+[wvm('A16,B16')]+gbr+rdE(16)+st(2)
        return out
    assert GT1<=42 and PG not in (0,2)
    W+=rdE(0)+[I('s_setprio %d'%opt.get('pg',0))]+([] if opt.get('clk') else st(1))
    for T in range(48): W+=tile(T)+(st(4) if T==15 and not NZX else [])
    k=gtail.index('; @L2')
    GW=resolve_vm(gtail+auto_lgkm(W,pre=[]))
    Ep=[]
    for nf in range(2):
        for m in range(2):
            a=ACC+16*(2*nf+m); g=G+16*(2*nf+m)
            for i in range(8): Ep+=[I('v_pk_add_f32 %s, %s, %s op_sel_hi:[1,0]'%(p(a+2*i),p(a+2*i),p(vBIAS+4*m+2*(i//4))))]
            for i in range(8): Ep+=[I('v_pk_mul_f32 %s, %s, %s'%(p(a+2*i),p(a+2*i),p(g+2*i)))]
            for i in range(8): Ep+=[I('v_cvt_pk_bf16_f32 v%d, v%d, v%d'%(a+i,a+2*i,a+2*i+1))]
            Ep+=[I('s_add_u32 s26, s32, %d'%(m*56*2048+nf*2048))]
            for h in range(2): Ep+=[I('buffer_store_dwordx4 %s, v%d, s[52:55], s26 offen offset:%d sc0 sc1'%(vr(a+4*h,4),vL16,1024*h))]
        if nf==0: Ep+=gbr
    if opt.get('eu',0): Ep=unpk(Ep)
    def bars(n,tag_):
        if n<=2: return gbr*n
        return [I('s_mov_b32 s47, %d'%n), 'L_%s:'%tag_]+gbr+[I('s_sub_u32 s47, s47, 1'), I('s_cmp_lg_u32 s47, 0'), I('s_cbranch_scc1 L_%s'%tag_)]
    Ep+=flat(dmaW(7))+st(6)+gbr*(CW-1)+[I('s_waitcnt vmcnt(4)')]+gbr
    Ep+=[I('s_lshl_b32 s30, s64, 1'), I('s_add_u32 s30, s30, s75'), I('s_lshl_b32 s30, s30, 8'), I('s_add_u32 s30, s30, %d'%(320*128))]+resolve_vm(pub1('L_c_pb',7,'s30',2))
    D=['L_gC:', I('s_lshl_b32 s30, s64, 1'), I('s_add_u32 s30, s30, s75'), I('s_lshl_b32 s30, s30, 1'), I('s_and_b32 s26, s34, 1'), I('s_add_u32 s30, s30, s26'), I('s_lshl_b32 s30, s30, 7'),
       I('s_add_u32 s30, s30, %d'%(320*128)), I('s_xor_b32 s35, s30, 256'),
       I('s_lshr_b32 s31, s64, 1'), I('s_lshl_b32 s31, s31, 3'), I('s_and_b32 s26, s34, %d'%(RO-1)), I('s_add_u32 s31, s31, s26'), I('s_lshl_b32 s31, s31, 7'), I('s_add_u32 s31, s31, %d'%(256*128))]+srd(52,72,73,0,0x400000)
    D+=[I('s_lshl_b32 s32, s43, 16'), I('s_add_u32 s32, s32, s59'), I('s_add_u32 s33, s32, 32768')]
    OE2=opt.get('oe',0)==2
    if not OE2: D+=[I('buffer_load_dwordx4 %s, v%d, s[52:55], s%d offen offset:%d'%(vr(XR+4*q,4),vX,32+q//2,64*(q&1))) for q in range(4)]
    D+=[I('s_mul_i32 s26, s43, %d'%(56*2048)), I('s_add_u32 s26, s26, 0x%x'%H_OFF)]+srd(8,4,5,'s26',56*2048)+[I('s_mul_i32 s24, s75, %d'%(7*8192))]
    D+=[I('s_lshl_b32 s26, s43, 16'), I('s_add_u32 s26, s26, 0x%x'%O_OFF)]+srd(16,4,5,'s26',65536)
    D+=[I('s_sub_u32 s26, 0x200000, s59')]+srd(20,66,67,'s59','s26')+srd(52,70,71,0,0x400000)
    TW=opt.get('tw',0); TH=opt.get('th',0); JA=opt.get('ja',1); JK=opt.get('jk',3)
    if TW:
        D+=[I('v_lshlrev_b32 v30, 11, v0'), I('s_bfe_u32 s26, s2, 0x20003'), I('s_lshl_b32 s26, s26, 2'), I('s_add_u32 s26, s26, s42'), I('s_mul_i32 s27, s26, %d'%(48*2048)), I('s_add_u32 s27, s27, s57'),
            I('s_add_u32 s27, s27, %d'%(1024*2048)), I('s_lshl_b32 s26, s26, 17'), I('s_bfm_b64 exec, 48, 0'), I('buffer_load_dword v13, v30, s[12:15], s27 offen'), I('s_mov_b64 exec, -1'),
            I('buffer_load_dword v13, v30, s[20:23], s26 offen')]
    if EX:
        tb=[EX.get(c,0) for c in ('q2','q3','q3','z2','z3','z3','z3','z3i')]
        D+=[I('s_mov_b32 s26, 0x%x'%sum(tb[i]<<(8*i) for i in range(4))), I('s_mov_b32 s27, 0x%x'%sum(tb[4+i]<<(8*i) for i in range(4))), I('s_lshl_b32 s28, s34, 3'), I('s_lshr_b64 s[26:27], s[26:27], s28'),
            I('s_and_b32 s47, s26, 0xff'), I('s_cbranch_scc0 L_c_ex0'), 'L_c_ex:']+gbr+[I('s_sub_u32 s47, s47, 1'), I('s_cmp_lg_u32 s47, 0'), I('s_cbranch_scc1 L_c_ex'), 'L_c_ex0:']
    if CQ==CW: D+=ask1('L_c_ak',7,'s30')
    for k in range(CW+1,CK+1):
        if k==CK: D+=chk1('L_c_ck',7,'s30',7)
        D+=gbr
        if k==CQ: D+=ask1('L_c_ak',7,'s30')
    nb=NC-2-CK
    for k in range(3):
        D+=flat(ldA(k))
        if k<2 and nb>0: D+=gbr; nb-=1
    if TH:
        D+=[I('v_lshlrev_b32 v30, 7, v0'), I('s_lshl_b32 s26, s34, 12'), I('s_add_u32 s26, s26, s24'), I('s_bfm_b64 exec, 32, 0'), I('buffer_load_dword v13, v30, s[8:11], s26 offen'), I('s_mov_b64 exec, -1')]
    if JA<0: D+=ask1('L_d_ak',7,'s35')
    D+=gbr*nb+[I('s_waitcnt vmcnt(%d)'%(17 if TH else 16))]+gbr+st(5)+rd3p(0)
    DT=[]
    swW=[I('s_mov_b64 s[12:13], s[20:21]'), I('s_mov_b32 s14, s22')]
    swA=[I('s_mov_b64 s[8:9], s[16:17]'), I('s_mov_b32 s10, s18')]
    def earlyA(st_): return {3*k:g for k,g in enumerate(ldA(st_))}
    for j in range(14):
        w={0:16,1:16,2:20,11:16,12:8,13:63}.get(j,24)
        mid=[I('s_waitcnt vmcnt(%d)'%w)]+(chk1('L_d_ck',7,'s35',7,JK-JA>=2) if j==JK else [])+gbr
        if j==JA: mid+=ask1('L_d_ak',7,'s35')
        if j==JK and TH: mid+=[I('s_xor_b32 s26, s75, 1'), I('s_lshl_b32 s26, s26, 3'), I('s_add_u32 s26, s26, s34'), I('s_mul_i32 s26, s26, 7168'), I('s_bfm_b64 exec, 56, 0'), I('buffer_load_dword v13, v30, s[8:11], s26 offen'), I('s_mov_b64 exec, -1')]
        if opt.get('oe',0) and j==13: early_={0:[I('v_lshlrev_b32 v14, 2, v0')], opt.get('oep',8):[I('s_mov_b64 exec, 0xff'), I('buffer_load_dword v15, v14, s[48:51], s31 offen sc1'), I('s_mov_b64 exec, -1')]}
        if j==3: mid+=[I('s_xor_b32 s24, s75, 1'), I('s_mul_i32 s24, s24, %d'%(7*8192))]
        late=[]
        if j>=1:
            Gw=dmaW(j+7); mid=mid+(swW if j==7 else [])+Gw[0]; late=Gw[1:]
        DT+=tile3(j,j%4,(Y,Y+16),j==0,j+1 if j<13 else None,mid,earlyA((j+3)%4) if j<=10 else (early_ if opt.get('oe',0) and j==13 else {}),late)
    poll=[I('s_mov_b64 exec, 0xff'), I('buffer_load_dword v15, v14, s[48:51], s31 offen sc1'), I('s_mov_b64 exec, -1')]
    OE=opt.get('oe',0)
    DT+=[I('s_waitcnt lgkmcnt(0)')]+gbr+flat(dmaW(21))+swA+[I('s_mov_b32 s44, 0'), I('s_mov_b32 s45, 0')]+([] if OE else [I('v_lshlrev_b32 v14, 2, v0')]+poll)
    DT0=DT; DT=[]
    T3=FR3+16
    DT+=[I('s_mov_b32 s28, 0x%x'%f2u(-math.log2(math.e))), I('s_mov_b32 s29, s28')]
    for nf in range(2):
        y=Y+16*nf
        for i in range(8): DT+=[I('v_pk_mul_f32 %s, %s, s[28:29]'%(p(T3+2*i),p(y+2*i)))]
        for i in range(16): DT+=[I('v_exp_f32 v%d, v%d'%(T3+i,T3+i))]
        for i in range(8): DT+=[I('v_pk_add_f32 %s, %s, 1.0 op_sel_hi:[1,0]'%(p(T3+2*i),p(T3+2*i)))]
        for i in range(16): DT+=[I('v_rcp_f32 v%d, v%d'%(T3+i,T3+i))]
        for i in range(8): DT+=[I('v_pk_mul_f32 %s, %s, %s'%(p(y+2*i),p(y+2*i),p(T3+2*i)))]
    if opt.get('su',0): DT=unpk(DT)
    for q in range(4):
        DT+=[I('v_permlane16_swap_b32 v%d, v%d'%(XR+4*q,XR+4*q+2)), I('v_permlane16_swap_b32 v%d, v%d'%(XR+4*q+1,XR+4*q+3))]
    for i in range(15,-1,-1): DT+=[I('v_and_b32 v%d, 0xffff0000, v%d'%(XR+2*i+1,XR+i)), I('v_lshlrev_b32 v%d, 16, v%d'%(XR+2*i,XR+i))]
    SIL=DT; DT=DT0
    assert DE in (2,3)
    def issue(k,try_=False):
        lab='L_e%d%s'%(k,'t' if try_ else '')
        ck=[I('v_cmp_le_u32 vcc, 4, v15'), I('s_sub_u32 s47, s47, 1'), I('s_cselect_b32 s26, 0xff, 0'), I('s_or_b32 s26, s26, vcc_lo'), I('s_and_b32 s44, s26, 0xff'), I('s_andn2_b32 s26, s44, s45')]
        if not try_:
            X=[I('s_andn2_b32 s26, s44, s45'), I('s_cbranch_scc1 %s_h'%lab), I('s_waitcnt vmcnt(%d)'%(8 if k else 0)), I('s_mov_b32 s47, 0x40000'),
               lab+'_l:']+ck+[I('s_cbranch_scc1 %s_h'%lab), I('s_sleep %d'%opt.get('slp2',2))]+poll+[I('s_waitcnt vmcnt(0)'), I('s_branch %s_l'%lab), lab+'_h:']
        elif k==0: X=[I('s_mov_b32 s43, 0'), I('s_mov_b32 s47, 1'), I('s_waitcnt vmcnt(8)')]+ck+[I('s_cbranch_scc1 %s_h'%lab)]+poll+[I('s_branch L_sil'), lab+'_h:']
        else: X=[I('s_mov_b32 s43, %d'%k), I('s_andn2_b32 s26, s44, s45'), I('s_cbranch_scc0 L_sil')]
        X+=[I('s_ff1_i32_b32 s46, s26'), I('s_bitset1_b32 s45, s46'), I('s_lshl_b32 s24, s46, 13'), I('s_add_u32 s26, s46, 6'), I('s_and_b32 s26, s26, 7'), I('s_lshl_b32 s%d, s26, 14'%(36+k%4))]
        return X+(poll if k<7 else [])+flat(ldA(k%3))
    def after(k): return sum(8+(1 if x<7 else 0) for x in range(k+1,min(8,k+DE)))
    vE=lambda k: 24+(k&1)
    if OE==2: pass
    elif not OE:
        DT+=SIL+gbr*(NX-1)+[I('s_waitcnt vmcnt(0)')]+gbr+([] if opt.get('clk') else st(3))
        for k in range(DE): DT+=issue(k)
    else:
        assert NBAR-NX>=64+opt.get('jp',1)+opt.get('jpm',0)+opt.get('jp0',0)
        for k in range(DE): DT+=issue(k,True)
        DT+=[I('s_mov_b32 s43, %d'%DE), 'L_sil:']+SIL
        for k in range(DE): DT+=[I('s_cmp_gt_u32 s43, %d'%k), I('s_cbranch_scc1 L_e%ds'%k)]+issue(k)+['L_e%ds:'%k]
        DT+=gbr*(NX-1)+[I('s_waitcnt vmcnt(%d)'%after(0))]+gbr+([] if opt.get('clk') else st(3))
    DT+=[I('v_add_u32 v%d, s36, v%d'%(vE(0),vB3))]+rd3p((vE(0),))
    for k in range(8):
        DT+=[I('s_waitcnt vmcnt(%d)'%after(k))]
        DT+=tile3((vE(k),),k%3,(S0,S1),k==0,(vE(k+1),) if k<7 else None,[],{0:[I('v_add_u32 v%d, s%d, v%d'%(vE(k+1),36+(k+1)%4,vB3))]} if k<7 else {})
        if k+DE<8: DT+=issue(k+DE)
    for nf in range(2):
        y=(S0,S1)[nf]
        for i in range(8): DT+=[I('v_pk_fma_f32 %s, %s, %s, %s'%(p(y+2*i),p(y+2*i),p(Y+16*nf+2*i),p(XR+16*nf+2*i)))]
        for i in range(8): DT+=[I('v_cvt_pk_bf16_f32 v%d, v%d, v%d'%(y+i,y+2*i,y+2*i+1))]
        for h in range(2):
            DT+=[I('v_permlane16_swap_b32 v%d, v%d'%(y+4*h,y+4*h+2)), I('v_permlane16_swap_b32 v%d, v%d'%(y+4*h+1,y+4*h+3))]
        for h in range(2):
            DT+=[I('buffer_store_dwordx4 %s, v%d, s[52:55], s%d offen offset:%d %s'%(vr(y+4*h,4),vX,32+nf,64*h,opt.get('out_mod','')))]
    if OE2:
        assert NX==1 and NBAR-NX>=64+opt.get('jp',1)+opt.get('jpm',0)+opt.get('jp0',0) and not TH
        SS_=(224,240); XR2=AR+64
        kA=[i for i,x in enumerate(D) if 'buffer_load_dwordx4 v[%d:'%AR in x and 's[8:11]' in x][0]
        cnt=[0]
        def tg3(x):
            if 'buffer_load_dwordx4' in x and 's[8:11]' in x: cnt[0]+=1; return x+' ; @t:A%d'%((cnt[0]-1)//8)
            return cond([x])[0]
        D=D[:kA]+[tg3(x) for x in D[kA:]]
        pol=lambda k: tag(poll,'p%d'%k)
        ck=[I('v_cmp_le_u32 vcc, 4, v15'), I('s_sub_u32 s47, s47, 1'), I('s_cselect_b32 s26, 0xff, 0'), I('s_or_b32 s26, s26, vcc_lo'), I('s_and_b32 s44, s26, 0xff'), I('s_andn2_b32 s26, s44, s45')]
        take=lambda k: [I('s_ff1_i32_b32 s46, s26'), I('s_bitset1_b32 s45, s46'), I('s_lshl_b32 s24, s46, 13'), I('s_add_u32 s26, s46, 6'), I('s_and_b32 s26, s26, 7'), I('s_lshl_b32 s%d, s26, 14'%(36+k%4))]
        lo=lambda k: [I('s_and_b32 s26, s26, 0x3f')] if k<2 else []
        def dec(k,mode):
            lab='L_e%d_%d'%(k,mode)
            X=[I('s_andn2_b32 s26, s44, s45')]+lo(k)+[I('s_cbranch_scc1 %s_h'%lab)]
            if mode==0:
                X=([I('s_cmp_lt_u32 s43, %d'%k), I('s_cbranch_scc1 %s_x'%lab)]+X if k else [])+[I('s_mov_b32 s47, 1'), wvm('p%d'%(k-1))]+ck+lo(k)+[I('s_cbranch_scc1 %s_h'%lab),
                   I('s_mov_b32 s43, %d'%k), I('s_mov_b32 s10, 0'), I('s_mov_b32 s24, 0'), I('s_branch %s_x'%lab), lab+'_h:']+take(k)+[lab+'_x:']
                return X
            X+=[I('s_mov_b32 s47, 0x40000')]+([wvm('p%d'%(k-1)), I('s_branch %s_k'%lab)] if mode==1 else [])+[lab+'_l:']+cond(poll)+[I('s_waitcnt vmcnt(0)'), lab+'_k:']+ck+lo(k)+[
                I('s_cbranch_scc1 %s_h'%lab), I('s_sleep %d'%opt.get('slp2',2)), I('s_branch %s_l'%lab), lab+'_h:']+take(k)
            return X
        vE=lambda k: 24+(k&1)
        w_=lambda e: 2+(e&7)
        stg={1:lambda e: I('v_mul_f32 v%d, s28, v%d'%(w_(e),Y+e)), 2:lambda e: I('v_exp_f32 v%d, v%d'%(w_(e),w_(e))), 3:lambda e: I('v_add_f32 v%d, 1.0, v%d'%(w_(e),w_(e))),
             4:lambda e: I('v_rcp_f32 v%d, v%d'%(w_(e),w_(e))), 5:lambda e: I('v_mul_f32 v%d, v%d, v%d'%(Y+e,Y+e,w_(e)))}
        SI=[stg[s_](slot-d) for slot in range(32+6) for s_,d in ((5,6),(1,0),(2,1),(3,3),(4,4)) if 0<=slot-d<32]
        XU=[]
        for q in range(4): XU+=[I('v_permlane16_swap_b32 v%d, v%d'%(XR2+4*q,XR2+4*q+2)), I('v_permlane16_swap_b32 v%d, v%d'%(XR2+4*q+1,XR2+4*q+3))]
        for i in range(15,-1,-1): XU+=[I('v_and_b32 v%d, 0xffff0000, v%d'%(XR2+2*i+1,XR2+i)), I('v_lshlrev_b32 v%d, 16, v%d'%(XR2+2*i,XR2+i))]
        ST0,ST1=opt.get('sil',(14,20)); AW=opt.get('aw',1)
        DT=[]
        for j in range(22):
            k=j-14; pre=[]; mid=[]; late=[]; early={}
            def add(g,x): early.setdefault(g,[]).extend(x)
            if j<=12: mid+=[wvm(','.join((['W%d'%(j+1)] if j+1>=8 else [])+([] if AW else ['A%d'%(j+1)])))] if (j+1>=8 or not AW) else []
            if j==JK: mid+=([wvm('ak')] if AW else [])+cond(chk1('L_d_ck',7,'s35',7,True))
            if j==13: mid+=[wvm('W19')]
            if j==15: mid+=[wvm('W21')]
            if j<=13 or j==15: mid+=gbr
            if j==JA: mid+=cond(tag(ask1('L_d_ak',7,'s35'),'ak'))
            if j==3: mid+=[I('s_xor_b32 s24, s75, 1'), I('s_mul_i32 s24, s24, %d'%(7*8192))]
            if 1<=j<=13:
                Gw=[tag(g,'W%d'%(j+7)) for g in dmaW(j+7)]; mid=mid+(swW if j==7 else [])+Gw[0]; late=Gw[1:]
            if j==10: add(0,[I('v_lshlrev_b32 v14, 2, v0'), I('s_mov_b32 s44, 0'), I('s_mov_b32 s45, 0'), I('s_mov_b32 s43, 3'), I('s_mov_b32 s36, 0')]+pol(-1))
            if j==11: pre+=swA
            if j==opt.get('xto',-1): add(1,[I('v_lshlrev_b32 v30, 7, v0'), I('s_lshl_b32 s26, s34, 13'), I('buffer_load_dword v13, v30, s[16:19], s26 offen')])
            if j==14:
                fx=[I('s_cmp_eq_u32 s43, 3'), I('s_cbranch_scc1 L_e_fx'), I('s_mov_b32 s10, s18')]
                for q in range(3): fx+=[I('s_cmp_gt_u32 s43, %d'%q), I('s_cbranch_scc1 L_e_fx%d'%q)]+dec(q,2)+flat(ldA((14+q)%4))+['L_e_fx%d:'%q]
                fx+=[I('v_add_u32 v%d, s36, v%d'%(vE(0),vB3))]+rd3p((vE(0),))+[I('s_waitcnt vmcnt(0) lgkmcnt(0)'), 'L_e_fx:']
                Gw=[tag(g,'W21') for g in dmaW(21)]
                pre+=[I('s_waitcnt lgkmcnt(0)')]+gbr+st(3)+cond(fx)+[I('s_mov_b32 s28, 0x%x'%f2u(-math.log2(math.e)))]+Gw[0]
                for q,g in enumerate(Gw[1:]): add(1+3*q,g)
            if 11<=j<=18: pre+=dec(j-11,0 if j<14 else 1)+(pol(j-11) if j<18 else [])
            if j and (AW or j>=14): pre+=[wvm('A%d'%j)]
            if j<=18:
                for q,g in enumerate(ldA((j+3)%4)): add(3*q+(2 if j==14 else 0),tag(g,'A%d'%(j+3)))
            if 13<=j<21: add(0,[I('v_add_u32 v%d, s%d, v%d'%(vE(k+1),36+(k+1)%4,vB3))])
            if j==19:
                add(0,srd(20,72,73,0,0x400000))
                for q in range(4): add(2+3*q,tag([I('buffer_load_dwordx4 %s, v%d, s[20:23], s%d offen offset:%d'%(vr(XR2+4*q,4),vX,32+q//2,64*(q&1)))],'xr'))
            ex=[]
            if ST0<=j<ST1: ex=SI[(len(SI)*(j-ST0))//(ST1-ST0):(len(SI)*(j+1-ST0))//(ST1-ST0)]
            if j==21: ex=[wvm('xr')]+XU
            g0=4 if j==14 else 0
            for q,x in enumerate(ex): add(g0+(q*(32-g0))//len(ex),[x])
            nxt=j+1 if j<13 else ((vE(k+1),) if j<21 else None)
            DT+=pre+tile3(j if j<14 else (vE(k),),j%4,(Y,Y+16) if j<14 else SS_,j in (0,14),nxt,mid,early,late)
        for nf in range(2):
            y=SS_[nf]
            for i in range(8): DT+=[I('v_pk_fma_f32 %s, %s, %s, %s'%(p(y+2*i),p(y+2*i),p(Y+16*nf+2*i),p(XR2+16*nf+2*i)))]
            for i in range(8): DT+=[I('v_cvt_pk_bf16_f32 v%d, v%d, v%d'%(y+i,y+2*i,y+2*i+1))]
            for h in range(2):
                DT+=[I('v_permlane16_swap_b32 v%d, v%d'%(y+4*h,y+4*h+2)), I('v_permlane16_swap_b32 v%d, v%d'%(y+4*h+1,y+4*h+3))]
            for h in range(2):
                DT+=[I('buffer_store_dwordx4 %s, v%d, s[52:55], s%d offen offset:%d %s'%(vr(y+4*h,4),vX,32+nf,64*h,opt.get('out_mod','')))]
    k0=len(D)-8
    D=resolve_vm(D[:k0]+auto_lgkm(D[k0:]+DT,pre=[]))
    ID=['L_g_idle:', I('s_lshr_b32 s34, s2, 5')]+S3+([I('s_waitcnt vmcnt(0)')]+gbr*(PG+2) if GZE else gbr*(PG+1)+resolve_vm(arrive('L_t_pi',1,[I('s_waitcnt vmcnt(0)')]))+gbr)
    IDB=opt.get('idb',8); ID+=gbr*(IDB-(PG+2))
    ID+=[I('v_lshlrev_b32 v12, 7, v0'), I('s_sub_u32 s26, s2, 224'), I('s_lshl_b32 s26, s26, 2'), I('s_add_u32 s26, s26, s42'), I('s_lshl_b32 s26, s26, 13')]
    ID+=srd(8,66,67,0,0x200000)+srd(20,68,69,0,0x380000)
    for k in range(2): ID+=[I('s_add_u32 s27, s26, %d'%(k*0x100000)), I('buffer_load_dword v13, v12, s[8:11], s27 offen')]
    for k in range(4): ID+=[I('s_add_u32 s27, s26, %d'%(k*0x100000)), I('buffer_load_dword v13, v12, s[20:23], s27 offen')]
    for t in range(8): ID+=gbr+flat(dmaW(t))
    ID+=bars(1+48+NZX+CW+1-8-IDB,'g_idl')+[I('s_branch L_gC')]
    fin=['L_fin:']
    if STAMP:
        fin+=[I('s_waitcnt vmcnt(0)')]+st(7)
    if opt.get('wgst'):
        fin+=[I('s_cmp_lg_u32 s25, %d'%opt.get('wgw',0)), I('s_cbranch_scc1 L_nowg')]+srd(48,4,5,ST_OFF+2*65536,65536)+[I('s_lshl_b32 s26, s2, 4'), I('v_mov_b32 v1, s26')]
        fin+=[I('v_mov_b32 v%d, s%d'%(4+i,76+2*k)) for i,k in enumerate(opt['wgst'])]+[I('s_nop 1'), I('buffer_store_dwordx4 v[4:7], v1, s[48:51], 0 offen'), 'L_nowg:']
    if opt.get('rt'): fin+=[I('s_cmp_lg_u32 s25, 4'), I('s_cbranch_scc1 L_end')]
    fin+=rt_end(opt,0,'k2',sreg=96)+['L_end:', I('s_endpgm')]
    if opt.get('trc'):
        def trace(L,v,k0=0,kmax=64):
            out=[]; k=k0
            for x in L:
                if x.strip()=='s_barrier' and k+1<kmax:
                    out+=[I('s_memrealtime s[90:91]'), I('s_waitcnt lgkmcnt(0)'), I('v_writelane_b32 v%d, s90, %d'%(v,k)), x, I('s_memrealtime s[90:91]'), I('s_waitcnt lgkmcnt(0)'), I('v_writelane_b32 v%d, s90, %d'%(v,k+1))]; k+=2
                elif x.startswith('; @TR'): out+=[I('s_memrealtime s[90:91]'), I('s_waitcnt lgkmcnt(0)'), I('v_writelane_b32 v%d, s90, %s'%(v,x[5:]))]
                else: out.append(x)
            return out,k
        CA=[]
        if opt['trc']==3:
            def tr1(first,loop1,T,v):
                X,k=trace(first,255,2,54)
                lp=[loop1[0], I('s_memrealtime s[90:91]'), I('s_lshl_b32 s26, s22, 1'), I('s_sub_u32 m0, %d, s26'%(k+12)), I('s_waitcnt lgkmcnt(0)'), I('v_writelane_b32 v255, s90, m0'), I('s_add_u32 m0, m0, 1'), I('s_nop 0'), I('v_writelane_b32 v255, s90, m0')]+loop1[1:]
                j=T.index('; @L2'); Y,_=trace(T[:j],255,k+12,54)
                return [X[0], I('s_memrealtime s[90:91]'), I('s_waitcnt lgkmcnt(0)'), I('v_writelane_b32 v255, s90, 0'), I('v_writelane_b32 v255, s90, 1')]+X[1:],lp,Y+[I('v_mov_b32 v%d, v255'%v)]+T[j:]
            stp=lambda l: [I('s_memrealtime s[90:91]'), I('s_waitcnt lgkmcnt(0)'), I('v_writelane_b32 v255, s90, %d'%l)]
            kb=[i for i,x in enumerate(B) if 's_waitcnt lgkmcnt(0)' in x][-1]; kc=[i for i,x in enumerate(B) if 's_mov_b32 s4, s46' in x][0]; ka=[i for i,x in enumerate(B) if 'v_lshrrev_b32 v1, 6, v0' in x][0]
            B=B[:ka]+[I('s_memrealtime s[78:79]')]+B[ka:kb]+[I('s_memrealtime s[76:77]')]+B[kb:kb+1]+[I('v_writelane_b32 v255, s78, 54'), I('v_writelane_b32 v255, s76, 55')]+stp(56)+B[kb+1:kc]+stp(57)+B[kc:]
            def tr2(first):
                k=[i for i,x in enumerate(first) if 's_waitcnt vmcnt(' in x][0]
                return first[:k]+stp(58)+first[k:k+1]+stp(59)+first[k+1:]
            PA_=[(tr2(first),loop1,T,tg) for first,loop1,T,tg in PA_]; gfirst=tr2(gfirst)
            PA_=[tr1(first,loop1,T,6)+(tg,) for first,loop1,T,tg in PA_]
            gfirst,gloop1,GW=tr1(gfirst,gloop1,GW,31)
            tr0=trace; trace=lambda L,v,k0=0,kmax=64: tr0(L,v,k0,0)
        for first,loop1,T,tg in PA_:
            k=T.index('; @L2'); X,_=trace(T[k:],6); CA+=first+loop1+T[:k]+[I('s_memrealtime s[90:91]'), I('s_waitcnt lgkmcnt(0)'), I('v_writelane_b32 v6, s90, 63')]+X
        A,k=trace(A,6,40,60); k0=aloop.index('L_att_loop:'); X,_=trace(aloop[:k0],6,k,60); aloop=X+aloop[k0:]
        k=GW.index('; @L2'); X,_=trace(GW[k:],31,0,60 if opt['trc']==1 else 0); GW=GW[:k]+[I('s_memrealtime s[90:91]'), I('s_waitcnt lgkmcnt(0)'), I('v_writelane_b32 v31, s90, 63')]+X
        if opt['trc']==1: ID,_=trace(ID,31,0,30)
        elif opt['trc']==2:
            Ep,k=trace(Ep,31,0,60); D,_=trace(D,31,k,60)
        fin=['L_fin:', I('s_and_b32 s26, s25, 3'), I('s_cmp_lg_u32 s26, %d'%opt.get('trw',0)), I('s_cbranch_scc1 L_notr')]+srd(48,4,5,ST_OFF+0x100000,256*512)+[I('s_lshl_b32 s26, s2, 1'), I('s_lshr_b32 s27, s25, 2'), I('s_add_u32 s26, s26, s27'),
             I('s_lshl_b32 s26, s26, 8'), I('v_lshlrev_b32 v1, 2, v0'), I('s_cmp_ge_u32 s25, 4'), I('s_cbranch_scc1 L_trg'), I('v_mov_b32 v31, v6'), 'L_trg:', I('buffer_store_dword v31, v1, s[48:51], s26 offen'), 'L_notr:']+fin[1:]
    code=B+CA+A+st(1)+aloop+st(2)+AT+FB+gfirst+gloop1+GW+Ep+D+fin+ID+['L_cw1:']
    code,_=fix_hazards(code)
    for tg,tr in trA:
        t,_=fix_hazards(B+tr+A+firstb+body+body+lastb+AT); check_waits(t,'a'+tg)
    tr,_=fix_hazards(FB); check_waits(tr,'k2fb')
    tr,_=fix_hazards(B+gfirst+gbody+gbody+GW+Ep+D); check_waits(tr,'k2g')
    code=[x.strip() if opt.get('compact',1) else x for x in code if not x.startswith(';')]
    return L+code, kernel_desc(name,256,256,102), '; @launch %sgrid=(256,1,1) block=(512,1,1) lds=163840'%('' if name.startswith('recurrent') else 'kernel=%s '%name)
if __name__=='__main__':
    from build import *
    opt=json.loads(sys.argv[2]) if len(sys.argv)>2 else {}
    assemble([gen(opt.get('name','recurrent_scan__softmax_full_mha__mixer_gmlp__prompt_kernel'),opt)], sys.argv[1])
```
